```python
import torch

def _softmax(x, axis=-1):
    return torch.softmax(x, dim=axis)

def _gelu(x):
    return torch.nn.functional.gelu(x, approximate='tanh')

def _silu(x):
    return torch.nn.functional.silu(x)

def _sigmoid(x):
    return torch.sigmoid(x)

def _layernorm(x, axis=-1, eps=1e-05):
    m = x.mean(dim=axis, keepdim=True)
    v = x.var(dim=axis, keepdim=True, unbiased=False)
    return (x - m) / torch.sqrt(v + eps)

def _scatter_add(tgt, idx, src, axis=0):
    return tgt.clone().index_add_(axis, idx, src)

def _segment_sum(src, seg, n):
    out = torch.zeros((n,) + src.shape[1:], dtype=src.dtype)
    return out.index_add_(0, seg, src)

def _pad(x, pw):
    flat = tuple((v for pair in reversed(pw) for v in pair))
    return torch.nn.functional.pad(x, flat)
kernel_name = 'standalone__factorization_afm__recsys'

def setup_inputs():

    _w = lambda a: (lambda t: t.to(torch.bfloat16) if t.is_floating_point() else t)(torch.as_tensor(a))
    B, F, D, V = (16384, 26, 32, min(1000, 100000))
    A = D
    ii, jj = tuple(torch.triu_indices(F, F, 1).unbind(0))
    return {'idx': _w((lambda lo, hi, *s: torch.randint(lo, hi, s))(0, V, B, F).to(torch.int64)), 'table': _w((lambda *s: torch.randn(*s, dtype=torch.bfloat16) * 0.4)(V, D)), 'ii': _w(ii.to(torch.int64)), 'jj': _w(jj.to(torch.int64)), 'W': _w((lambda *s: torch.randn(*s, dtype=torch.bfloat16) * 1.6)(D, A) * (1.0 / D ** 0.5)), 'b': _w((lambda *s: torch.randn(*s, dtype=torch.bfloat16) * 1.6)(A)), 'h': _w((lambda *s: torch.randn(*s, dtype=torch.bfloat16) * 1.6)(A)), 'p': _w((lambda *s: torch.randn(*s, dtype=torch.bfloat16) * 0.2)(D))}

def reference(idx, table, ii, jj, W, b, h, p):
    emb = table[idx]
    ei = emb[:, ii, :].clone()
    ej = emb[:, jj, :].clone()
    pair = ei * ej
    hid = pair @ W + b
    hid = 0.5 * (hid + torch.abs(hid))
    e = hid @ h
    alpha = _softmax(e, axis=-1)
    pooled = torch.einsum('bp,bpd->bd', alpha, pair)
    return pooled @ p
```

```python
HEADER = """; Kernarg layout for this problem (88 bytes, ptrs only, base s[0:1]):
"""
NAME = "standalone__factorization_afm__recsys"

def kd(name, vgpr, sgpr, accum=None, extra=""):
    if accum is None: accum = (vgpr+3)//4*4
    return f""".p2align 6
.amdhsa_kernel {name}
  .amdhsa_next_free_vgpr {vgpr}
  .amdhsa_next_free_sgpr {sgpr}
  .amdhsa_accum_offset {accum}
  .amdhsa_group_segment_fixed_size 0
  .amdhsa_kernarg_size 88
  .amdhsa_user_sgpr_count 2
  .amdhsa_user_sgpr_kernarg_segment_ptr 1
  .amdhsa_system_sgpr_workgroup_id_x 1
{extra}.end_amdhsa_kernel
"""
```

```python
from common import *
import sys
L=[]
def e(s): L.append("    "+s)
K=NAME+"_kernel"
F=26
e("s_cmp_ge_u32 s2, 256")
e("s_cbranch_scc1 L_end")
e("s_load_dwordx4 s[32:35], s[0:1], 0")
e("s_load_dwordx8 s[36:43], s[0:1], 32")
e("s_load_dwordx2 s[44:45], s[0:1], 64")
e("v_and_b32 v1, 15, v0")
e("v_bfe_u32 v2, v0, 4, 2")
e("v_lshrrev_b32 v3, 6, v0")
e("s_lshl_b32 s3, s2, 6")
e("v_lshlrev_b32 v3, 4, v3")
e("v_add3_u32 v4, v1, v3, s3")
e("s_waitcnt lgkmcnt(0)")
def srd(d, s, n):
    e(f"s_mov_b32 s{d}, s{s}"); e(f"s_mov_b32 s{d+1}, s{s+1}"); e(f"s_mov_b32 s{d+2}, {n}"); e(f"s_mov_b32 s{d+3}, 0x00020000")
srd(4,32,16384*104); srd(8,34,64000); srd(12,36,2048); srd(16,38,64); srd(20,40,64); srd(24,42,64); srd(28,44,32768)
e("s_movk_i32 s46, 104")
e("v_mul_lo_u32 v5, v4, s46")
IDX=240-26-2
for c in range(6): e(f"buffer_load_dwordx4 v[{6+4*c}:{9+4*c}], v5, s[4:7], 0 offen offset:{16*c}")
e(f"buffer_load_dwordx2 v[30:31], v5, s[4:7], 0 offen offset:96")
e("v_lshlrev_b32 v252, 9, v2")
e("v_lshl_add_u32 v252, v1, 1, v252")
for half in range(2):
    for t in range(8):
        e(f"buffer_load_ushort v{32+8*half+t}, v252, s[12:15], 0 offen offset:{t*64+half*32}")
e("s_waitcnt vmcnt(0)")
for half in range(2):
    for t in range(4):
        e(f"v_lshl_or_b32 v{240+4*half+t}, v{32+8*half+2*t+1}, 16, v{32+8*half+2*t}")
e("s_waitcnt vmcnt(16)")
e("v_lshlrev_b32 v253, 4, v2")
for f in range(F):
    e(f"v_lshl_add_u32 v{6+f}, v{6+f}, 6, v253")
for f in range(F):
    b=32+8*f
    e(f"buffer_load_dwordx4 v[{b+4}:{b+7}], v{6+f}, s[8:11], 0 offen")
e("s_waitcnt vmcnt(0)")
for f in range(F):
    b=32+8*f
    for t in range(4):
        e(f"v_lshlrev_b32 v{b+2*t}, 16, v{b+4+t}") if 2*t < 4+t else None
        if 2*t < 4+t:
            e(f"v_and_b32 v{b+2*t+1}, 0xffff0000, v{b+4+t}")
e("v_lshlrev_b32 v6, 3, v2")
e("buffer_load_dwordx2 v[24:25], v6, s[16:19], 0 offen")
e("buffer_load_dwordx2 v[26:27], v6, s[16:19], 0 offen offset:32")
e("buffer_load_dwordx2 v[16:17], v6, s[20:23], 0 offen")
e("buffer_load_dwordx2 v[18:19], v6, s[20:23], 0 offen offset:32")
e("buffer_load_dwordx4 v[20:23], v253, s[24:27], 0 offen")
e("s_waitcnt vmcnt(0)")
for i in range(4):
    e(f"v_lshlrev_b32 v{8+2*i}, 16, v{24+i}")
    e(f"v_and_b32 v{9+2*i}, 0xffff0000, v{24+i}")
e("v_mov_b32 v6, 0xff800000")
e("v_mov_b32 v7, 0")
e("v_mov_b32 v5, 0")
e("s_mov_b32 s47, 0x3fb8aa3b")
for i in range(F):
    for j in range(i+1,F):
        bi=32+8*i; bj=32+8*j
        for t in range(4):
            e(f"v_pk_mul_f32 v[{24+2*t}:{25+2*t}], v[{bi+2*t}:{bi+2*t+1}], v[{bj+2*t}:{bj+2*t+1}]")
        for t in range(4):
            e(f"v_cvt_pk_bf16_f32 v{248+t}, v{24+2*t}, v{25+2*t}")
        e("s_nop 1")
        e("v_mfma_f32_16x16x32_bf16 v[24:27], v[240:243], v[248:251], v[8:11]")
        e("v_mfma_f32_16x16x32_bf16 v[28:31], v[244:247], v[248:251], v[12:15]")
        e("v_mfma_f32_16x16x32_bf16 v[0:3], v[20:23], v[248:251], 0")
        e("s_nop 7")
        for t in range(4):
            e(f"v_cvt_pk_bf16_f32 v{252+t}, v{24+2*t}, v{25+2*t}")
        for t in range(4):
            e(f"v_pk_max_i16 v{252+t}, v{252+t}, 0")
        e("s_nop 1")
        e("v_mfma_f32_16x16x32_bf16 v[24:27], v[16:19], v[252:255], 0")
        e("s_nop 7")
        e("v_mul_f32 v24, s47, v24")
        e("v_max_f32 v25, v6, v24")
        e("v_sub_f32 v26, v6, v25")
        e("v_sub_f32 v27, v24, v25")
        e("v_exp_f32 v26, v26")
        e("v_exp_f32 v27, v27")
        e("v_mov_b32 v6, v25")
        e("v_fma_f32 v7, v7, v26, v27")
        e("v_mul_f32 v5, v5, v26")
        e("v_fma_f32 v5, v27, v0, v5")
e("v_rcp_f32 v7, v7")
e("s_nop 1")
e("v_mul_f32 v5, v5, v7")
e("v_cvt_pk_bf16_f32 v5, v5, v5")
e("v_lshlrev_b32 v4, 1, v4")
e("v_mbcnt_lo_u32_b32 v8, -1, 0")
e("v_mbcnt_hi_u32_b32 v8, -1, v8")
e("v_cmp_gt_u32 vcc, 16, v8")
e("s_and_saveexec_b64 s[48:49], vcc")
e("buffer_store_short v5, v4, s[28:31], 0 offen")
e("s_waitcnt vmcnt(0)")
src = HEADER + "; @launch grid=(256,1,1) block=(256,1,1) lds=0\n" + f""".amdgcn_target "amdgcn-amd-amdhsa--gfx950"
.text
.globl {K}
.p2align 8
.type {K},@function
{K}:
""" + "\n".join(L) + """
L_end:
    s_endpgm
.section .rodata,"a"
""" + kd(K,256,56)
open(sys.argv[1],"w").write(src)
```

```python
import re
def regs(tok):
    tok=tok.strip().strip('|').lstrip('-').strip('|')
    if tok.startswith('abs('): tok=tok[4:-1]
    m=re.fullmatch(r'([vas])(\d+)',tok)
    if m: return [(m.group(1),int(m.group(2)))]
    m=re.fullmatch(r'([vas])\[(\d+):(\d+)\]',tok)
    if m: return [(m.group(1),i) for i in range(int(m.group(2)),int(m.group(3))+1)]
    if tok=='vcc': return [('s','vcc')]
    if tok=='exec': return [('s','exec')]
    if tok=='m0': return [('s','m0')]
    return []
TRANS=('v_exp_','v_log_','v_rcp_','v_rsq_','v_sqrt_','v_sin_','v_cos_')
def parse(line):
    line=line.split(';')[0].strip()
    if not line or line.endswith(':') or line.startswith('.'): return None
    p=line.split(None,1); op=p[0]; rest=p[1] if len(p)>1 else ''
    ops=[o.strip() for o in re.split(r',(?![^\[]*\])',rest)] if rest else []
    if ops:
        last=ops[-1].split(); ops[-1]=last[0]; mods=' '.join(last[1:])
    else: mods=''
    I=dict(op=op,ops=ops,mods=mods,line=line)
    isv=op.startswith('v_'); I['valu']=isv and not op.startswith(('v_mfma','v_smfmac'))
    I['mfma']=op.startswith(('v_mfma','v_smfmac'))
    I['vmem']=op.startswith(('buffer_','global_'))
    I['ds']=op.startswith('ds_')
    W=[];R=[]
    if I['mfma']:
        W=regs(ops[0]); I['A']=regs(ops[1]); I['B']=regs(ops[2]);
        if op.startswith('v_smfmac'): I['C']=W; R=I['A']+I['B']+regs(ops[3])+W; I['A']=I['A']+regs(ops[3])
        else: I['C']=regs(ops[3]); R=I['A']+I['B']+I['C']
        I['passes']=8 if '32x32' in op else (2 if '4x4' in op else 4)
    elif I['valu']:
        if op.startswith(('v_cmpx',)): W=regs(ops[0])+[('s','exec')]; R=sum((regs(o) for o in ops[1:]),[])
        elif op.startswith('v_permlane') and 'swap' in op: W=regs(ops[0])+regs(ops[1]); R=list(W)
        else:
            W=regs(ops[0]); R=sum((regs(o) for o in ops[1:]),[])
            if op.startswith(('v_add_co','v_sub_co','v_addc_co')): W+=regs(ops[1])
            if op.startswith(('v_fmac','v_dot2c','v_writelane')) or 'UNUSED_PRESERVE' in mods or '_dpp' in op or 'quad_perm' in mods or 'row_' in mods: R+=regs(ops[0])
            if op.startswith('v_cndmask') and len(ops)==3: R.append(('s','vcc'))
    elif I['vmem']:
        if 'store' in op or ('atomic' in op and 'sc0' not in mods):
            R=sum((regs(o) for o in ops),[]); I['store']=True
            I['sdata']=regs(ops[0]) if op.startswith('buffer_') else regs(ops[1])
        elif ' lds' in (' '+mods) or 'load_lds' in op: R=sum((regs(o) for o in ops),[])+[('s','m0')]
        else: W=regs(ops[0]); R=sum((regs(o) for o in ops[1:]),[])
    elif I['ds']:
        if op.startswith(('ds_write','ds_add_u32','ds_add_f32','ds_or_b32')): R=sum((regs(o) for o in ops),[])
        else: W=regs(ops[0]); R=sum((regs(o) for o in ops[1:]),[])
    elif op.startswith('s_'):
        if op.startswith(('s_cmp','s_cbranch','s_branch','s_waitcnt','s_nop','s_barrier','s_endpgm','s_sleep','s_setprio')): R=sum((regs(o) for o in ops),[])
        else:
            W=regs(ops[0]) if ops else []; R=sum((regs(o) for o in ops[1:]),[])
            if 'saveexec' in op: W+= [('s','exec')]
    I['W']=set(W); I['R']=set(R)
    I['dpp']=I['valu'] and ('quad_perm' in mods or 'row_' in mods or 'wave_' in mods)
    I['states']= (int(ops[0],0)+1) if op=='s_nop' else 1
    return I
def check(lines, verbose=True):
    ins=[x for x in (parse(l) for l in lines) if x]
    errs=[]
    for i,c in enumerate(ins):
        dist=0
        for k in range(i-1,max(-1,i-24),-1):
            p=ins[k]
            need=0; why=''
            vW={r for r in p['W'] if r[0] in 'va'}; sW={r for r in p['W'] if r[0]=='s'}
            if p['valu']:
                if c['mfma'] and vW&c['R']: need=2; why='valu->mfma'
                if c['dpp'] and vW&c['R']: need=max(need,2); why='valu->dpp'
                if c['op'].startswith('v_permlane') and vW&c['R']: need=max(need,2); why='valu->permlane'
                if c['op'].startswith(('v_readfirstlane','v_readlane')) and vW&c['R']: need=max(need,1); why='valu->readlane'
                if p['op'].startswith(TRANS) and c['valu'] and not c['op'].startswith(TRANS) and vW&c['R']: need=max(need,1); why='trans->valu'
                if p['op'].startswith(TRANS) and (c['mfma']) and vW&c['R']: need=max(need,2)
                if c['vmem'] and sW&c['R']: need=max(need,5); why='valu sgpr->vmem'
                if c['valu'] and (sW-{('s','exec')})&c['R']: need=max(need,2); why='valu sgpr->valu'
                if c['op'].startswith(('v_readlane','v_writelane')) and sW&c['R']: need=max(need,4)
                if ('s','exec') in sW and (c['dpp']): need=max(need,5); why='valu exec->dpp'
                if ('s','exec') in sW and c['mfma']: need=max(need,4)
                if ('sdwa' in p['op'] and 'dst_sel:WORD' in p['mods'] or 'op_sel:' in p['mods']) and c['valu'] and vW&(c['R']|c['W']): need=max(need,1); why='sdwa/opsel->valu'
            if p['mfma']:
                P=p['passes']; full={2:5,4:8,8:12,16:20}[P]
                if c['mfma']:
                    if vW&(set(c['A'])|set(c['B'])): need=max(need,full); why='mfma D->A/B'
                    if vW&set(c['C']):
                        if vW==set(c['C']) and c['passes']==P: need=max(need,2 if P==2 else 0)
                        else: need=max(need,{2:4,4:6,8:10,16:18}[P]); why='mfma D->C overlap'
                elif (c['valu'] or c['vmem'] or c['ds']) and vW&(c['R']|c['W']): need=max(need,full); why='mfma D->valu/mem'
                if c['valu'] and set(p['C'])&c['W']: need=max(need,{2:1,4:3,8:7,16:15}[P]); why=why or 'mfma C WAR'
            if p.get('store') and len(p['sdata'])>=3 and c['valu'] and set(p['sdata'])&c['W']: need=max(need,2); why='store data WAR'
            if p['op'].startswith('s_') and ('s','m0') in p['W'] and ('s','m0') in c['R'] and (c['vmem'] or c['ds']): need=max(need,1); why='m0'
            if need>dist: errs.append((why,need,dist,p['line'],c['line']))
            dist+=p['states']
            if dist>=20: break
    if verbose:
        for e in errs: print("HAZARD %s need %d have %d:\n    %s\n    %s"%e)
    return errs
```

```python
import sys
from common import *
import hazard

OPT = set(sys.argv[2].split(',')) if len(sys.argv) > 2 else set()
def opt(name, d):
    for o in OPT:
        if o.startswith(name + '='): return int(o.split('=')[1])
    return d
STAMP = 'stamp' in OPT
NGLO = opt('nglo', 3)
CLK = 's_memtime' if 'cyc' in OPT else 's_memrealtime'
DL1, DL2, SL1, SL2 = opt('dl1', 0), opt('dl2', 0), opt('sl1', 0), opt('sl2', 0)
PRE = 'nopre' not in OPT

EPOCH, L0, ROW0, R0, R1 = 0x0, 0x10000, 0x400000, 0x800000, 0xC00000
STAMP0 = 0x1000000
FLG = 0x1000
TAB, CNT, BH, GP, AIMG, LIMG, WL = 0, 0x4100, 0x4500, 0x4600, 0x5000, 0x8000, 0xC000
RS = LIMG
NANW = 0x4080
ROWPF = 'rowpf' in OPT
SYNC = CNT + 1004
LIMIT = 0x4000
RLV = 0x400000
LDS_BYTES = 0x10000
S_IDX, S_TABL, S_W, S_LIST, S_ROW, S_RES, S_OUT = 4, 8, 12, 16, 20, 24, 28
sG = 32
P_IDX, P_TAB, P_W, P_B, P_H, P_P, P_OUT, P_WS = 36, 38, 40, 42, 44, 46, 48, 50
sJ, sRARE, sTAG, sT2, sT0, sT1, sNT, sBAD, sU, sCNT = 52, 53, 54, 55, 56, 57, 58, 59, 60, 61
sEX = 62
sH = 64
sST = 80
NST = 11
LOG2E_HALF = 0x3f38aa3b
vL = 1
SC = " sc1"
KN = NAME + "_kernel"

class K:
    def __init__(s): s.L = []; s.tail = []; s.cur = s.L
    def e(s, x):
        for ln in x.split('\n'):
            ln = ln.strip()
            if ln: s.cur.append(ln if ln.endswith(':') else '    ' + ln)
    def stamp(s, i):
        if STAMP: s.e(f"{CLK} s[{sST+2*i}:{sST+2*i+1}]")
    def srd(s, d, p, n, off=0):
        if off: s.e(f"s_add_u32 s{d}, s{p}, {off:#x}\ns_addc_u32 s{d+1}, s{p+1}, 0")
        else: s.e(f"s_mov_b64 s[{d}:{d+1}], s[{p}:{p+1}]")
        s.e(f"s_mov_b32 s{d+2}, {n:#x}\ns_mov_b32 s{d+3}, 0x00020000")
k = K(); e = k.e
def vr(a, n): return f"v[{a}:{a+n-1}]"
def sr(a): return f"s[{a}:{a+3}]"
class rare:
    def __enter__(s): s.old = k.cur; k.cur = k.tail
    def __exit__(s, *a): k.cur = s.old

LOC = 8
G = 16; RM = 136; AS = 166; AC = 182; BQ = 230
cA, cOFF, cBIT, cWR, cWL, cMSK = 246, 247, 248, 249, 250, 251
cR = 252
NIN = 10

def prologue():
    e("s_cmp_ge_u32 s2, 256\ns_cbranch_scc1 L_end")
    k.stamp(0)
    e(f"s_load_dwordx4 s[{P_IDX}:{P_IDX+3}], s[0:1], 0")
    e(f"s_load_dwordx2 s[{P_WS}:{P_WS+1}], s[0:1], 80")
    e(f"s_load_dwordx8 s[{P_W}:{P_W+7}], s[0:1], 32")
    e(f"s_load_dwordx2 s[{P_OUT}:{P_OUT+1}], s[0:1], 64")
    e(f"v_lshrrev_b32 v2, 6, v0\nv_and_b32 v{vL}, 63, v0")
    e(f"v_readfirstlane_b32 s{sJ}, v2")
    e("v_mov_b32 v240, -1\nv_mov_b32 v241, -1\nv_mov_b32 v242, -1\nv_mov_b32 v243, -1")
    e(f"v_lshlrev_b32 v3, 4, v0\nds_write_b128 v3, v[240:243] offset:{LIMG}\nds_write_b128 v3, v[240:243] offset:{LIMG+8192}")
    e(f"s_and_b32 s{sU}, s{sJ}, 3\ns_cmp_ge_u32 s{sJ}, 4\ns_cbranch_scc1 L_hi")

def sync_add(i):
    e(f"v_mov_b32 v5, {SYNC+4*i}\nv_mov_b32 v6, 1\ns_mov_b64 exec, 1\nds_add_u32 v5, v6\ns_mov_b64 exec, -1")
def sync_wait(i, n, nm, sleep=0):
    e(f"v_mov_b32 v5, {SYNC+4*i}\nL_sync_{nm}:")
    if sleep: e(f"s_sleep {sleep}")
    e(f"ds_read_b32 v6, v5\ns_waitcnt lgkmcnt(0)\nv_cmp_gt_u32 vcc, {n}, v6\ns_cbranch_vccnz L_sync_{nm}")

def make_loc(KK, C4):
    e(f"v_mov_b32 v6, {NANW}\nv_mov_b32 v7, {RS}\nv_mov_b32 v4, -1\nds_write_b32 v6, v4")
    for t in range(8):
        if t == 2: e("s_mov_b32 exec_lo, 0x77777777\ns_mov_b32 exec_hi, 0x77777777")
        e(f"v_and_b32 v4, 30, v{KK+t}\nv_lshlrev_b32 v5, 3, v{C4+t}\nv_add_lshl_u32 v4, v4, v5, 1\nv_cmp_le_u32 vcc, 48, v{KK+t}")
        e(f"v_lshrrev_b32 v5, 5, v{KK+t}\nv_lshlrev_b32 v5, 14, v5\nv_add3_u32 v4, v4, v5, v7\nv_cndmask_b32 v{LOC+t}, v4, v6, vcc")
    e("s_mov_b64 exec, -1")

def lookup_consts(g0):
    e(f"v_and_b32 v4, 15, v{vL}\nv_bfe_u32 v5, v{vL}, 4, 1\nv_lshrrev_b32 v{cBIT}, 5, v{vL}")
    e(f"s_lshl_b32 s{sCNT}, s{sU}, 12")
    e(f"v_lshlrev_b32 v{cWL}, 6, v4\nv_lshl_add_u32 v{cWL}, v5, 1, v{cWL}\nv_add_u32 v{cWL}, s{sCNT}, v{cWL}")
    e(f"v_add_u32 v{cA}, -1, v{cBIT}\nv_and_b32 v{cA}, 0xffff0000, v{cA}")
    e(f"v_mul_u32_u24 v{cOFF}, 12, v{cBIT}\nv_lshl_add_u32 v{cOFF}, v4, 12, v{cOFF}")
    e(f"v_mul_i32_i24 v{cWR}, -52, v{cBIT}\nv_mov_b32 v{cMSK}, 0x7ffffffe")
    e(f"v_and_b32 v6, 1, v4\nv_lshlrev_b32 v6, 4, v6\nv_lshrrev_b32 v6, v6, 1.0")
    e(f"v_bfe_u32 v7, v4, 1, 1\nv_xor_b32 v7, v7, v5\nv_add_u32 v7, -1, v7\nv_and_b32 v6, v6, v7\nv_lshrrev_b32 v7, 2, v4")
    e(f"s_lshl_b32 s{sG}, s{sU}, 18")
    if g0: e(f"s_add_u32 s{sG}, s{sG}, {g0*0x10000:#x}")
    for g in range(1, 3): e(f"s_add_u32 s{sG+g}, s{sG}, {g*0x10000:#x}")
    for q in range(4):
        e(f"v_xor_b32 v4, {q}, v7\nv_add_u32 v4, -1, v4\nv_ashrrev_i32 v4, 31, v4\nv_and_b32 v{AS+4*q}, v4, v6")
        for i in range(1, 4): e(f"v_mov_b32 v{AS+4*q+i}, v{AS+4*q}")
    e(f"v_mov_b32 v{BQ+7}, 0\nv_mov_b32 v{BQ+15}, 0")

def res_tags(lane_expr):
    e(f"s_and_b32 s{sT0}, s{sTAG}, 255\ns_xor_b32 s{sT1}, s{sTAG}, 1\ns_and_b32 s{sT1}, s{sT1}, 3\ns_lshl_b32 s{sT1}, s{sT1}, 8\ns_or_b32 s{sT0}, s{sT0}, s{sT1}")
    e(f"s_lshr_b32 s{sT1}, s{sTAG}, 8\ns_lshl_b32 s{sT1}, s{sT1}, 10\ns_or_b32 s{sT0}, s{sT0}, s{sT1}")
    e(lane_expr)
    e(f"v_lshlrev_b32 v4, 3, v4\nv_lshrrev_b32 v4, v4, s{sT0}")
    for j in range(4): e(f"v_bfe_u32 v5, v4, {2*j}, 2\nv_alignbit_b32 v{cR+j}, v5, v5, 1")

def route():
    V = 16; KK = 24; C4 = 32; RW = 40; EB = 44; T = 52
    TP = 64; TU = 72; WR = 88; WV = 104; MU = 120; PP = 128
    e("s_setprio 2")
    e(f"v_mov_b32 v4, 0\nv_lshlrev_b32 v5, 2, v0\nds_write_b32 v5, v4 offset:{CNT}\nv_and_b32 v5, 12, v5\nds_write_b32 v5, v4")
    e(f"v_lshrrev_b32 v{T}, 2, v0\nv_and_b32 v{T+1}, 3, v0\nv_lshlrev_b32 v{T+1}, 2, v{T+1}")
    e(f"v_mul_u32_u24 v{T+2}, 104, v{T}\ns_mul_i32 s{sT1}, s2, 6656")
    for t in range(4):
        e(f"v_add_u32 v{EB+2*t}, {t}, v{T+1}\nv_add_u32 v{T+3}, {t-13}, v{T+1}\nv_min_u32 v{EB+2*t}, v{EB+2*t}, v{T+3}")
        e(f"v_lshl_add_u32 v{T+4+t}, v{EB+2*t}, 3, v{T+2}")
    e("s_waitcnt lgkmcnt(0)")
    k.srd(S_IDX, P_IDX, 16384 * 104)
    for t in range(4): e(f"buffer_load_dwordx2 {vr(V+2*t,2)}, v{T+4+t}, {sr(S_IDX)}, s{sT1} offen")
    e(f"s_load_dword s{sTAG}, s[{P_WS}:{P_WS+1}], {EPOCH:#x}")
    e(f"s_load_dwordx16 s[{sH}:{sH+15}], s[{P_H}:{P_H+1}], 0")
    e("s_barrier")
    k.srd(S_TABL, P_TAB, 64000)
    k.srd(S_W, P_W, 2048)
    e(f"v_lshrrev_b32 v253, 5, v{vL}\nv_and_b32 v254, 7, v{vL}")
    e(f"v_bfe_u32 v5, v{vL}, 3, 2\nv_lshlrev_b32 v5, 6, v5\nv_lshl_add_u32 v5, v253, 5, v5")
    e(f"v_and_b32 v6, 31, v{vL}\nv_lshlrev_b32 v7, 6, v6\nv_lshlrev_b32 v6, 1, v6\ns_lshl_b32 s{sT1}, s2, 8")
    e(f"buffer_load_dwordx4 {vr(TP,4)}, v5, {sr(S_TABL)}, s{sT1} offen")
    e(f"buffer_load_dwordx4 {vr(TP+4,4)}, v5, {sr(S_TABL)}, s{sT1} offen offset:16")
    for t in range(4): e(f"buffer_load_dwordx4 {vr(WR+4*t,4)}, v7, {sr(S_W)}, 0 offen offset:{16*t}")
    e(f"global_load_short_d16_hi v{PP}, v6, s[{P_P}:{P_P+1}]")
    k.srd(S_ROW, P_WS, 0x100000, ROW0)
    k.srd(S_LIST, P_WS, 250 * 16384, L0)
    k.srd(S_RES, P_WS, 0x800000, R0)
    k.srd(S_OUT, P_OUT, 32768)
    e(f"v_lshlrev_b32 v{T+3}, 8, v{T}")
    for t in range(4):
        e(f"v_add_u32 v4, 6, v{EB+2*t}\nv_lshl_or_b32 v{EB+2*t+1}, v{EB+2*t}, 4, v{T+3}")
        e(f"v_lshrrev_b32 v4, 4, v4\nv_lshl_or_b32 v{EB+2*t+1}, v4, 1, v{EB+2*t+1}\nv_or_b32 v{EB+2*t}, 1, v{EB+2*t+1}")
    for t in range(8): e(f"v_mov_b32 v{LOC+t}, 0\nv_mov_b32 v{KK+t}, 0")
    lookup_consts(0)
    e(f"v_mov_b32 v2, 2\nv_mov_b32 v7, 0x100010\ns_lshl_b32 s{sT0}, s2, 12")
    e(f"v_and_b32 v4, 3, v0\nv_lshlrev_b32 v{T+4}, 14, v{T}\nv_lshl_add_u32 v{T+4}, v4, 4, v{T+4}")
    e(f"v_add_u32 v{T+5}, 1, v4\nv_lshrrev_b32 v{T+5}, 2, v{T+5}\nv_sub_u32 v{T+5}, 0, v{T+5}")
    e("s_waitcnt vmcnt(7)")
    k.stamp(1)
    for t in range(4): e(f"v_lshl_or_b32 v{RW+t}, v{V+2*t+1}, 16, v{V+2*t}\nv_lshl_add_u32 v{RW+t}, v{RW+t}, 4, v7")
    e(f"buffer_store_dwordx4 {vr(RW,4)}, v3, {sr(S_ROW)}, s{sT0} offen{SC}")
    for t in range(8):
        if t == 2: e("s_mov_b32 exec_lo, 0x77777777\ns_mov_b32 exec_hi, 0x77777777")
        e(f"v_and_b32 v{C4+t}, -4, v{V+t}\nds_add_rtn_u32 v{KK+t}, v{C4+t}, v2 offset:{CNT}")
    e("s_mov_b64 exec, -1")
    for t in range(8): e(f"v_lshlrev_b32 v{V+t}, 2, v{V+t}\nv_and_or_b32 v{V+t}, v{V+t}, 12, v{EB+t}")
    e("s_waitcnt lgkmcnt(0)")
    for t in range(8):
        if t == 2: e("s_mov_b32 exec_lo, 0x77777777\ns_mov_b32 exec_hi, 0x77777777")
        e(f"v_min_u32 v4, 60, v{KK+t}\nv_lshl_add_u32 v4, v{C4+t}, 4, v4\nds_write_b16 v4, v{V+t} offset:{LIMG}")
    e("s_mov_b64 exec, -1")
    e(f"s_add_u32 s{sTAG}, s{sTAG}, 1\ns_lshl_b32 s{sT0}, s2, 6\nv_mov_b32 v7, s{sTAG}")
    k.stamp(2)
    e("s_waitcnt vmcnt(0) lgkmcnt(0)")
    sync_add(0)
    sync_wait(0, 4, 'lo')
    k.stamp(3)
    P = 136
    for h in range(4): e(f"ds_read_b128 {vr(P+4*h,4)}, v3 offset:{LIMG+4096*h}")
    for h in range(4):
        e(f"s_waitcnt lgkmcnt({3-h})\nv_bfi_b32 v{P+4*h+3}, v{T+5}, v7, v{P+4*h+3}")
        e(f"buffer_store_dwordx4 {vr(P+4*h,4)}, v{T+4}, {sr(S_LIST)}, s{sT0} offen{SC}")
        if h < 3: e(f"s_add_u32 s{sT0}, s{sT0}, 0x100000")
    k.stamp(4)
    e(f"v_max3_u32 v7, v{KK}, v{KK+1}, v{KK+2}\nv_max3_u32 v7, v7, v{KK+3}, v{KK+4}\nv_max3_u32 v7, v7, v{KK+5}, v{KK+6}\nv_max_u32 v7, v7, v{KK+7}")
    e(f"v_cmp_le_u32 vcc, 32, v7\ns_cbranch_vccnz L_mark\nL_mark_ret:")
    with rare():
        e("L_mark:"); sync_add(4); e("s_branch L_mark_ret")
    e(f"s_cmp_ge_u32 s{sU}, 2\ns_cbranch_scc1 L_no_a5")
    e("v_mov_b32 v6, 0")
    for t in range(16): e(f"v_dot2_f32_bf16 v6, v{WR+t}, s{sH+t}, v6")
    e(f"v_cmp_gt_u32 vcc, 32, v{vL}\ns_mul_i32 s{sT0}, s{sU}, 384\nv_lshlrev_b32 v7, 2, v{vL}\nv_add_u32 v7, s{sT0}, v7")
    e(f"v_mul_f32 v6, {LOG2E_HALF:#x}, v6\nv_cndmask_b32 v6, v{PP}, v6, vcc\nds_write_b32 v7, v6 offset:{GP}")
    e(f"v_mov_b32 v6, 0\nv_and_b32 v7, 31, v{vL}\nv_lshlrev_b32 v7, 2, v7\nv_add_u32 v7, s{sT0}, v7\nds_write_b32 v7, v6 offset:{GP+256}")
    e(f"s_lshl_b32 s{sT1}, s{sU}, 2\nv_subrev_u32 v7, s{sT1}, v254\nv_min_u32 v7, 2, v7\nv_lshlrev_b32 v7, 7, v7\nv_lshl_add_u32 v7, v253, 6, v7\nv_add_u32 v7, s{sT0}, v7")
    e("s_waitcnt lgkmcnt(0)")
    for t in range(4): e(f"ds_read_b128 {vr(WV+4*t,4)}, v7 offset:{GP+16*t}")
    for t in range(8): e(f"v_lshlrev_b32 v{TU+2*t}, 16, v{TP+t}\nv_and_b32 v{TU+2*t+1}, 0xffff0000, v{TP+t}")
    e(f"s_lshl_b32 s{sT0}, s{sU}, 11\nv_lshlrev_b32 v4, 4, v{vL}\nv_add_u32 v4, s{sT0}, v4")
    e("s_waitcnt lgkmcnt(0)")
    for t in range(16): e(f"v_mul_f32 v{WV+t}, v{WV+t}, v{TU+t}")
    for t in range(8): e(f"v_cvt_pk_bf16_f32 v{MU+t}, v{WV+2*t}, v{WV+2*t+1}")
    e(f"ds_write_b128 v4, {vr(MU,4)} offset:{AIMG+8192}\nds_write_b128 v4, {vr(MU+4,4)} offset:{AIMG+8192+1024}")
    e("s_waitcnt lgkmcnt(0)")
    sync_add(2)
    e("L_no_a5:")
    make_loc(KK, C4)

def ent_off(tau, grp): return WL + grp * 1024 + tau * 4

def tiles(nm, g0, ng, barrier_before_process):
    def gs(tau, i): return G + 4 * (ng * tau + i)
    def rm(tau, i): return RM + ng * tau + i
    def decode(tau, i):
        r = rm(tau, i)
        e(f"v_lshrrev_b32 v4, 2, v{r}\nv_bfe_i32 v5, v{r}, v{cBIT}, 1\nv_and_b32 v4, -4, v4\nv_and_b32 v2, v5, v{cWR}")
        e(f"v_add3_u32 v4, v4, v{cOFF}, v2\nv_and_b32 v5, v5, v{cA}")
        e(f"buffer_load_dwordx4 {vr(gs(tau,i),4)}, v4, {sr(S_ROW)}, s{sG+i} offen{SC}")
        e(f"v_and_or_b32 v{r}, v{r}, 12, v5")
    def addrs(tau, i, buf):
        g = gs(tau, i); r = rm(tau, i)
        e(f"v_and_b32 v{g}, v{g}, v{r}")
        seq = [(2, 1, 0), (g + 1, 1, 1), (3, 2, 0), (g + 2, 2, 1), (4, 3, 0), (g + 3, 3, 1), (g, 0, 1)]
        for t, (d, dw, hi) in enumerate(seq):
            e(f"v_add_u32_sdwa v{d}, v{r}, v{g+dw} dst_sel:DWORD dst_unused:UNUSED_PAD src0_sel:WORD_0 src1_sel:WORD_{hi}")
            e(f"ds_read_b32 v{BQ+8*buf+t}, v{d}")
    def mf(tau, i, buf):
        a = AC + 24 * (tau // 8) + 8 * i + 4 * (tau & 1); q = (tau >> 1) & 3
        e(f"v_mfma_f32_16x16x32_bf16 {vr(a,4)}, {vr(AS+4*q,4)}, {vr(BQ+8*buf,4)}, {vr(a,4)}")
        e(f"v_mfma_f32_16x16x32_bf16 {vr(a,4)}, {vr(AS+4*q,4)}, {vr(BQ+8*buf+4,4)}, {vr(a,4)}")
    def results(sec):
        sh = 14
        e(f"v_and_b32 v4, 15, v{vL}\nv_lshlrev_b32 v4, {sh}, v4\nv_lshrrev_b32 v5, 4, v{vL}\nv_lshl_add_u32 v4, v5, 4, v4")
        e(f"s_lshl_b32 s{sT0}, s{sU}, {sh+6}\ns_lshl_b32 s{sT1}, s2, {sh-8}\ns_add_u32 s{sT0}, s{sT0}, s{sT1}")
        add = (g0 << (sh + 4)) + ((R1 - R0) if sec else 0)
        if add: e(f"s_add_u32 s{sT0}, s{sT0}, {add:#x}")
        for i in range(ng):
            a = AC + (24 if sec else 0) + 8 * i; T = G + 4 * i + (16 if sec else 0)
            for j in range(4): e(f"v_cvt_pk_bf16_f32 v{T+j}, v{a+2*j+1}, v{a+2*j}")
            for j in range(4): e(f"v_and_or_b32 v{T+j}, v{T+j}, v{cMSK}, v{cR+j}")
            e(f"buffer_store_dwordx4 {vr(T,4)}, v4, {sr(S_RES)}, s{sT0} offen{SC}")
            if i < ng - 1: e(f"s_add_u32 s{sT0}, s{sT0}, {1<<(sh+4):#x}")
    def anyset(tau):
        if ng == 1: e(f"v_cmp_ne_u32 vcc, -1, v{rm(tau,0)}"); return
        e(f"v_and_b32 v4, v{rm(tau,0)}, v{rm(tau,1)}")
        if ng == 3: e(f"v_and_b32 v4, v4, v{rm(tau,2)}")
        e("v_cmp_ne_u32 vcc, -1, v4")
    FO = 3
    out = 0
    for tau in range(8, -1, -1):
        for i in range(ng):
            e(f"ds_read_i16 v{rm(tau,i)}, v{cWL} offset:{ent_off(tau,g0+i)}"); out += 1
            if out == 14: e("s_waitcnt lgkmcnt(2)"); out = 2
    e(f"s_waitcnt lgkmcnt({min(out, 3*ng)})")
    e(f"s_mov_b32 s{sNT}, 8")
    anyset(8); e(f"s_cbranch_vccnz L_{nm}_big")
    for tau in range(7, FO - 1, -1):
        anyset(tau); e(f"s_cbranch_vccnz L_{nm}_iss{tau}\ns_mov_b32 s{sNT}, {tau}")
    e(f"s_branch L_{nm}_iss{FO-1}")
    with rare():
        e(f"L_{nm}_big:")
        for i in range(ng): e(f"ds_read_i16 v{rm(9,i)}, v{cWL} offset:{ent_off(9,g0+i)}")
        e(f"s_mov_b32 s{sNT}, 10\ns_waitcnt lgkmcnt(0)")
        for tau in (9, 8):
            for i in range(ng): decode(tau, i)
        e(f"s_branch L_{nm}_iss7")
    for tau in range(7, -1, -1):
        if tau >= FO - 1: e(f"L_{nm}_iss{tau}:")
        if tau == FO - 1: e("s_waitcnt lgkmcnt(0)")
        for i in range(ng): decode(tau, i)
    k.stamp(7)
    if barrier_before_process: e("s_barrier"); k.stamp(8)
    order = [7, 6, 5, 8, 10, 4, 3]
    for nt in order[:-1]: e(f"s_cmp_eq_u32 s{sNT}, {nt}\ns_cbranch_scc1 L_{nm}_stub{nt-1}")
    seq = [(tau, i) for tau in range(NIN - 1, -1, -1) for i in range(ng)]
    buf = {t: n & 1 for n, t in enumerate(seq)}
    def stub(tau):
        e(f"L_{nm}_stub{tau}:\ns_waitcnt vmcnt({ng*tau+ng-1})"); addrs(tau, 0, buf[(tau, 0)]); e(f"s_branch L_{nm}_pr{tau}")
    def body(n):
        tau, i = seq[n]
        if n:
            e(f"s_waitcnt vmcnt({ng*tau+ng-1-i})"); addrs(tau, i, buf[seq[n]])
            e("s_waitcnt lgkmcnt(7)"); mf(*seq[n - 1], buf[seq[n - 1]])
        if i == 0 and (FO - 1 <= tau <= 7 or tau == 9): e(f"L_{nm}_pr{tau}:")
    for tau in range(FO - 1, 8): stub(tau)
    with rare():
        stub(9)
        for n in range(2 * ng): body(n)
        e(f"s_branch L_{nm}_body7")
    e(f"L_{nm}_body7:")
    for n in range(2 * ng, len(seq)): body(n)
    e("s_waitcnt lgkmcnt(0)")
    mf(*seq[-1], buf[seq[-1]])
    if ng == 1: e("s_nop 1")
    results(False)
    e(f"s_cmp_gt_u32 s{sNT}, 8\ns_cbranch_scc1 L_{nm}_res2\nL_{nm}_res2_ret:")
    with rare():
        e(f"L_{nm}_res2:")
        for tau in (10, 11):
            for i in range(ng): e(f"ds_read_i16 v{rm(tau-8,i)}, v{cWL} offset:{ent_off(tau,g0+i)}")
        e("s_waitcnt lgkmcnt(0)")
        anyset(2); e(f"s_cbranch_vccz L_{nm}_res2b")
        for tau in (2, 3):
            for i in range(ng): decode(tau, i)
        e("s_waitcnt vmcnt(0)")
        for tau in (2, 3):
            for i in range(ng):
                addrs(tau, i, 0); e("s_waitcnt lgkmcnt(0)"); mf(tau + 8, i, 0)
        e(f"s_nop 7\nL_{nm}_res2b:")
        results(True)
        e(f"s_branch L_{nm}_res2_ret")

def lo_lookup():
    POLL = 16
    e("s_cmp_ge_u32 s2, 250\ns_cbranch_scc1 L_nobucket0")
    with rare(): e("L_nobucket0:\ns_waitcnt lgkmcnt(0)\ns_barrier\ns_branch L_nobucket")
    res_tags(f"v_lshrrev_b32 v4, 4, v{vL}")
    e(f"v_lshlrev_b32 v3, 4, v{vL}\ns_lshl_b32 s{sT0}, s2, 14\ns_add_u32 s{sT0}, s{sT0}, s{sCNT}\nv_add_u32 v2, s{sCNT}, v3")
    e(f"s_mov_b32 s{sNT}, 0\ns_mov_b32 s{sEX}, 0x88888888\ns_mov_b32 s{sEX+1}, 0x88888888")
    for i in range(8 * NGLO): e(f"v_mov_b32 v{AC+i}, 0\nv_mov_b32 v{AC+24+i}, 0")
    e("s_waitcnt vmcnt(0)")
    sync_add(0)
    sync_wait(0, 8, 'pub', 1)
    k.stamp(5)
    if ROWPF:
        e(f"s_lshr_b32 s{sT1}, s2, 3\ns_lshl_b32 s{sT1}, s{sT1}, 15\nv_lshlrev_b32 v4, 7, v0")
        e(f"buffer_load_dword v7, v4, {sr(S_ROW)}, s{sT1} offen{SC}")
    if DL1: e(f"s_sleep {DL1}")
    e("L_poll1:")
    for h in range(4): e(f"buffer_load_dwordx4 {vr(POLL+4*h,4)}, v3, {sr(S_LIST)}, s{sT0} offen offset:{1024*h}{SC}")
    for h in range(4):
        e(f"s_waitcnt vmcnt({3-h})")
        if h == 0: e(f"v_xor_b32 v4, s{sTAG}, v{POLL+3}")
        else: e(f"v_xor_b32 v5, s{sTAG}, v{POLL+4*h+3}\nv_or_b32 v4, v4, v5")
        e(f"ds_write_b128 v2, {vr(POLL+4*h,4)} offset:{WL+1024*h}")
    e(f"v_cmp_ne_u32 vcc, 0, v4\ns_and_b64 vcc, vcc, s[{sEX}:{sEX+1}]\ns_waitcnt lgkmcnt(0)")
    e("s_cbranch_vccnz L_poll1_again\nL_poll1_ok:")
    with rare():
        e("L_poll1_again:")
        if SL1: e(f"s_sleep {SL1}")
        e(f"s_add_u32 s{sNT}, s{sNT}, 1\ns_cmp_lt_u32 s{sNT}, {LIMIT}\ns_cbranch_scc1 L_poll1")
        for i in range(4): e(f"v_mov_b32 v{POLL+i}, -1\nv_or_b32 v{cR+i}, 0x7fc00000, v{cR+i}")
        for h in range(4): e(f"ds_write_b128 v2, {vr(POLL,4)} offset:{WL+1024*h}")
        sync_add(3)
        e("s_waitcnt lgkmcnt(0)\ns_branch L_poll1_ok")
    k.stamp(6)
    tiles('lo', 0, NGLO, True)
    e(f"s_or_b32 s{sT0}, s2, s{sJ}\ns_cmp_eq_u32 s{sT0}, 0\ns_cbranch_scc1 L_epoch\nL_nobucket:")
    with rare():
        e(f"L_epoch:\ns_mov_b64 exec, 1\nv_mov_b32 v2, {EPOCH:#x}\nv_mov_b32 v3, s{sTAG}\nglobal_store_dword v2, v3, s[{P_WS}:{P_WS+1}]{SC}\ns_mov_b64 exec, -1\ns_branch L_nobucket")
    k.stamp(9)

def final():
    T = 32; X = 48; Y = 64; CN = 80; YA = 84
    res_tags("v_and_b32 v4, 3, v0")
    e(f"v_lshlrev_b32 v{T}, 4, v0\nv_add_u32 v{T+1}, 0x2000, v{T}\ns_lshl_b32 s{sT0}, s2, 14\ns_add_u32 s{sT1}, s{sT0}, 0x1000")
    e(f"v_mov_b32 v5, {SYNC+16}\nds_read_b32 v6, v5")
    e(f"v_cmp_gt_u32 vcc, 232, v0\ns_mov_b64 s[{sEX}:{sEX+1}], vcc\ns_mov_b32 s{sNT}, 0\nv_mov_b32 v{T+4}, 0")
    for t in range(8): e(f"v_and_b32 v{T+8+t}, 0xffff, v{LOC+t}")
    e(f"s_lshl_b32 s{sT2}, s2, 7\ns_lshl_b32 s{sBAD}, s{sJ}, 5\ns_add_u32 s{sT2}, s{sT2}, s{sBAD}")
    e(f"v_lshrrev_b32 v3, 2, v{vL}\nv_lshlrev_b32 v3, 1, v3\ns_waitcnt lgkmcnt(0)\nv_readfirstlane_b32 s{sRARE}, v6")
    for h in range(4): e(f"v_mov_b32 v{YA+h}, -1")
    e(f"s_cmp_lg_u32 s{sRARE}, 0\ns_cbranch_scc1 L_rare0\nL_rare0_ret:")
    with rare():
        e(f"L_rare0:\nv_and_b32 v4, -4, v0\ns_add_u32 s{sBAD}, s{sT0}, {RLV:#x}\nv_mov_b32 v7, 0x80000000")
        for h in range(4): e(f"ds_read_b32 v{CN+h}, v4 offset:{CNT+256*h}")
        e("s_waitcnt lgkmcnt(0)")
        for h in range(4):
            e(f"v_add_u32 v{CN+h}, -33, v{CN+h}\nv_add_u32 v4, {4096*h}, v{T}\nv_and_or_b32 v{YA+h}, v{CN+h}, v7, v4\nv_ashrrev_i32 v{CN+h}, 31, v{CN+h}")
        e("s_branch L_rare0_ret")
    e("s_waitcnt vmcnt(0)\ns_barrier")
    if DL2: e(f"s_sleep {DL2}")
    e("L_poll2:")
    e(f"s_cmp_lg_u32 s{sRARE}, 0\ns_cbranch_scc1 L_rare1\nL_rare1_ret:")
    with rare():
        e("L_rare1:")
        for h in range(4): e(f"buffer_load_dwordx4 {vr(Y+4*h,4)}, v{YA+h}, {sr(S_RES)}, s{sBAD} offen{SC}")
        e("s_branch L_rare1_ret")
    for h in range(4): e(f"buffer_load_dwordx4 {vr(X+4*h,4)}, v{T+h//2}, {sr(S_RES)}, s{sT0 if h%2==0 else sT1} offen{SC}")
    for h in range(4):
        d = T + 2 if h < 3 else T + 3
        e(f"s_waitcnt vmcnt({3-h})")
        for j in range(4):
            if j == 0 and h in (0, 3): e(f"v_xor_b32 v{d}, v{X+4*h}, v{cR}")
            else: e(f"v_bitop3_b32 v{d}, v{d}, v{X+4*h+j}, v{cR+j} bitop3:0xf6")
        e(f"ds_write_b128 v{T}, {vr(X+4*h,4)} offset:{RS+4096*h}")
    e(f"s_cmp_lg_u32 s{sRARE}, 0\ns_cbranch_scc1 L_rare2\nL_rare2_ret:")
    with rare():
        e("L_rare2:")
        for h in range(4):
            for j in range(4):
                if j == 0: e(f"v_xor_b32 v4, v{Y+4*h}, v{cR}")
                else: e(f"v_bitop3_b32 v4, v4, v{Y+4*h+j}, v{cR+j} bitop3:0xf6")
            e(f"v_bitop3_b32 v{T+2}, v{T+2}, v4, v{CN+h} bitop3:0xf4")
            e(f"ds_write_b128 v{T}, {vr(Y+4*h,4)} offset:{RS+16384+4096*h}")
        e("s_branch L_rare2_ret")
    e(f"v_and_b32 v{T+3}, 0x80000001, v{T+3}\nv_and_b32 v{T+2}, 0x80000001, v{T+2}")
    e(f"v_cmp_ne_u32 vcc, 0, v{T+3}\ns_and_b64 s[{sU}:{sU+1}], vcc, s[{sEX}:{sEX+1}]\nv_cmp_ne_u32 vcc, 0, v{T+2}\ns_or_b64 vcc, vcc, s[{sU}:{sU+1}]")
    e("s_cbranch_vccnz L_poll2_again\nL_poll2_ok:")
    with rare():
        e("L_poll2_again:")
        if SL2: e(f"s_sleep {SL2}")
        e(f"s_waitcnt lgkmcnt(0)\ns_add_u32 s{sNT}, s{sNT}, 1\ns_cmp_lt_u32 s{sNT}, {LIMIT}\ns_cbranch_scc1 L_poll2")
        sync_add(3)
        e("s_branch L_poll2_ok")
    k.stamp(10)
    e("s_waitcnt lgkmcnt(0)\ns_barrier")
    e(f"v_mov_b32 v5, {SYNC+12}\nds_read_b32 v6, v5")
    for t in range(8): e(f"ds_read_b32 v{X+t}, v{T+8+t}")
    for t in range(8):
        e(f"s_waitcnt lgkmcnt({7-t})\nv_and_b32 v{T+t}, 0x7fff0000, v{X+t}\nv_lshlrev_b32 v{X+t}, 16, v{X+t}")
        if t % 2: e(f"v_add_f32 v{T+t-1}, v{T+t-1}, v{T+t}\nv_add_f32 v{X+t-1}, v{X+t-1}, v{X+t}")
        if t % 4 == 3: e(f"v_add_f32 v{T+t-3}, v{T+t-3}, v{T+t-1}\nv_add_f32 v{X+t-3}, v{X+t-3}, v{X+t-1}")
    e(f"v_add_f32 v{T}, v{T}, v{T+4}\nv_add_f32 v{X}, v{X}, v{X+4}\ns_nop 0")
    e(f"v_add_f32_dpp v{T+1}, v{T}, v{T} quad_perm:[1,0,3,2] row_mask:0xf bank_mask:0xf")
    e(f"v_add_f32_dpp v{X+1}, v{X}, v{X} quad_perm:[1,0,3,2] row_mask:0xf bank_mask:0xf")
    e("s_nop 0")
    e(f"v_add_f32_dpp v{T}, v{T+1}, v{T+1} quad_perm:[2,3,0,1] row_mask:0xf bank_mask:0xf")
    e(f"v_add_f32_dpp v{X}, v{X+1}, v{X+1} quad_perm:[2,3,0,1] row_mask:0xf bank_mask:0xf")
    e(f"v_rcp_f32 v{T+1}, v{T}")
    e(f"v_add_u32 v{T+2}, {(-0x2b800000)&0xffffffff:#x}, v{T}\nv_mul_f32 v{X}, v{X}, v{T+1}\nv_cmp_gt_u32 vcc, 0x28000000, v{T+2}")
    e(f"v_and_b32 v{T+3}, 0x7fffffff, v{X}\ns_mov_b64 s[{sEX}:{sEX+1}], vcc\nv_cmp_gt_u32 vcc, 0x7f800000, v{T+3}\nv_cvt_pk_bf16_f32 v{X}, v{X}, v{X}")
    e(f"s_and_b64 s[{sEX}:{sEX+1}], vcc, s[{sEX}:{sEX+1}]\nv_cmp_eq_u32 vcc, 0, v6")
    e(f"s_and_b64 vcc, vcc, s[{sEX}:{sEX+1}]\ns_cmp_eq_u64 vcc, -1\ns_cbranch_scc0 L_fallback")
    e("s_mov_b32 exec_lo, 0x11111111\ns_mov_b32 exec_hi, 0x11111111")
    e(f"buffer_store_short v{X}, v3, {sr(S_OUT)}, s{sT2} offen")
    e("L_fin:")

def fallback():
    e("L_fallback:")
    A0 = 16; A1 = 20; C0 = 24; C1 = 28; AH = 32; AP = 36; EI = 40; EJ = 48; PK = 56; DD = 60; HK = 68; DS = 72; W16 = 80
    N, Q, IB, M, LL, ACc, T = 100, 101, 102, 103, 104, 105, 106
    e(f"v_and_b32 v{N}, 15, v{vL}\nv_lshrrev_b32 v{Q}, 4, v{vL}")
    e(f"v_lshlrev_b32 v{T}, 9, v{Q}\nv_lshl_add_u32 v{T}, v{N}, 1, v{T}")
    for half in range(2):
        for t in range(8): e(f"buffer_load_ushort v{W16+8*half+t}, v{T}, {sr(S_W)}, 0 offen offset:{t*64+half*32}")
    e(f"v_lshlrev_b32 v{T+1}, 3, v{Q}\nv_lshlrev_b32 v{Q}, 4, v{Q}")
    e(f"global_load_dwordx2 {vr(EI,2)}, v{T+1}, s[{P_B}:{P_B+1}]\nglobal_load_dwordx2 {vr(EI+2,2)}, v{T+1}, s[{P_B}:{P_B+1}] offset:32")
    e(f"global_load_dwordx2 {vr(AH,2)}, v{T+1}, s[{P_H}:{P_H+1}]\nglobal_load_dwordx2 {vr(AH+2,2)}, v{T+1}, s[{P_H}:{P_H+1}] offset:32")
    e(f"global_load_dwordx4 {vr(AP,4)}, v{Q}, s[{P_P}:{P_P+1}]")
    e(f"s_lshl_b32 s{sU}, s2, 6\ns_lshl_b32 s{sT1}, s{sJ}, 4\ns_add_u32 s{sU}, s{sU}, s{sT1}\nv_add_u32 v{IB}, s{sU}, v{N}\nv_mul_u32_u24 v{IB}, 104, v{IB}")
    e("s_waitcnt vmcnt(0)")
    for half in range(2):
        for t in range(4): e(f"v_lshl_or_b32 v{A0+4*half+t}, v{W16+8*half+2*t+1}, 16, v{W16+8*half+2*t}")
    for i in range(4): e(f"v_lshlrev_b32 v{C0+2*i}, 16, v{EI+i}\nv_and_b32 v{C0+2*i+1}, 0xffff0000, v{EI+i}")
    e(f"v_mov_b32 v{M}, 0xff800000\nv_mov_b32 v{LL}, 0\nv_mov_b32 v{ACc}, 0")
    e(f"s_mov_b32 s{sU}, 0")
    def getrow(dst, soff):
        e(f"buffer_load_dword v{T}, v{IB}, {sr(S_IDX)}, s{soff} offen\ns_waitcnt vmcnt(0)")
        e(f"v_lshl_add_u32 v{T}, v{T}, 6, v{Q}\nbuffer_load_dwordx4 {vr(dst+4,4)}, v{T}, {sr(S_TABL)}, 0 offen\ns_waitcnt vmcnt(0)")
        for t in range(4): e(f"v_lshlrev_b32 v{dst+2*t}, 16, v{dst+4+t}\nv_and_b32 v{dst+2*t+1}, 0xffff0000, v{dst+4+t}")
    e("L_fb_i:")
    getrow(EI, sU)
    e(f"s_add_u32 s{sCNT}, s{sU}, 4")
    e("L_fb_j:")
    getrow(EJ, sCNT)
    for t in range(8): e(f"v_mul_f32 v{EJ+t}, v{EJ+t}, v{EI+t}")
    for t in range(4): e(f"v_cvt_pk_bf16_f32 v{PK+t}, v{EJ+2*t}, v{EJ+2*t+1}")
    e("s_nop 1")
    e(f"v_mfma_f32_16x16x32_bf16 {vr(DD,4)}, {vr(A0,4)}, {vr(PK,4)}, {vr(C0,4)}")
    e(f"v_mfma_f32_16x16x32_bf16 {vr(DD+4,4)}, {vr(A1,4)}, {vr(PK,4)}, {vr(C1,4)}")
    e(f"v_mfma_f32_16x16x32_bf16 {vr(DS,4)}, {vr(AP,4)}, {vr(PK,4)}, 0")
    e("s_nop 7")
    for t in range(4): e(f"v_cvt_pk_bf16_f32 v{HK+t}, v{DD+2*t}, v{DD+2*t+1}")
    for t in range(4): e(f"v_pk_max_i16 v{HK+t}, v{HK+t}, 0")
    e("s_nop 1")
    e(f"v_mfma_f32_16x16x32_bf16 {vr(DD,4)}, {vr(AH,4)}, {vr(HK,4)}, 0")
    e("s_nop 7")
    e(f"v_mul_f32 v{DD}, 0x3fb8aa3b, v{DD}\nv_max_f32 v{DD+1}, v{M}, v{DD}\nv_sub_f32 v{DD+2}, v{M}, v{DD+1}\nv_sub_f32 v{DD+3}, v{DD}, v{DD+1}")
    e(f"v_exp_f32 v{DD+2}, v{DD+2}\nv_exp_f32 v{DD+3}, v{DD+3}\nv_mov_b32 v{M}, v{DD+1}")
    e(f"v_fma_f32 v{LL}, v{LL}, v{DD+2}, v{DD+3}\nv_mul_f32 v{ACc}, v{ACc}, v{DD+2}\nv_fma_f32 v{ACc}, v{DD+3}, v{DS}, v{ACc}")
    e(f"s_add_u32 s{sCNT}, s{sCNT}, 4\ns_cmp_lt_u32 s{sCNT}, 104\ns_cbranch_scc1 L_fb_j")
    e(f"s_add_u32 s{sU}, s{sU}, 4\ns_cmp_lt_u32 s{sU}, 100\ns_cbranch_scc1 L_fb_i")
    e(f"v_rcp_f32 v{LL}, v{LL}\nv_lshlrev_b32 v{N}, 1, v{N}\nv_mul_f32 v{ACc}, v{ACc}, v{LL}\nv_cvt_pk_bf16_f32 v{ACc}, v{ACc}, v{ACc}")
    e("s_mov_b64 exec, 0xffff")
    e(f"buffer_store_short v{ACc}, v{N}, {sr(S_OUT)}, s{sT2} offen")
    e("s_branch L_fin")

B_ = 8; A_ = 72; A5 = 104; CB = 120; HQ = 184; D_ = 200; ACC = 232; INIT = 248; TW = 249

PREF = 'nopref' not in OPT
NB0 = opt('nb0', 4); NB1 = opt('nb1', 8); CL0 = opt('cl0', 5)
def flag_store(nm, n):
    sync_wait(0, 8, nm)
    e(f"s_waitcnt vmcnt(0) lgkmcnt(0)\ns_add_u32 s{sTAG}, s{sTAG}, 0x9e3779b1\ns_lshl_b32 s{sT0}, s2, 4\ns_lshl_b32 s{sT1}, s{sU}, 2\ns_add_u32 s{sT0}, s{sT0}, s{sT1}\ns_add_u32 s{sT0}, s{sT0}, {FLG:#x}")
    e(f"v_mov_b32 v6, s{sT0}\nv_mov_b32 v7, s{sTAG}\ns_mov_b64 exec, 1\nglobal_store_dword v6, v7, s[{P_WS}:{P_WS+1}]{SC}\ns_mov_b64 exec, -1")

def hi():
    WV = 120; TP = 136; TU = 144; T = 184
    e("L_hi:")
    e(f"v_lshrrev_b32 v252, 5, v{vL}\nv_and_b32 v253, 7, v{vL}")
    e(f"v_lshlrev_b32 v4, 10, v252\nv_lshl_add_u32 v4, v253, 1, v4")
    e(f"v_bfe_u32 v5, v{vL}, 3, 2\nv_lshlrev_b32 v5, 6, v5\nv_lshl_add_u32 v5, v252, 5, v5")
    e(f"v_and_b32 v6, 31, v{vL}\nv_lshlrev_b32 v7, 6, v6\nv_lshlrev_b32 v6, 1, v6")
    e(f"v_lshl_add_u32 v250, v252, 5, v7\nv_add_u32 v251, 4096, v250")
    e(f"s_lshl_b32 s{sT0}, s{sU}, 4\ns_lshl_b32 s{sT1}, s2, 8\ns_lshl_b32 s{sT2}, s2, 14")
    e(f"v_add_u32 v3, -4096, v3")
    e("s_waitcnt lgkmcnt(0)")
    k.srd(S_TABL, P_TAB, 64000)
    k.srd(S_W, P_W, 2048)
    vm = []
    def vmem(lab, txt): e(txt); vm.append(lab)
    def vneed(lab): return len(vm) - 1 - max(i for i, x in enumerate(vm) if x == lab)
    e("s_cmp_ge_u32 s2, 250\ns_cbranch_scc1 L_hi_skip")
    vmem('s', f"buffer_load_dwordx4 {vr(TP,4)}, v5, {sr(S_TABL)}, s{sT1} offen")
    vmem('s', f"buffer_load_short_d16_hi v{WV}, v4, {sr(S_W)}, s{sT0} offen")
    vmem('s', f"global_load_short_d16_hi v{T+1}, v6, s[{P_B}:{P_B+1}]")
    vmem('s', f"global_load_short_d16_hi v{T+2}, v6, s[{P_H}:{P_H+1}]")
    e(f"s_load_dword s{sTAG}, s[{P_WS}:{P_WS+1}], {EPOCH:#x}")
    if PRE:
        e(f"v_and_b32 v2, 7, v{vL}\nv_lshlrev_b32 v2, 21, v2\nv_add_u32 v2, 0x1fff80, v2")
        vmem('s', f"global_load_dword v2, v2, s[{P_WS}:{P_WS+1}]")
    e("s_barrier")
    vmem('s', f"buffer_load_dwordx4 {vr(TP+4,4)}, v5, {sr(S_TABL)}, s{sT1} offen offset:16")
    for t in range(1, 16): vmem('s', f"buffer_load_short_d16_hi v{WV+t}, v4, {sr(S_W)}, s{sT0} offen offset:{t*64}")
    e(f"s_lshl_b32 s{sG}, s{sU}, 14\ns_add_u32 s{sG+1}, s{sG}, 0x2000")
    def bload(n):
        b, ks = n // 2, n % 2
        vmem(f"b{b//2}", f"buffer_load_dwordx4 {vr(B_+8*b+4*ks,4)}, v{250+(b//2)%2}, {sr(S_TABL)}, s{sG if b<4 else sG+1} offen offset:{(b%2)*2048+ks*16}")
    for n in range(NB0): bload(n)
    k.srd(S_RES, P_WS, 0x800000, R0)
    k.srd(S_ROW, P_WS, 0x100000, ROW0)
    def clear(h):
        vmem('c', f"buffer_store_dwordx4 {'v[240:243]' if CL0 < 0 else 'v[252:255]'}, v3, {sr(S_RES)}, s{sT2} offen{SC}")
        if h < 3: e(f"s_add_u32 s{sT2}, s{sT2}, 0x1000")
    def prefetch():
        e(f"s_getpc_b64 s[{sEX}:{sEX+1}]\nL_pc:\ns_sub_u32 s{sEX}, s{sEX}, L_pc-{KN}\ns_subb_u32 s{sEX+1}, s{sEX+1}, 0")
        e(f"v_lshlrev_b32 v6, 3, v3\nv_min_u32 v6, L_code_end-{KN}-4, v6\nv_mov_b32 v7, s{sEX+1}\nv_add_co_u32 v6, vcc, s{sEX}, v6\ns_nop 1\nv_addc_co_u32 v7, vcc, 0, v7, vcc")
        vmem('p', "global_load_dword v2, v[6:7], off")
    with rare(): e("L_hi_skip:\ns_barrier\ns_branch L_hi_done")
    e(f"s_lshl_b32 s{sT0}, s{sU}, 11\nv_lshlrev_b32 v4, 4, v{vL}\nv_add_u32 v5, s{sT0}, v4\nv_cmp_gt_u32 vcc, 32, v{vL}\nv_lshlrev_b32 v7, 2, v{vL}")
    e(f"s_lshl_b32 s{sT0}, s{sU}, 12\nv_add_u32 v{TW}, s{sT0}, v4")
    e(f"s_waitcnt vmcnt({vneed('s')})")
    k.stamp(2)

    for t in range(8): e(f"v_lshlrev_b32 v{TU+2*t}, 16, v{TP+t}\nv_and_b32 v{TU+2*t+1}, 0xffff0000, v{TP+t}")
    for t in range(16): e(f"v_mul_f32 v{WV+t}, v{WV+t}, v{TU+t}")
    for t in range(8): e(f"v_cvt_pk_bf16_f32 v{TP+t}, v{WV+2*t}, v{WV+2*t+1}")
    e(f"ds_write_b128 v5, {vr(TP,4)} offset:{AIMG}\nds_write_b128 v5, {vr(TP+4,4)} offset:{AIMG+1024}")
    e(f"v_mul_f32 v{T+2}, {LOG2E_HALF:#x}, v{T+2}\nv_cndmask_b32 v6, v{T+2}, v{T+1}, vcc\nds_write_b32 v7, v6 offset:{BH}")
    for n in range(NB0, NB1): bload(n)
    e("s_waitcnt lgkmcnt(0)")
    sync_add(1)
    sync_wait(1, 4, 'hi')
    e("v_lshlrev_b32 v5, 4, v252")
    k.stamp(3)
    for i in range(2): e(f"ds_read_b128 {vr(A_+4*i,4)}, v4 offset:{AIMG+1024*i}")
    for i in range(4): e(f"ds_read_b128 {vr(CB+4*i,4)}, v5 offset:{BH}")
    for g in range(4): e(f"ds_read_b128 {vr(HQ+4*g,4)}, v5 offset:{BH+128+32*g}")
    for g in range(1, 4): e(f"ds_read_b128 {vr(CB+16*g,4)}, v5 offset:{BH+32*g}")
    e(f"s_waitcnt vmcnt({vneed('b0')}) lgkmcnt(7)")
    later = []
    for g in range(1, 4):
        later += [f"ds_read_b128 {vr(A_+8*g+4*i,4)}, v4 offset:{AIMG+1024*(2*g+i)}" for i in range(2)]
        later += [f"ds_read_b128 {vr(CB+16*g+4*i,4)}, v5 offset:{BH+32*g}" for i in range(1, 4)]
    steps = []
    for bp in range(4): steps += [('r', bp, g, b) for g in range(4) for b in range(2)] + [('x', bp, 0, 0)]
    NS = len(steps)
    def mms(s):
        kind, bp, g, b = steps[s]; d = D_ + 16 * (s % 2)
        if kind == 'r':
            bb = B_ + 8 * (2 * bp + b)
            return [f"v_mfma_f32_32x32x16_bf16 {vr(d,16)}, {vr(A_+8*g,4)}, {vr(bb,4)}, {vr(CB+16*g,16)}",
                    f"v_mfma_f32_32x32x16_bf16 {vr(d,16)}, {vr(A_+8*g+4,4)}, {vr(bb+4,4)}, {vr(d,16)}"]
        return [f"v_mfma_f32_32x32x16_bf16 {vr(d,16)}, {vr(A5+8*b2+4*ks,4)}, {vr(B_+8*(2*bp+b2)+4*ks,4)}, {'0' if b2+ks==0 else vr(d,16)}"
                for b2 in range(2) for ks in range(2)]
    def valu(s):
        kind, bp, g, b = steps[s]; d = D_ + 16 * (s % 2); X = ACC + 8 * (bp % 2); Y = X + 4
        if kind == 'r':
            a = X + 4 * b
            return [f"v_fma_f32 v{a+v}, v{HQ+4*g+r}, |v{d+4*v+r}|, " + (f"-v{INIT}" if g == 0 and r == 0 else f"v{a+v}") for r in range(4) for v in range(4)]
        o = [f"v_permlane32_swap_b32 v{X+v}, v{Y+v}" for v in range(4)]
        o += [f"v_add_f32 v{X+v}, v{X+v}, v{Y+v}" for v in range(4)]
        o += [f"v_add_f32 v{X+v}, v{X+v}, v{d+4*v}" for v in range(4)]
        o += [f"v_exp_f32 v{X+v}, v{X+v}" for v in range(4)]
        o += [f"v_mul_f32 v{Y+v}, v{X+v}, v{d+4*v+1}" for v in range(4)]
        o += [f"v_cvt_pk_bf16_f32 v{X+v}, v{Y+v}, v{X+v}" for v in range(4)]
        o += [f"ds_write_b128 v{TW}, {vr(X,4)} offset:{TAB+16+1024*bp}"]
        return o
    m = mms(0)
    e(m[0])
    for x in later[:5]: e(x)
    e(m[1])
    e("s_waitcnt lgkmcnt(5)")
    for x in later[5:10]: e(x)
    e(f"v_mul_f32 v{INIT}, v{HQ}, |v{CB}|")
    for g in range(4):
        for r in range(4):
            if g or r: e(f"v_fma_f32 v{INIT}, v{HQ+4*g+r}, |v{CB+16*g+r}|, v{INIT}")
    nb_next = [NB1]
    for s in range(NS):
        v = valu(s); m = mms(s + 1) if s + 1 < NS else []
        if s + 1 < NS:
            kind, bp, g, b = steps[s + 1]
            if bp == 0 and kind == 'r' and b == 0 and g == 1: e("s_waitcnt lgkmcnt(5)"); [e(x) for x in later[10:15]]
            if bp == 0 and kind == 'r' and b == 0 and g == 2: e("s_waitcnt lgkmcnt(5)")
            if bp == 0 and kind == 'r' and b == 0 and g == 3:
                sync_wait(2, 2, 'a5')
                for i in range(4): e(f"ds_read_b128 {vr(A5+4*i,4)}, v4 offset:{AIMG+8192+1024*i}")
            if bp == 0 and kind == 'x': e("s_waitcnt lgkmcnt(0)")
            if kind == 'r' and g == 0 and b == 0 and bp > 0: e(f"s_waitcnt vmcnt({vneed(f'b{bp}')})")

        if nb_next[0] < 16: bload(nb_next[0]); bload(nb_next[0] + 1); nb_next[0] += 2
        if s == opt('pf', 4) and PREF: prefetch()
        if len(m) == 2:
            n = 6 if steps[s][0] == 'x' else 5
            e(m[0]); [e(x) for x in v[:n]]; e(m[1]); [e(x) for x in v[n:]]
        elif len(m) == 4:
            e(m[0]); [e(x) for x in v[:4]]; e(m[1]); [e(x) for x in v[4:8]]; e(m[2]); [e(x) for x in v[8:12]]; e(m[3]); [e(x) for x in v[12:]]
        else:
            e("s_nop 1"); [e(x) for x in v]
    k.stamp(5)
    lookup_consts(NGLO)
    e(f"s_add_u32 s{sTAG}, s{sTAG}, 1")
    res_tags(f"v_lshrrev_b32 v4, 4, v{vL}")
    for i in range(8 * (4 - NGLO)): e(f"v_mov_b32 v{AC+i}, 0\nv_mov_b32 v{AC+24+i}, 0")
    e("s_waitcnt lgkmcnt(0)\ns_barrier")
    k.stamp(6)
    e(f"v_mov_b32 v5, {SYNC+12}\nds_read_b32 v7, v5")
    n0 = len(k.L)
    tiles('hi', NGLO, 4 - NGLO, False)
    for i in range(n0, len(k.L)):
        if k.L[i].strip().startswith(f"s_mov_b32 s{sNT}, 8"):
            k.L[i:i] = ["    v_sub_u32 v7, 0, v7", "    v_ashrrev_i32 v7, 31, v7", "    v_and_b32 v7, 0x7fc00000, v7"] + [f"    v_or_b32 v{cR+j}, v{cR+j}, v7" for j in range(4)]
            break
    k.stamp(9)
    e("L_hi_done:")

def finish():
    if STAMP:
        e(f"{CLK} s[{sH}:{sH+1}]\ns_waitcnt lgkmcnt(0)\ns_mov_b64 exec, 1")
        e(f"s_lshl_b32 s{sT0}, s2, 3\ns_add_u32 s{sT0}, s{sT0}, s{sJ}\ns_lshl_b32 s{sT0}, s{sT0}, 7\ns_add_u32 s{sT0}, s{sT0}, {STAMP0:#x}")
        e(f"v_mov_b32 v2, s{sT0}")
        for i in range(NST): e(f"v_mov_b32 v3, s{sST+2*i}\nglobal_store_dword v2, v3, s[{P_WS}:{P_WS+1}] offset:{4*i}")
        e(f"v_mov_b32 v3, s{sH}\nglobal_store_dword v2, v3, s[{P_WS}:{P_WS+1}] offset:{4*NST}")
        e(f"v_mov_b32 v3, {NST+1}\nglobal_store_dword v2, v3, s[{P_WS}:{P_WS+1}] offset:124")
    e("s_endpgm")

if STAMP:
    for i in range(NST): e(f"s_mov_b64 s[{sST+2*i}:{sST+2*i+1}], 0")
prologue()
route()
lo_lookup()
final()
finish()
hi()
finish()
e("L_end:\ns_endpgm")
with rare(): fallback()
hazard.check(k.L); hazard.check(k.tail)
src = HEADER + f"; @launch grid=(256,1,1) block=(512,1,1) lds={LDS_BYTES}\n"
src += f'.amdgcn_target "amdgcn-amd-amdhsa--gfx950"\n.text\n.globl {KN}\n.p2align 8\n.type {KN},@function\n{KN}:\n'
src += "\n".join(k.L) + "\n" + "\n".join(k.tail) + "\nL_code_end:\n"
src += '.section .rodata,"a"\n' + kd(KN, 256, 102)
open(sys.argv[1], "w").write(src)
```

```python
import sys
from common import *
import hazard

OPT = set(sys.argv[2].split(',')) if len(sys.argv) > 2 else set()
def opt(name, d):
    for o in OPT:
        if o.startswith(name + '='): return int(o.split('=')[1])
    return d
STAMP = 'stamp' in OPT
NGLO = opt('nglo', 3)
CLK = 's_memtime' if 'cyc' in OPT else 's_memrealtime'
DL1, DL2, SL1, SL2 = opt('dl1', 0), opt('dl2', 0), opt('sl1', 0), opt('sl2', 0)
PRE = 'nopre' not in OPT

EPOCH, L0, ROW0, R0, R1 = 0x0, 0x10000, 0x400000, 0x800000, 0xC00000
STAMP0 = 0x1000000
FLG = 0x1000
TAB, CNT, BH, GP, AIMG, LIMG, WL = 0, 0x4100, 0x4500, 0x4600, 0x5000, 0x8000, 0xC000
RS = LIMG
NANW = 0x4080
ROWPF = 'rowpf' in OPT
SYNC = CNT + 1004
LIMIT = 0x4000
RLV = 0x400000
FL = 0x10000; FLS = 6656; RIM = 0x18000; NW = 0x4090; DUMP = 0x4C00
LDS_BYTES = RIM + 4 * 8192
S_IDX, S_TABL, S_W, S_LIST, S_ROW, S_RES, S_OUT = 4, 8, 12, 16, 20, 24, 28
sG = 32
P_IDX, P_TAB, P_W, P_B, P_H, P_P, P_OUT, P_WS = 36, 38, 40, 42, 44, 46, 48, 50
sJ, sRARE, sTAG, sT2, sT0, sT1, sNT, sBAD, sU, sCNT = 52, 53, 54, 55, 56, 57, 58, 59, 60, 61
sEX = 62
sRND = 3
sH = 64
sST = 80
NST = 11
LOG2E_HALF = 0x3f38aa3b
vL = 1
SC = " sc1"
KN = NAME + "_kernel"

class K:
    def __init__(s): s.L = []; s.tail = []; s.cur = s.L
    def e(s, x):
        for ln in x.split('\n'):
            ln = ln.strip()
            if ln: s.cur.append(ln if ln.endswith(':') else '    ' + ln)
    def stamp(s, i):
        if STAMP: s.e(f"{CLK} s[{sST+2*i}:{sST+2*i+1}]")
    def srd(s, d, p, n, off=0):
        if off: s.e(f"s_add_u32 s{d}, s{p}, {off:#x}\ns_addc_u32 s{d+1}, s{p+1}, 0")
        else: s.e(f"s_mov_b64 s[{d}:{d+1}], s[{p}:{p+1}]")
        s.e(f"s_mov_b32 s{d+2}, {n:#x}\ns_mov_b32 s{d+3}, 0x00020000")
k = K(); e = k.e
def vr(a, n): return f"v[{a}:{a+n-1}]"
def sr(a): return f"s[{a}:{a+3}]"
class rare:
    def __enter__(s): s.old = k.cur; k.cur = k.tail
    def __exit__(s, *a): k.cur = s.old

LOC = 8
G = 16; RM = 80; EN = 96; TQ = 112; AS = 166; AC = 182; BQ = 230; DX = 202
cA, cOFF, cBIT, cWR, cFL, cMSK = 246, 247, 248, 249, 250, 251
cR = 252
cAM, cDR, cRD, cRA = 198, 199, 200, 201
WA = 140

def prologue():
    e("s_cmp_ge_u32 s2, 256\ns_cbranch_scc1 L_end")
    k.stamp(0)
    e(f"s_load_dwordx4 s[{P_IDX}:{P_IDX+3}], s[0:1], 0")
    e(f"s_load_dwordx2 s[{P_WS}:{P_WS+1}], s[0:1], 80")
    e(f"s_load_dwordx8 s[{P_W}:{P_W+7}], s[0:1], 32")
    e(f"s_load_dwordx2 s[{P_OUT}:{P_OUT+1}], s[0:1], 64")
    e(f"v_lshrrev_b32 v2, 6, v0\nv_and_b32 v{vL}, 63, v0")
    e(f"v_readfirstlane_b32 s{sJ}, v2")
    e("v_mov_b32 v240, -1\nv_mov_b32 v241, -1\nv_mov_b32 v242, -1\nv_mov_b32 v243, -1")
    e(f"v_lshlrev_b32 v3, 4, v0\nds_write_b128 v3, v[240:243] offset:{LIMG}\nds_write_b128 v3, v[240:243] offset:{LIMG+8192}")
    e(f"s_and_b32 s{sU}, s{sJ}, 3\ns_cmp_ge_u32 s{sJ}, 4\ns_cbranch_scc1 L_hi")

def sync_add(i):
    e(f"v_mov_b32 v5, {SYNC+4*i}\nv_mov_b32 v6, 1\ns_mov_b64 exec, 1\nds_add_u32 v5, v6\ns_mov_b64 exec, -1")
def sync_wait(i, n, nm, sleep=0):
    e(f"v_mov_b32 v5, {SYNC+4*i}\nL_sync_{nm}:")
    if sleep: e(f"s_sleep {sleep}")
    e(f"ds_read_b32 v6, v5\ns_waitcnt lgkmcnt(0)\nv_cmp_gt_u32 vcc, {n}, v6\ns_cbranch_vccnz L_sync_{nm}")

def make_loc(KK, C4, full):
    e(f"v_mov_b32 v7, {RS}")
    if full: e(f"v_mov_b32 v6, {NANW}\nv_mov_b32 v4, -1\nds_write_b32 v6, v4")
    for t in range(8):
        if t == 2: e("s_mov_b32 exec_lo, 0x77777777\ns_mov_b32 exec_hi, 0x77777777")
        if full:
            e(f"v_and_b32 v4, 30, v{KK+t}\nv_lshlrev_b32 v5, 3, v{C4+t}\nv_add_lshl_u32 v4, v4, v5, 1\nv_cmp_le_u32 vcc, 48, v{KK+t}")
            e(f"v_lshrrev_b32 v5, 5, v{KK+t}\nv_lshlrev_b32 v5, 14, v5\nv_add3_u32 v4, v4, v5, v7\nv_cndmask_b32 v{LOC+t}, v4, v6, vcc")
        else:
            e(f"v_lshl_add_u32 v4, v{C4+t}, 3, v{KK+t}\nv_lshl_add_u32 v{LOC+t}, v4, 1, v7")
    e("s_mov_b64 exec, -1")

def lookup_consts():
    e(f"v_and_b32 v4, 15, v{vL}\nv_bfe_u32 v5, v{vL}, 4, 1\nv_lshrrev_b32 v{cBIT}, 5, v{vL}")
    e(f"s_mul_i32 s{sG+1}, s{sU}, {FLS}\ns_add_u32 s{sG+1}, s{sG+1}, {FL}\ns_lshl_b32 s{sG}, s{sU}, 18\ns_lshl_b32 s{sG+2}, s{sU}, 13\ns_add_u32 s{sG+2}, s{sG+2}, {RIM}")
    e(f"v_and_b32 v{cFL}, 31, v{vL}\nv_lshl_add_u32 v{cFL}, v{cFL}, 2, s{sG+1}")
    e(f"v_lshrrev_b32 v7, 4, v{vL}\nv_lshl_add_u32 v{cDR}, v7, 5, v4\nv_lshl_add_u32 v{cDR}, v{cDR}, 2, s{sG+1}")
    e(f"v_add_u32 v{cA}, -1, v{cBIT}\nv_and_b32 v{cA}, 0xffff0000, v{cA}")
    e(f"v_mul_u32_u24 v{cOFF}, 12, v{cBIT}\nv_mul_i32_i24 v{cWR}, -52, v{cBIT}\nv_mov_b32 v{cMSK}, 0x7ffffffe\nv_mov_b32 v{cAM}, 0x2003fffc")
    e(f"v_and_b32 v6, 1, v4\nv_lshlrev_b32 v6, 4, v6\nv_lshrrev_b32 v6, v6, 1.0")
    e(f"v_bfe_u32 v7, v4, 1, 1\nv_xor_b32 v7, v7, v5\nv_add_u32 v7, -1, v7\nv_and_b32 v6, v6, v7\nv_lshrrev_b32 v7, 2, v4")
    for q in range(4):
        e(f"v_xor_b32 v4, {q}, v7\nv_add_u32 v4, -1, v4\nv_ashrrev_i32 v4, 31, v4\nv_and_b32 v{AS+4*q}, v4, v6")
        for i in range(1, 4): e(f"v_mov_b32 v{AS+4*q+i}, v{AS+4*q}")
    e(f"v_mov_b32 v{BQ+7}, 0\nv_mov_b32 v{BQ+15}, 0")
    e(f"v_and_b32 v4, 3, v{vL}\nv_lshrrev_b32 v5, 2, v{vL}\nv_lshlrev_b32 v{cRD}, 10, v4\nv_lshl_add_u32 v{cRD}, v5, 2, v{cRD}\nv_add_u32 v{cRD}, s{sG+2}, v{cRD}")
    e(f"v_lshlrev_b32 v4, 4, v4\nv_lshl_add_u32 v{cRA}, v5, 14, v4")
    e(f"s_lshl_b32 s{sG+3}, s{sU}, 20\ns_lshl_b32 s{sT0}, s2, 6\ns_add_u32 s{sG+3}, s{sG+3}, s{sT0}")

def res_tags(lane_expr):
    e(f"s_and_b32 s{sT0}, s{sTAG}, 255\ns_xor_b32 s{sT1}, s{sTAG}, 1\ns_and_b32 s{sT1}, s{sT1}, 3\ns_lshl_b32 s{sT1}, s{sT1}, 8\ns_or_b32 s{sT0}, s{sT0}, s{sT1}")
    e(f"s_lshr_b32 s{sT1}, s{sTAG}, 8\ns_lshl_b32 s{sT1}, s{sT1}, 10\ns_or_b32 s{sT0}, s{sT0}, s{sT1}")
    e(lane_expr)
    e(f"v_lshlrev_b32 v4, 3, v4\nv_lshrrev_b32 v4, v4, s{sT0}")
    for j in range(4): e(f"v_bfe_u32 v5, v4, {2*j}, 2\nv_alignbit_b32 v{cR+j}, v5, v5, 1")

def route():
    V = 16; KK = 24; C4 = 32; RW = 40; EB = 44; T = 52
    TP = 64; TU = 72; WR = 88; WV = 104; MU = 120; PP = 128
    e("s_setprio 2")
    e(f"v_mov_b32 v4, 0\nv_lshlrev_b32 v5, 2, v0\nds_write_b32 v5, v4 offset:{CNT}\nv_and_b32 v5, 12, v5\nds_write_b32 v5, v4")
    e(f"v_lshrrev_b32 v{T}, 2, v0\nv_and_b32 v{T+1}, 3, v0\nv_lshlrev_b32 v{T+1}, 2, v{T+1}")
    e(f"v_mul_u32_u24 v{T+2}, 104, v{T}\ns_mul_i32 s{sT1}, s2, 6656")
    for t in range(4):
        e(f"v_add_u32 v{EB+2*t}, {t}, v{T+1}\nv_add_u32 v{T+3}, {t-13}, v{T+1}\nv_min_u32 v{EB+2*t}, v{EB+2*t}, v{T+3}")
        e(f"v_lshl_add_u32 v{T+4+t}, v{EB+2*t}, 3, v{T+2}")
    e("s_waitcnt lgkmcnt(0)")
    k.srd(S_IDX, P_IDX, 16384 * 104)
    for t in range(4): e(f"buffer_load_dwordx2 {vr(V+2*t,2)}, v{T+4+t}, {sr(S_IDX)}, s{sT1} offen")
    e(f"s_load_dword s{sTAG}, s[{P_WS}:{P_WS+1}], {EPOCH:#x}")
    e(f"s_load_dwordx16 s[{sH}:{sH+15}], s[{P_H}:{P_H+1}], 0")
    e("s_barrier")
    k.srd(S_TABL, P_TAB, 64000)
    k.srd(S_W, P_W, 2048)
    e(f"v_lshrrev_b32 v130, 5, v{vL}\nv_and_b32 v131, 7, v{vL}")
    e(f"v_bfe_u32 v5, v{vL}, 3, 2\nv_lshlrev_b32 v5, 6, v5\nv_lshl_add_u32 v5, v130, 5, v5")
    e(f"v_and_b32 v6, 31, v{vL}\nv_lshlrev_b32 v7, 6, v6\nv_lshlrev_b32 v6, 1, v6\ns_lshl_b32 s{sT1}, s2, 8\ns_lshr_b32 s{sT2}, s{sU}, 1\ns_lshl_b32 s{sT0}, s{sT2}, 4\ns_add_u32 s{sT1}, s{sT1}, s{sT0}")
    e(f"buffer_load_dwordx4 {vr(TP,4)}, v5, {sr(S_TABL)}, s{sT1} offen")
    for t in range(4): e(f"buffer_load_dwordx4 {vr(WR+4*t,4)}, v7, {sr(S_W)}, 0 offen offset:{16*t}")
    e(f"global_load_short_d16_hi v{PP}, v6, s[{P_P}:{P_P+1}]")
    e(f"s_mul_i32 s{sT0}, s{sU}, 384\nv_lshlrev_b32 v132, 2, v{vL}\nv_add_u32 v132, s{sT0}, v132")
    e(f"v_mov_b32 v4, 0\nv_lshl_add_u32 v7, v6, 1, s{sT0}\nds_write_b32 v7, v4 offset:{GP+256}")
    e(f"s_and_b32 s{sT1}, s{sU}, 1\ns_lshl_b32 s{sNT}, s{sT1}, 2\nv_subrev_u32 v133, s{sNT}, v131\nv_min_u32 v133, 2, v133\nv_lshlrev_b32 v133, 7, v133\nv_lshl_add_u32 v133, v130, 6, v133")
    e(f"s_lshl_b32 s{sNT}, s{sT2}, 5\ns_add_u32 s{sT0}, s{sT0}, s{sNT}\nv_add_u32 v133, s{sT0}, v133")
    e(f"s_lshl_b32 s{sT1}, s{sT1}, 1\ns_add_u32 s{sT1}, s{sT1}, s{sT2}\ns_lshl_b32 s{sT1}, s{sT1}, 10\nv_lshlrev_b32 v134, 4, v{vL}\nv_add_u32 v134, s{sT1}, v134")
    k.srd(S_ROW, P_WS, 0x100000, ROW0)
    k.srd(S_LIST, P_WS, 250 * 16384, L0)
    k.srd(S_RES, P_WS, 0x800000, R0)
    k.srd(S_OUT, P_OUT, 32768)
    e(f"v_lshlrev_b32 v{T+3}, 8, v{T}")
    for t in range(4):
        e(f"v_add_u32 v4, 6, v{EB+2*t}\nv_lshl_or_b32 v{EB+2*t+1}, v{EB+2*t}, 4, v{T+3}")
        e(f"v_lshrrev_b32 v4, 4, v4\nv_lshl_or_b32 v{EB+2*t+1}, v4, 1, v{EB+2*t+1}\nv_or_b32 v{EB+2*t}, 1, v{EB+2*t+1}")
    for t in range(8): e(f"v_mov_b32 v{LOC+t}, 0\nv_mov_b32 v{KK+t}, 0")
    lookup_consts()
    e(f"s_lshl_b32 s{sCNT}, s{sU}, 12\nv_lshrrev_b32 v4, 4, v{vL}\nv_xor_b32 v4, v4, v{vL}\nv_and_b32 v4, 3, v4\nv_and_b32 v5, 60, v{vL}\nv_or_b32 v4, v4, v5\nv_lshl_add_u32 v{WA}, v4, 4, s{sCNT}")
    e(f"v_lshrrev_b32 v4, 2, v{vL}\nv_lshl_add_u32 v5, v{vL}, 6, s{sCNT}")
    for g in range(4): e(f"v_xor_b32 v6, {g}, v4\nv_and_b32 v6, 3, v6\nv_lshl_add_u32 v{WA+1+g}, v6, 4, v5")
    e(f"v_lshl_add_u32 v4, v{vL}, 4, s{sG+1}")
    for i in range(7): e(f"ds_write_b128 v4, v[240:243] offset:{1024*i}")
    e(f"v_mov_b32 v2, 2\nv_mov_b32 v7, 0x100010\ns_lshl_b32 s{sT0}, s2, 12")
    e(f"v_and_b32 v4, 3, v0\nv_lshlrev_b32 v{T+4}, 14, v{T}\nv_lshl_add_u32 v{T+4}, v4, 4, v{T+4}")
    e(f"v_add_u32 v{T+5}, 1, v4\nv_lshrrev_b32 v{T+5}, 2, v{T+5}\nv_sub_u32 v{T+5}, 0, v{T+5}")
    e(f"s_waitcnt lgkmcnt(0)\ns_add_u32 s{sTAG}, s{sTAG}, 1")
    res_tags("v_and_b32 v4, 3, v0")
    e(f"s_lshl_b32 s{sT0}, s2, 12\ns_waitcnt vmcnt(6)")
    k.stamp(1)
    for t in range(4): e(f"v_lshl_or_b32 v{RW+t}, v{V+2*t+1}, 16, v{V+2*t}\nv_lshl_add_u32 v{RW+t}, v{RW+t}, 4, v7")
    e(f"buffer_store_dwordx4 {vr(RW,4)}, v3, {sr(S_ROW)}, s{sT0} offen{SC}")
    for t in range(8):
        if t == 2: e("s_mov_b32 exec_lo, 0x77777777\ns_mov_b32 exec_hi, 0x77777777")
        e(f"v_and_b32 v{C4+t}, -4, v{V+t}\nds_add_rtn_u32 v{KK+t}, v{C4+t}, v2 offset:{CNT}")
    e("s_mov_b64 exec, -1")
    for t in range(8): e(f"v_lshlrev_b32 v{V+t}, 2, v{V+t}\nv_and_or_b32 v{V+t}, v{V+t}, 12, v{EB+t}")
    e("s_waitcnt lgkmcnt(0)")
    for t in range(8):
        if t == 2: e("s_mov_b32 exec_lo, 0x77777777\ns_mov_b32 exec_hi, 0x77777777")
        e(f"v_min_u32 v4, 54, v{KK+t}\nv_lshl_add_u32 v4, v{C4+t}, 4, v4\nds_write_b16 v4, v{V+t} offset:{LIMG}")
    e("s_mov_b64 exec, -1")
    e(f"s_lshl_b32 s{sT0}, s2, 6")
    k.stamp(2)
    e(f"s_waitcnt vmcnt(1)\nv_mov_b32 v6, 0\nv_cmp_gt_u32 vcc, 32, v{vL}")
    for t in range(16): e(f"v_dot2_f32_bf16 v6, v{WR+t}, s{sH+t}, v6")
    for t in range(4): e(f"v_lshlrev_b32 v{TU+2*t}, 16, v{TP+t}\nv_and_b32 v{TU+2*t+1}, 0xffff0000, v{TP+t}")
    e(f"v_mul_f32 v6, {LOG2E_HALF:#x}, v6\nv_cndmask_b32 v6, v{PP}, v6, vcc\nds_write_b32 v132, v6 offset:{GP}\ns_waitcnt lgkmcnt(0)")
    for t in range(2): e(f"ds_read_b128 {vr(WV+4*t,4)}, v133 offset:{GP+16*t}")
    e("s_waitcnt lgkmcnt(0)")
    for t in range(8): e(f"v_mul_f32 v{WV+t}, v{WV+t}, v{TU+t}")
    for t in range(4): e(f"v_cvt_pk_bf16_f32 v{MU+t}, v{WV+2*t}, v{WV+2*t+1}")
    e(f"ds_write_b128 v134, {vr(MU,4)} offset:{AIMG+8192}\nv_mov_b32 v7, s{sTAG}")
    e("s_waitcnt vmcnt(0) lgkmcnt(0)")
    sync_add(0)
    sync_wait(0, 4, 'lo')
    k.stamp(3)
    P = 146
    e("v_and_b32 v4, -4, v0")
    for h in range(4): e(f"ds_read_b128 {vr(P+4*h,4)}, v3 offset:{LIMG+4096*h}\nds_read_b32 v{P+16+h}, v4 offset:{CNT+256*h}")
    for h in range(4):
        e(f"s_waitcnt lgkmcnt({6-2*h})\nv_bfi_b32 v{P+4*h+3}, v{T+5}, v7, v{P+4*h+3}\nv_bfi_b32 v{P+4*h+2}, v{T+5}, v{P+16+h}, v{P+4*h+2}")
        e(f"buffer_store_dwordx4 {vr(P+4*h,4)}, v{T+4}, {sr(S_LIST)}, s{sT0} offen{SC}")
        if h < 3: e(f"s_add_u32 s{sT0}, s{sT0}, 0x100000")
    k.stamp(4)
    make_loc(KK, C4, False)
    e(f"v_max3_u32 v7, v{KK}, v{KK+1}, v{KK+2}\nv_max3_u32 v7, v7, v{KK+3}, v{KK+4}\nv_max3_u32 v7, v7, v{KK+5}, v{KK+6}\nv_max_u32 v7, v7, v{KK+7}")
    e(f"v_cmp_le_u32 vcc, 32, v7\ns_cbranch_vccnz L_mark\nL_mark_ret:")
    with rare():
        e("L_mark:"); make_loc(KK, C4, True); sync_add(4); e("s_branch L_mark_ret")

def decode(ns):
    for i, n in enumerate(ns): e(f"v_lshrrev_b32 v{TQ+i}, 2, v{RM+n}\nv_bfe_i32 v{TQ+4+i}, v{RM+n}, v{cBIT}, 1")
    for i, n in enumerate(ns): e(f"v_and_b32 v{TQ+i}, v{TQ+i}, v{cAM}\nv_and_b32 v{TQ+8+i}, v{TQ+4+i}, v{cWR}")
    for i, n in enumerate(ns): e(f"v_add3_u32 v{TQ+i}, v{TQ+i}, v{cOFF}, v{TQ+8+i}\nv_and_b32 v{TQ+4+i}, v{TQ+4+i}, v{cA}")
    for i, n in enumerate(ns):
        e(f"buffer_load_dwordx4 {vr(G+4*n,4)}, v{TQ+i}, {sr(S_ROW)}, s{sG} offen{SC}\nv_and_or_b32 v{RM+n}, v{RM+n}, 12, v{TQ+4+i}")
def addrs(n, buf):
    g = G + 4 * n; r = RM + n
    e(f"v_and_b32 v{g}, v{g}, v{r}")
    for t, (d, dw, hi) in enumerate([(2, 1, 0), (g + 1, 1, 1), (3, 2, 0), (g + 2, 2, 1), (4, 3, 0), (g + 3, 3, 1), (g, 0, 1)]):
        e(f"v_add_u32_sdwa v{d}, v{r}, v{g+dw} dst_sel:DWORD dst_unused:UNUSED_PAD src0_sel:WORD_0 src1_sel:WORD_{hi}")
        e(f"ds_read_b32 v{BQ+8*buf+t}, v{d}")
def mf(n, buf):
    a = AC + 4 * (n // 4); q = n & 3
    e(f"v_mfma_f32_16x16x32_bf16 {vr(a,4)}, {vr(AS+4*q,4)}, {vr(BQ+8*buf,4)}, {'0' if (q==0 and n<12) else vr(a,4)}")
    e(f"v_mfma_f32_16x16x32_bf16 {vr(a,4)}, {vr(AS+4*q,4)}, {vr(BQ+8*buf+4,4)}, {vr(a,4)}")
def dreads(addr):
    for q in range(4): e(f"ds_read2_b32 {vr(DX+2*q,2)}, v{addr+q//2} offset0:{128*(q%2)} offset1:{128*(q%2)+16}")
def dests():
    for q in range(8): e(f"v_lshrrev_b32 v{DX+q}, 12, v{DX+q}")
    for q in range(8): e(f"v_and_or_b32 v{DX+q}, v{DX+q}, v5, v6")
def scatter():
    for q in range(4):
        a = AC + 4 * q
        e(f"v_cvt_pk_bf16_f32 v{a}, v{a+1}, v{a}\nv_cvt_pk_bf16_f32 v{a+2}, v{a+3}, v{a+2}")
        e(f"ds_write_b32 v{DX+2*q}, v{a}\nds_write_b32 v{DX+2*q+1}, v{a+2}")
def res_stores(lvl, s0):
    T = G + 16 * lvl
    e(f"v_add_u32 v2, 64, v{cRD}\nv_add_u32 v3, 128, v{cRD}\nv_add_u32 v4, 192, v{cRD}\ns_waitcnt lgkmcnt(6)")
    for i in range(4):
        for x in range(2): e(f"ds_read2st64_b32 {vr(T+4*i+2*x,2)}, v{cRD if i==0 else 1+i} offset0:{16*lvl+2*x} offset1:{16*lvl+2*x+1}")
    for i in range(4):
        e(f"s_waitcnt lgkmcnt({6-2*i})")
        for j in range(4): e(f"v_and_or_b32 v{T+4*i+j}, v{T+4*i+j}, v{cMSK}, v{cR+j}")
        e(f"buffer_store_dwordx4 {vr(T+4*i,4)}, v{cRA}, {sr(S_RES)}, s{s0} offen{SC}")
        if i < 3: e(f"s_add_u32 s{s0}, s{s0}, 0x40000")

def lo_lookup():
    POLL = 16; NQ = 3
    e("s_cmp_ge_u32 s2, 250\ns_cbranch_scc1 L_nobucket0")
    with rare(): e("L_nobucket0:\ns_waitcnt lgkmcnt(0)\ns_barrier\ns_branch L_nobucket")
    e(f"v_lshlrev_b32 v3, 4, v{vL}\ns_lshl_b32 s{sT0}, s2, 14\ns_add_u32 s{sT0}, s{sT0}, s{sCNT}")
    e(f"s_mov_b32 s{sNT}, 0\ns_mov_b32 s{sEX}, 0x88888888\ns_mov_b32 s{sEX+1}, 0x88888888")
    CW, CN1, CD, CP = DX + 8, DX + 9, DX + 10, DX + 11
    e(f"v_lshlrev_b32 v{CW}, 14, v{vL}\nv_mov_b32 v{CD}, {DUMP}")
    for i in range(4): e(f"v_mov_b32 v{AC+12+i}, 0")
    e("s_waitcnt vmcnt(0)")
    sync_add(0)
    sync_wait(0, 8, 'pub', 1)
    k.stamp(5)
    if DL1: e(f"s_sleep {DL1}")
    e("L_poll1:")
    for h in range(4): e(f"buffer_load_dwordx4 {vr(POLL+4*h,4)}, v3, {sr(S_LIST)}, s{sT0} offen offset:{1024*h}{SC}")
    for h in range(4):
        e(f"s_waitcnt vmcnt({3-h})")
        if h == 0: e(f"v_xor_b32 v4, s{sTAG}, v{POLL+3}")
        else: e(f"v_xor_b32 v5, s{sTAG}, v{POLL+4*h+3}\nv_or_b32 v4, v4, v5")
        e(f"ds_write_b128 v{WA}, {vr(POLL+4*h,4)} offset:{WL+1024*h}")
    e(f"v_cmp_ne_u32 vcc, 0, v4\ns_and_b64 vcc, vcc, s[{sEX}:{sEX+1}]\ns_waitcnt lgkmcnt(0)")
    e("s_cbranch_vccnz L_poll1_again\nL_poll1_ok:")
    with rare():
        e("L_poll1_again:")
        if SL1: e(f"s_sleep {SL1}")
        e(f"s_add_u32 s{sNT}, s{sNT}, 1\ns_cmp_lt_u32 s{sNT}, {LIMIT}\ns_cbranch_scc1 L_poll1")
        for i in range(4): e(f"v_mov_b32 v{POLL+i}, 0\nv_or_b32 v{cR+i}, 0x7fc00000, v{cR+i}")
        for h in range(4): e(f"ds_write_b128 v{WA}, {vr(POLL,4)} offset:{WL+1024*h}")
        e("s_waitcnt lgkmcnt(0)\ns_branch L_poll1_ok")
    k.stamp(6)
    if 'loprio0' in OPT: e("s_setprio 0")
    e(f"ds_read_b128 {vr(EN+12,4)}, v{WA+4} offset:{WL}")
    for g in range(3): e(f"ds_read_b128 {vr(EN+4*g,4)}, v{WA+1+g} offset:{WL}")
    e(f"s_waitcnt lgkmcnt(3)\nv_lshrrev_b32 v2, 1, v{EN+14}\nv_min_u32 v2, 24, v2\nv_mov_b32 v3, v2\ns_nop 1")
    for m in ("row_shr:1", "row_shr:2", "row_shr:4", "row_shr:8"):
        e(f"v_add_u32_dpp v3, v3, v3 {m} row_mask:0xf bank_mask:0xf bound_ctrl:0" .replace(" bound_ctrl:0", "") + "\ns_nop 1")
    e("v_add_u32_dpp v3, v3, v3 row_bcast:15 row_mask:0xa bank_mask:0xf\ns_nop 1\nv_add_u32_dpp v3, v3, v3 row_bcast:31 row_mask:0xc bank_mask:0xf")
    e(f"v_cmp_eq_u32 vcc, 0, v2\nv_readlane_b32 s{sNT}, v3, 63\nv_sub_u32 v3, v3, v2\nv_lshl_add_u32 v3, v3, 2, s{sG+1}\nv_cndmask_b32 v3, v3, v{CD}, vcc")
    e(f"v_cmp_lt_u32 vcc, 16, v2\ns_or_b32 s{sBAD}, vcc_lo, vcc_hi\ns_waitcnt lgkmcnt(0)\ns_cbranch_vccnz L_fl23")
    e(f"v_cmp_lt_u32 vcc, 14, v2\nv_add_u32 v5, {15<<20:#x}, v{CW}\ns_cbranch_vccnz L_fl15\nv_add_u32 v5, {13<<20:#x}, v{CW}\ns_branch L_fl13")
    def put(j):
        e(f"v_or_b32_sdwa v{6+(j&1)}, v5, sext(v{EN+j//2}) dst_sel:DWORD dst_unused:UNUSED_PAD src0_sel:DWORD src1_sel:WORD_{j&1}")
        if j: e(f"v_add_u32 v5, 0xfff00000, v5")
        e(f"ds_write_b32 v3, v{6+(j&1)} offset:{4*j}")
    with rare():
        e(f"L_fl23:\nv_add_u32 v5, {23<<20:#x}, v{CW}")
        for j in range(23, 15, -1): put(j)
        e("s_waitcnt lgkmcnt(0)\ns_branch L_fl15")
    for j in range(15, -1, -1):
        if j in (15, 13): e(f"L_fl{j}:")
        put(j)
        if j == 8: e("s_waitcnt lgkmcnt(4)")
    e(f"v_add_u32 v{cDR+0 if False else 7}, 1024, v{cDR}\nv_mov_b32 v6, v{cDR}\ns_mov_b32 s{sRND}, 0")
    e("s_waitcnt lgkmcnt(3)\nL_round:")
    order = [15, 14, 13, 12] + list(range(12))
    for i, n in enumerate(order):
        e(f"ds_read_b32 v{RM+n}, v{cFL} offset:{128*n}")
        if i == 11: e("s_waitcnt lgkmcnt(8)")
    e(f"s_add_u32 s{sT2}, s{sNT}, 31\ns_lshr_b32 s{sT2}, s{sT2}, 5")
    e(f"s_cmp_eq_u32 s{sT2}, 14\ns_cbranch_scc1 L_d13\ns_cmp_eq_u32 s{sT2}, 13\ns_cbranch_scc1 L_d12\ns_cmp_lt_u32 s{sT2}, 13\ns_cbranch_scc1 L_d0\ns_cmp_eq_u32 s{sT2}, 15\ns_cbranch_scc1 L_d14")
    for n in (15, 14, 13, 12):
        if n < 15: e(f"L_d{n}:")
        decode([n])
    P = opt('pre', 6); R = 12 - P
    e("L_d0:\ns_waitcnt lgkmcnt(8)")
    decode([0, 1, 2, 3][:P]); e("s_waitcnt lgkmcnt(0)")
    if P > 4: decode(list(range(4, min(P, 8))))
    if P > 8: decode(list(range(8, P)))
    dreads(6)
    k.stamp(7)
    e(f"s_cmp_lg_u32 s{sRND}, 0\ns_cbranch_scc1 L_nobar\ns_barrier\nL_nobar:")
    k.stamp(8)
    e(f"s_waitcnt lgkmcnt(0)\nv_mov_b32 v5, 0x1ffc\nv_mov_b32 v6, s{sG+2}")
    dests()
    e(f"s_cmp_eq_u32 s{sT2}, 14\ns_cbranch_scc1 L_s13\ns_cmp_eq_u32 s{sT2}, 13\ns_cbranch_scc1 L_s12\ns_cmp_lt_u32 s{sT2}, 13\ns_cbranch_scc1 L_s0\ns_cmp_eq_u32 s{sT2}, 15\ns_cbranch_scc1 L_s14")
    e("s_branch L_s15")
    def later(i):
        n = order[i]
        return (3 - i) + P if i < 4 else P + min(n, R) - 1 - n
    for i, n in enumerate(order[:5]):
        e(f"L_s{n}:\ns_waitcnt vmcnt({later(i)})"); addrs(n, i & 1); e(f"s_branch L_p{n}")
    for i, n in enumerate(order):
        if i:
            e(f"s_waitcnt vmcnt({later(i)})"); addrs(n, i & 1)
            e("s_waitcnt lgkmcnt(7)"); mf(order[i - 1], (i - 1) & 1)
        if i < 5: e(f"L_p{n}:")
        if i >= 4 and n < R: decode([P + n])
    e("s_waitcnt lgkmcnt(0)"); mf(order[-1], 1)
    scatter_first = True
    for q in (3, 0, 1, 2):
        a_ = AC + 4 * q
        e(f"v_cvt_pk_bf16_f32 v{a_}, v{a_+1}, v{a_}\nv_cvt_pk_bf16_f32 v{a_+2}, v{a_+3}, v{a_+2}")
        e(f"ds_write_b32 v{DX+2*q}, v{a_}\nds_write_b32 v{DX+2*q+1}, v{a_+2}")
    e(f"s_cmp_gt_u32 s{sNT}, 512\ns_cbranch_scc1 L_more")
    with rare():
        e(f"L_more:\ns_sub_u32 s{sNT}, s{sNT}, 512\ns_mov_b32 s{sRND}, 1\nv_add_u32 v{cFL}, 2048, v{cFL}\nv_add_u32 v{cDR}, 2048, v{cDR}\nv_add_u32 v7, 1024, v{cDR}\nv_mov_b32 v6, v{cDR}")
        e("s_waitcnt lgkmcnt(0)")
        for i in range(4): e(f"v_mov_b32 v{AC+12+i}, 0")
        e("s_branch L_round")
    e(f"s_mov_b32 s{sT0}, s{sG+3}")
    res_stores(0, sT0)
    e(f"s_cmp_lg_u32 s{sBAD}, 0\ns_cbranch_scc1 L_res2\nL_res2_ret:")
    with rare():
        e(f"L_res2:\ns_add_u32 s{sT0}, s{sG+3}, {RLV:#x}"); res_stores(1, sT0); e("s_branch L_res2_ret")
    for j in range(4): e(f"v_and_b32 v{cR+j}, 0x80000001, v{cR+j}")
    e(f"s_or_b32 s{sT0}, s2, s{sJ}\ns_cmp_eq_u32 s{sT0}, 0\ns_cbranch_scc1 L_epoch\nL_nobucket:")
    with rare():
        e(f"L_epoch:\ns_mov_b64 exec, 1\nv_mov_b32 v2, {EPOCH:#x}\nv_mov_b32 v3, s{sTAG}\nglobal_store_dword v2, v3, s[{P_WS}:{P_WS+1}]{SC}\ns_mov_b64 exec, -1\ns_branch L_nobucket")
    k.stamp(9)

def hi_lookup():
    e("s_waitcnt lgkmcnt(0)\ns_barrier")
    k.stamp(6)

def final():
    T = 32; X = 48; Y = 64; CN = 80; YA = 84
    e(f"v_lshlrev_b32 v{T}, 4, v0\nv_add_u32 v{T+1}, 0x2000, v{T}\ns_lshl_b32 s{sT0}, s2, 14\ns_add_u32 s{sT1}, s{sT0}, 0x1000")
    e(f"v_mov_b32 v5, {SYNC+16}\nds_read_b32 v6, v5")
    e(f"v_cmp_gt_u32 vcc, 232, v0\ns_mov_b64 s[{sEX}:{sEX+1}], vcc\ns_mov_b32 s{sNT}, 0\nv_mov_b32 v{T+4}, 0")
    for t in range(8): e(f"v_and_b32 v{T+8+t}, 0xffff, v{LOC+t}")
    e(f"s_lshl_b32 s{sT2}, s2, 7\ns_lshl_b32 s{sBAD}, s{sJ}, 5\ns_add_u32 s{sT2}, s{sT2}, s{sBAD}")
    e(f"v_lshrrev_b32 v3, 2, v{vL}\nv_lshlrev_b32 v3, 1, v3\ns_waitcnt lgkmcnt(0)\nv_readfirstlane_b32 s{sRARE}, v6")
    for h in range(4): e(f"v_mov_b32 v{YA+h}, -1")
    e(f"s_cmp_lg_u32 s{sRARE}, 0\ns_cbranch_scc1 L_rare0\nL_rare0_ret:")
    with rare():
        e(f"L_rare0:\nv_and_b32 v4, -4, v0\ns_add_u32 s{sBAD}, s{sT0}, {RLV:#x}\nv_mov_b32 v7, 0x80000000")
        for h in range(4): e(f"ds_read_b32 v{CN+h}, v4 offset:{CNT+256*h}")
        e("s_waitcnt lgkmcnt(0)")
        for h in range(4):
            e(f"v_add_u32 v{CN+h}, -33, v{CN+h}\nv_add_u32 v4, {4096*h}, v{T}\nv_and_or_b32 v{YA+h}, v{CN+h}, v7, v4\nv_ashrrev_i32 v{CN+h}, 31, v{CN+h}")
        e("s_branch L_rare0_ret")
    e("s_waitcnt vmcnt(0)\ns_barrier")
    if DL2: e(f"s_sleep {DL2}")
    e("L_poll2:")
    e(f"s_cmp_lg_u32 s{sRARE}, 0\ns_cbranch_scc1 L_rare1\nL_rare1_ret:")
    with rare():
        e("L_rare1:")
        for h in range(4): e(f"buffer_load_dwordx4 {vr(Y+4*h,4)}, v{YA+h}, {sr(S_RES)}, s{sBAD} offen{SC}")
        e("s_branch L_rare1_ret")
    for h in range(4): e(f"buffer_load_dwordx4 {vr(X+4*h,4)}, v{T+h//2}, {sr(S_RES)}, s{sT0 if h%2==0 else sT1} offen{SC}")
    for h in range(4):
        d = T + 2 if h < 3 else T + 3
        e(f"s_waitcnt vmcnt({3-h})")
        for j in range(4):
            if j == 0 and h in (0, 3): e(f"v_xor_b32 v{d}, v{X+4*h}, v{cR}")
            else: e(f"v_bitop3_b32 v{d}, v{d}, v{X+4*h+j}, v{cR+j} bitop3:0xf6")
        e(f"ds_write_b128 v{T}, {vr(X+4*h,4)} offset:{RS+4096*h}")
    e(f"s_cmp_lg_u32 s{sRARE}, 0\ns_cbranch_scc1 L_rare2\nL_rare2_ret:")
    with rare():
        e("L_rare2:")
        for h in range(4):
            for j in range(4):
                if j == 0: e(f"v_xor_b32 v4, v{Y+4*h}, v{cR}")
                else: e(f"v_bitop3_b32 v4, v4, v{Y+4*h+j}, v{cR+j} bitop3:0xf6")
            e(f"v_bitop3_b32 v{T+2}, v{T+2}, v4, v{CN+h} bitop3:0xf4")
            e(f"ds_write_b128 v{T}, {vr(Y+4*h,4)} offset:{RS+16384+4096*h}")
        e("s_branch L_rare2_ret")
    e(f"v_and_b32 v{T+3}, 0x80000001, v{T+3}\nv_and_b32 v{T+2}, 0x80000001, v{T+2}")
    e(f"v_cmp_ne_u32 vcc, 0, v{T+3}\ns_and_b64 s[{sU}:{sU+1}], vcc, s[{sEX}:{sEX+1}]\nv_cmp_ne_u32 vcc, 0, v{T+2}\ns_or_b64 vcc, vcc, s[{sU}:{sU+1}]")
    e("s_cbranch_vccnz L_poll2_again\nL_poll2_ok:")
    with rare():
        e("L_poll2_again:")
        if SL2: e(f"s_sleep {SL2}")
        e(f"s_waitcnt lgkmcnt(0)\ns_add_u32 s{sNT}, s{sNT}, 1\ns_cmp_lt_u32 s{sNT}, {LIMIT}\ns_cbranch_scc1 L_poll2")
        sync_add(3)
        e("s_branch L_poll2_ok")
    k.stamp(10)
    e("s_waitcnt lgkmcnt(0)\ns_barrier")
    e(f"v_mov_b32 v5, {SYNC+12}\nds_read_b32 v6, v5")
    for t in range(8): e(f"ds_read_b32 v{X+t}, v{T+8+t}")
    for t in range(8):
        e(f"s_waitcnt lgkmcnt({7-t})\nv_and_b32 v{T+t}, 0x7fff0000, v{X+t}\nv_lshlrev_b32 v{X+t}, 16, v{X+t}")
        if t % 2: e(f"v_add_f32 v{T+t-1}, v{T+t-1}, v{T+t}\nv_add_f32 v{X+t-1}, v{X+t-1}, v{X+t}")
        if t % 4 == 3: e(f"v_add_f32 v{T+t-3}, v{T+t-3}, v{T+t-1}\nv_add_f32 v{X+t-3}, v{X+t-3}, v{X+t-1}")
    e(f"v_add_f32 v{T}, v{T}, v{T+4}\nv_add_f32 v{X}, v{X}, v{X+4}\ns_nop 0")
    e(f"v_add_f32_dpp v{T+1}, v{T}, v{T} quad_perm:[1,0,3,2] row_mask:0xf bank_mask:0xf")
    e(f"v_add_f32_dpp v{X+1}, v{X}, v{X} quad_perm:[1,0,3,2] row_mask:0xf bank_mask:0xf")
    e("s_nop 0")
    e(f"v_add_f32_dpp v{T}, v{T+1}, v{T+1} quad_perm:[2,3,0,1] row_mask:0xf bank_mask:0xf")
    e(f"v_add_f32_dpp v{X}, v{X+1}, v{X+1} quad_perm:[2,3,0,1] row_mask:0xf bank_mask:0xf")
    e(f"v_rcp_f32 v{T+1}, v{T}")
    e(f"v_add_u32 v{T+2}, {(-0x17800000)&0xffffffff:#x}, v{T}\nv_mul_f32 v{X}, v{X}, v{T+1}\nv_cmp_gt_u32 vcc, 0x5a000000, v{T+2}")
    e(f"v_and_b32 v{T+3}, 0x7fffffff, v{X}\ns_mov_b64 s[{sEX}:{sEX+1}], vcc\nv_cmp_gt_u32 vcc, 0x7f800000, v{T+3}\nv_cvt_pk_bf16_f32 v{X}, v{X}, v{X}")
    e(f"s_and_b64 s[{sEX}:{sEX+1}], vcc, s[{sEX}:{sEX+1}]\nv_cmp_eq_u32 vcc, 0, v6")
    e(f"s_and_b64 vcc, vcc, s[{sEX}:{sEX+1}]\ns_cmp_eq_u64 vcc, -1\ns_cbranch_scc0 {'L_fallback' if not (OPT & {'nolds','nogather'}) else 'L_fin'}")
    e("s_mov_b32 exec_lo, 0x11111111\ns_mov_b32 exec_hi, 0x11111111")
    e(f"buffer_store_short v{X}, v3, {sr(S_OUT)}, s{sT2} offen")
    e("L_fin:")

def fallback():
    e("L_fallback:")
    A0 = 16; A1 = 20; C0 = 24; C1 = 28; AH = 32; AP = 36; EI = 40; EJ = 48; PK = 56; DD = 60; HK = 68; DS = 72; W16 = 80
    N, Q, IB, M, LL, ACc, T = 100, 101, 102, 103, 104, 105, 106
    e(f"v_and_b32 v{N}, 15, v{vL}\nv_lshrrev_b32 v{Q}, 4, v{vL}")
    e(f"v_lshlrev_b32 v{T}, 9, v{Q}\nv_lshl_add_u32 v{T}, v{N}, 1, v{T}")
    for half in range(2):
        for t in range(8): e(f"buffer_load_ushort v{W16+8*half+t}, v{T}, {sr(S_W)}, 0 offen offset:{t*64+half*32}")
    e(f"v_lshlrev_b32 v{T+1}, 3, v{Q}\nv_lshlrev_b32 v{Q}, 4, v{Q}")
    e(f"global_load_dwordx2 {vr(EI,2)}, v{T+1}, s[{P_B}:{P_B+1}]\nglobal_load_dwordx2 {vr(EI+2,2)}, v{T+1}, s[{P_B}:{P_B+1}] offset:32")
    e(f"global_load_dwordx2 {vr(AH,2)}, v{T+1}, s[{P_H}:{P_H+1}]\nglobal_load_dwordx2 {vr(AH+2,2)}, v{T+1}, s[{P_H}:{P_H+1}] offset:32")
    e(f"global_load_dwordx4 {vr(AP,4)}, v{Q}, s[{P_P}:{P_P+1}]")
    e(f"s_lshl_b32 s{sU}, s2, 6\ns_lshl_b32 s{sT1}, s{sJ}, 4\ns_add_u32 s{sU}, s{sU}, s{sT1}\nv_add_u32 v{IB}, s{sU}, v{N}\nv_mul_u32_u24 v{IB}, 104, v{IB}")
    e("s_waitcnt vmcnt(0)")
    for half in range(2):
        for t in range(4): e(f"v_lshl_or_b32 v{A0+4*half+t}, v{W16+8*half+2*t+1}, 16, v{W16+8*half+2*t}")
    for i in range(4): e(f"v_lshlrev_b32 v{C0+2*i}, 16, v{EI+i}\nv_and_b32 v{C0+2*i+1}, 0xffff0000, v{EI+i}")
    e(f"v_mov_b32 v{M}, 0xff800000\nv_mov_b32 v{LL}, 0\nv_mov_b32 v{ACc}, 0")
    e(f"s_mov_b32 s{sU}, 0")
    def getrow(dst, soff):
        e(f"buffer_load_dword v{T}, v{IB}, {sr(S_IDX)}, s{soff} offen\ns_waitcnt vmcnt(0)")
        e(f"v_lshl_add_u32 v{T}, v{T}, 6, v{Q}\nbuffer_load_dwordx4 {vr(dst+4,4)}, v{T}, {sr(S_TABL)}, 0 offen\ns_waitcnt vmcnt(0)")
        for t in range(4): e(f"v_lshlrev_b32 v{dst+2*t}, 16, v{dst+4+t}\nv_and_b32 v{dst+2*t+1}, 0xffff0000, v{dst+4+t}")
    e("L_fb_i:")
    getrow(EI, sU)
    e(f"s_add_u32 s{sCNT}, s{sU}, 4")
    e("L_fb_j:")
    getrow(EJ, sCNT)
    for t in range(8): e(f"v_mul_f32 v{EJ+t}, v{EJ+t}, v{EI+t}")
    for t in range(4): e(f"v_cvt_pk_bf16_f32 v{PK+t}, v{EJ+2*t}, v{EJ+2*t+1}")
    e("s_nop 1")
    e(f"v_mfma_f32_16x16x32_bf16 {vr(DD,4)}, {vr(A0,4)}, {vr(PK,4)}, {vr(C0,4)}")
    e(f"v_mfma_f32_16x16x32_bf16 {vr(DD+4,4)}, {vr(A1,4)}, {vr(PK,4)}, {vr(C1,4)}")
    e(f"v_mfma_f32_16x16x32_bf16 {vr(DS,4)}, {vr(AP,4)}, {vr(PK,4)}, 0")
    e("s_nop 7")
    for t in range(4): e(f"v_cvt_pk_bf16_f32 v{HK+t}, v{DD+2*t}, v{DD+2*t+1}")
    for t in range(4): e(f"v_pk_max_i16 v{HK+t}, v{HK+t}, 0")
    e("s_nop 1")
    e(f"v_mfma_f32_16x16x32_bf16 {vr(DD,4)}, {vr(AH,4)}, {vr(HK,4)}, 0")
    e("s_nop 7")
    e(f"v_mul_f32 v{DD}, 0x3fb8aa3b, v{DD}\nv_max_f32 v{DD+1}, v{M}, v{DD}\nv_sub_f32 v{DD+2}, v{M}, v{DD+1}\nv_sub_f32 v{DD+3}, v{DD}, v{DD+1}")
    e(f"v_exp_f32 v{DD+2}, v{DD+2}\nv_exp_f32 v{DD+3}, v{DD+3}\nv_mov_b32 v{M}, v{DD+1}")
    e(f"v_fma_f32 v{LL}, v{LL}, v{DD+2}, v{DD+3}\nv_mul_f32 v{ACc}, v{ACc}, v{DD+2}\nv_fma_f32 v{ACc}, v{DD+3}, v{DS}, v{ACc}")
    e(f"s_add_u32 s{sCNT}, s{sCNT}, 4\ns_cmp_lt_u32 s{sCNT}, 104\ns_cbranch_scc1 L_fb_j")
    e(f"s_add_u32 s{sU}, s{sU}, 4\ns_cmp_lt_u32 s{sU}, 100\ns_cbranch_scc1 L_fb_i")
    e(f"v_rcp_f32 v{LL}, v{LL}\nv_lshlrev_b32 v{N}, 1, v{N}\nv_mul_f32 v{ACc}, v{ACc}, v{LL}\nv_cvt_pk_bf16_f32 v{ACc}, v{ACc}, v{ACc}")
    e("s_mov_b64 exec, 0xffff")
    e(f"buffer_store_short v{ACc}, v{N}, {sr(S_OUT)}, s{sT2} offen")
    e("s_branch L_fin")

B_ = 8; A_ = 72; A5 = 104; CB = 120; HQ = 184; D_ = 200; ACC = 232; INIT = 248; TW = 249

PREF = 'nopref' not in OPT
NB0 = opt('nb0', 4); NB1 = opt('nb1', 8); CL0 = opt('cl0', 5)
def flag_store(nm, n):
    sync_wait(0, 8, nm)
    e(f"s_waitcnt vmcnt(0) lgkmcnt(0)\ns_add_u32 s{sTAG}, s{sTAG}, 0x9e3779b1\ns_lshl_b32 s{sT0}, s2, 4\ns_lshl_b32 s{sT1}, s{sU}, 2\ns_add_u32 s{sT0}, s{sT0}, s{sT1}\ns_add_u32 s{sT0}, s{sT0}, {FLG:#x}")
    e(f"v_mov_b32 v6, s{sT0}\nv_mov_b32 v7, s{sTAG}\ns_mov_b64 exec, 1\nglobal_store_dword v6, v7, s[{P_WS}:{P_WS+1}]{SC}\ns_mov_b64 exec, -1")

def hi():
    WV = 120; TP = 136; TU = 144; T = 184
    e("L_hi:")
    e(f"v_lshrrev_b32 v252, 5, v{vL}\nv_and_b32 v253, 7, v{vL}")
    e(f"v_lshlrev_b32 v4, 10, v252\nv_lshl_add_u32 v4, v253, 1, v4")
    e(f"v_bfe_u32 v5, v{vL}, 3, 2\nv_lshlrev_b32 v5, 6, v5\nv_lshl_add_u32 v5, v252, 5, v5")
    e(f"v_and_b32 v6, 31, v{vL}\nv_lshlrev_b32 v7, 6, v6\nv_lshlrev_b32 v6, 1, v6")
    e(f"v_lshl_add_u32 v250, v252, 5, v7\nv_add_u32 v251, 4096, v250")
    e(f"s_lshl_b32 s{sT0}, s{sU}, 4\ns_lshl_b32 s{sT1}, s2, 8\ns_lshl_b32 s{sT2}, s2, 14")
    e(f"v_add_u32 v3, -4096, v3")
    e("s_waitcnt lgkmcnt(0)")
    k.srd(S_TABL, P_TAB, 64000)
    k.srd(S_W, P_W, 2048)
    vm = []
    def vmem(lab, txt): e(txt); vm.append(lab)
    def vneed(lab): return len(vm) - 1 - max(i for i, x in enumerate(vm) if x == lab)
    e("s_cmp_ge_u32 s2, 250\ns_cbranch_scc1 L_hi_skip")
    vmem('s', f"buffer_load_dwordx4 {vr(TP,4)}, v5, {sr(S_TABL)}, s{sT1} offen")
    vmem('s', f"buffer_load_short_d16_hi v{WV}, v4, {sr(S_W)}, s{sT0} offen")
    vmem('s', f"global_load_short_d16_hi v{T+1}, v6, s[{P_B}:{P_B+1}]")
    vmem('s', f"global_load_short_d16_hi v{T+2}, v6, s[{P_H}:{P_H+1}]")
    e(f"s_load_dword s{sTAG}, s[{P_WS}:{P_WS+1}], {EPOCH:#x}")
    if PRE:
        e(f"v_and_b32 v2, 7, v{vL}\nv_lshlrev_b32 v2, 21, v2\nv_add_u32 v2, 0x1fff80, v2")
        vmem('s', f"global_load_dword v2, v2, s[{P_WS}:{P_WS+1}]")
    e("s_barrier")
    vmem('s', f"buffer_load_dwordx4 {vr(TP+4,4)}, v5, {sr(S_TABL)}, s{sT1} offen offset:16")
    for t in range(1, 16): vmem('s', f"buffer_load_short_d16_hi v{WV+t}, v4, {sr(S_W)}, s{sT0} offen offset:{t*64}")
    e(f"s_lshl_b32 s{sG}, s{sU}, 14\ns_add_u32 s{sG+1}, s{sG}, 0x2000")
    def bload(n):
        b, ks = n // 2, n % 2
        vmem(f"b{b//2}", f"buffer_load_dwordx4 {vr(B_+8*b+4*ks,4)}, v{250+(b//2)%2}, {sr(S_TABL)}, s{sG if b<4 else sG+1} offen offset:{(b%2)*2048+ks*16}")
    for n in range(NB0): bload(n)
    k.srd(S_RES, P_WS, 0x800000, R0)
    k.srd(S_ROW, P_WS, 0x100000, ROW0)
    def clear(h):
        vmem('c', f"buffer_store_dwordx4 {'v[240:243]' if CL0 < 0 else 'v[252:255]'}, v3, {sr(S_RES)}, s{sT2} offen{SC}")
        if h < 3: e(f"s_add_u32 s{sT2}, s{sT2}, 0x1000")
    def prefetch():
        e(f"s_getpc_b64 s[{sEX}:{sEX+1}]\nL_pc:\ns_sub_u32 s{sEX}, s{sEX}, L_pc-{KN}\ns_subb_u32 s{sEX+1}, s{sEX+1}, 0")
        e(f"v_lshlrev_b32 v6, 3, v3\nv_min_u32 v6, L_code_end-{KN}-4, v6\nv_mov_b32 v7, s{sEX+1}\nv_add_co_u32 v6, vcc, s{sEX}, v6\ns_nop 1\nv_addc_co_u32 v7, vcc, 0, v7, vcc")
        vmem('p', "global_load_dword v2, v[6:7], off")
    with rare(): e("L_hi_skip:\ns_barrier\ns_branch L_hi_done")
    e(f"s_lshl_b32 s{sT0}, s{sU}, 11\nv_lshlrev_b32 v4, 4, v{vL}\nv_add_u32 v5, s{sT0}, v4\nv_cmp_gt_u32 vcc, 32, v{vL}\nv_lshlrev_b32 v7, 2, v{vL}")
    e(f"s_lshl_b32 s{sT0}, s{sU}, 12\nv_add_u32 v{TW}, s{sT0}, v4")
    if PREF and opt('pf', 4) < 0:
        e("v_mov_b32 v254, v7"); prefetch(); e(f"v_mov_b32 v7, v254\nv_cmp_gt_u32 vcc, 32, v{vL}")
    e(f"s_waitcnt vmcnt({vneed('s')})")
    k.stamp(2)

    for t in range(8): e(f"v_lshlrev_b32 v{TU+2*t}, 16, v{TP+t}\nv_and_b32 v{TU+2*t+1}, 0xffff0000, v{TP+t}")
    for t in range(16): e(f"v_mul_f32 v{WV+t}, v{WV+t}, v{TU+t}")
    for t in range(8): e(f"v_cvt_pk_bf16_f32 v{TP+t}, v{WV+2*t}, v{WV+2*t+1}")
    e(f"ds_write_b128 v5, {vr(TP,4)} offset:{AIMG}\nds_write_b128 v5, {vr(TP+4,4)} offset:{AIMG+1024}")
    e(f"v_mul_f32 v{T+2}, {LOG2E_HALF:#x}, v{T+2}\nv_cndmask_b32 v6, v{T+2}, v{T+1}, vcc\nds_write_b32 v7, v6 offset:{BH}")
    for n in range(NB0, NB1): bload(n)
    e("s_waitcnt lgkmcnt(0)")
    sync_add(1)
    sync_wait(1, 4, 'hi')
    e("v_lshlrev_b32 v5, 4, v252")
    k.stamp(3)
    for i in range(2): e(f"ds_read_b128 {vr(A_+4*i,4)}, v4 offset:{AIMG+1024*i}")
    for i in range(4): e(f"ds_read_b128 {vr(CB+4*i,4)}, v5 offset:{BH}")
    for g in range(4): e(f"ds_read_b128 {vr(HQ+4*g,4)}, v5 offset:{BH+128+32*g}")
    for g in range(1, 4): e(f"ds_read_b128 {vr(CB+16*g,4)}, v5 offset:{BH+32*g}")
    e(f"s_waitcnt vmcnt({vneed('b0')}) lgkmcnt(7)")
    later = []
    for g in range(1, 4):
        later += [f"ds_read_b128 {vr(A_+8*g+4*i,4)}, v4 offset:{AIMG+1024*(2*g+i)}" for i in range(2)]
        later += [f"ds_read_b128 {vr(CB+16*g+4*i,4)}, v5 offset:{BH+32*g}" for i in range(1, 4)]
    steps = []
    for bp in range(4): steps += [('r', bp, g, b) for g in range(4) for b in range(2)] + [('x', bp, 0, 0)]
    NS = len(steps)
    def mms(s):
        kind, bp, g, b = steps[s]; d = D_ + 16 * (s % 2)
        if kind == 'r':
            bb = B_ + 8 * (2 * bp + b)
            return [f"v_mfma_f32_32x32x16_bf16 {vr(d,16)}, {vr(A_+8*g,4)}, {vr(bb,4)}, {vr(CB+16*g,16)}",
                    f"v_mfma_f32_32x32x16_bf16 {vr(d,16)}, {vr(A_+8*g+4,4)}, {vr(bb+4,4)}, {vr(d,16)}"]
        return [f"v_mfma_f32_32x32x16_bf16 {vr(d,16)}, {vr(A5+8*b2+4*ks,4)}, {vr(B_+8*(2*bp+b2)+4*ks,4)}, {'0' if b2+ks==0 else vr(d,16)}"
                for b2 in range(2) for ks in range(2)]
    def valu(s):
        kind, bp, g, b = steps[s]; d = D_ + 16 * (s % 2); X = ACC + 8 * (bp % 2); Y = X + 4
        if kind == 'r':
            a = X + 4 * b
            return [f"v_fma_f32 v{a+v}, v{HQ+4*g+r}, |v{d+4*v+r}|, " + (f"-v{INIT}" if g == 0 and r == 0 else f"v{a+v}") for r in range(4) for v in range(4)]
        o = [f"v_permlane32_swap_b32 v{X+v}, v{Y+v}" for v in range(4)]
        o += [f"v_add_f32 v{X+v}, v{X+v}, v{Y+v}" for v in range(4)]
        o += [f"v_add_f32 v{X+v}, v{X+v}, v{d+4*v}" for v in range(4)]
        o += [f"v_exp_f32 v{X+v}, v{X+v}" for v in range(4)]
        o += [f"v_mul_f32 v{Y+v}, v{X+v}, v{d+4*v+1}" for v in range(4)]
        o += [f"v_cvt_pk_bf16_f32 v{X+v}, v{Y+v}, v{X+v}" for v in range(4)]
        o += [f"ds_write_b128 v{TW}, {vr(X,4)} offset:{TAB+16+1024*bp}"]
        return o
    m = mms(0)
    e(m[0])
    for x in later[:5]: e(x)
    e(m[1])
    e("s_waitcnt lgkmcnt(5)")
    for x in later[5:10]: e(x)
    e(f"v_mul_f32 v{INIT}, v{HQ}, |v{CB}|")
    for g in range(4):
        for r in range(4):
            if g or r: e(f"v_fma_f32 v{INIT}, v{HQ+4*g+r}, |v{CB+16*g+r}|, v{INIT}")
    nb_next = [NB1]
    for s in range(NS):
        v = valu(s); m = mms(s + 1) if s + 1 < NS else []
        if s + 1 < NS:
            kind, bp, g, b = steps[s + 1]
            if bp == 0 and kind == 'r' and b == 0 and g == 1: e("s_waitcnt lgkmcnt(5)"); [e(x) for x in later[10:15]]
            if bp == 0 and kind == 'r' and b == 0 and g == 2: e("s_waitcnt lgkmcnt(5)")
            if bp == 0 and kind == 'r' and b == 0 and g == 3:
                sync_wait(0, 4, 'a5')
                for i in range(4): e(f"ds_read_b128 {vr(A5+4*i,4)}, v4 offset:{AIMG+8192+1024*i}")
            if bp == 0 and kind == 'x': e("s_waitcnt lgkmcnt(0)")
            if kind == 'r' and g == 0 and b == 0 and bp > 0:
                e(f"s_waitcnt vmcnt({vneed(f'b{bp}')})"); k.stamp({1: 4, 2: 8, 3: 10}[bp])
            if bp == 0 and kind == 'r' and b == 0 and g == 3: k.stamp(1)

        if nb_next[0] < 16: bload(nb_next[0]); bload(nb_next[0] + 1); nb_next[0] += 2
        if s == opt('pf', 4) and PREF: prefetch()
        if len(m) == 2:
            n = 6 if steps[s][0] == 'x' else 5
            e(m[0]); [e(x) for x in v[:n]]; e(m[1]); [e(x) for x in v[n:]]
        elif len(m) == 4:
            e(m[0]); [e(x) for x in v[:4]]; e(m[1]); [e(x) for x in v[4:8]]; e(m[2]); [e(x) for x in v[8:12]]; e(m[3]); [e(x) for x in v[12:]]
        else:
            e("s_nop 1"); [e(x) for x in v]
    k.stamp(5)
    hi_lookup()
    e("L_hi_done:")

def finish():
    if STAMP:
        e(f"{CLK} s[{sH}:{sH+1}]\ns_waitcnt lgkmcnt(0)\ns_mov_b64 exec, 1")
        e(f"s_lshl_b32 s{sT0}, s2, 3\ns_add_u32 s{sT0}, s{sT0}, s{sJ}\ns_lshl_b32 s{sT0}, s{sT0}, 7\ns_add_u32 s{sT0}, s{sT0}, {STAMP0:#x}")
        e(f"v_mov_b32 v2, s{sT0}")
        for i in range(NST): e(f"v_mov_b32 v3, s{sST+2*i}\nglobal_store_dword v2, v3, s[{P_WS}:{P_WS+1}] offset:{4*i}")
        e(f"v_mov_b32 v3, s{sH}\nglobal_store_dword v2, v3, s[{P_WS}:{P_WS+1}] offset:{4*NST}")
        e(f"v_mov_b32 v3, {NST+1}\nglobal_store_dword v2, v3, s[{P_WS}:{P_WS+1}] offset:124")
    e("s_endpgm")

if STAMP:
    for i in range(NST): e(f"s_mov_b64 s[{sST+2*i}:{sST+2*i+1}], 0")
prologue()
route()
lo_lookup()
final()
finish()
hi()
finish()
e("L_end:\ns_endpgm")
with rare(): fallback()
hazard.check(k.L); hazard.check(k.tail)
src = HEADER + f"; @launch grid=(256,1,1) block=(512,1,1) lds={LDS_BYTES}\n"
src += f'.amdgcn_target "amdgcn-amd-amdhsa--gfx950"\n.text\n.globl {KN}\n.p2align 8\n.type {KN},@function\n{KN}:\n'
src += "\n".join(k.L) + "\n" + "\n".join(k.tail) + "\nL_code_end:\n"
src += '.section .rodata,"a"\n' + kd(KN, 256, 102)
open(sys.argv[1], "w").write(src)
print("lds", LDS_BYTES)
```

```python
import sys
from common import *
import hazard

OPT = set(sys.argv[2].split(',')) if len(sys.argv) > 2 else set()
def opt(name, d):
    for o in OPT:
        if o.startswith(name + '='): return int(o.split('=')[1])
    return d
STAMP = 'stamp' in OPT
NGLO = opt('nglo', 3)
CLK = 's_memtime' if 'cyc' in OPT else 's_memrealtime'
DL1, DL2, SL1, SL2 = opt('dl1', 0), opt('dl2', 0), opt('sl1', 0), opt('sl2', 0)
PRE = 'nopre' not in OPT

EPOCH, L0, ROW0, R0, R1 = 0x0, 0x10000, 0x400000, 0x800000, 0xC00000
STAMP0 = 0x1000000
FLG = 0x1000
TAB, CNT, BH, GP, AIMG, LIMG, WL = 0, 0x4100, 0x4500, 0x4600, 0x5000, 0x8000, 0xC000
RS = LIMG
NANW = 0x4080
ROWPF = 'rowpf' in OPT
SYNC = CNT + 1004
LIMIT = 0x4000
RLV = 0x400000
FL = 0x10000; FLS = 6656; RIM = 0x18000; NW = 0x4090; DUMP = 0x4C00
LDS_BYTES = RIM + 4 * 8192
S_IDX, S_TABL, S_W, S_LIST, S_ROW, S_RES, S_OUT = 4, 8, 12, 16, 20, 24, 28
sG = 32
P_IDX, P_TAB, P_W, P_B, P_H, P_P, P_OUT, P_WS = 36, 38, 40, 42, 44, 46, 48, 50
sJ, sRARE, sTAG, sT2, sT0, sT1, sNT, sBAD, sU, sCNT = 52, 53, 54, 55, 56, 57, 58, 59, 60, 61
sEX = 62
sRND = 3
sH = 64
sST = 80
NST = 11
LOG2E_HALF = 0x3f38aa3b
vL = 1
SC = " sc1"
KN = NAME + "_kernel"

class K:
    def __init__(s): s.L = []; s.tail = []; s.cur = s.L
    def e(s, x):
        for ln in x.split('\n'):
            ln = ln.strip()
            if ln: s.cur.append(ln if ln.endswith(':') else '    ' + ln)
    def stamp(s, i):
        if STAMP: s.e(f"{CLK} s[{sST+2*i}:{sST+2*i+1}]")
    def srd(s, d, p, n, off=0):
        if off: s.e(f"s_add_u32 s{d}, s{p}, {off:#x}\ns_addc_u32 s{d+1}, s{p+1}, 0")
        else: s.e(f"s_mov_b64 s[{d}:{d+1}], s[{p}:{p+1}]")
        s.e(f"s_mov_b32 s{d+2}, {n:#x}\ns_mov_b32 s{d+3}, 0x00020000")
k = K(); e = k.e
def vr(a, n): return f"v[{a}:{a+n-1}]"
def sr(a): return f"s[{a}:{a+3}]"
class rare:
    def __enter__(s): s.old = k.cur; k.cur = k.tail
    def __exit__(s, *a): k.cur = s.old

LOC = 8
G = 16; RM = 80; EN = 96; TQ = 112; AS = 166; AC = 182; BQ = 230; DX = 202
cA, cOFF, cBIT, cWR, cFL, cMSK = 246, 247, 248, 249, 250, 251
cR = 252
cAM, cDR, cRD, cRA = 198, 199, 200, 201
WA = 140

def prologue():
    e("s_cmp_ge_u32 s2, 256\ns_cbranch_scc1 L_end")
    k.stamp(0)
    e(f"s_load_dwordx4 s[{P_IDX}:{P_IDX+3}], s[0:1], 0")
    e(f"s_load_dwordx2 s[{P_WS}:{P_WS+1}], s[0:1], 80")
    e(f"s_load_dwordx8 s[{P_W}:{P_W+7}], s[0:1], 32")
    e(f"s_load_dwordx2 s[{P_OUT}:{P_OUT+1}], s[0:1], 64")
    e(f"v_lshrrev_b32 v2, 6, v0\nv_and_b32 v{vL}, 63, v0")
    e(f"v_readfirstlane_b32 s{sJ}, v2")
    e("v_mov_b32 v240, -1\nv_mov_b32 v241, -1\nv_mov_b32 v242, -1\nv_mov_b32 v243, -1")
    e(f"v_lshlrev_b32 v3, 4, v0\nds_write_b128 v3, v[240:243] offset:{LIMG}\nds_write_b128 v3, v[240:243] offset:{LIMG+8192}")
    e(f"s_and_b32 s{sU}, s{sJ}, 3\ns_cmp_ge_u32 s{sJ}, 4\ns_cbranch_scc1 L_hi")

def sync_add(i):
    e(f"v_mov_b32 v5, {SYNC+4*i}\nv_mov_b32 v6, 1\ns_mov_b64 exec, 1\nds_add_u32 v5, v6\ns_mov_b64 exec, -1")
def sync_wait(i, n, nm, sleep=0):
    e(f"v_mov_b32 v5, {SYNC+4*i}\nL_sync_{nm}:")
    if sleep: e(f"s_sleep {sleep}")
    e(f"ds_read_b32 v6, v5\ns_waitcnt lgkmcnt(0)\nv_cmp_gt_u32 vcc, {n}, v6\ns_cbranch_vccnz L_sync_{nm}")

def make_loc(KK, C4, full):
    e(f"v_mov_b32 v7, {RS}")
    if full: e(f"v_mov_b32 v6, {NANW}\nv_mov_b32 v4, -1\nds_write_b32 v6, v4")
    for t in range(8):
        if t == 2: e("s_mov_b32 exec_lo, 0x77777777\ns_mov_b32 exec_hi, 0x77777777")
        if full:
            e(f"v_and_b32 v4, 30, v{KK+t}\nv_lshlrev_b32 v5, 3, v{C4+t}\nv_add_lshl_u32 v4, v4, v5, 1\nv_cmp_le_u32 vcc, 48, v{KK+t}")
            e(f"v_lshrrev_b32 v5, 5, v{KK+t}\nv_lshlrev_b32 v5, 14, v5\nv_add3_u32 v4, v4, v5, v7\nv_cndmask_b32 v{LOC+t}, v4, v6, vcc")
        else:
            e(f"v_lshl_add_u32 v4, v{C4+t}, 3, v{KK+t}\nv_lshl_add_u32 v{LOC+t}, v4, 1, v7")
    e("s_mov_b64 exec, -1")

def lookup_consts():
    e(f"v_and_b32 v4, 15, v{vL}\nv_bfe_u32 v5, v{vL}, 4, 1\nv_lshrrev_b32 v{cBIT}, 5, v{vL}")
    e(f"s_mul_i32 s{sG+1}, s{sU}, {FLS}\ns_add_u32 s{sG+1}, s{sG+1}, {FL}\ns_lshl_b32 s{sG}, s{sU}, 18\ns_lshl_b32 s{sG+2}, s{sU}, 13\ns_add_u32 s{sG+2}, s{sG+2}, {RIM}")
    e(f"v_and_b32 v{cFL}, 31, v{vL}\nv_lshl_add_u32 v{cFL}, v{cFL}, 2, s{sG+1}")
    e(f"v_lshrrev_b32 v7, 4, v{vL}\nv_lshl_add_u32 v{cDR}, v7, 5, v4\nv_lshl_add_u32 v{cDR}, v{cDR}, 2, s{sG+1}")
    e(f"v_add_u32 v{cA}, -1, v{cBIT}\nv_and_b32 v{cA}, 0xffff0000, v{cA}")
    e(f"v_mul_u32_u24 v{cOFF}, 12, v{cBIT}\nv_mul_i32_i24 v{cWR}, -52, v{cBIT}\nv_mov_b32 v{cMSK}, 0x7ffffffe\nv_mov_b32 v{cAM}, 0x2003fffc")
    e(f"v_and_b32 v6, 1, v4\nv_lshlrev_b32 v6, 4, v6\nv_lshrrev_b32 v6, v6, 1.0")
    e(f"v_bfe_u32 v7, v4, 1, 1\nv_xor_b32 v7, v7, v5\nv_add_u32 v7, -1, v7\nv_and_b32 v6, v6, v7\nv_lshrrev_b32 v7, 2, v4")
    for q in range(4):
        e(f"v_xor_b32 v4, {q}, v7\nv_add_u32 v4, -1, v4\nv_ashrrev_i32 v4, 31, v4\nv_and_b32 v{AS+4*q}, v4, v6")
        for i in range(1, 4): e(f"v_mov_b32 v{AS+4*q+i}, v{AS+4*q}")
    e(f"v_mov_b32 v{BQ+7}, 0\nv_mov_b32 v{BQ+15}, 0")
    e(f"v_and_b32 v4, 3, v{vL}\nv_lshrrev_b32 v5, 2, v{vL}\nv_lshlrev_b32 v{cRD}, 10, v4\nv_lshl_add_u32 v{cRD}, v5, 2, v{cRD}\nv_add_u32 v{cRD}, s{sG+2}, v{cRD}")
    e(f"v_lshlrev_b32 v4, 4, v4\nv_lshl_add_u32 v{cRA}, v5, 14, v4")
    e(f"s_lshl_b32 s{sG+3}, s{sU}, 20\ns_lshl_b32 s{sT0}, s2, 6\ns_add_u32 s{sG+3}, s{sG+3}, s{sT0}")

def res_tags(lane_expr):
    e(f"s_and_b32 s{sT0}, s{sTAG}, 255\ns_xor_b32 s{sT1}, s{sTAG}, 1\ns_and_b32 s{sT1}, s{sT1}, 3\ns_lshl_b32 s{sT1}, s{sT1}, 8\ns_or_b32 s{sT0}, s{sT0}, s{sT1}")
    e(f"s_lshr_b32 s{sT1}, s{sTAG}, 8\ns_lshl_b32 s{sT1}, s{sT1}, 10\ns_or_b32 s{sT0}, s{sT0}, s{sT1}")
    e(lane_expr)
    e(f"v_lshlrev_b32 v4, 3, v4\nv_lshrrev_b32 v4, v4, s{sT0}")
    for j in range(4): e(f"v_bfe_u32 v5, v4, {2*j}, 2\nv_alignbit_b32 v{cR+j}, v5, v5, 1")

PM = opt('pm', 0)
def pre_addr():
    sh = opt('psh', 21); n = (1 << (24 - sh)) - 1
    e(f"v_and_b32 v2, {min(n,63)}, v{vL}\nv_lshlrev_b32 v2, {sh}, v2\nv_add_u32 v2, {(1<<sh)-128:#x}, v2")

def route():
    V = 16; KK = 24; C4 = 32; RW = 40; EB = 44; T = 52
    TP = 64; TU = 72; WR = 88; WV = 104; MU = 120; PP = 128
    e("s_setprio 2")
    e(f"v_mov_b32 v4, 0\nv_lshlrev_b32 v5, 2, v0\nds_write_b32 v5, v4 offset:{CNT}\nv_and_b32 v5, 12, v5\nds_write_b32 v5, v4")
    e(f"v_lshrrev_b32 v{T}, 2, v0\nv_and_b32 v{T+1}, 3, v0\nv_lshlrev_b32 v{T+1}, 2, v{T+1}")
    e(f"v_mul_u32_u24 v{T+2}, 104, v{T}\ns_mul_i32 s{sT1}, s2, 6656")
    for t in range(4):
        e(f"v_add_u32 v{EB+2*t}, {t}, v{T+1}\nv_add_u32 v{T+3}, {t-13}, v{T+1}\nv_min_u32 v{EB+2*t}, v{EB+2*t}, v{T+3}")
        e(f"v_lshl_add_u32 v{T+4+t}, v{EB+2*t}, 3, v{T+2}")
    if PM == 2: pre_addr()
    e("s_waitcnt lgkmcnt(0)")
    if PM == 2: e(f"global_load_dword v129, v2, s[{P_WS}:{P_WS+1}]")
    k.srd(S_IDX, P_IDX, 16384 * 104)
    for t in range(4): e(f"buffer_load_dwordx2 {vr(V+2*t,2)}, v{T+4+t}, {sr(S_IDX)}, s{sT1} offen")
    e(f"s_load_dword s{sTAG}, s[{P_WS}:{P_WS+1}], {EPOCH:#x}")
    e(f"s_load_dwordx16 s[{sH}:{sH+15}], s[{P_H}:{P_H+1}], 0")
    e("s_barrier")
    k.srd(S_TABL, P_TAB, 64000)
    k.srd(S_W, P_W, 2048)
    e(f"v_lshrrev_b32 v130, 5, v{vL}\nv_and_b32 v131, 7, v{vL}")
    e(f"v_bfe_u32 v5, v{vL}, 3, 2\nv_lshlrev_b32 v5, 6, v5\nv_lshl_add_u32 v5, v130, 5, v5")
    e(f"v_and_b32 v6, 31, v{vL}\nv_lshlrev_b32 v7, 6, v6\nv_lshlrev_b32 v6, 1, v6\ns_lshl_b32 s{sT1}, s2, 8\ns_lshr_b32 s{sT2}, s{sU}, 1\ns_lshl_b32 s{sT0}, s{sT2}, 4\ns_add_u32 s{sT1}, s{sT1}, s{sT0}")
    e(f"buffer_load_dwordx4 {vr(TP,4)}, v5, {sr(S_TABL)}, s{sT1} offen")
    for t in range(4): e(f"buffer_load_dwordx4 {vr(WR+4*t,4)}, v7, {sr(S_W)}, 0 offen offset:{16*t}")
    e(f"global_load_short_d16_hi v{PP}, v6, s[{P_P}:{P_P+1}]")
    e(f"s_mul_i32 s{sT0}, s{sU}, 384\nv_lshlrev_b32 v132, 2, v{vL}\nv_add_u32 v132, s{sT0}, v132")
    e(f"v_mov_b32 v4, 0\nv_lshl_add_u32 v7, v6, 1, s{sT0}\nds_write_b32 v7, v4 offset:{GP+256}")
    e(f"s_and_b32 s{sT1}, s{sU}, 1\ns_lshl_b32 s{sNT}, s{sT1}, 2\nv_subrev_u32 v133, s{sNT}, v131\nv_min_u32 v133, 2, v133\nv_lshlrev_b32 v133, 7, v133\nv_lshl_add_u32 v133, v130, 6, v133")
    e(f"s_lshl_b32 s{sNT}, s{sT2}, 5\ns_add_u32 s{sT0}, s{sT0}, s{sNT}\nv_add_u32 v133, s{sT0}, v133")
    e(f"s_lshl_b32 s{sT1}, s{sT1}, 1\ns_add_u32 s{sT1}, s{sT1}, s{sT2}\ns_lshl_b32 s{sT1}, s{sT1}, 10\nv_lshlrev_b32 v134, 4, v{vL}\nv_add_u32 v134, s{sT1}, v134")
    k.srd(S_ROW, P_WS, 0x100000, ROW0)
    k.srd(S_LIST, P_WS, 250 * 16384, L0)
    k.srd(S_RES, P_WS, 0x800000, R0)
    k.srd(S_OUT, P_OUT, 32768)
    e(f"v_lshlrev_b32 v{T+3}, 8, v{T}")
    for t in range(4):
        e(f"v_add_u32 v4, 6, v{EB+2*t}\nv_lshl_or_b32 v{EB+2*t+1}, v{EB+2*t}, 4, v{T+3}")
        e(f"v_lshrrev_b32 v4, 4, v4\nv_lshl_or_b32 v{EB+2*t+1}, v4, 1, v{EB+2*t+1}\nv_or_b32 v{EB+2*t}, 1, v{EB+2*t+1}")
    for t in range(8): e(f"v_mov_b32 v{LOC+t}, 0\nv_mov_b32 v{KK+t}, 0")
    lookup_consts()
    e(f"s_lshl_b32 s{sCNT}, s{sU}, 12\nv_lshrrev_b32 v4, 4, v{vL}\nv_xor_b32 v4, v4, v{vL}\nv_and_b32 v4, 3, v4\nv_and_b32 v5, 60, v{vL}\nv_or_b32 v4, v4, v5\nv_lshl_add_u32 v{WA}, v4, 4, s{sCNT}")
    e(f"v_lshrrev_b32 v4, 2, v{vL}\nv_lshl_add_u32 v5, v{vL}, 6, s{sCNT}")
    for g in range(4): e(f"v_xor_b32 v6, {g}, v4\nv_and_b32 v6, 3, v6\nv_lshl_add_u32 v{WA+1+g}, v6, 4, v5")
    e(f"v_lshl_add_u32 v4, v{vL}, 4, s{sG+1}")
    for i in range(7): e(f"ds_write_b128 v4, v[240:243] offset:{1024*i}")
    e(f"v_mov_b32 v2, 2\nv_mov_b32 v7, 0x100010\ns_lshl_b32 s{sT0}, s2, 12")
    e(f"v_and_b32 v4, 3, v0\nv_lshlrev_b32 v{T+4}, 14, v{T}\nv_lshl_add_u32 v{T+4}, v4, 4, v{T+4}")
    e(f"v_add_u32 v{T+5}, 1, v4\nv_lshrrev_b32 v{T+5}, 2, v{T+5}\nv_sub_u32 v{T+5}, 0, v{T+5}")
    e(f"s_waitcnt lgkmcnt(0)\ns_add_u32 s{sTAG}, s{sTAG}, 1")
    res_tags("v_and_b32 v4, 3, v0")
    e(f"s_lshl_b32 s{sT0}, s2, 12\ns_waitcnt vmcnt(6)")
    k.stamp(1)
    for t in range(4): e(f"v_lshl_or_b32 v{RW+t}, v{V+2*t+1}, 16, v{V+2*t}\nv_lshl_add_u32 v{RW+t}, v{RW+t}, 4, v7")
    e(f"buffer_store_dwordx4 {vr(RW,4)}, v3, {sr(S_ROW)}, s{sT0} offen{SC}")
    for t in range(8):
        if t == 2: e("s_mov_b32 exec_lo, 0x77777777\ns_mov_b32 exec_hi, 0x77777777")
        e(f"v_and_b32 v{C4+t}, -4, v{V+t}\nds_add_rtn_u32 v{KK+t}, v{C4+t}, v2 offset:{CNT}")
    e("s_mov_b64 exec, -1")
    for t in range(8): e(f"v_lshlrev_b32 v{V+t}, 2, v{V+t}\nv_and_or_b32 v{V+t}, v{V+t}, 12, v{EB+t}")
    e("s_waitcnt lgkmcnt(0)")
    for t in range(8):
        if t == 2: e("s_mov_b32 exec_lo, 0x77777777\ns_mov_b32 exec_hi, 0x77777777")
        e(f"v_min_u32 v4, 54, v{KK+t}\nv_lshl_add_u32 v4, v{C4+t}, 4, v4\nds_write_b16 v4, v{V+t} offset:{LIMG}")
    e("s_mov_b64 exec, -1")
    e(f"s_lshl_b32 s{sT0}, s2, 6")
    k.stamp(2)
    e(f"s_waitcnt vmcnt(1)\nv_mov_b32 v6, 0\nv_cmp_gt_u32 vcc, 32, v{vL}")
    for t in range(16): e(f"v_dot2_f32_bf16 v6, v{WR+t}, s{sH+t}, v6")
    for t in range(4): e(f"v_lshlrev_b32 v{TU+2*t}, 16, v{TP+t}\nv_and_b32 v{TU+2*t+1}, 0xffff0000, v{TP+t}")
    e(f"v_mul_f32 v6, {LOG2E_HALF:#x}, v6\nv_cndmask_b32 v6, v{PP}, v6, vcc\nds_write_b32 v132, v6 offset:{GP}\ns_waitcnt lgkmcnt(0)")
    for t in range(2): e(f"ds_read_b128 {vr(WV+4*t,4)}, v133 offset:{GP+16*t}")
    e("s_waitcnt lgkmcnt(0)")
    for t in range(8): e(f"v_mul_f32 v{WV+t}, v{WV+t}, v{TU+t}")
    for t in range(4): e(f"v_cvt_pk_bf16_f32 v{MU+t}, v{WV+2*t}, v{WV+2*t+1}")
    e(f"ds_write_b128 v134, {vr(MU,4)} offset:{AIMG+8192}\nv_mov_b32 v7, s{sTAG}")
    e("s_waitcnt vmcnt(0) lgkmcnt(0)")
    sync_add(0)
    sync_wait(0, 4, 'lo')
    k.stamp(3)
    P = 146
    e("v_and_b32 v4, -4, v0")
    for h in range(4): e(f"ds_read_b128 {vr(P+4*h,4)}, v3 offset:{LIMG+4096*h}\nds_read_b32 v{P+16+h}, v4 offset:{CNT+256*h}")
    for h in range(4):
        e(f"s_waitcnt lgkmcnt({6-2*h})\nv_bfi_b32 v{P+4*h+3}, v{T+5}, v7, v{P+4*h+3}\nv_bfi_b32 v{P+4*h+2}, v{T+5}, v{P+16+h}, v{P+4*h+2}")
        e(f"buffer_store_dwordx4 {vr(P+4*h,4)}, v{T+4}, {sr(S_LIST)}, s{sT0} offen{SC}")
        if h < 3: e(f"s_add_u32 s{sT0}, s{sT0}, 0x100000")
    k.stamp(4)
    make_loc(KK, C4, False)
    e(f"v_max3_u32 v7, v{KK}, v{KK+1}, v{KK+2}\nv_max3_u32 v7, v7, v{KK+3}, v{KK+4}\nv_max3_u32 v7, v7, v{KK+5}, v{KK+6}\nv_max_u32 v7, v7, v{KK+7}")
    e(f"v_cmp_le_u32 vcc, 32, v7\ns_cbranch_vccnz L_mark\nL_mark_ret:")
    with rare():
        e("L_mark:"); make_loc(KK, C4, True); sync_add(4); e("s_branch L_mark_ret")

def decode(ns):
    for i, n in enumerate(ns): e(f"v_lshrrev_b32 v{TQ+i}, 2, v{RM+n}\nv_bfe_i32 v{TQ+4+i}, v{RM+n}, v{cBIT}, 1")
    for i, n in enumerate(ns): e(f"v_and_b32 v{TQ+i}, v{TQ+i}, v{cAM}\nv_and_b32 v{TQ+8+i}, v{TQ+4+i}, v{cWR}")
    for i, n in enumerate(ns): e(f"v_add3_u32 v{TQ+i}, v{TQ+i}, v{cOFF}, v{TQ+8+i}\nv_and_b32 v{TQ+4+i}, v{TQ+4+i}, v{cA}")
    for i, n in enumerate(ns):
        e(f"buffer_load_dwordx4 {vr(G+4*n,4)}, v{TQ+i}, {sr(S_ROW)}, s{sG} offen{SC}\nv_and_or_b32 v{RM+n}, v{RM+n}, 12, v{TQ+4+i}")
def addrs(n, buf):
    g = G + 4 * n; r = RM + n
    e(f"v_and_b32 v{g}, v{g}, v{r}")
    for t, (d, dw, hi) in enumerate([(2, 1, 0), (g + 1, 1, 1), (3, 2, 0), (g + 2, 2, 1), (4, 3, 0), (g + 3, 3, 1), (g, 0, 1)]):
        e(f"v_add_u32_sdwa v{d}, v{r}, v{g+dw} dst_sel:DWORD dst_unused:UNUSED_PAD src0_sel:WORD_0 src1_sel:WORD_{hi}")
        e(f"ds_read_b32 v{BQ+8*buf+t}, v{d}")
def mf(n, buf):
    a = AC + 4 * (n // 4); q = n & 3
    e(f"v_mfma_f32_16x16x32_bf16 {vr(a,4)}, {vr(AS+4*q,4)}, {vr(BQ+8*buf,4)}, {'0' if (q==0 and n<12) else vr(a,4)}")
    e(f"v_mfma_f32_16x16x32_bf16 {vr(a,4)}, {vr(AS+4*q,4)}, {vr(BQ+8*buf+4,4)}, {vr(a,4)}")
def dreads(addr):
    for q in range(4): e(f"ds_read2_b32 {vr(DX+2*q,2)}, v{addr+q//2} offset0:{128*(q%2)} offset1:{128*(q%2)+16}")
def dests():
    for q in range(8): e(f"v_lshrrev_b32 v{DX+q}, 12, v{DX+q}")
    for q in range(8): e(f"v_and_or_b32 v{DX+q}, v{DX+q}, v5, v6")
def scatter():
    for q in range(4):
        a = AC + 4 * q
        e(f"v_cvt_pk_bf16_f32 v{a}, v{a+1}, v{a}\nv_cvt_pk_bf16_f32 v{a+2}, v{a+3}, v{a+2}")
        e(f"ds_write_b32 v{DX+2*q}, v{a}\nds_write_b32 v{DX+2*q+1}, v{a+2}")
def res_stores(lvl, s0):
    T = G + 16 * lvl
    e(f"v_add_u32 v2, 64, v{cRD}\nv_add_u32 v3, 128, v{cRD}\nv_add_u32 v4, 192, v{cRD}\ns_waitcnt lgkmcnt(6)")
    for i in range(4):
        for x in range(2): e(f"ds_read2st64_b32 {vr(T+4*i+2*x,2)}, v{cRD if i==0 else 1+i} offset0:{16*lvl+2*x} offset1:{16*lvl+2*x+1}")
    for i in range(4):
        e(f"s_waitcnt lgkmcnt({6-2*i})")
        for j in range(4): e(f"v_and_or_b32 v{T+4*i+j}, v{T+4*i+j}, v{cMSK}, v{cR+j}")
        e(f"buffer_store_dwordx4 {vr(T+4*i,4)}, v{cRA}, {sr(S_RES)}, s{s0} offen{SC}")
        if i < 3: e(f"s_add_u32 s{s0}, s{s0}, 0x40000")

def lo_lookup():
    POLL = 16; NQ = 3
    e("s_cmp_ge_u32 s2, 250\ns_cbranch_scc1 L_nobucket0")
    with rare(): e("L_nobucket0:\ns_waitcnt lgkmcnt(0)\ns_barrier\ns_branch L_nobucket")
    e(f"v_lshlrev_b32 v3, 4, v{vL}\ns_lshl_b32 s{sT0}, s2, 14\ns_add_u32 s{sT0}, s{sT0}, s{sCNT}")
    e(f"s_mov_b32 s{sNT}, 0\ns_mov_b32 s{sEX}, 0x88888888\ns_mov_b32 s{sEX+1}, 0x88888888")
    CW, CN1, CD, CP = DX + 8, DX + 9, DX + 10, DX + 11
    e(f"v_lshlrev_b32 v{CW}, 14, v{vL}\nv_mov_b32 v{CD}, {DUMP}")
    for i in range(4): e(f"v_mov_b32 v{AC+12+i}, 0")
    e("s_waitcnt vmcnt(0)")
    sync_add(0)
    sync_wait(0, 8, 'pub', 1)
    k.stamp(5)
    if DL1: e(f"s_sleep {DL1}")
    e("L_poll1:")
    for h in range(4): e(f"buffer_load_dwordx4 {vr(POLL+4*h,4)}, v3, {sr(S_LIST)}, s{sT0} offen offset:{1024*h}{SC}")
    for h in range(4):
        e(f"s_waitcnt vmcnt({3-h})")
        if h == 0: e(f"v_xor_b32 v4, s{sTAG}, v{POLL+3}")
        else: e(f"v_xor_b32 v5, s{sTAG}, v{POLL+4*h+3}\nv_or_b32 v4, v4, v5")
        e(f"ds_write_b128 v{WA}, {vr(POLL+4*h,4)} offset:{WL+1024*h}")
    e(f"v_cmp_ne_u32 vcc, 0, v4\ns_and_b64 vcc, vcc, s[{sEX}:{sEX+1}]\ns_waitcnt lgkmcnt(0)")
    e("s_cbranch_vccnz L_poll1_again\nL_poll1_ok:")
    with rare():
        e("L_poll1_again:")
        if SL1: e(f"s_sleep {SL1}")
        e(f"s_add_u32 s{sNT}, s{sNT}, 1\ns_cmp_lt_u32 s{sNT}, {LIMIT}\ns_cbranch_scc1 L_poll1")
        for i in range(4): e(f"v_mov_b32 v{POLL+i}, 0\nv_or_b32 v{cR+i}, 0x7fc00000, v{cR+i}")
        for h in range(4): e(f"ds_write_b128 v{WA}, {vr(POLL,4)} offset:{WL+1024*h}")
        e("s_waitcnt lgkmcnt(0)\ns_branch L_poll1_ok")
    k.stamp(6)
    if 'loprio0' in OPT: e("s_setprio 0")
    e(f"ds_read_b128 {vr(EN+12,4)}, v{WA+4} offset:{WL}")
    for g in range(3): e(f"ds_read_b128 {vr(EN+4*g,4)}, v{WA+1+g} offset:{WL}")
    e(f"s_waitcnt lgkmcnt(3)\nv_lshrrev_b32 v2, 1, v{EN+14}\nv_min_u32 v2, 24, v2\nv_mov_b32 v3, v2\ns_nop 1")
    for m in ("row_shr:1", "row_shr:2", "row_shr:4", "row_shr:8"):
        e(f"v_add_u32_dpp v3, v3, v3 {m} row_mask:0xf bank_mask:0xf bound_ctrl:0" .replace(" bound_ctrl:0", "") + "\ns_nop 1")
    e("v_add_u32_dpp v3, v3, v3 row_bcast:15 row_mask:0xa bank_mask:0xf\ns_nop 1\nv_add_u32_dpp v3, v3, v3 row_bcast:31 row_mask:0xc bank_mask:0xf")
    e(f"v_cmp_eq_u32 vcc, 0, v2\nv_readlane_b32 s{sNT}, v3, 63\nv_sub_u32 v3, v3, v2\nv_lshl_add_u32 v3, v3, 2, s{sG+1}\nv_cndmask_b32 v3, v3, v{CD}, vcc")
    e(f"v_cmp_lt_u32 vcc, 16, v2\ns_or_b32 s{sBAD}, vcc_lo, vcc_hi\ns_waitcnt lgkmcnt(0)\ns_cbranch_vccnz L_fl23")
    e(f"v_cmp_lt_u32 vcc, 14, v2\nv_add_u32 v5, {15<<20:#x}, v{CW}\ns_cbranch_vccnz L_fl15\nv_add_u32 v5, {13<<20:#x}, v{CW}\ns_branch L_fl13")
    def put(j):
        e(f"v_or_b32_sdwa v{6+(j&1)}, v5, sext(v{EN+j//2}) dst_sel:DWORD dst_unused:UNUSED_PAD src0_sel:DWORD src1_sel:WORD_{j&1}")
        if j: e(f"v_add_u32 v5, 0xfff00000, v5")
        e(f"ds_write_b32 v3, v{6+(j&1)} offset:{4*j}")
    with rare():
        e(f"L_fl23:\nv_add_u32 v5, {23<<20:#x}, v{CW}")
        for j in range(23, 15, -1): put(j)
        e("s_waitcnt lgkmcnt(0)\ns_branch L_fl15")
    for j in range(15, -1, -1):
        if j in (15, 13): e(f"L_fl{j}:")
        put(j)
        if j == 8: e("s_waitcnt lgkmcnt(4)")
    e(f"v_add_u32 v{cDR+0 if False else 7}, 1024, v{cDR}\nv_mov_b32 v6, v{cDR}\ns_mov_b32 s{sRND}, 0")
    e("s_waitcnt lgkmcnt(3)\nL_round:")
    order = [15, 14, 13, 12] + list(range(12))
    for i, n in enumerate(order):
        e(f"ds_read_b32 v{RM+n}, v{cFL} offset:{128*n}")
        if i == 11: e("s_waitcnt lgkmcnt(8)")
    e(f"s_add_u32 s{sT2}, s{sNT}, 31\ns_lshr_b32 s{sT2}, s{sT2}, 5")
    e(f"s_cmp_eq_u32 s{sT2}, 14\ns_cbranch_scc1 L_d13\ns_cmp_eq_u32 s{sT2}, 13\ns_cbranch_scc1 L_d12\ns_cmp_lt_u32 s{sT2}, 13\ns_cbranch_scc1 L_d0\ns_cmp_eq_u32 s{sT2}, 15\ns_cbranch_scc1 L_d14")
    for n in (15, 14, 13, 12):
        if n < 15: e(f"L_d{n}:")
        decode([n])
    P = opt('pre', 6); R = 12 - P
    e("L_d0:\ns_waitcnt lgkmcnt(8)")
    decode([0, 1, 2, 3][:P]); e("s_waitcnt lgkmcnt(0)")
    if P > 4: decode(list(range(4, min(P, 8))))
    if P > 8: decode(list(range(8, P)))
    dreads(6)
    k.stamp(7)
    e(f"s_cmp_lg_u32 s{sRND}, 0\ns_cbranch_scc1 L_nobar\ns_barrier\nL_nobar:")
    k.stamp(8)
    e(f"s_waitcnt lgkmcnt(0)\nv_mov_b32 v5, 0x1ffc\nv_mov_b32 v6, s{sG+2}")
    dests()
    e(f"s_cmp_eq_u32 s{sT2}, 14\ns_cbranch_scc1 L_s13\ns_cmp_eq_u32 s{sT2}, 13\ns_cbranch_scc1 L_s12\ns_cmp_lt_u32 s{sT2}, 13\ns_cbranch_scc1 L_s0\ns_cmp_eq_u32 s{sT2}, 15\ns_cbranch_scc1 L_s14")
    e("s_branch L_s15")
    def later(i):
        n = order[i]
        return (3 - i) + P if i < 4 else P + min(n, R) - 1 - n
    for i, n in enumerate(order[:5]):
        e(f"L_s{n}:\ns_waitcnt vmcnt({later(i)})"); addrs(n, i & 1); e(f"s_branch L_p{n}")
    for i, n in enumerate(order):
        if i:
            e(f"s_waitcnt vmcnt({later(i)})"); addrs(n, i & 1)
            e("s_waitcnt lgkmcnt(7)"); mf(order[i - 1], (i - 1) & 1)
        if i < 5: e(f"L_p{n}:")
        if i >= 4 and n < R: decode([P + n])
    e("s_waitcnt lgkmcnt(0)"); mf(order[-1], 1)
    scatter_first = True
    for q in (3, 0, 1, 2):
        a_ = AC + 4 * q
        e(f"v_cvt_pk_bf16_f32 v{a_}, v{a_+1}, v{a_}\nv_cvt_pk_bf16_f32 v{a_+2}, v{a_+3}, v{a_+2}")
        e(f"ds_write_b32 v{DX+2*q}, v{a_}\nds_write_b32 v{DX+2*q+1}, v{a_+2}")
    e(f"s_cmp_gt_u32 s{sNT}, 512\ns_cbranch_scc1 L_more")
    with rare():
        e(f"L_more:\ns_sub_u32 s{sNT}, s{sNT}, 512\ns_mov_b32 s{sRND}, 1\nv_add_u32 v{cFL}, 2048, v{cFL}\nv_add_u32 v{cDR}, 2048, v{cDR}\nv_add_u32 v7, 1024, v{cDR}\nv_mov_b32 v6, v{cDR}")
        e("s_waitcnt lgkmcnt(0)")
        for i in range(4): e(f"v_mov_b32 v{AC+12+i}, 0")
        e("s_branch L_round")
    e(f"s_mov_b32 s{sT0}, s{sG+3}")
    res_stores(0, sT0)
    e(f"s_cmp_lg_u32 s{sBAD}, 0\ns_cbranch_scc1 L_res2\nL_res2_ret:")
    with rare():
        e(f"L_res2:\ns_add_u32 s{sT0}, s{sG+3}, {RLV:#x}"); res_stores(1, sT0); e("s_branch L_res2_ret")
    for j in range(4): e(f"v_and_b32 v{cR+j}, 0x80000001, v{cR+j}")
    e(f"s_or_b32 s{sT0}, s2, s{sJ}\ns_cmp_eq_u32 s{sT0}, 0\ns_cbranch_scc1 L_epoch\nL_nobucket:")
    with rare():
        e(f"L_epoch:\ns_mov_b64 exec, 1\nv_mov_b32 v2, {EPOCH:#x}\nv_mov_b32 v3, s{sTAG}\nglobal_store_dword v2, v3, s[{P_WS}:{P_WS+1}]{SC}\ns_mov_b64 exec, -1\ns_branch L_nobucket")
    k.stamp(9)

def hi_lookup():
    e("s_waitcnt lgkmcnt(0)\ns_barrier")
    k.stamp(6)

def final():
    T = 32; X = 48; Y = 64; CN = 80; YA = 84
    e(f"v_lshlrev_b32 v{T}, 4, v0\nv_add_u32 v{T+1}, 0x2000, v{T}\ns_lshl_b32 s{sT0}, s2, 14\ns_add_u32 s{sT1}, s{sT0}, 0x1000")
    e(f"v_mov_b32 v5, {SYNC+16}\nds_read_b32 v6, v5")
    e(f"v_cmp_gt_u32 vcc, 232, v0\ns_mov_b64 s[{sEX}:{sEX+1}], vcc\ns_mov_b32 s{sNT}, 0\nv_mov_b32 v{T+4}, 0")
    for t in range(8): e(f"v_and_b32 v{T+8+t}, 0xffff, v{LOC+t}")
    e(f"s_lshl_b32 s{sT2}, s2, 7\ns_lshl_b32 s{sBAD}, s{sJ}, 5\ns_add_u32 s{sT2}, s{sT2}, s{sBAD}")
    e(f"v_lshrrev_b32 v3, 2, v{vL}\nv_lshlrev_b32 v3, 1, v3\ns_waitcnt lgkmcnt(0)\nv_readfirstlane_b32 s{sRARE}, v6")
    for h in range(4): e(f"v_mov_b32 v{YA+h}, -1")
    e(f"s_cmp_lg_u32 s{sRARE}, 0\ns_cbranch_scc1 L_rare0\nL_rare0_ret:")
    with rare():
        e(f"L_rare0:\nv_and_b32 v4, -4, v0\ns_add_u32 s{sBAD}, s{sT0}, {RLV:#x}\nv_mov_b32 v7, 0x80000000")
        for h in range(4): e(f"ds_read_b32 v{CN+h}, v4 offset:{CNT+256*h}")
        e("s_waitcnt lgkmcnt(0)")
        for h in range(4):
            e(f"v_add_u32 v{CN+h}, -33, v{CN+h}\nv_add_u32 v4, {4096*h}, v{T}\nv_and_or_b32 v{YA+h}, v{CN+h}, v7, v4\nv_ashrrev_i32 v{CN+h}, 31, v{CN+h}")
        e("s_branch L_rare0_ret")
    e("s_waitcnt vmcnt(0)\ns_barrier")
    if DL2: e(f"s_sleep {DL2}")
    e("L_poll2:")
    e(f"s_cmp_lg_u32 s{sRARE}, 0\ns_cbranch_scc1 L_rare1\nL_rare1_ret:")
    with rare():
        e("L_rare1:")
        for h in range(4): e(f"buffer_load_dwordx4 {vr(Y+4*h,4)}, v{YA+h}, {sr(S_RES)}, s{sBAD} offen{SC}")
        e("s_branch L_rare1_ret")
    for h in range(4): e(f"buffer_load_dwordx4 {vr(X+4*h,4)}, v{T+h//2}, {sr(S_RES)}, s{sT0 if h%2==0 else sT1} offen{SC}")
    for h in range(4):
        d = T + 2 if h < 3 else T + 3
        e(f"s_waitcnt vmcnt({3-h})")
        for j in range(4):
            if j == 0 and h in (0, 3): e(f"v_xor_b32 v{d}, v{X+4*h}, v{cR}")
            else: e(f"v_bitop3_b32 v{d}, v{d}, v{X+4*h+j}, v{cR+j} bitop3:0xf6")
        e(f"ds_write_b128 v{T}, {vr(X+4*h,4)} offset:{RS+4096*h}")
    e(f"s_cmp_lg_u32 s{sRARE}, 0\ns_cbranch_scc1 L_rare2\nL_rare2_ret:")
    with rare():
        e("L_rare2:")
        for h in range(4):
            for j in range(4):
                if j == 0: e(f"v_xor_b32 v4, v{Y+4*h}, v{cR}")
                else: e(f"v_bitop3_b32 v4, v4, v{Y+4*h+j}, v{cR+j} bitop3:0xf6")
            e(f"v_bitop3_b32 v{T+2}, v{T+2}, v4, v{CN+h} bitop3:0xf4")
            e(f"ds_write_b128 v{T}, {vr(Y+4*h,4)} offset:{RS+16384+4096*h}")
        e("s_branch L_rare2_ret")
    e(f"v_and_b32 v{T+3}, 0x80000001, v{T+3}\nv_and_b32 v{T+2}, 0x80000001, v{T+2}")
    e(f"v_cmp_ne_u32 vcc, 0, v{T+3}\ns_and_b64 s[{sU}:{sU+1}], vcc, s[{sEX}:{sEX+1}]\nv_cmp_ne_u32 vcc, 0, v{T+2}\ns_or_b64 vcc, vcc, s[{sU}:{sU+1}]")
    e("s_cbranch_vccnz L_poll2_again\nL_poll2_ok:")
    with rare():
        e("L_poll2_again:")
        if SL2: e(f"s_sleep {SL2}")
        e(f"s_waitcnt lgkmcnt(0)\ns_add_u32 s{sNT}, s{sNT}, 1\ns_cmp_lt_u32 s{sNT}, {LIMIT}\ns_cbranch_scc1 L_poll2")
        sync_add(3)
        e("s_branch L_poll2_ok")
    k.stamp(10)
    e("s_waitcnt lgkmcnt(0)\ns_barrier")
    e(f"v_mov_b32 v5, {SYNC+12}\nds_read_b32 v6, v5")
    for t in range(8): e(f"ds_read_b32 v{X+t}, v{T+8+t}")
    for t in range(8):
        e(f"s_waitcnt lgkmcnt({7-t})\nv_and_b32 v{T+t}, 0x7fff0000, v{X+t}\nv_lshlrev_b32 v{X+t}, 16, v{X+t}")
        if t % 2: e(f"v_add_f32 v{T+t-1}, v{T+t-1}, v{T+t}\nv_add_f32 v{X+t-1}, v{X+t-1}, v{X+t}")
        if t % 4 == 3: e(f"v_add_f32 v{T+t-3}, v{T+t-3}, v{T+t-1}\nv_add_f32 v{X+t-3}, v{X+t-3}, v{X+t-1}")
    e(f"v_add_f32 v{T}, v{T}, v{T+4}\nv_add_f32 v{X}, v{X}, v{X+4}\ns_nop 0")
    e(f"v_add_f32_dpp v{T+1}, v{T}, v{T} quad_perm:[1,0,3,2] row_mask:0xf bank_mask:0xf")
    e(f"v_add_f32_dpp v{X+1}, v{X}, v{X} quad_perm:[1,0,3,2] row_mask:0xf bank_mask:0xf")
    e("s_nop 0")
    e(f"v_add_f32_dpp v{T}, v{T+1}, v{T+1} quad_perm:[2,3,0,1] row_mask:0xf bank_mask:0xf")
    e(f"v_add_f32_dpp v{X}, v{X+1}, v{X+1} quad_perm:[2,3,0,1] row_mask:0xf bank_mask:0xf")
    e(f"v_rcp_f32 v{T+1}, v{T}")
    e(f"v_add_u32 v{T+2}, {(-0x17800000)&0xffffffff:#x}, v{T}\nv_mul_f32 v{X}, v{X}, v{T+1}\nv_cmp_gt_u32 vcc, 0x5a000000, v{T+2}")
    e(f"v_and_b32 v{T+3}, 0x7fffffff, v{X}\ns_mov_b64 s[{sEX}:{sEX+1}], vcc\nv_cmp_gt_u32 vcc, 0x7f800000, v{T+3}\nv_cvt_pk_bf16_f32 v{X}, v{X}, v{X}")
    e(f"s_and_b64 s[{sEX}:{sEX+1}], vcc, s[{sEX}:{sEX+1}]\nv_cmp_eq_u32 vcc, 0, v6")
    e(f"s_and_b64 vcc, vcc, s[{sEX}:{sEX+1}]\ns_cmp_eq_u64 vcc, -1\ns_cbranch_scc0 {'L_fallback' if not (OPT & {'nolds','nogather'}) else 'L_fin'}")
    e("s_mov_b32 exec_lo, 0x11111111\ns_mov_b32 exec_hi, 0x11111111")
    e(f"buffer_store_short v{X}, v3, {sr(S_OUT)}, s{sT2} offen")
    e("L_fin:")

def fallback():
    e("L_fallback:")
    A0 = 16; A1 = 20; C0 = 24; C1 = 28; AH = 32; AP = 36; EI = 40; EJ = 48; PK = 56; DD = 60; HK = 68; DS = 72; W16 = 80
    N, Q, IB, M, LL, ACc, T = 100, 101, 102, 103, 104, 105, 106
    e(f"v_and_b32 v{N}, 15, v{vL}\nv_lshrrev_b32 v{Q}, 4, v{vL}")
    e(f"v_lshlrev_b32 v{T}, 9, v{Q}\nv_lshl_add_u32 v{T}, v{N}, 1, v{T}")
    for half in range(2):
        for t in range(8): e(f"buffer_load_ushort v{W16+8*half+t}, v{T}, {sr(S_W)}, 0 offen offset:{t*64+half*32}")
    e(f"v_lshlrev_b32 v{T+1}, 3, v{Q}\nv_lshlrev_b32 v{Q}, 4, v{Q}")
    e(f"global_load_dwordx2 {vr(EI,2)}, v{T+1}, s[{P_B}:{P_B+1}]\nglobal_load_dwordx2 {vr(EI+2,2)}, v{T+1}, s[{P_B}:{P_B+1}] offset:32")
    e(f"global_load_dwordx2 {vr(AH,2)}, v{T+1}, s[{P_H}:{P_H+1}]\nglobal_load_dwordx2 {vr(AH+2,2)}, v{T+1}, s[{P_H}:{P_H+1}] offset:32")
    e(f"global_load_dwordx4 {vr(AP,4)}, v{Q}, s[{P_P}:{P_P+1}]")
    e(f"s_lshl_b32 s{sU}, s2, 6\ns_lshl_b32 s{sT1}, s{sJ}, 4\ns_add_u32 s{sU}, s{sU}, s{sT1}\nv_add_u32 v{IB}, s{sU}, v{N}\nv_mul_u32_u24 v{IB}, 104, v{IB}")
    e("s_waitcnt vmcnt(0)")
    for half in range(2):
        for t in range(4): e(f"v_lshl_or_b32 v{A0+4*half+t}, v{W16+8*half+2*t+1}, 16, v{W16+8*half+2*t}")
    for i in range(4): e(f"v_lshlrev_b32 v{C0+2*i}, 16, v{EI+i}\nv_and_b32 v{C0+2*i+1}, 0xffff0000, v{EI+i}")
    e(f"v_mov_b32 v{M}, 0xff800000\nv_mov_b32 v{LL}, 0\nv_mov_b32 v{ACc}, 0")
    e(f"s_mov_b32 s{sU}, 0")
    def getrow(dst, soff):
        e(f"buffer_load_dword v{T}, v{IB}, {sr(S_IDX)}, s{soff} offen\ns_waitcnt vmcnt(0)")
        e(f"v_lshl_add_u32 v{T}, v{T}, 6, v{Q}\nbuffer_load_dwordx4 {vr(dst+4,4)}, v{T}, {sr(S_TABL)}, 0 offen\ns_waitcnt vmcnt(0)")
        for t in range(4): e(f"v_lshlrev_b32 v{dst+2*t}, 16, v{dst+4+t}\nv_and_b32 v{dst+2*t+1}, 0xffff0000, v{dst+4+t}")
    e("L_fb_i:")
    getrow(EI, sU)
    e(f"s_add_u32 s{sCNT}, s{sU}, 4")
    e("L_fb_j:")
    getrow(EJ, sCNT)
    for t in range(8): e(f"v_mul_f32 v{EJ+t}, v{EJ+t}, v{EI+t}")
    for t in range(4): e(f"v_cvt_pk_bf16_f32 v{PK+t}, v{EJ+2*t}, v{EJ+2*t+1}")
    e("s_nop 1")
    e(f"v_mfma_f32_16x16x32_bf16 {vr(DD,4)}, {vr(A0,4)}, {vr(PK,4)}, {vr(C0,4)}")
    e(f"v_mfma_f32_16x16x32_bf16 {vr(DD+4,4)}, {vr(A1,4)}, {vr(PK,4)}, {vr(C1,4)}")
    e(f"v_mfma_f32_16x16x32_bf16 {vr(DS,4)}, {vr(AP,4)}, {vr(PK,4)}, 0")
    e("s_nop 7")
    for t in range(4): e(f"v_cvt_pk_bf16_f32 v{HK+t}, v{DD+2*t}, v{DD+2*t+1}")
    for t in range(4): e(f"v_pk_max_i16 v{HK+t}, v{HK+t}, 0")
    e("s_nop 1")
    e(f"v_mfma_f32_16x16x32_bf16 {vr(DD,4)}, {vr(AH,4)}, {vr(HK,4)}, 0")
    e("s_nop 7")
    e(f"v_mul_f32 v{DD}, 0x3fb8aa3b, v{DD}\nv_max_f32 v{DD+1}, v{M}, v{DD}\nv_sub_f32 v{DD+2}, v{M}, v{DD+1}\nv_sub_f32 v{DD+3}, v{DD}, v{DD+1}")
    e(f"v_exp_f32 v{DD+2}, v{DD+2}\nv_exp_f32 v{DD+3}, v{DD+3}\nv_mov_b32 v{M}, v{DD+1}")
    e(f"v_fma_f32 v{LL}, v{LL}, v{DD+2}, v{DD+3}\nv_mul_f32 v{ACc}, v{ACc}, v{DD+2}\nv_fma_f32 v{ACc}, v{DD+3}, v{DS}, v{ACc}")
    e(f"s_add_u32 s{sCNT}, s{sCNT}, 4\ns_cmp_lt_u32 s{sCNT}, 104\ns_cbranch_scc1 L_fb_j")
    e(f"s_add_u32 s{sU}, s{sU}, 4\ns_cmp_lt_u32 s{sU}, 100\ns_cbranch_scc1 L_fb_i")
    e(f"v_rcp_f32 v{LL}, v{LL}\nv_lshlrev_b32 v{N}, 1, v{N}\nv_mul_f32 v{ACc}, v{ACc}, v{LL}\nv_cvt_pk_bf16_f32 v{ACc}, v{ACc}, v{ACc}")
    e("s_mov_b64 exec, 0xffff")
    e(f"buffer_store_short v{ACc}, v{N}, {sr(S_OUT)}, s{sT2} offen")
    e("s_branch L_fin")

B_ = 8; A_ = 72; A5 = 104; CB = 120; HQ = 184; D_ = 200; ACC = 232; INIT = 248; TW = 249

PREF = 'nopref' not in OPT
NB0 = opt('nb0', 4); NB1 = opt('nb1', 8); CL0 = opt('cl0', 5)
def flag_store(nm, n):
    sync_wait(0, 8, nm)
    e(f"s_waitcnt vmcnt(0) lgkmcnt(0)\ns_add_u32 s{sTAG}, s{sTAG}, 0x9e3779b1\ns_lshl_b32 s{sT0}, s2, 4\ns_lshl_b32 s{sT1}, s{sU}, 2\ns_add_u32 s{sT0}, s{sT0}, s{sT1}\ns_add_u32 s{sT0}, s{sT0}, {FLG:#x}")
    e(f"v_mov_b32 v6, s{sT0}\nv_mov_b32 v7, s{sTAG}\ns_mov_b64 exec, 1\nglobal_store_dword v6, v7, s[{P_WS}:{P_WS+1}]{SC}\ns_mov_b64 exec, -1")

def hi():
    WV = 120; TP = 136; TU = 144; T = 184
    e("L_hi:")
    e(f"v_lshrrev_b32 v252, 5, v{vL}\nv_and_b32 v253, 7, v{vL}")
    e(f"v_lshlrev_b32 v4, 10, v252\nv_lshl_add_u32 v4, v253, 1, v4")
    e(f"v_bfe_u32 v5, v{vL}, 3, 2\nv_lshlrev_b32 v5, 6, v5\nv_lshl_add_u32 v5, v252, 5, v5")
    e(f"v_and_b32 v6, 31, v{vL}\nv_lshlrev_b32 v7, 6, v6\nv_lshlrev_b32 v6, 1, v6")
    e(f"v_lshl_add_u32 v250, v252, 5, v7\nv_add_u32 v251, 4096, v250")
    e(f"s_lshl_b32 s{sT0}, s{sU}, 4\ns_lshl_b32 s{sT1}, s2, 8\ns_lshl_b32 s{sT2}, s2, 14")
    e(f"v_add_u32 v3, -4096, v3")
    pre_addr()
    e("s_waitcnt lgkmcnt(0)")
    k.srd(S_TABL, P_TAB, 64000)
    k.srd(S_W, P_W, 2048)
    vm = []
    def vmem(lab, txt): e(txt); vm.append(lab)
    def vneed(lab): return len(vm) - 1 - max(i for i, x in enumerate(vm) if x == lab)
    e("s_cmp_ge_u32 s2, 250\ns_cbranch_scc1 L_hi_skip")
    if PRE and PM != 2:
        vmem('s', f"global_load_dword v255, v2, s[{P_WS}:{P_WS+1}]")
    if PRE and 'preout' in OPT:
        vmem('s', f"global_load_dword v254, v6, s[{P_OUT}:{P_OUT+1}]")
    if PM == 0: vm[:] = []; hold = k.L[-(1 + ('preout' in OPT)):]; del k.L[-(1 + ('preout' in OPT)):]
    vmem('s', f"buffer_load_dwordx4 {vr(TP,4)}, v5, {sr(S_TABL)}, s{sT1} offen")
    vmem('s', f"buffer_load_short_d16_hi v{WV}, v4, {sr(S_W)}, s{sT0} offen")
    vmem('s', f"global_load_short_d16_hi v{T+1}, v6, s[{P_B}:{P_B+1}]")
    vmem('s', f"global_load_short_d16_hi v{T+2}, v6, s[{P_H}:{P_H+1}]")
    if PM == 0 and PRE:
        for x in hold: vmem('s', x)
    e("s_barrier")
    vmem('s', f"buffer_load_dwordx4 {vr(TP+4,4)}, v5, {sr(S_TABL)}, s{sT1} offen offset:16")
    for t in range(1, 16): vmem('s', f"buffer_load_short_d16_hi v{WV+t}, v4, {sr(S_W)}, s{sT0} offen offset:{t*64}")
    e(f"s_lshl_b32 s{sG}, s{sU}, 14\ns_add_u32 s{sG+1}, s{sG}, 0x2000")
    def bload(n):
        b, ks = n // 2, n % 2
        vmem(f"b{b//2}", f"buffer_load_dwordx4 {vr(B_+8*b+4*ks,4)}, v{250+(b//2)%2}, {sr(S_TABL)}, s{sG if b<4 else sG+1} offen offset:{(b%2)*2048+ks*16}")
    for n in range(NB0): bload(n)
    k.srd(S_RES, P_WS, 0x800000, R0)
    k.srd(S_ROW, P_WS, 0x100000, ROW0)
    def clear(h):
        vmem('c', f"buffer_store_dwordx4 {'v[240:243]' if CL0 < 0 else 'v[252:255]'}, v3, {sr(S_RES)}, s{sT2} offen{SC}")
        if h < 3: e(f"s_add_u32 s{sT2}, s{sT2}, 0x1000")
    def prefetch():
        e(f"s_getpc_b64 s[{sEX}:{sEX+1}]\nL_pc:\ns_sub_u32 s{sEX}, s{sEX}, L_pc-{KN}\ns_subb_u32 s{sEX+1}, s{sEX+1}, 0")
        e(f"v_lshlrev_b32 v6, 3, v3\nv_min_u32 v6, L_code_end-{KN}-4, v6\nv_mov_b32 v7, s{sEX+1}\nv_add_co_u32 v6, vcc, s{sEX}, v6\ns_nop 1\nv_addc_co_u32 v7, vcc, 0, v7, vcc")
        vmem('p', "global_load_dword v2, v[6:7], off")
    with rare(): e("L_hi_skip:\ns_barrier\ns_branch L_hi_done")
    e(f"s_lshl_b32 s{sT0}, s{sU}, 11\nv_lshlrev_b32 v4, 4, v{vL}\nv_add_u32 v5, s{sT0}, v4\nv_cmp_gt_u32 vcc, 32, v{vL}\nv_lshlrev_b32 v7, 2, v{vL}")
    e(f"s_lshl_b32 s{sT0}, s{sU}, 12\nv_add_u32 v{TW}, s{sT0}, v4")
    if PREF and opt('pf', 4) < 0:
        e("v_mov_b32 v254, v7"); prefetch(); e(f"v_mov_b32 v7, v254\nv_cmp_gt_u32 vcc, 32, v{vL}")
    e(f"s_waitcnt vmcnt({vneed('s')})")
    k.stamp(2)

    for t in range(8): e(f"v_lshlrev_b32 v{TU+2*t}, 16, v{TP+t}\nv_and_b32 v{TU+2*t+1}, 0xffff0000, v{TP+t}")
    for t in range(16): e(f"v_mul_f32 v{WV+t}, v{WV+t}, v{TU+t}")
    for t in range(8): e(f"v_cvt_pk_bf16_f32 v{TP+t}, v{WV+2*t}, v{WV+2*t+1}")
    e(f"ds_write_b128 v5, {vr(TP,4)} offset:{AIMG}\nds_write_b128 v5, {vr(TP+4,4)} offset:{AIMG+1024}")
    e(f"v_mul_f32 v{T+2}, {LOG2E_HALF:#x}, v{T+2}\nv_cndmask_b32 v6, v{T+2}, v{T+1}, vcc\nds_write_b32 v7, v6 offset:{BH}")
    for n in range(NB0, NB1): bload(n)
    e("s_waitcnt lgkmcnt(0)")
    sync_add(1)
    sync_wait(1, 4, 'hi')
    e("v_lshlrev_b32 v5, 4, v252")
    k.stamp(3)
    for i in range(2): e(f"ds_read_b128 {vr(A_+4*i,4)}, v4 offset:{AIMG+1024*i}")
    for i in range(4): e(f"ds_read_b128 {vr(CB+4*i,4)}, v5 offset:{BH}")
    for g in range(4): e(f"ds_read_b128 {vr(HQ+4*g,4)}, v5 offset:{BH+128+32*g}")
    for g in range(1, 4): e(f"ds_read_b128 {vr(CB+16*g,4)}, v5 offset:{BH+32*g}")
    e(f"s_waitcnt vmcnt({vneed('b0')}) lgkmcnt(7)")
    later = []
    for g in range(1, 4):
        later += [f"ds_read_b128 {vr(A_+8*g+4*i,4)}, v4 offset:{AIMG+1024*(2*g+i)}" for i in range(2)]
        later += [f"ds_read_b128 {vr(CB+16*g+4*i,4)}, v5 offset:{BH+32*g}" for i in range(1, 4)]
    steps = []
    for bp in range(4): steps += [('r', bp, g, b) for g in range(4) for b in range(2)] + [('x', bp, 0, 0)]
    NS = len(steps)
    def mms(s):
        kind, bp, g, b = steps[s]; d = D_ + 16 * (s % 2)
        if kind == 'r':
            bb = B_ + 8 * (2 * bp + b)
            return [f"v_mfma_f32_32x32x16_bf16 {vr(d,16)}, {vr(A_+8*g,4)}, {vr(bb,4)}, {vr(CB+16*g,16)}",
                    f"v_mfma_f32_32x32x16_bf16 {vr(d,16)}, {vr(A_+8*g+4,4)}, {vr(bb+4,4)}, {vr(d,16)}"]
        return [f"v_mfma_f32_32x32x16_bf16 {vr(d,16)}, {vr(A5+8*b2+4*ks,4)}, {vr(B_+8*(2*bp+b2)+4*ks,4)}, {'0' if b2+ks==0 else vr(d,16)}"
                for b2 in range(2) for ks in range(2)]
    def valu(s):
        kind, bp, g, b = steps[s]; d = D_ + 16 * (s % 2); X = ACC + 8 * (bp % 2); Y = X + 4
        if kind == 'r':
            a = X + 4 * b
            return [f"v_fma_f32 v{a+v}, v{HQ+4*g+r}, |v{d+4*v+r}|, " + (f"-v{INIT}" if g == 0 and r == 0 else f"v{a+v}") for r in range(4) for v in range(4)]
        o = [f"v_permlane32_swap_b32 v{X+v}, v{Y+v}" for v in range(4)]
        o += [f"v_add_f32 v{X+v}, v{X+v}, v{Y+v}" for v in range(4)]
        o += [f"v_add_f32 v{X+v}, v{X+v}, v{d+4*v}" for v in range(4)]
        o += [f"v_exp_f32 v{X+v}, v{X+v}" for v in range(4)]
        o += [f"v_mul_f32 v{Y+v}, v{X+v}, v{d+4*v+1}" for v in range(4)]
        o += [f"v_cvt_pk_bf16_f32 v{X+v}, v{Y+v}, v{X+v}" for v in range(4)]
        o += [f"ds_write_b128 v{TW}, {vr(X,4)} offset:{TAB+16+1024*bp}"]
        return o
    m = mms(0)
    e(m[0])
    for x in later[:5]: e(x)
    e(m[1])
    e("s_waitcnt lgkmcnt(5)")
    for x in later[5:10]: e(x)
    e(f"v_mul_f32 v{INIT}, v{HQ}, |v{CB}|")
    for g in range(4):
        for r in range(4):
            if g or r: e(f"v_fma_f32 v{INIT}, v{HQ+4*g+r}, |v{CB+16*g+r}|, v{INIT}")
    nb_next = [NB1]
    for s in range(NS):
        v = valu(s); m = mms(s + 1) if s + 1 < NS else []
        if s + 1 < NS:
            kind, bp, g, b = steps[s + 1]
            if bp == 0 and kind == 'r' and b == 0 and g == 1: e("s_waitcnt lgkmcnt(5)"); [e(x) for x in later[10:15]]
            if bp == 0 and kind == 'r' and b == 0 and g == 2: e("s_waitcnt lgkmcnt(5)")
            if bp == 0 and kind == 'r' and b == 0 and g == 3:
                sync_wait(0, 4, 'a5')
                for i in range(4): e(f"ds_read_b128 {vr(A5+4*i,4)}, v4 offset:{AIMG+8192+1024*i}")
            if bp == 0 and kind == 'x': e("s_waitcnt lgkmcnt(0)")
            if kind == 'r' and g == 0 and b == 0 and bp > 0:
                e(f"s_waitcnt vmcnt({vneed(f'b{bp}')})"); k.stamp({1: 4, 2: 8, 3: 10}[bp])
            if bp == 0 and kind == 'r' and b == 0 and g == 3: k.stamp(1)

        if nb_next[0] < 16: bload(nb_next[0]); bload(nb_next[0] + 1); nb_next[0] += 2
        if s == opt('pf', 4) and PREF: prefetch()
        if len(m) == 2:
            n = 6 if steps[s][0] == 'x' else 5
            e(m[0]); [e(x) for x in v[:n]]; e(m[1]); [e(x) for x in v[n:]]
        elif len(m) == 4:
            e(m[0]); [e(x) for x in v[:4]]; e(m[1]); [e(x) for x in v[4:8]]; e(m[2]); [e(x) for x in v[8:12]]; e(m[3]); [e(x) for x in v[12:]]
        else:
            e("s_nop 1"); [e(x) for x in v]
    k.stamp(5)
    hi_lookup()
    e("L_hi_done:")

def finish():
    if STAMP:
        e(f"{CLK} s[{sH}:{sH+1}]\ns_waitcnt lgkmcnt(0)\ns_mov_b64 exec, 1")
        e(f"s_lshl_b32 s{sT0}, s2, 3\ns_add_u32 s{sT0}, s{sT0}, s{sJ}\ns_lshl_b32 s{sT0}, s{sT0}, 7\ns_add_u32 s{sT0}, s{sT0}, {STAMP0:#x}")
        e(f"v_mov_b32 v2, s{sT0}")
        for i in range(NST): e(f"v_mov_b32 v3, s{sST+2*i}\nglobal_store_dword v2, v3, s[{P_WS}:{P_WS+1}] offset:{4*i}")
        e(f"v_mov_b32 v3, s{sH}\nglobal_store_dword v2, v3, s[{P_WS}:{P_WS+1}] offset:{4*NST}")
        e(f"v_mov_b32 v3, {NST+1}\nglobal_store_dword v2, v3, s[{P_WS}:{P_WS+1}] offset:124")
    e("s_endpgm")

if STAMP:
    for i in range(NST): e(f"s_mov_b64 s[{sST+2*i}:{sST+2*i+1}], 0")
prologue()
route()
lo_lookup()
final()
finish()
hi()
finish()
e("L_end:\ns_endpgm")
with rare(): fallback()
hazard.check(k.L); hazard.check(k.tail)
src = HEADER + f"; @launch grid=(256,1,1) block=(512,1,1) lds={LDS_BYTES}\n"
src += f'.amdgcn_target "amdgcn-amd-amdhsa--gfx950"\n.text\n.globl {KN}\n.p2align 8\n.type {KN},@function\n{KN}:\n'
src += "\n".join(k.L) + "\n" + "\n".join(k.tail) + "\nL_code_end:\n"
src += '.section .rodata,"a"\n' + kd(KN, 256, 102)
open(sys.argv[1], "w").write(src)
print("lds", LDS_BYTES)
```

```python
import sys
from common import *
import hazard

OPT = set(sys.argv[2].split(',')) if len(sys.argv) > 2 else set()
def opt(name, d):
    for o in OPT:
        if o.startswith(name + '='): return int(o.split('=')[1])
    return d
STAMP = 'stamp' in OPT
NGLO = opt('nglo', 3)
CLK = 's_memtime' if 'cyc' in OPT else 's_memrealtime'
DL1, DL2, SL1, SL2 = opt('dl1', 0), opt('dl2', 0), opt('sl1', 0), opt('sl2', 0)
PRE = 'nopre' not in OPT

EPOCH, L0, ROW0, R0, R1 = 0x0, 0x10000, 0x400000, 0x800000, 0xC00000
STAMP0 = 0x1000000
FLG = 0x1000
TAB, CNT, BH, GP, AIMG, LIMG, WL = 0, 0x4100, 0x4500, 0x4600, 0x5000, 0x8000, 0xC000
RS = LIMG
NANW = 0x4080
ROWPF = 'rowpf' in OPT
SYNC = CNT + 1004
LIMIT = 0x4000
RLV = 0x400000
FL = 0x10000; FLS = 6656; RIM = 0x18000; NW = 0x4090; DUMP = 0x4C00
LDS_BYTES = RIM + 4 * 8192
S_IDX, S_TABL, S_W, S_LIST, S_ROW, S_RES, S_OUT = 4, 8, 12, 16, 20, 24, 28
sG = 32
P_IDX, P_TAB, P_W, P_B, P_H, P_P, P_OUT, P_WS = 36, 38, 40, 42, 44, 46, 48, 50
sJ, sRARE, sTAG, sT2, sT0, sT1, sNT, sBAD, sU, sCNT = 52, 53, 54, 55, 56, 57, 58, 59, 60, 61
sEX = 62
sRND = 3
sH = 64
sST = 80
NST = 11
LOG2E_HALF = 0x3f38aa3b
vL = 1
SC = " sc1"
KN = NAME + "_kernel"

class K:
    def __init__(s): s.L = []; s.tail = []; s.cur = s.L
    def e(s, x):
        for ln in x.split('\n'):
            ln = ln.strip()
            if ln: s.cur.append(ln if ln.endswith(':') else '    ' + ln)
    def stamp(s, i):
        if STAMP: s.e(f"{CLK} s[{sST+2*i}:{sST+2*i+1}]")
    def srd(s, d, p, n, off=0):
        if off: s.e(f"s_add_u32 s{d}, s{p}, {off:#x}\ns_addc_u32 s{d+1}, s{p+1}, 0")
        else: s.e(f"s_mov_b64 s[{d}:{d+1}], s[{p}:{p+1}]")
        s.e(f"s_mov_b32 s{d+2}, {n:#x}\ns_mov_b32 s{d+3}, 0x00020000")
k = K(); e = k.e
def vr(a, n): return f"v[{a}:{a+n-1}]"
def sr(a): return f"s[{a}:{a+3}]"
class rare:
    def __enter__(s): s.old = k.cur; k.cur = k.tail
    def __exit__(s, *a): k.cur = s.old

LOC = 8
G = 16; RM = 80; EN = 96; TQ = 112; AS = 166; AC = 182; BQ = 230; DX = 202
cA, cOFF, cBIT, cWR, cFL, cMSK = 246, 247, 248, 249, 250, 251
cR = 252
cAM, cDR, cRD, cRA = 198, 199, 200, 201
WA = 140

def prologue():
    e("s_cmp_ge_u32 s2, 256\ns_cbranch_scc1 L_end")
    k.stamp(0)
    e(f"s_load_dwordx4 s[{P_IDX}:{P_IDX+3}], s[0:1], 0")
    e(f"s_load_dwordx2 s[{P_WS}:{P_WS+1}], s[0:1], 80")
    e(f"s_load_dwordx8 s[{P_W}:{P_W+7}], s[0:1], 32")
    e(f"s_load_dwordx2 s[{P_OUT}:{P_OUT+1}], s[0:1], 64")
    e(f"v_lshrrev_b32 v2, 6, v0\nv_and_b32 v{vL}, 63, v0")
    e(f"v_readfirstlane_b32 s{sJ}, v2")
    e("v_mov_b32 v240, -1\nv_mov_b32 v241, -1\nv_mov_b32 v242, -1\nv_mov_b32 v243, -1")
    e(f"v_lshlrev_b32 v3, 4, v0\nds_write_b128 v3, v[240:243] offset:{LIMG}\nds_write_b128 v3, v[240:243] offset:{LIMG+8192}")
    e(f"s_and_b32 s{sU}, s{sJ}, 3\ns_cmp_ge_u32 s{sJ}, 4\ns_cbranch_scc1 L_hi")

def sync_add(i):
    e(f"v_mov_b32 v5, {SYNC+4*i}\nv_mov_b32 v6, 1\ns_mov_b64 exec, 1\nds_add_u32 v5, v6\ns_mov_b64 exec, -1")
def sync_wait(i, n, nm, sleep=0):
    e(f"v_mov_b32 v5, {SYNC+4*i}\nL_sync_{nm}:")
    if sleep: e(f"s_sleep {sleep}")
    e(f"ds_read_b32 v6, v5\ns_waitcnt lgkmcnt(0)\nv_cmp_gt_u32 vcc, {n}, v6\ns_cbranch_vccnz L_sync_{nm}")

def make_loc(KK, C4, full):
    e(f"v_mov_b32 v7, {RS}")
    if full: e(f"v_mov_b32 v6, {NANW}\nv_mov_b32 v4, -1\nds_write_b32 v6, v4")
    for t in range(8):
        if t == 2: e("s_mov_b32 exec_lo, 0x77777777\ns_mov_b32 exec_hi, 0x77777777")
        if full:
            e(f"v_and_b32 v4, 30, v{KK+t}\nv_lshlrev_b32 v5, 3, v{C4+t}\nv_add_lshl_u32 v4, v4, v5, 1\nv_cmp_le_u32 vcc, 48, v{KK+t}")
            e(f"v_lshrrev_b32 v5, 5, v{KK+t}\nv_lshlrev_b32 v5, 14, v5\nv_add3_u32 v4, v4, v5, v7\nv_cndmask_b32 v{LOC+t}, v4, v6, vcc")
        else:
            e(f"v_lshl_add_u32 v4, v{C4+t}, 3, v{KK+t}\nv_lshl_add_u32 v{LOC+t}, v4, 1, v7")
    e("s_mov_b64 exec, -1")

def lookup_consts():
    e(f"v_and_b32 v4, 15, v{vL}\nv_bfe_u32 v5, v{vL}, 4, 1\nv_lshrrev_b32 v{cBIT}, 5, v{vL}")
    e(f"s_mul_i32 s{sG+1}, s{sU}, {FLS}\ns_add_u32 s{sG+1}, s{sG+1}, {FL}\ns_lshl_b32 s{sG}, s{sU}, 18\ns_lshl_b32 s{sG+2}, s{sU}, 13\ns_add_u32 s{sG+2}, s{sG+2}, {RIM}")
    e(f"v_and_b32 v{cFL}, 31, v{vL}\nv_lshl_add_u32 v{cFL}, v{cFL}, 2, s{sG+1}")
    e(f"v_lshrrev_b32 v7, 4, v{vL}\nv_lshl_add_u32 v{cDR}, v7, 5, v4\nv_lshl_add_u32 v{cDR}, v{cDR}, 2, s{sG+1}")
    e(f"v_add_u32 v{cA}, -1, v{cBIT}\nv_and_b32 v{cA}, 0xffff0000, v{cA}")
    e(f"v_mul_u32_u24 v{cOFF}, 12, v{cBIT}\nv_mul_i32_i24 v{cWR}, -52, v{cBIT}\nv_mov_b32 v{cMSK}, 0x7ffffffe\nv_mov_b32 v{cAM}, 0x2003fffc")
    e(f"v_and_b32 v6, 1, v4\nv_lshlrev_b32 v6, 4, v6\nv_lshrrev_b32 v6, v6, 1.0")
    e(f"v_bfe_u32 v7, v4, 1, 1\nv_xor_b32 v7, v7, v5\nv_add_u32 v7, -1, v7\nv_and_b32 v6, v6, v7\nv_lshrrev_b32 v7, 2, v4")
    for q in range(4):
        e(f"v_xor_b32 v4, {q}, v7\nv_add_u32 v4, -1, v4\nv_ashrrev_i32 v4, 31, v4\nv_and_b32 v{AS+4*q}, v4, v6")
        for i in range(1, 4): e(f"v_mov_b32 v{AS+4*q+i}, v{AS+4*q}")
    e(f"v_mov_b32 v{BQ+7}, 0\nv_mov_b32 v{BQ+15}, 0")
    e(f"v_and_b32 v4, 3, v{vL}\nv_lshrrev_b32 v5, 2, v{vL}\nv_lshlrev_b32 v{cRD}, 10, v4\nv_lshl_add_u32 v{cRD}, v5, 2, v{cRD}\nv_add_u32 v{cRD}, s{sG+2}, v{cRD}")
    e(f"v_lshlrev_b32 v4, 4, v4\nv_lshl_add_u32 v{cRA}, v5, 14, v4")
    e(f"s_lshl_b32 s{sG+3}, s{sU}, 20\ns_lshl_b32 s{sT0}, s2, 6\ns_add_u32 s{sG+3}, s{sG+3}, s{sT0}")

def res_tags(lane_expr):
    e(f"s_and_b32 s{sT0}, s{sTAG}, 255\ns_xor_b32 s{sT1}, s{sTAG}, 1\ns_and_b32 s{sT1}, s{sT1}, 3\ns_lshl_b32 s{sT1}, s{sT1}, 8\ns_or_b32 s{sT0}, s{sT0}, s{sT1}")
    e(f"s_lshr_b32 s{sT1}, s{sTAG}, 8\ns_lshl_b32 s{sT1}, s{sT1}, 10\ns_or_b32 s{sT0}, s{sT0}, s{sT1}")
    e(lane_expr)
    e(f"v_lshlrev_b32 v4, 3, v4\nv_lshrrev_b32 v4, v4, s{sT0}")
    for j in range(4): e(f"v_bfe_u32 v5, v4, {2*j}, 2\nv_alignbit_b32 v{cR+j}, v5, v5, 1")

PM = opt('pm', 0)
def pre_addr():
    sh = opt('psh', 21); n = (1 << (24 - sh)) - 1
    e(f"v_and_b32 v2, {min(n,63)}, v{vL}\nv_lshlrev_b32 v2, {sh}, v2\nv_add_u32 v2, {(1<<sh)-128:#x}, v2")

def route():
    V = 16; KK = 24; C4 = 32; RW = 40; EB = 44; T = 52
    TP = 64; TU = 72; WR = 88; WV = 104; MU = 120; PP = 128
    e("s_setprio 2")
    e(f"v_mov_b32 v4, 0\nv_lshlrev_b32 v5, 2, v0\nds_write_b32 v5, v4 offset:{CNT}\nv_and_b32 v5, 12, v5\nds_write_b32 v5, v4")
    e(f"v_lshrrev_b32 v{T}, 2, v0\nv_and_b32 v{T+1}, 3, v0\nv_lshlrev_b32 v{T+1}, 2, v{T+1}")
    e(f"v_mul_u32_u24 v{T+2}, 104, v{T}\ns_mul_i32 s{sT1}, s2, 6656")
    for t in range(4):
        e(f"v_add_u32 v{EB+2*t}, {t}, v{T+1}\nv_add_u32 v{T+3}, {t-13}, v{T+1}\nv_min_u32 v{EB+2*t}, v{EB+2*t}, v{T+3}")
        e(f"v_lshl_add_u32 v{T+4+t}, v{EB+2*t}, 3, v{T+2}")
    if PM == 2: pre_addr()
    e("s_waitcnt lgkmcnt(0)")
    if PM == 2: e(f"global_load_dword v129, v2, s[{P_WS}:{P_WS+1}]")
    k.srd(S_IDX, P_IDX, 16384 * 104)
    for t in range(4): e(f"buffer_load_dwordx2 {vr(V+2*t,2)}, v{T+4+t}, {sr(S_IDX)}, s{sT1} offen")
    e(f"s_load_dword s{sTAG}, s[{P_WS}:{P_WS+1}], {EPOCH:#x}")
    e(f"s_load_dwordx16 s[{sH}:{sH+15}], s[{P_H}:{P_H+1}], 0")
    e("s_barrier")
    k.srd(S_TABL, P_TAB, 64000)
    k.srd(S_W, P_W, 2048)
    e(f"v_lshrrev_b32 v130, 5, v{vL}\nv_and_b32 v131, 7, v{vL}")
    e(f"v_bfe_u32 v5, v{vL}, 3, 2\nv_lshlrev_b32 v5, 6, v5\nv_lshl_add_u32 v5, v130, 5, v5")
    e(f"v_and_b32 v6, 31, v{vL}\nv_lshlrev_b32 v7, 6, v6\nv_lshlrev_b32 v6, 1, v6\ns_lshl_b32 s{sT1}, s2, 8\ns_lshr_b32 s{sT2}, s{sU}, 1\ns_lshl_b32 s{sT0}, s{sT2}, 4\ns_add_u32 s{sT1}, s{sT1}, s{sT0}")
    e(f"buffer_load_dwordx4 {vr(TP,4)}, v5, {sr(S_TABL)}, s{sT1} offen")
    for t in range(4): e(f"buffer_load_dwordx4 {vr(WR+4*t,4)}, v7, {sr(S_W)}, 0 offen offset:{16*t}")
    e(f"global_load_short_d16_hi v{PP}, v6, s[{P_P}:{P_P+1}]")
    e(f"s_mul_i32 s{sT0}, s{sU}, 384\nv_lshlrev_b32 v132, 2, v{vL}\nv_add_u32 v132, s{sT0}, v132")
    e(f"v_mov_b32 v4, 0\nv_lshl_add_u32 v7, v6, 1, s{sT0}\nds_write_b32 v7, v4 offset:{GP+256}")
    e(f"s_and_b32 s{sT1}, s{sU}, 1\ns_lshl_b32 s{sNT}, s{sT1}, 2\nv_subrev_u32 v133, s{sNT}, v131\nv_min_u32 v133, 2, v133\nv_lshlrev_b32 v133, 7, v133\nv_lshl_add_u32 v133, v130, 6, v133")
    e(f"s_lshl_b32 s{sNT}, s{sT2}, 5\ns_add_u32 s{sT0}, s{sT0}, s{sNT}\nv_add_u32 v133, s{sT0}, v133")
    e(f"s_lshl_b32 s{sT1}, s{sT1}, 1\ns_add_u32 s{sT1}, s{sT1}, s{sT2}\ns_lshl_b32 s{sT1}, s{sT1}, 10\nv_lshlrev_b32 v134, 4, v{vL}\nv_add_u32 v134, s{sT1}, v134")
    k.srd(S_ROW, P_WS, 0x100000, ROW0)
    k.srd(S_LIST, P_WS, 250 * 16384, L0)
    k.srd(S_RES, P_WS, 0x800000, R0)
    k.srd(S_OUT, P_OUT, 32768)
    e(f"v_lshlrev_b32 v{T+3}, 8, v{T}")
    for t in range(4):
        e(f"v_add_u32 v4, 6, v{EB+2*t}\nv_lshl_or_b32 v{EB+2*t+1}, v{EB+2*t}, 4, v{T+3}")
        e(f"v_lshrrev_b32 v4, 4, v4\nv_lshl_or_b32 v{EB+2*t+1}, v4, 1, v{EB+2*t+1}\nv_or_b32 v{EB+2*t}, 1, v{EB+2*t+1}")
    for t in range(8): e(f"v_mov_b32 v{LOC+t}, 0\nv_mov_b32 v{KK+t}, 0")
    lookup_consts()
    e(f"s_lshl_b32 s{sCNT}, s{sU}, 12\nv_lshrrev_b32 v4, 4, v{vL}\nv_xor_b32 v4, v4, v{vL}\nv_and_b32 v4, 3, v4\nv_and_b32 v5, 60, v{vL}\nv_or_b32 v4, v4, v5\nv_lshl_add_u32 v{WA}, v4, 4, s{sCNT}")
    e(f"v_lshrrev_b32 v4, 2, v{vL}\nv_lshl_add_u32 v5, v{vL}, 6, s{sCNT}")
    for g in range(4): e(f"v_xor_b32 v6, {g}, v4\nv_and_b32 v6, 3, v6\nv_lshl_add_u32 v{WA+1+g}, v6, 4, v5")
    e(f"v_lshl_add_u32 v4, v{vL}, 4, s{sG+1}")
    for i in range(7): e(f"ds_write_b128 v4, v[240:243] offset:{1024*i}")
    e(f"v_mov_b32 v2, 2\nv_mov_b32 v7, 0x100010\ns_lshl_b32 s{sT0}, s2, 12")
    e(f"v_and_b32 v4, 3, v0\nv_lshlrev_b32 v{T+4}, 14, v{T}\nv_lshl_add_u32 v{T+4}, v4, 4, v{T+4}")
    e(f"v_add_u32 v{T+5}, 1, v4\nv_lshrrev_b32 v{T+5}, 2, v{T+5}\nv_sub_u32 v{T+5}, 0, v{T+5}")
    e(f"s_waitcnt lgkmcnt(0)\ns_add_u32 s{sTAG}, s{sTAG}, 1")
    res_tags("v_and_b32 v4, 3, v0")
    e(f"s_lshl_b32 s{sT0}, s2, 12\ns_waitcnt vmcnt(6)")
    k.stamp(1)
    for t in range(4): e(f"v_lshl_or_b32 v{RW+t}, v{V+2*t+1}, 16, v{V+2*t}\nv_lshl_add_u32 v{RW+t}, v{RW+t}, 4, v7")
    e(f"buffer_store_dwordx4 {vr(RW,4)}, v3, {sr(S_ROW)}, s{sT0} offen{SC}")
    for t in range(8):
        if t == 2: e("s_mov_b32 exec_lo, 0x77777777\ns_mov_b32 exec_hi, 0x77777777")
        e(f"v_and_b32 v{C4+t}, -4, v{V+t}\nds_add_rtn_u32 v{KK+t}, v{C4+t}, v2 offset:{CNT}")
    e("s_mov_b64 exec, -1")
    for t in range(8): e(f"v_lshlrev_b32 v{V+t}, 2, v{V+t}\nv_and_or_b32 v{V+t}, v{V+t}, 12, v{EB+t}")
    e("s_waitcnt lgkmcnt(0)")
    for t in range(8):
        if t == 2: e("s_mov_b32 exec_lo, 0x77777777\ns_mov_b32 exec_hi, 0x77777777")
        e(f"v_min_u32 v4, 54, v{KK+t}\nv_lshl_add_u32 v4, v{C4+t}, 4, v4\nds_write_b16 v4, v{V+t} offset:{LIMG}")
    e("s_mov_b64 exec, -1")
    e(f"s_lshl_b32 s{sT0}, s2, 6")
    k.stamp(2)
    e(f"s_waitcnt vmcnt(1)\nv_mov_b32 v6, 0\nv_cmp_gt_u32 vcc, 32, v{vL}")
    for t in range(16): e(f"v_dot2_f32_bf16 v6, v{WR+t}, s{sH+t}, v6")
    for t in range(4): e(f"v_lshlrev_b32 v{TU+2*t}, 16, v{TP+t}\nv_and_b32 v{TU+2*t+1}, 0xffff0000, v{TP+t}")
    e(f"v_mul_f32 v6, {LOG2E_HALF:#x}, v6\nv_cndmask_b32 v6, v{PP}, v6, vcc\nds_write_b32 v132, v6 offset:{GP}\ns_waitcnt lgkmcnt(0)")
    for t in range(2): e(f"ds_read_b128 {vr(WV+4*t,4)}, v133 offset:{GP+16*t}")
    e("s_waitcnt lgkmcnt(0)")
    for t in range(8): e(f"v_mul_f32 v{WV+t}, v{WV+t}, v{TU+t}")
    for t in range(4): e(f"v_cvt_pk_bf16_f32 v{MU+t}, v{WV+2*t}, v{WV+2*t+1}")
    e(f"ds_write_b128 v134, {vr(MU,4)} offset:{AIMG+8192}\nv_mov_b32 v7, s{sTAG}")
    e("s_waitcnt vmcnt(0) lgkmcnt(0)")
    sync_add(0)
    sync_wait(0, 4, 'lo')
    k.stamp(3)
    P = 146
    e("v_and_b32 v4, -4, v0")
    for h in range(4): e(f"ds_read_b128 {vr(P+4*h,4)}, v3 offset:{LIMG+4096*h}\nds_read_b32 v{P+16+h}, v4 offset:{CNT+256*h}")
    for h in range(4):
        e(f"s_waitcnt lgkmcnt({6-2*h})\nv_bfi_b32 v{P+4*h+3}, v{T+5}, v7, v{P+4*h+3}\nv_bfi_b32 v{P+4*h+2}, v{T+5}, v{P+16+h}, v{P+4*h+2}")
        e(f"buffer_store_dwordx4 {vr(P+4*h,4)}, v{T+4}, {sr(S_LIST)}, s{sT0} offen{SC}")
        if h < 3: e(f"s_add_u32 s{sT0}, s{sT0}, 0x100000")
    k.stamp(4)
    make_loc(KK, C4, False)
    e(f"v_max3_u32 v7, v{KK}, v{KK+1}, v{KK+2}\nv_max3_u32 v7, v7, v{KK+3}, v{KK+4}\nv_max3_u32 v7, v7, v{KK+5}, v{KK+6}\nv_max_u32 v7, v7, v{KK+7}")
    e(f"v_cmp_le_u32 vcc, 32, v7\ns_cbranch_vccnz L_mark\nL_mark_ret:")
    with rare():
        e("L_mark:"); make_loc(KK, C4, True); sync_add(4); e("s_branch L_mark_ret")

def decode(ns):
    for i, n in enumerate(ns): e(f"v_lshrrev_b32 v{TQ+i}, 2, v{RM+n}\nv_bfe_i32 v{TQ+4+i}, v{RM+n}, v{cBIT}, 1")
    for i, n in enumerate(ns): e(f"v_and_b32 v{TQ+i}, v{TQ+i}, v{cAM}\nv_and_b32 v{TQ+8+i}, v{TQ+4+i}, v{cWR}")
    for i, n in enumerate(ns): e(f"v_add3_u32 v{TQ+i}, v{TQ+i}, v{cOFF}, v{TQ+8+i}\nv_and_b32 v{TQ+4+i}, v{TQ+4+i}, v{cA}")
    for i, n in enumerate(ns):
        e(f"buffer_load_dwordx4 {vr(G+4*n,4)}, v{TQ+i}, {sr(S_ROW)}, s{sG} offen{SC}\nv_and_or_b32 v{RM+n}, v{RM+n}, 12, v{TQ+4+i}")
def addrs(n, buf):
    g = G + 4 * n; r = RM + n
    e(f"v_and_b32 v{g}, v{g}, v{r}")
    for t, (d, dw, hi) in enumerate([(2, 1, 0), (g + 1, 1, 1), (3, 2, 0), (g + 2, 2, 1), (4, 3, 0), (g + 3, 3, 1), (g, 0, 1)]):
        e(f"v_add_u32_sdwa v{d}, v{r}, v{g+dw} dst_sel:DWORD dst_unused:UNUSED_PAD src0_sel:WORD_0 src1_sel:WORD_{hi}")
        e(f"ds_read_b32 v{BQ+8*buf+t}, v{d}")
def mf(n, buf):
    a = AC + 4 * (n // 4); q = n & 3
    e(f"v_mfma_f32_16x16x32_bf16 {vr(a,4)}, {vr(AS+4*q,4)}, {vr(BQ+8*buf,4)}, {'0' if (q==0 and n<12) else vr(a,4)}")
    e(f"v_mfma_f32_16x16x32_bf16 {vr(a,4)}, {vr(AS+4*q,4)}, {vr(BQ+8*buf+4,4)}, {vr(a,4)}")
def dreads(addr):
    for q in range(4): e(f"ds_read2_b32 {vr(DX+2*q,2)}, v{addr+q//2} offset0:{128*(q%2)} offset1:{128*(q%2)+16}")
def dests():
    for q in range(8): e(f"v_lshrrev_b32 v{DX+q}, 12, v{DX+q}")
    for q in range(8): e(f"v_and_or_b32 v{DX+q}, v{DX+q}, v5, v6")
def scatter():
    for q in range(4):
        a = AC + 4 * q
        e(f"v_cvt_pk_bf16_f32 v{a}, v{a+1}, v{a}\nv_cvt_pk_bf16_f32 v{a+2}, v{a+3}, v{a+2}")
        e(f"ds_write_b32 v{DX+2*q}, v{a}\nds_write_b32 v{DX+2*q+1}, v{a+2}")
def res_stores(lvl, s0):
    T = G + 16 * lvl
    e(f"v_add_u32 v2, 64, v{cRD}\nv_add_u32 v3, 128, v{cRD}\nv_add_u32 v4, 192, v{cRD}\ns_waitcnt lgkmcnt(6)")
    for i in range(4):
        for x in range(2): e(f"ds_read2st64_b32 {vr(T+4*i+2*x,2)}, v{cRD if i==0 else 1+i} offset0:{16*lvl+2*x} offset1:{16*lvl+2*x+1}")
    for i in range(4):
        e(f"s_waitcnt lgkmcnt({6-2*i})")
        for j in range(4): e(f"v_and_or_b32 v{T+4*i+j}, v{T+4*i+j}, v{cMSK}, v{cR+j}")
        e(f"buffer_store_dwordx4 {vr(T+4*i,4)}, v{cRA}, {sr(S_RES)}, s{s0} offen{SC}")
        if i < 3: e(f"s_add_u32 s{s0}, s{s0}, 0x40000")

def lo_lookup():
    POLL = 16; NQ = 3
    e("s_cmp_ge_u32 s2, 250\ns_cbranch_scc1 L_nobucket0")
    with rare(): e("L_nobucket0:\ns_waitcnt lgkmcnt(0)\ns_barrier\ns_branch L_nobucket")
    e(f"v_lshlrev_b32 v3, 4, v{vL}\ns_lshl_b32 s{sT0}, s2, 14\ns_add_u32 s{sT0}, s{sT0}, s{sCNT}")
    e(f"s_mov_b32 s{sNT}, 0\ns_mov_b32 s{sEX}, 0x88888888\ns_mov_b32 s{sEX+1}, 0x88888888")
    CW, CN1, CD, CP = DX + 8, DX + 9, DX + 10, DX + 11
    e(f"v_lshlrev_b32 v{CW}, 14, v{vL}\nv_mov_b32 v{CD}, {DUMP}")
    for i in range(4): e(f"v_mov_b32 v{AC+12+i}, 0")
    if 'nodrain' not in OPT: e("s_waitcnt vmcnt(0)")
    sync_add(0)
    sync_wait(0, 8, 'pub', 1)
    k.stamp(5)
    if DL1: e(f"s_sleep {DL1}")
    e("L_poll1:")
    for h in range(4): e(f"buffer_load_dwordx4 {vr(POLL+4*h,4)}, v3, {sr(S_LIST)}, s{sT0} offen offset:{1024*h}{SC}")
    for h in range(4):
        e(f"s_waitcnt vmcnt({3-h})")
        if h == 0: e(f"v_xor_b32 v4, s{sTAG}, v{POLL+3}")
        else: e(f"v_xor_b32 v5, s{sTAG}, v{POLL+4*h+3}\nv_or_b32 v4, v4, v5")
        e(f"ds_write_b128 v{WA}, {vr(POLL+4*h,4)} offset:{WL+1024*h}")
    e(f"v_cmp_ne_u32 vcc, 0, v4\ns_and_b64 vcc, vcc, s[{sEX}:{sEX+1}]\ns_waitcnt lgkmcnt(0)")
    e("s_cbranch_vccnz L_poll1_again\nL_poll1_ok:")
    with rare():
        e("L_poll1_again:")
        if SL1: e(f"s_sleep {SL1}")
        e(f"s_add_u32 s{sNT}, s{sNT}, 1\ns_cmp_lt_u32 s{sNT}, {LIMIT}\ns_cbranch_scc1 L_poll1")
        for i in range(4): e(f"v_mov_b32 v{POLL+i}, 0\nv_or_b32 v{cR+i}, 0x7fc00000, v{cR+i}")
        for h in range(4): e(f"ds_write_b128 v{WA}, {vr(POLL,4)} offset:{WL+1024*h}")
        e("s_waitcnt lgkmcnt(0)\ns_branch L_poll1_ok")
    k.stamp(6)
    if 'loprio0' in OPT: e("s_setprio 0")
    e(f"ds_read_b128 {vr(EN+12,4)}, v{WA+4} offset:{WL}")
    for g in range(3): e(f"ds_read_b128 {vr(EN+4*g,4)}, v{WA+1+g} offset:{WL}")
    e(f"s_waitcnt lgkmcnt(3)\nv_lshrrev_b32 v2, 1, v{EN+14}\nv_min_u32 v2, 24, v2\nv_mov_b32 v3, v2\ns_nop 1")
    for m in ("row_shr:1", "row_shr:2", "row_shr:4", "row_shr:8"):
        e(f"v_add_u32_dpp v3, v3, v3 {m} row_mask:0xf bank_mask:0xf bound_ctrl:0" .replace(" bound_ctrl:0", "") + "\ns_nop 1")
    e("v_add_u32_dpp v3, v3, v3 row_bcast:15 row_mask:0xa bank_mask:0xf\ns_nop 1\nv_add_u32_dpp v3, v3, v3 row_bcast:31 row_mask:0xc bank_mask:0xf")
    e(f"v_cmp_eq_u32 vcc, 0, v2\nv_readlane_b32 s{sNT}, v3, 63\nv_sub_u32 v3, v3, v2\nv_lshl_add_u32 v3, v3, 2, s{sG+1}\nv_cndmask_b32 v3, v3, v{CD}, vcc")
    e(f"v_cmp_lt_u32 vcc, 16, v2\ns_or_b32 s{sBAD}, vcc_lo, vcc_hi\ns_waitcnt lgkmcnt(0)\ns_cbranch_vccnz L_fl23")
    e(f"v_cmp_lt_u32 vcc, 14, v2\nv_add_u32 v5, {15<<20:#x}, v{CW}\ns_cbranch_vccnz L_fl15\nv_add_u32 v5, {13<<20:#x}, v{CW}\ns_branch L_fl13")
    def put(j):
        e(f"v_or_b32_sdwa v{6+(j&1)}, v5, sext(v{EN+j//2}) dst_sel:DWORD dst_unused:UNUSED_PAD src0_sel:DWORD src1_sel:WORD_{j&1}")
        if j: e(f"v_add_u32 v5, 0xfff00000, v5")
        e(f"ds_write_b32 v3, v{6+(j&1)} offset:{4*j}")
    with rare():
        e(f"L_fl23:\nv_add_u32 v5, {23<<20:#x}, v{CW}")
        for j in range(23, 15, -1): put(j)
        e("s_waitcnt lgkmcnt(0)\ns_branch L_fl15")
    for j in range(15, -1, -1):
        if j in (15, 13): e(f"L_fl{j}:")
        put(j)
        if j == 8: e("s_waitcnt lgkmcnt(4)")
    e(f"v_add_u32 v{cDR+0 if False else 7}, 1024, v{cDR}\nv_mov_b32 v6, v{cDR}\ns_mov_b32 s{sRND}, 0")
    e("s_waitcnt lgkmcnt(3)\nL_round:")
    order = [15, 14, 13, 12] + list(range(12))
    for i, n in enumerate(order):
        e(f"ds_read_b32 v{RM+n}, v{cFL} offset:{128*n}")
        if i == 11: e("s_waitcnt lgkmcnt(8)")
    e(f"s_add_u32 s{sT2}, s{sNT}, 31\ns_lshr_b32 s{sT2}, s{sT2}, 5")
    e(f"s_cmp_eq_u32 s{sT2}, 14\ns_cbranch_scc1 L_d13\ns_cmp_eq_u32 s{sT2}, 13\ns_cbranch_scc1 L_d12\ns_cmp_lt_u32 s{sT2}, 13\ns_cbranch_scc1 L_d0\ns_cmp_eq_u32 s{sT2}, 15\ns_cbranch_scc1 L_d14")
    for n in (15, 14, 13, 12):
        if n < 15: e(f"L_d{n}:")
        decode([n])
    P = opt('pre', 6); R = 12 - P
    e("L_d0:\ns_waitcnt lgkmcnt(8)")
    decode([0, 1, 2, 3][:P]); e("s_waitcnt lgkmcnt(0)")
    if P > 4: decode(list(range(4, min(P, 8))))
    if P > 8: decode(list(range(8, P)))
    dreads(6)
    k.stamp(7)
    e(f"s_cmp_lg_u32 s{sRND}, 0\ns_cbranch_scc1 L_nobar\ns_barrier\nL_nobar:")
    k.stamp(8)
    e(f"s_waitcnt lgkmcnt(0)\nv_mov_b32 v5, 0x1ffc\nv_mov_b32 v6, s{sG+2}")
    dests()
    e(f"s_cmp_eq_u32 s{sT2}, 14\ns_cbranch_scc1 L_s13\ns_cmp_eq_u32 s{sT2}, 13\ns_cbranch_scc1 L_s12\ns_cmp_lt_u32 s{sT2}, 13\ns_cbranch_scc1 L_s0\ns_cmp_eq_u32 s{sT2}, 15\ns_cbranch_scc1 L_s14")
    e("s_branch L_s15")
    def later(i):
        n = order[i]
        return (3 - i) + P if i < 4 else P + min(n, R) - 1 - n
    for i, n in enumerate(order[:5]):
        e(f"L_s{n}:\ns_waitcnt vmcnt({later(i)})"); addrs(n, i & 1); e(f"s_branch L_p{n}")
    for i, n in enumerate(order):
        if i:
            e(f"s_waitcnt vmcnt({later(i)})"); addrs(n, i & 1)
            e("s_waitcnt lgkmcnt(7)"); mf(order[i - 1], (i - 1) & 1)
        if i < 5: e(f"L_p{n}:")
        if i >= 4 and n < R: decode([P + n])
    e("s_waitcnt lgkmcnt(0)"); mf(order[-1], 1)
    scatter_first = True
    for q in (3, 0, 1, 2):
        a_ = AC + 4 * q
        e(f"v_cvt_pk_bf16_f32 v{a_}, v{a_+1}, v{a_}\nv_cvt_pk_bf16_f32 v{a_+2}, v{a_+3}, v{a_+2}")
        e(f"ds_write_b32 v{DX+2*q}, v{a_}\nds_write_b32 v{DX+2*q+1}, v{a_+2}")
    e(f"s_cmp_gt_u32 s{sNT}, 512\ns_cbranch_scc1 L_more")
    with rare():
        e(f"L_more:\ns_sub_u32 s{sNT}, s{sNT}, 512\ns_mov_b32 s{sRND}, 1\nv_add_u32 v{cFL}, 2048, v{cFL}\nv_add_u32 v{cDR}, 2048, v{cDR}\nv_add_u32 v7, 1024, v{cDR}\nv_mov_b32 v6, v{cDR}")
        e("s_waitcnt lgkmcnt(0)")
        for i in range(4): e(f"v_mov_b32 v{AC+12+i}, 0")
        e("s_branch L_round")
    e(f"s_mov_b32 s{sT0}, s{sG+3}")
    res_stores(0, sT0)
    e(f"s_cmp_lg_u32 s{sBAD}, 0\ns_cbranch_scc1 L_res2\nL_res2_ret:")
    with rare():
        e(f"L_res2:\ns_add_u32 s{sT0}, s{sG+3}, {RLV:#x}"); res_stores(1, sT0); e("s_branch L_res2_ret")
    for j in range(4): e(f"v_and_b32 v{cR+j}, 0x80000001, v{cR+j}")
    e(f"s_or_b32 s{sT0}, s2, s{sJ}\ns_cmp_eq_u32 s{sT0}, 0\ns_cbranch_scc1 L_epoch\nL_nobucket:")
    with rare():
        e(f"L_epoch:\ns_mov_b64 exec, 1\nv_mov_b32 v2, {EPOCH:#x}\nv_mov_b32 v3, s{sTAG}\nglobal_store_dword v2, v3, s[{P_WS}:{P_WS+1}]{SC}\ns_mov_b64 exec, -1\ns_branch L_nobucket")
    k.stamp(9)

def hi_lookup():
    e("s_waitcnt lgkmcnt(0)\ns_barrier")
    k.stamp(6)

def final():
    T = 32; X = 48; Y = 64; CN = 80; YA = 84
    e(f"v_lshlrev_b32 v{T}, 4, v0\nv_add_u32 v{T+1}, 0x2000, v{T}\ns_lshl_b32 s{sT0}, s2, 14\ns_add_u32 s{sT1}, s{sT0}, 0x1000")
    e(f"v_mov_b32 v5, {SYNC+16}\nds_read_b32 v6, v5")
    e(f"v_cmp_gt_u32 vcc, 232, v0\ns_mov_b64 s[{sEX}:{sEX+1}], vcc\ns_mov_b32 s{sNT}, 0\nv_mov_b32 v{T+4}, 0")
    for t in range(8): e(f"v_and_b32 v{T+8+t}, 0xffff, v{LOC+t}")
    e(f"s_lshl_b32 s{sT2}, s2, 7\ns_lshl_b32 s{sBAD}, s{sJ}, 5\ns_add_u32 s{sT2}, s{sT2}, s{sBAD}")
    e(f"v_lshrrev_b32 v3, 2, v{vL}\nv_lshlrev_b32 v3, 1, v3\ns_waitcnt lgkmcnt(0)\nv_readfirstlane_b32 s{sRARE}, v6")
    for h in range(4): e(f"v_mov_b32 v{YA+h}, -1")
    e(f"s_cmp_lg_u32 s{sRARE}, 0\ns_cbranch_scc1 L_rare0\nL_rare0_ret:")
    with rare():
        e(f"L_rare0:\nv_and_b32 v4, -4, v0\ns_add_u32 s{sBAD}, s{sT0}, {RLV:#x}\nv_mov_b32 v7, 0x80000000")
        for h in range(4): e(f"ds_read_b32 v{CN+h}, v4 offset:{CNT+256*h}")
        e("s_waitcnt lgkmcnt(0)")
        for h in range(4):
            e(f"v_add_u32 v{CN+h}, -33, v{CN+h}\nv_add_u32 v4, {4096*h}, v{T}\nv_and_or_b32 v{YA+h}, v{CN+h}, v7, v4\nv_ashrrev_i32 v{CN+h}, 31, v{CN+h}")
        e("s_branch L_rare0_ret")
    e("s_barrier" if 'nodrain2' in OPT else "s_waitcnt vmcnt(0)\ns_barrier")
    if DL2: e(f"s_sleep {DL2}")
    e("L_poll2:")
    e(f"s_cmp_lg_u32 s{sRARE}, 0\ns_cbranch_scc1 L_rare1\nL_rare1_ret:")
    with rare():
        e("L_rare1:")
        for h in range(4): e(f"buffer_load_dwordx4 {vr(Y+4*h,4)}, v{YA+h}, {sr(S_RES)}, s{sBAD} offen{SC}")
        e("s_branch L_rare1_ret")
    for h in range(4): e(f"buffer_load_dwordx4 {vr(X+4*h,4)}, v{T+h//2}, {sr(S_RES)}, s{sT0 if h%2==0 else sT1} offen{SC}")
    for h in range(4):
        d = T + 2 if h < 3 else T + 3
        e(f"s_waitcnt vmcnt({3-h})")
        for j in range(4):
            if j == 0 and h in (0, 3): e(f"v_xor_b32 v{d}, v{X+4*h}, v{cR}")
            else: e(f"v_bitop3_b32 v{d}, v{d}, v{X+4*h+j}, v{cR+j} bitop3:0xf6")
        e(f"ds_write_b128 v{T}, {vr(X+4*h,4)} offset:{RS+4096*h}")
    e(f"s_cmp_lg_u32 s{sRARE}, 0\ns_cbranch_scc1 L_rare2\nL_rare2_ret:")
    with rare():
        e("L_rare2:")
        for h in range(4):
            for j in range(4):
                if j == 0: e(f"v_xor_b32 v4, v{Y+4*h}, v{cR}")
                else: e(f"v_bitop3_b32 v4, v4, v{Y+4*h+j}, v{cR+j} bitop3:0xf6")
            e(f"v_bitop3_b32 v{T+2}, v{T+2}, v4, v{CN+h} bitop3:0xf4")
            e(f"ds_write_b128 v{T}, {vr(Y+4*h,4)} offset:{RS+16384+4096*h}")
        e("s_branch L_rare2_ret")
    e(f"v_and_b32 v{T+3}, 0x80000001, v{T+3}\nv_and_b32 v{T+2}, 0x80000001, v{T+2}")
    e(f"v_cmp_ne_u32 vcc, 0, v{T+3}\ns_and_b64 s[{sU}:{sU+1}], vcc, s[{sEX}:{sEX+1}]\nv_cmp_ne_u32 vcc, 0, v{T+2}\ns_or_b64 vcc, vcc, s[{sU}:{sU+1}]")
    e("s_cbranch_vccnz L_poll2_again\nL_poll2_ok:")
    with rare():
        e("L_poll2_again:")
        if SL2: e(f"s_sleep {SL2}")
        e(f"s_waitcnt lgkmcnt(0)\ns_add_u32 s{sNT}, s{sNT}, 1\ns_cmp_lt_u32 s{sNT}, {LIMIT}\ns_cbranch_scc1 L_poll2")
        sync_add(3)
        e("s_branch L_poll2_ok")
    k.stamp(10)
    e("s_waitcnt lgkmcnt(0)\ns_barrier")
    e(f"v_mov_b32 v5, {SYNC+12}\nds_read_b32 v6, v5")
    for t in range(8): e(f"ds_read_b32 v{X+t}, v{T+8+t}")
    for t in range(8):
        e(f"s_waitcnt lgkmcnt({7-t})\nv_and_b32 v{T+t}, 0x7fff0000, v{X+t}\nv_lshlrev_b32 v{X+t}, 16, v{X+t}")
        if t % 2: e(f"v_add_f32 v{T+t-1}, v{T+t-1}, v{T+t}\nv_add_f32 v{X+t-1}, v{X+t-1}, v{X+t}")
        if t % 4 == 3: e(f"v_add_f32 v{T+t-3}, v{T+t-3}, v{T+t-1}\nv_add_f32 v{X+t-3}, v{X+t-3}, v{X+t-1}")
    e(f"v_add_f32 v{T}, v{T}, v{T+4}\nv_add_f32 v{X}, v{X}, v{X+4}\ns_nop 0")
    e(f"v_add_f32_dpp v{T+1}, v{T}, v{T} quad_perm:[1,0,3,2] row_mask:0xf bank_mask:0xf")
    e(f"v_add_f32_dpp v{X+1}, v{X}, v{X} quad_perm:[1,0,3,2] row_mask:0xf bank_mask:0xf")
    e("s_nop 0")
    e(f"v_add_f32_dpp v{T}, v{T+1}, v{T+1} quad_perm:[2,3,0,1] row_mask:0xf bank_mask:0xf")
    e(f"v_add_f32_dpp v{X}, v{X+1}, v{X+1} quad_perm:[2,3,0,1] row_mask:0xf bank_mask:0xf")
    e(f"v_rcp_f32 v{T+1}, v{T}")
    e(f"v_add_u32 v{T+2}, {(-0x17800000)&0xffffffff:#x}, v{T}\nv_mul_f32 v{X}, v{X}, v{T+1}\nv_cmp_gt_u32 vcc, 0x5a000000, v{T+2}")
    e(f"v_and_b32 v{T+3}, 0x7fffffff, v{X}\ns_mov_b64 s[{sEX}:{sEX+1}], vcc\nv_cmp_gt_u32 vcc, 0x7f800000, v{T+3}\nv_cvt_pk_bf16_f32 v{X}, v{X}, v{X}")
    e(f"s_and_b64 s[{sEX}:{sEX+1}], vcc, s[{sEX}:{sEX+1}]\nv_cmp_eq_u32 vcc, 0, v6")
    e(f"s_and_b64 vcc, vcc, s[{sEX}:{sEX+1}]\ns_cmp_eq_u64 vcc, -1\ns_cbranch_scc0 {'L_fallback' if not (OPT & {'nolds','nogather'}) else 'L_fin'}")
    e("s_mov_b32 exec_lo, 0x11111111\ns_mov_b32 exec_hi, 0x11111111")
    e(f"buffer_store_short v{X}, v3, {sr(S_OUT)}, s{sT2} offen")
    e("L_fin:")

def fallback():
    e("L_fallback:")
    A0 = 16; A1 = 20; C0 = 24; C1 = 28; AH = 32; AP = 36; EI = 40; EJ = 48; PK = 56; DD = 60; HK = 68; DS = 72; W16 = 80
    N, Q, IB, M, LL, ACc, T = 100, 101, 102, 103, 104, 105, 106
    e(f"v_and_b32 v{N}, 15, v{vL}\nv_lshrrev_b32 v{Q}, 4, v{vL}")
    e(f"v_lshlrev_b32 v{T}, 9, v{Q}\nv_lshl_add_u32 v{T}, v{N}, 1, v{T}")
    for half in range(2):
        for t in range(8): e(f"buffer_load_ushort v{W16+8*half+t}, v{T}, {sr(S_W)}, 0 offen offset:{t*64+half*32}")
    e(f"v_lshlrev_b32 v{T+1}, 3, v{Q}\nv_lshlrev_b32 v{Q}, 4, v{Q}")
    e(f"global_load_dwordx2 {vr(EI,2)}, v{T+1}, s[{P_B}:{P_B+1}]\nglobal_load_dwordx2 {vr(EI+2,2)}, v{T+1}, s[{P_B}:{P_B+1}] offset:32")
    e(f"global_load_dwordx2 {vr(AH,2)}, v{T+1}, s[{P_H}:{P_H+1}]\nglobal_load_dwordx2 {vr(AH+2,2)}, v{T+1}, s[{P_H}:{P_H+1}] offset:32")
    e(f"global_load_dwordx4 {vr(AP,4)}, v{Q}, s[{P_P}:{P_P+1}]")
    e(f"s_lshl_b32 s{sU}, s2, 6\ns_lshl_b32 s{sT1}, s{sJ}, 4\ns_add_u32 s{sU}, s{sU}, s{sT1}\nv_add_u32 v{IB}, s{sU}, v{N}\nv_mul_u32_u24 v{IB}, 104, v{IB}")
    e("s_waitcnt vmcnt(0)")
    for half in range(2):
        for t in range(4): e(f"v_lshl_or_b32 v{A0+4*half+t}, v{W16+8*half+2*t+1}, 16, v{W16+8*half+2*t}")
    for i in range(4): e(f"v_lshlrev_b32 v{C0+2*i}, 16, v{EI+i}\nv_and_b32 v{C0+2*i+1}, 0xffff0000, v{EI+i}")
    e(f"v_mov_b32 v{M}, 0xff800000\nv_mov_b32 v{LL}, 0\nv_mov_b32 v{ACc}, 0")
    e(f"s_mov_b32 s{sU}, 0")
    def getrow(dst, soff):
        e(f"buffer_load_dword v{T}, v{IB}, {sr(S_IDX)}, s{soff} offen\ns_waitcnt vmcnt(0)")
        e(f"v_lshl_add_u32 v{T}, v{T}, 6, v{Q}\nbuffer_load_dwordx4 {vr(dst+4,4)}, v{T}, {sr(S_TABL)}, 0 offen\ns_waitcnt vmcnt(0)")
        for t in range(4): e(f"v_lshlrev_b32 v{dst+2*t}, 16, v{dst+4+t}\nv_and_b32 v{dst+2*t+1}, 0xffff0000, v{dst+4+t}")
    e("L_fb_i:")
    getrow(EI, sU)
    e(f"s_add_u32 s{sCNT}, s{sU}, 4")
    e("L_fb_j:")
    getrow(EJ, sCNT)
    for t in range(8): e(f"v_mul_f32 v{EJ+t}, v{EJ+t}, v{EI+t}")
    for t in range(4): e(f"v_cvt_pk_bf16_f32 v{PK+t}, v{EJ+2*t}, v{EJ+2*t+1}")
    e("s_nop 1")
    e(f"v_mfma_f32_16x16x32_bf16 {vr(DD,4)}, {vr(A0,4)}, {vr(PK,4)}, {vr(C0,4)}")
    e(f"v_mfma_f32_16x16x32_bf16 {vr(DD+4,4)}, {vr(A1,4)}, {vr(PK,4)}, {vr(C1,4)}")
    e(f"v_mfma_f32_16x16x32_bf16 {vr(DS,4)}, {vr(AP,4)}, {vr(PK,4)}, 0")
    e("s_nop 7")
    for t in range(4): e(f"v_cvt_pk_bf16_f32 v{HK+t}, v{DD+2*t}, v{DD+2*t+1}")
    for t in range(4): e(f"v_pk_max_i16 v{HK+t}, v{HK+t}, 0")
    e("s_nop 1")
    e(f"v_mfma_f32_16x16x32_bf16 {vr(DD,4)}, {vr(AH,4)}, {vr(HK,4)}, 0")
    e("s_nop 7")
    e(f"v_mul_f32 v{DD}, 0x3fb8aa3b, v{DD}\nv_max_f32 v{DD+1}, v{M}, v{DD}\nv_sub_f32 v{DD+2}, v{M}, v{DD+1}\nv_sub_f32 v{DD+3}, v{DD}, v{DD+1}")
    e(f"v_exp_f32 v{DD+2}, v{DD+2}\nv_exp_f32 v{DD+3}, v{DD+3}\nv_mov_b32 v{M}, v{DD+1}")
    e(f"v_fma_f32 v{LL}, v{LL}, v{DD+2}, v{DD+3}\nv_mul_f32 v{ACc}, v{ACc}, v{DD+2}\nv_fma_f32 v{ACc}, v{DD+3}, v{DS}, v{ACc}")
    e(f"s_add_u32 s{sCNT}, s{sCNT}, 4\ns_cmp_lt_u32 s{sCNT}, 104\ns_cbranch_scc1 L_fb_j")
    e(f"s_add_u32 s{sU}, s{sU}, 4\ns_cmp_lt_u32 s{sU}, 100\ns_cbranch_scc1 L_fb_i")
    e(f"v_rcp_f32 v{LL}, v{LL}\nv_lshlrev_b32 v{N}, 1, v{N}\nv_mul_f32 v{ACc}, v{ACc}, v{LL}\nv_cvt_pk_bf16_f32 v{ACc}, v{ACc}, v{ACc}")
    e("s_mov_b64 exec, 0xffff")
    e(f"buffer_store_short v{ACc}, v{N}, {sr(S_OUT)}, s{sT2} offen")
    e("s_branch L_fin")

B_ = 8; A_ = 72; A5 = 104; CB = 120; HQ = 184; D_ = 200; ACC = 232; INIT = 248; TW = 249

PREF = 'nopref' not in OPT
NB0 = opt('nb0', 4); NB1 = opt('nb1', 8); CL0 = opt('cl0', 5)
def flag_store(nm, n):
    sync_wait(0, 8, nm)
    e(f"s_waitcnt vmcnt(0) lgkmcnt(0)\ns_add_u32 s{sTAG}, s{sTAG}, 0x9e3779b1\ns_lshl_b32 s{sT0}, s2, 4\ns_lshl_b32 s{sT1}, s{sU}, 2\ns_add_u32 s{sT0}, s{sT0}, s{sT1}\ns_add_u32 s{sT0}, s{sT0}, {FLG:#x}")
    e(f"v_mov_b32 v6, s{sT0}\nv_mov_b32 v7, s{sTAG}\ns_mov_b64 exec, 1\nglobal_store_dword v6, v7, s[{P_WS}:{P_WS+1}]{SC}\ns_mov_b64 exec, -1")

def hi():
    WV = 120; TP = 136; TU = 144; T = 184
    e("L_hi:")
    e(f"v_lshrrev_b32 v252, 5, v{vL}\nv_and_b32 v253, 7, v{vL}")
    e(f"v_lshlrev_b32 v4, 10, v252\nv_lshl_add_u32 v4, v253, 1, v4")
    e(f"v_bfe_u32 v5, v{vL}, 3, 2\nv_lshlrev_b32 v5, 6, v5\nv_lshl_add_u32 v5, v252, 5, v5")
    e(f"v_and_b32 v6, 31, v{vL}\nv_lshlrev_b32 v7, 6, v6\nv_lshlrev_b32 v6, 1, v6")
    e(f"v_lshl_add_u32 v250, v252, 5, v7\nv_add_u32 v251, 4096, v250")
    e(f"s_lshl_b32 s{sT0}, s{sU}, 4\ns_lshl_b32 s{sT1}, s2, 8\ns_lshl_b32 s{sT2}, s2, 14")
    e(f"v_add_u32 v3, -4096, v3")
    pre_addr()
    e("s_waitcnt lgkmcnt(0)")
    k.srd(S_TABL, P_TAB, 64000)
    k.srd(S_W, P_W, 2048)
    vm = []
    def vmem(lab, txt): e(txt); vm.append(lab)
    def vneed(lab): return len(vm) - 1 - max(i for i, x in enumerate(vm) if x == lab)
    e("s_cmp_ge_u32 s2, 250\ns_cbranch_scc1 L_hi_skip")
    if PRE and PM != 2:
        vmem('s', f"global_load_dword v255, v2, s[{P_WS}:{P_WS+1}]")
    if PRE and 'preout' in OPT:
        vmem('s', f"global_load_dword v254, v6, s[{P_OUT}:{P_OUT+1}]")
    if PM == 0: vm[:] = []; hold = k.L[-(1 + ('preout' in OPT)):]; del k.L[-(1 + ('preout' in OPT)):]
    vmem('s', f"buffer_load_dwordx4 {vr(TP,4)}, v5, {sr(S_TABL)}, s{sT1} offen")
    vmem('s', f"buffer_load_short_d16_hi v{WV}, v4, {sr(S_W)}, s{sT0} offen")
    vmem('s', f"global_load_short_d16_hi v{T+1}, v6, s[{P_B}:{P_B+1}]")
    vmem('s', f"global_load_short_d16_hi v{T+2}, v6, s[{P_H}:{P_H+1}]")
    if PM == 0 and PRE:
        for x in hold: vmem('s', x)
    e("s_barrier")
    vmem('s', f"buffer_load_dwordx4 {vr(TP+4,4)}, v5, {sr(S_TABL)}, s{sT1} offen offset:16")
    for t in range(1, 16): vmem('s', f"buffer_load_short_d16_hi v{WV+t}, v4, {sr(S_W)}, s{sT0} offen offset:{t*64}")
    e(f"s_lshl_b32 s{sG}, s{sU}, 14\ns_add_u32 s{sG+1}, s{sG}, 0x2000")
    def bload(n):
        b, ks = n // 2, n % 2
        vmem(f"b{b//2}", f"buffer_load_dwordx4 {vr(B_+8*b+4*ks,4)}, v{250+(b//2)%2}, {sr(S_TABL)}, s{sG if b<4 else sG+1} offen offset:{(b%2)*2048+ks*16}")
    for n in range(NB0): bload(n)
    k.srd(S_RES, P_WS, 0x800000, R0)
    k.srd(S_ROW, P_WS, 0x100000, ROW0)
    def clear(h):
        vmem('c', f"buffer_store_dwordx4 {'v[240:243]' if CL0 < 0 else 'v[252:255]'}, v3, {sr(S_RES)}, s{sT2} offen{SC}")
        if h < 3: e(f"s_add_u32 s{sT2}, s{sT2}, 0x1000")
    def prefetch():
        e(f"s_getpc_b64 s[{sEX}:{sEX+1}]\nL_pc:\ns_sub_u32 s{sEX}, s{sEX}, L_pc-{KN}\ns_subb_u32 s{sEX+1}, s{sEX+1}, 0")
        e(f"v_lshlrev_b32 v6, 3, v3\nv_min_u32 v6, L_code_end-{KN}-4, v6\nv_mov_b32 v7, s{sEX+1}\nv_add_co_u32 v6, vcc, s{sEX}, v6\ns_nop 1\nv_addc_co_u32 v7, vcc, 0, v7, vcc")
        vmem("p", "global_load_dword v253, v[6:7], off")
    with rare(): e("L_hi_skip:\ns_barrier\ns_branch L_hi_done")
    e(f"s_lshl_b32 s{sT0}, s{sU}, 11\nv_lshlrev_b32 v4, 4, v{vL}\nv_add_u32 v5, s{sT0}, v4\nv_cmp_gt_u32 vcc, 32, v{vL}\nv_lshlrev_b32 v7, 2, v{vL}")
    e(f"s_lshl_b32 s{sT0}, s{sU}, 12\nv_add_u32 v{TW}, s{sT0}, v4")
    if PREF and opt('pf', 4) < 0:
        e("v_mov_b32 v254, v7"); prefetch(); e(f"v_mov_b32 v7, v254\nv_cmp_gt_u32 vcc, 32, v{vL}")
    e(f"s_waitcnt vmcnt({vneed('s')})")
    k.stamp(2)

    for t in range(8): e(f"v_lshlrev_b32 v{TU+2*t}, 16, v{TP+t}\nv_and_b32 v{TU+2*t+1}, 0xffff0000, v{TP+t}")
    for t in range(16): e(f"v_mul_f32 v{WV+t}, v{WV+t}, v{TU+t}")
    for t in range(8): e(f"v_cvt_pk_bf16_f32 v{TP+t}, v{WV+2*t}, v{WV+2*t+1}")
    e(f"ds_write_b128 v5, {vr(TP,4)} offset:{AIMG}\nds_write_b128 v5, {vr(TP+4,4)} offset:{AIMG+1024}")
    e(f"v_mul_f32 v{T+2}, {LOG2E_HALF:#x}, v{T+2}\nv_cndmask_b32 v6, v{T+2}, v{T+1}, vcc\nds_write_b32 v7, v6 offset:{BH}")
    for n in range(NB0, NB1): bload(n)
    e("s_waitcnt lgkmcnt(0)")
    sync_add(1)
    sync_wait(1, 4, 'hi')
    e("v_lshlrev_b32 v5, 4, v252")
    k.stamp(3)
    for i in range(2): e(f"ds_read_b128 {vr(A_+4*i,4)}, v4 offset:{AIMG+1024*i}")
    for i in range(4): e(f"ds_read_b128 {vr(CB+4*i,4)}, v5 offset:{BH}")
    for g in range(4): e(f"ds_read_b128 {vr(HQ+4*g,4)}, v5 offset:{BH+128+32*g}")
    for g in range(1, 4): e(f"ds_read_b128 {vr(CB+16*g,4)}, v5 offset:{BH+32*g}")
    e(f"s_waitcnt vmcnt({vneed('b0')}) lgkmcnt(7)"); k.stamp(7)
    later = []
    for g in range(1, 4):
        later += [f"ds_read_b128 {vr(A_+8*g+4*i,4)}, v4 offset:{AIMG+1024*(2*g+i)}" for i in range(2)]
        later += [f"ds_read_b128 {vr(CB+16*g+4*i,4)}, v5 offset:{BH+32*g}" for i in range(1, 4)]
    steps = []
    for bp in range(4): steps += [('r', bp, g, b) for g in range(4) for b in range(2)] + [('x', bp, 0, 0)]
    NS = len(steps)
    def mms(s):
        kind, bp, g, b = steps[s]; d = D_ + 16 * (s % 2)
        if kind == 'r':
            bb = B_ + 8 * (2 * bp + b)
            return [f"v_mfma_f32_32x32x16_bf16 {vr(d,16)}, {vr(A_+8*g,4)}, {vr(bb,4)}, {vr(CB+16*g,16)}",
                    f"v_mfma_f32_32x32x16_bf16 {vr(d,16)}, {vr(A_+8*g+4,4)}, {vr(bb+4,4)}, {vr(d,16)}"]
        return [f"v_mfma_f32_32x32x16_bf16 {vr(d,16)}, {vr(A5+8*b2+4*ks,4)}, {vr(B_+8*(2*bp+b2)+4*ks,4)}, {'0' if b2+ks==0 else vr(d,16)}"
                for b2 in range(2) for ks in range(2)]
    def valu(s):
        kind, bp, g, b = steps[s]; d = D_ + 16 * (s % 2); X = ACC + 8 * (bp % 2); Y = X + 4
        if kind == 'r':
            a = X + 4 * b
            return [f"v_fma_f32 v{a+v}, v{HQ+4*g+r}, |v{d+4*v+r}|, " + (f"-v{INIT}" if g == 0 and r == 0 else f"v{a+v}") for r in range(4) for v in range(4)]
        o = [f"v_permlane32_swap_b32 v{X+v}, v{Y+v}" for v in range(4)]
        o += [f"v_add_f32 v{X+v}, v{X+v}, v{Y+v}" for v in range(4)]
        o += [f"v_add_f32 v{X+v}, v{X+v}, v{d+4*v}" for v in range(4)]
        o += [f"v_exp_f32 v{X+v}, v{X+v}" for v in range(4)]
        o += [f"v_mul_f32 v{Y+v}, v{X+v}, v{d+4*v+1}" for v in range(4)]
        o += [f"v_cvt_pk_bf16_f32 v{X+v}, v{Y+v}, v{X+v}" for v in range(4)]
        o += [f"ds_write_b128 v{TW}, {vr(X,4)} offset:{TAB+16+1024*bp}"]
        return o
    m = mms(0)
    e(m[0])
    for x in later[:5]: e(x)
    e(m[1])
    e("s_waitcnt lgkmcnt(5)")
    for x in later[5:10]: e(x)
    e(f"v_mul_f32 v{INIT}, v{HQ}, |v{CB}|")
    for g in range(4):
        for r in range(4):
            if g or r: e(f"v_fma_f32 v{INIT}, v{HQ+4*g+r}, |v{CB+16*g+r}|, v{INIT}")
    nb_next = [NB1]
    for s in range(NS):
        v = valu(s); m = mms(s + 1) if s + 1 < NS else []
        if s + 1 < NS:
            kind, bp, g, b = steps[s + 1]
            if bp == 0 and kind == 'r' and b == 0 and g == 1: e("s_waitcnt lgkmcnt(5)"); [e(x) for x in later[10:15]]
            if bp == 0 and kind == 'r' and b == 0 and g == 2: e("s_waitcnt lgkmcnt(5)")
            if bp == 0 and kind == 'r' and b == 0 and g == 3:
                sync_wait(0, 4, 'a5')
                for i in range(4): e(f"ds_read_b128 {vr(A5+4*i,4)}, v4 offset:{AIMG+8192+1024*i}")
            if bp == 0 and kind == 'x': e("s_waitcnt lgkmcnt(0)")
            if kind == 'r' and g == 0 and b == 0 and bp > 0:
                e(f"s_waitcnt vmcnt({vneed(f'b{bp}')})"); k.stamp({1: 4, 2: 8, 3: 10}[bp])
            if bp == 0 and kind == 'r' and b == 0 and g == 3: k.stamp(1)

        for _ in range(opt('bps', 2)):
            if nb_next[0] < 16 and s >= opt('bs0', 0): bload(nb_next[0]); nb_next[0] += 1
        if s == 2: k.stamp(9)
        if s == opt('pf', 4) and PREF: prefetch()
        if len(m) == 2:
            n = 6 if steps[s][0] == 'x' else 5
            e(m[0]); [e(x) for x in v[:n]]; e(m[1]); [e(x) for x in v[n:]]
        elif len(m) == 4:
            e(m[0]); [e(x) for x in v[:4]]; e(m[1]); [e(x) for x in v[4:8]]; e(m[2]); [e(x) for x in v[8:12]]; e(m[3]); [e(x) for x in v[12:]]
        else:
            e("s_nop 1"); [e(x) for x in v]
    k.stamp(5)
    hi_lookup()
    e("L_hi_done:")

def finish():
    if STAMP:
        e(f"{CLK} s[{sH}:{sH+1}]\ns_waitcnt lgkmcnt(0)\ns_mov_b64 exec, 1")
        e(f"s_lshl_b32 s{sT0}, s2, 3\ns_add_u32 s{sT0}, s{sT0}, s{sJ}\ns_lshl_b32 s{sT0}, s{sT0}, 7\ns_add_u32 s{sT0}, s{sT0}, {STAMP0:#x}")
        e(f"v_mov_b32 v2, s{sT0}")
        for i in range(NST): e(f"v_mov_b32 v3, s{sST+2*i}\nglobal_store_dword v2, v3, s[{P_WS}:{P_WS+1}] offset:{4*i}")
        e(f"v_mov_b32 v3, s{sH}\nglobal_store_dword v2, v3, s[{P_WS}:{P_WS+1}] offset:{4*NST}")
        e(f"v_mov_b32 v3, {NST+1}\nglobal_store_dword v2, v3, s[{P_WS}:{P_WS+1}] offset:124")
    e("s_endpgm")

if STAMP:
    for i in range(NST): e(f"s_mov_b64 s[{sST+2*i}:{sST+2*i+1}], 0")
prologue()
route()
lo_lookup()
final()
finish()
hi()
finish()
e("L_end:\ns_endpgm")
with rare(): fallback()
hazard.check(k.L); hazard.check(k.tail)
src = HEADER + f"; @launch grid=(256,1,1) block=(512,1,1) lds={LDS_BYTES}\n"
src += f'.amdgcn_target "amdgcn-amd-amdhsa--gfx950"\n.text\n.globl {KN}\n.p2align 8\n.type {KN},@function\n{KN}:\n'
src += "\n".join(k.L) + "\n" + "\n".join(k.tail) + "\nL_code_end:\n"
src += '.section .rodata,"a"\n' + kd(KN, 256, 102)
open(sys.argv[1], "w").write(src)
print("lds", LDS_BYTES)
```

```python
import sys
from common import *
import hazard

OPT = set(sys.argv[2].split(',')) if len(sys.argv) > 2 else set()
def opt(name, d):
    for o in OPT:
        if o.startswith(name + '='): return int(o.split('=')[1])
    return d
STAMP = 'stamp' in OPT
NGLO = opt('nglo', 3)
CLK = 's_memtime' if 'cyc' in OPT else 's_memrealtime'
DL1, DL2, SL1, SL2 = opt('dl1', 0), opt('dl2', 0), opt('sl1', 0), opt('sl2', 0)
PRE = 'nopre' not in OPT

EPOCH, L0, ROW0, R0, R1 = 0x0, 0x10000, 0x400000, 0x800000, 0xC00000
STAMP0 = 0x1000000
FLG = 0x1000
TAB, CNT, BH, GP, AIMG, LIMG, WL = 0, 0x4100, 0x4500, 0x4600, 0x5000, 0x8000, 0xC000
RS = LIMG
NANW = 0x4080
ROWPF = 'rowpf' in OPT
SYNC = CNT + 1000
LIMIT = 0x4000
RLV = 0x400000
FL = 0x10000; FLS = 8192; RIM = 0x18000; NW = 0x4090; DUMP = 0x4C00
LDS_BYTES = RIM + 4 * 8192
S_IDX, S_TABL, S_W, S_LIST, S_ROW, S_RES, S_OUT = 4, 8, 12, 16, 20, 24, 28
sG = 32
P_IDX, P_TAB, P_W, P_B, P_H, P_P, P_OUT, P_WS = 36, 38, 40, 42, 44, 46, 48, 50
sJ, sRARE, sTAG, sT2, sT0, sT1, sNT, sBAD, sU, sCNT = 52, 53, 54, 55, 56, 57, 58, 59, 60, 61
sEX = 62
sRND = 3
sPOS = 36
sH = 64
sST = 80
NST = 11
LOG2E_HALF = 0x3f38aa3b
vL = 1
SC = " sc1"
KN = NAME + "_kernel"

class K:
    def __init__(s): s.L = []; s.tail = []; s.cur = s.L
    def e(s, x):
        for ln in x.split('\n'):
            ln = ln.strip()
            if ln: s.cur.append(ln if ln.endswith(':') else '    ' + ln)
    def stamp(s, i):
        if STAMP: s.e(f"{CLK} s[{sST+2*i}:{sST+2*i+1}]")
    def srd(s, d, p, n, off=0):
        if off: s.e(f"s_add_u32 s{d}, s{p}, {off:#x}\ns_addc_u32 s{d+1}, s{p+1}, 0")
        else: s.e(f"s_mov_b64 s[{d}:{d+1}], s[{p}:{p+1}]")
        s.e(f"s_mov_b32 s{d+2}, {n:#x}\ns_mov_b32 s{d+3}, 0x00020000")
k = K(); e = k.e
def vr(a, n): return f"v[{a}:{a+n-1}]"
def sr(a): return f"s[{a}:{a+3}]"
class keep:
    def __enter__(s): pass
    def __exit__(s, *a): pass
class rare:
    def __enter__(s): s.old = k.cur; k.cur = k.tail
    def __exit__(s, *a): k.cur = s.old

LOC = 8
G = 16; RM = 80; EN = 96; TQ = 112; AS = 166; AC = 182; BQ = 230; DX = 202
cA, cOFF, cBIT, cWR, cFL, cMSK = 246, 247, 248, 249, 250, 251
cR = 252
cAM, cDR, cRD, cRA = 198, 199, 200, 201
WA = 140

def prologue():
    e("s_cmp_ge_u32 s2, 256\ns_cbranch_scc1 L_end")
    k.stamp(0)
    e(f"s_load_dwordx4 s[{P_IDX}:{P_IDX+3}], s[0:1], 0")
    e(f"s_load_dwordx2 s[{P_WS}:{P_WS+1}], s[0:1], 80")
    e(f"s_load_dwordx8 s[{P_W}:{P_W+7}], s[0:1], 32")
    e(f"s_load_dwordx2 s[{P_OUT}:{P_OUT+1}], s[0:1], 64")
    e(f"v_lshrrev_b32 v2, 6, v0\nv_and_b32 v{vL}, 63, v0")
    e(f"v_readfirstlane_b32 s{sJ}, v2")
    e("v_mov_b32 v240, -1\nv_mov_b32 v241, -1\nv_mov_b32 v242, -1\nv_mov_b32 v243, -1")
    e(f"v_lshlrev_b32 v3, 4, v0\nds_write_b128 v3, v[240:243] offset:{LIMG}\nds_write_b128 v3, v[240:243] offset:{LIMG+8192}")
    e(f"s_and_b32 s{sU}, s{sJ}, 3\ns_cmp_ge_u32 s{sJ}, 4\ns_cbranch_scc1 L_hi")

def sync_add(i):
    e(f"v_mov_b32 v5, {SYNC+4*i}\nv_mov_b32 v6, 1\ns_mov_b64 exec, 1\nds_add_u32 v5, v6\ns_mov_b64 exec, -1")
def sync_wait(i, n, nm, sleep=0):
    e(f"v_mov_b32 v5, {SYNC+4*i}\nL_sync_{nm}:")
    if sleep: e(f"s_sleep {sleep}")
    e(f"ds_read_b32 v6, v5\ns_waitcnt lgkmcnt(0)\nv_cmp_gt_u32 vcc, {n}, v6\ns_cbranch_vccnz L_sync_{nm}")

def make_loc(KK, C4, full):
    e(f"v_mov_b32 v7, {RS}")
    if full: e(f"v_mov_b32 v6, {NANW}\nv_mov_b32 v4, -1\nds_write_b32 v6, v4")
    for t in range(8):
        if t == 2: e("s_mov_b32 exec_lo, 0x77777777\ns_mov_b32 exec_hi, 0x77777777")
        if full:
            e(f"v_and_b32 v4, 30, v{KK+t}\nv_lshlrev_b32 v5, 3, v{C4+t}\nv_add_lshl_u32 v4, v4, v5, 1\nv_cmp_le_u32 vcc, 48, v{KK+t}")
            e(f"v_lshrrev_b32 v5, 5, v{KK+t}\nv_lshlrev_b32 v5, 14, v5\nv_add3_u32 v4, v4, v5, v7\nv_cndmask_b32 v{LOC+t}, v4, v6, vcc")
        else:
            e(f"v_lshl_add_u32 v4, v{C4+t}, 3, v{KK+t}\nv_lshl_add_u32 v{LOC+t}, v4, 1, v7")
    e("s_mov_b64 exec, -1")

def lookup_consts():
    e(f"v_and_b32 v4, 15, v{vL}\nv_bfe_u32 v5, v{vL}, 4, 1\nv_lshrrev_b32 v{cBIT}, 5, v{vL}")
    e(f"s_mul_i32 s{sG+1}, s{sU}, {FLS}\ns_add_u32 s{sG+1}, s{sG+1}, {FL}\ns_lshl_b32 s{sG}, s{sU}, 18\ns_lshl_b32 s{sG+2}, s{sU}, 13\ns_add_u32 s{sG+2}, s{sG+2}, {RIM}")
    e(f"v_and_b32 v{cFL}, 31, v{vL}\nv_lshl_add_u32 v{cFL}, v{cFL}, 2, s{sG+1}")
    e(f"v_lshrrev_b32 v7, 4, v{vL}\nv_lshl_add_u32 v{cDR}, v7, 5, v4\nv_lshl_add_u32 v{cDR}, v{cDR}, 2, s{sG+1}")
    e(f"v_add_u32 v{cA}, -1, v{cBIT}\nv_and_b32 v{cA}, 0xffff0000, v{cA}")
    e(f"v_mul_u32_u24 v{cOFF}, 12, v{cBIT}\nv_mul_i32_i24 v{cWR}, -52, v{cBIT}\nv_mov_b32 v{cMSK}, 0x7ffffffe\nv_mov_b32 v{cAM}, 0x2003fffc")
    e(f"v_and_b32 v6, 1, v4\nv_lshlrev_b32 v6, 4, v6\nv_lshrrev_b32 v6, v6, 1.0")
    e(f"v_bfe_u32 v7, v4, 1, 1\nv_xor_b32 v7, v7, v5\nv_add_u32 v7, -1, v7\nv_and_b32 v6, v6, v7\nv_lshrrev_b32 v7, 2, v4")
    for q in range(4):
        e(f"v_xor_b32 v4, {q}, v7\nv_add_u32 v4, -1, v4\nv_ashrrev_i32 v4, 31, v4\nv_and_b32 v{AS+4*q}, v4, v6")
        for i in range(1, 4): e(f"v_mov_b32 v{AS+4*q+i}, v{AS+4*q}")
    e(f"v_mov_b32 v{BQ+7}, 0\nv_mov_b32 v{BQ+15}, 0")
    e(f"v_and_b32 v4, 3, v{vL}\nv_lshrrev_b32 v5, 2, v{vL}\nv_lshlrev_b32 v{cRD}, 10, v4\nv_lshl_add_u32 v{cRD}, v5, 2, v{cRD}\nv_add_u32 v{cRD}, s{sG+2}, v{cRD}")
    e(f"v_lshlrev_b32 v4, 4, v4\nv_lshl_add_u32 v{cRA}, v5, 14, v4")
    e(f"s_lshl_b32 s{sG+3}, s{sU}, 20\ns_lshl_b32 s{sT0}, s2, 6\ns_add_u32 s{sG+3}, s{sG+3}, s{sT0}")

def res_tags(lane_expr, cR=cR):
    e(f"s_and_b32 s{sT0}, s{sTAG}, 255\ns_xor_b32 s{sT1}, s{sTAG}, 1\ns_and_b32 s{sT1}, s{sT1}, 3\ns_lshl_b32 s{sT1}, s{sT1}, 8\ns_or_b32 s{sT0}, s{sT0}, s{sT1}")
    e(f"s_lshr_b32 s{sT1}, s{sTAG}, 8\ns_lshl_b32 s{sT1}, s{sT1}, 10\ns_or_b32 s{sT0}, s{sT0}, s{sT1}")
    e(lane_expr)
    e(f"v_lshlrev_b32 v4, 3, v4\nv_lshrrev_b32 v4, v4, s{sT0}")
    for j in range(4): e(f"v_bfe_u32 v5, v4, {2*j}, 2\nv_alignbit_b32 v{cR+j}, v5, v5, 1")

PM = opt('pm', 0)
def pre_addr():
    sh = opt('psh', 21); n = (1 << (24 - sh)) - 1
    e(f"v_and_b32 v2, {min(n,63)}, v{vL}\nv_lshlrev_b32 v2, {sh}, v2\nv_add_u32 v2, {(1<<sh)-128:#x}, v2")

def late_consts():
    lookup_consts()
    e(f"s_lshl_b32 s{sCNT}, s{sU}, 12\nv_lshrrev_b32 v4, 4, v{vL}\nv_xor_b32 v4, v4, v{vL}\nv_and_b32 v4, 3, v4\nv_and_b32 v5, 60, v{vL}\nv_or_b32 v4, v4, v5\nv_lshl_add_u32 v{WA}, v4, 4, s{sCNT}")
    e(f"v_lshrrev_b32 v4, 2, v{vL}\nv_lshl_add_u32 v5, v{vL}, 6, s{sCNT}")
    for g in range(4): e(f"v_xor_b32 v6, {g}, v4\nv_and_b32 v6, 3, v6\nv_lshl_add_u32 v{WA+1+g}, v6, 4, v5")
    e(f"v_lshl_add_u32 v4, v{vL}, 4, s{sG+1}")
    for i in range(8): e(f"ds_write_b128 v4, v[240:243] offset:{1024*i}")
    if 'lateconst' in OPT: res_tags("v_and_b32 v4, 3, v0")

def route():
    V = 16; KK = 24; C4 = 32; RW = 40; EB = 44; T = 52
    TP = 64; TU = 72; WR = 88; WV = 104; MU = 120; PP = 128
    e("s_setprio 2")
    e(f"v_mov_b32 v4, 0\nv_lshlrev_b32 v5, 2, v0\nds_write_b32 v5, v4 offset:{CNT}\nv_and_b32 v5, 12, v5\nds_write_b32 v5, v4\nds_write_b32 v5, v4 offset:{NW}")
    e(f"v_lshrrev_b32 v{T}, 2, v0\nv_and_b32 v{T+1}, 3, v0\nv_lshlrev_b32 v{T+1}, 2, v{T+1}")
    e(f"v_mul_u32_u24 v{T+2}, 104, v{T}\ns_mul_i32 s{sT1}, s2, 6656")
    for t in range(4):
        e(f"v_add_u32 v{EB+2*t}, {t}, v{T+1}\nv_add_u32 v{T+3}, {t-13}, v{T+1}\nv_min_u32 v{EB+2*t}, v{EB+2*t}, v{T+3}")
        e(f"v_lshl_add_u32 v{T+4+t}, v{EB+2*t}, 3, v{T+2}")
    if PM == 2: pre_addr()
    e("s_waitcnt lgkmcnt(0)")
    if PM == 2: e(f"global_load_dword v129, v2, s[{P_WS}:{P_WS+1}]")
    k.srd(S_IDX, P_IDX, 16384 * 104)
    for t in range(4): e(f"buffer_load_dwordx2 {vr(V+2*t,2)}, v{T+4+t}, {sr(S_IDX)}, s{sT1} offen")
    e(f"s_load_dword s{sTAG}, s[{P_WS}:{P_WS+1}], {EPOCH:#x}")
    e(f"s_load_dwordx16 s[{sH}:{sH+15}], s[{P_H}:{P_H+1}], 0")
    e("s_barrier")
    if 'nopos' in OPT: e(f"s_mov_b32 s{sPOS}, s2")
    else: e(f"s_and_b32 s{sPOS}, s2, 6\ns_lshl_b32 s{sPOS}, s{sPOS}, 5\ns_lshr_b32 s{sT0}, s2, 3\ns_lshl_b32 s{sT0}, s{sT0}, 1\ns_or_b32 s{sPOS}, s{sPOS}, s{sT0}\ns_and_b32 s{sT0}, s2, 1\ns_or_b32 s{sPOS}, s{sPOS}, s{sT0}")
    k.srd(S_TABL, P_TAB, 64000)
    k.srd(S_W, P_W, 2048)
    e(f"v_lshrrev_b32 v130, 5, v{vL}\nv_and_b32 v131, 7, v{vL}")
    e(f"v_bfe_u32 v5, v{vL}, 3, 2\nv_lshlrev_b32 v5, 6, v5\nv_lshl_add_u32 v5, v130, 5, v5")
    e(f"v_and_b32 v6, 31, v{vL}\nv_lshlrev_b32 v7, 6, v6\nv_lshlrev_b32 v6, 1, v6\ns_lshl_b32 s{sT1}, s2, 8\ns_lshr_b32 s{sT2}, s{sU}, 1\ns_lshl_b32 s{sT0}, s{sT2}, 4\ns_add_u32 s{sT1}, s{sT1}, s{sT0}")
    e(f"buffer_load_dwordx4 {vr(TP,4)}, v5, {sr(S_TABL)}, s{sT1} offen")
    for t in range(4): e(f"buffer_load_dwordx4 {vr(WR+4*t,4)}, v7, {sr(S_W)}, 0 offen offset:{16*t}")
    e(f"global_load_short_d16_hi v{PP}, v6, s[{P_P}:{P_P+1}]")
    e(f"s_mul_i32 s{sT0}, s{sU}, 384\nv_lshlrev_b32 v132, 2, v{vL}\nv_add_u32 v132, s{sT0}, v132")
    e(f"v_mov_b32 v4, 0\nv_lshl_add_u32 v7, v6, 1, s{sT0}\nds_write_b32 v7, v4 offset:{GP+256}")
    e(f"s_and_b32 s{sT1}, s{sU}, 1\ns_lshl_b32 s{sNT}, s{sT1}, 2\nv_subrev_u32 v133, s{sNT}, v131\nv_min_u32 v133, 2, v133\nv_lshlrev_b32 v133, 7, v133\nv_lshl_add_u32 v133, v130, 6, v133")
    e(f"s_lshl_b32 s{sNT}, s{sT2}, 5\ns_add_u32 s{sT0}, s{sT0}, s{sNT}\nv_add_u32 v133, s{sT0}, v133")
    e(f"s_lshl_b32 s{sT1}, s{sT1}, 1\ns_add_u32 s{sT1}, s{sT1}, s{sT2}\ns_lshl_b32 s{sT1}, s{sT1}, 10\nv_lshlrev_b32 v134, 4, v{vL}\nv_add_u32 v134, s{sT1}, v134")
    k.srd(S_ROW, P_WS, 0x100000, ROW0)
    k.srd(S_LIST, P_WS, 250 * 16384, L0)
    k.srd(S_RES, P_WS, 0x800000, R0)
    k.srd(S_OUT, P_OUT, 32768)
    e(f"v_lshlrev_b32 v{T+3}, 8, v{T}")
    for t in range(4):
        e(f"v_add_u32 v4, 6, v{EB+2*t}\nv_lshl_or_b32 v{EB+2*t+1}, v{EB+2*t}, 4, v{T+3}")
        e(f"v_lshrrev_b32 v4, 4, v4\nv_lshl_or_b32 v{EB+2*t+1}, v4, 1, v{EB+2*t+1}\nv_or_b32 v{EB+2*t}, 1, v{EB+2*t+1}")
    for t in range(8): e(f"v_mov_b32 v{LOC+t}, 0\nv_mov_b32 v{KK+t}, 0")
    if 'lateconst' not in OPT: late_consts()
    e(f"v_mov_b32 v2, 2\nv_mov_b32 v7, 0x100010\ns_lshl_b32 s{sT0}, s2, 12")
    e(f"v_and_b32 v4, 3, v0\nv_lshlrev_b32 v{T+4}, 14, v{T}\nv_lshl_add_u32 v{T+4}, v4, 4, v{T+4}")
    e(f"v_add_u32 v{T+5}, 1, v4\nv_lshrrev_b32 v{T+5}, 2, v{T+5}\nv_sub_u32 v{T+5}, 0, v{T+5}")
    e(f"s_waitcnt lgkmcnt(0)\ns_add_u32 s{sTAG}, s{sTAG}, 1")
    if 'lateconst' not in OPT: res_tags("v_and_b32 v4, 3, v0")
    e(f"s_lshl_b32 s{sT0}, s{sPOS}, 12\ns_waitcnt vmcnt(6)")
    k.stamp(1)
    for t in range(4): e(f"v_lshl_or_b32 v{RW+t}, v{V+2*t+1}, 16, v{V+2*t}\nv_lshl_add_u32 v{RW+t}, v{RW+t}, 4, v7")
    e(f"buffer_store_dwordx4 {vr(RW,4)}, v3, {sr(S_ROW)}, s{sT0} offen{SC}")
    for t in range(8):
        if t == 2: e("s_mov_b32 exec_lo, 0x77777777\ns_mov_b32 exec_hi, 0x77777777")
        e(f"v_and_b32 v{C4+t}, -4, v{V+t}\nds_add_rtn_u32 v{KK+t}, v{C4+t}, v2 offset:{CNT}")
    e("s_mov_b64 exec, -1")
    for t in range(8): e(f"v_lshlrev_b32 v{V+t}, 2, v{V+t}\nv_and_or_b32 v{V+t}, v{V+t}, 12, v{EB+t}")
    e("s_waitcnt lgkmcnt(0)")
    for t in range(8):
        if t == 2: e("s_mov_b32 exec_lo, 0x77777777\ns_mov_b32 exec_hi, 0x77777777")
        e(f"v_min_u32 v4, 54, v{KK+t}\nv_lshl_add_u32 v4, v{C4+t}, 4, v4\nds_write_b16 v4, v{V+t} offset:{LIMG}")
    e("s_mov_b64 exec, -1")
    e(f"s_lshl_b32 s{sT0}, s{sPOS}, 6")
    k.stamp(2)
    e(f"s_waitcnt vmcnt(1)\nv_mov_b32 v6, 0\nv_cmp_gt_u32 vcc, 32, v{vL}")
    for t in range(16): e(f"v_dot2_f32_bf16 v6, v{WR+t}, s{sH+t}, v6")
    for t in range(4): e(f"v_lshlrev_b32 v{TU+2*t}, 16, v{TP+t}\nv_and_b32 v{TU+2*t+1}, 0xffff0000, v{TP+t}")
    e(f"v_mul_f32 v6, {LOG2E_HALF:#x}, v6\nv_cndmask_b32 v6, v{PP}, v6, vcc\nds_write_b32 v132, v6 offset:{GP}\ns_waitcnt lgkmcnt(0)")
    for t in range(2): e(f"ds_read_b128 {vr(WV+4*t,4)}, v133 offset:{GP+16*t}")
    e("s_waitcnt lgkmcnt(0)")
    for t in range(8): e(f"v_mul_f32 v{WV+t}, v{WV+t}, v{TU+t}")
    for t in range(4): e(f"v_cvt_pk_bf16_f32 v{MU+t}, v{WV+2*t}, v{WV+2*t+1}")
    e(f"ds_write_b128 v134, {vr(MU,4)} offset:{AIMG+8192}\nv_mov_b32 v7, s{sTAG}")
    e("s_waitcnt vmcnt(0) lgkmcnt(0)")
    sync_add(0)
    sync_wait(0, 4, 'lo')
    k.stamp(3)
    P = 64
    e(f"s_cmp_ge_u32 s{sU}, 2\ns_cbranch_scc1 L_nopub\nv_and_b32 v4, -4, v0")
    for h in range(7): e(f"ds_read_b128 {vr(P+4*h,4)}, v3 offset:{LIMG+2048*h}\nds_read_b32 v{P+32+h}, v4 offset:{CNT+128*h}")
    for h in range(8):
        e(f"s_waitcnt lgkmcnt({12 if h==0 else 14-2*h})")
        if h == 0: e(f"ds_read_b128 {vr(P+28,4)}, v3 offset:{LIMG+2048*7}\nds_read_b32 v{P+39}, v4 offset:{CNT+128*7}")
        e(f"v_bfi_b32 v{P+4*h+3}, v{T+5}, v7, v{P+4*h+3}\nv_bfi_b32 v{P+4*h+2}, v{T+5}, v{P+32+h}, v{P+4*h+2}")
        e(f"buffer_store_dwordx4 {vr(P+4*h,4)}, v{T+4}, {sr(S_LIST)}, s{sT0} offen{SC}")
        if h < 7: e(f"s_add_u32 s{sT0}, s{sT0}, 0x80000")
    e("L_nopub:")
    k.stamp(4)
    make_loc(KK, C4, False)
    e(f"v_max3_u32 v7, v{KK}, v{KK+1}, v{KK+2}\nv_max3_u32 v7, v7, v{KK+3}, v{KK+4}\nv_max3_u32 v7, v7, v{KK+5}, v{KK+6}\nv_max_u32 v7, v7, v{KK+7}")
    e(f"v_cmp_le_u32 vcc, 32, v7\ns_cbranch_vccnz L_mark\nL_mark_ret:")
    with rare():
        e("L_mark:"); make_loc(KK, C4, True); sync_add(4); e("s_branch L_mark_ret")

def decode(ns):
    for i, n in enumerate(ns): e(f"v_lshrrev_b32 v{TQ+i}, 2, v{RM+n}\nv_bfe_i32 v{TQ+4+i}, v{RM+n}, v{cBIT}, 1")
    for i, n in enumerate(ns): e(f"v_and_b32 v{TQ+i}, v{TQ+i}, v{cAM}\nv_and_b32 v{TQ+8+i}, v{TQ+4+i}, v{cWR}")
    for i, n in enumerate(ns): e(f"v_add3_u32 v{TQ+i}, v{TQ+i}, v{cOFF}, v{TQ+8+i}\nv_and_b32 v{TQ+4+i}, v{TQ+4+i}, v{cA}")
    for i, n in enumerate(ns):
        e(f"buffer_load_dwordx4 {vr(G+4*n,4)}, v{TQ+i}, {sr(S_ROW)}, s{sG} offen{SC}\nv_and_or_b32 v{RM+n}, v{RM+n}, 12, v{TQ+4+i}")
def addrs(n, buf):
    g = G + 4 * n; r = RM + n
    e(f"v_and_b32 v{g}, v{g}, v{r}")
    for t, (d, dw, hi) in enumerate([(2, 1, 0), (g + 1, 1, 1), (3, 2, 0), (g + 2, 2, 1), (4, 3, 0), (g + 3, 3, 1), (g, 0, 1)]):
        e(f"v_add_u32_sdwa v{d}, v{r}, v{g+dw} dst_sel:DWORD dst_unused:UNUSED_PAD src0_sel:WORD_0 src1_sel:WORD_{hi}")
        e(f"ds_read_b32 v{BQ+8*buf+t}, v{d}")
def mf(n, buf):
    a = AC + 4 * (n // 4); q = n & 3
    e(f"v_mfma_f32_16x16x32_bf16 {vr(a,4)}, {vr(AS+4*q,4)}, {vr(BQ+8*buf,4)}, {'0' if q==0 else vr(a,4)}")
    e(f"v_mfma_f32_16x16x32_bf16 {vr(a,4)}, {vr(AS+4*q,4)}, {vr(BQ+8*buf+4,4)}, {vr(a,4)}")
def dreads(addr):
    for q in range(4): e(f"ds_read2_b32 {vr(DX+2*q,2)}, v{addr+q//2} offset0:{128*(q%2)} offset1:{128*(q%2)+16}")
def dests():
    for q in range(8): e(f"v_lshrrev_b32 v{DX+q}, 12, v{DX+q}")
    for q in range(8): e(f"v_and_or_b32 v{DX+q}, v{DX+q}, v5, v6")
def scatter():
    for q in range(4):
        a = AC + 4 * q
        e(f"v_cvt_pk_bf16_f32 v{a}, v{a+1}, v{a}\nv_cvt_pk_bf16_f32 v{a+2}, v{a+3}, v{a+2}")
        e(f"ds_write_b32 v{DX+2*q}, v{a}\nds_write_b32 v{DX+2*q+1}, v{a+2}")
def res_stores(lvl, s0):
    T = G + 16 * lvl
    e(f"v_add_u32 v2, 64, v{cRD}\nv_add_u32 v3, 128, v{cRD}\nv_add_u32 v4, 192, v{cRD}\ns_waitcnt lgkmcnt(6)")
    for i in range(4):
        for x in range(2): e(f"ds_read2st64_b32 {vr(T+4*i+2*x,2)}, v{cRD if i==0 else 1+i} offset0:{16*lvl+2*x} offset1:{16*lvl+2*x+1}")
    for i in range(4):
        e(f"s_waitcnt lgkmcnt({6-2*i})")
        for j in range(4): e(f"v_and_or_b32 v{T+4*i+j}, v{T+4*i+j}, v{cMSK}, v{cR+j}")
        e(f"buffer_store_dwordx4 {vr(T+4*i,4)}, v{cRA}, {sr(S_RES)}, s{s0} offen{SC}")
        if i < 3: e(f"s_add_u32 s{s0}, s{s0}, 0x40000")

def lo_lookup():
    POLL = 16; NQ = 3
    e("s_cmp_ge_u32 s2, 250\ns_cbranch_scc1 L_nobucket0")
    with rare(): e("L_nobucket0:\ns_waitcnt lgkmcnt(0)\ns_branch L_nobucket")
    if 'lateconst' in OPT:
        e("s_setprio 0"); late_consts(); e("s_setprio 2")
    e(f"v_lshlrev_b32 v3, 4, v{vL}\ns_lshl_b32 s{sT0}, s2, 14\ns_add_u32 s{sT0}, s{sT0}, s{sCNT}")
    e(f"s_mov_b32 s{sNT}, 0\ns_mov_b32 s{sEX}, 0x88888888\ns_mov_b32 s{sEX+1}, 0x88888888")
    CW, CN1, CD, CP = DX + 8, DX + 9, DX + 10, DX + 11
    e(f"v_lshlrev_b32 v{CW}, 14, v{vL}\nv_mov_b32 v{CD}, {DUMP}\nv_lshl_add_u32 v{CP}, v{vL}, 2, s{sG+1}")
    for i in range(4): e(f"v_mov_b32 v{AC+12+i}, 0")
    e(f"s_mov_b32 s{sRND}, 0\ns_and_b32 s{sT1}, s{sU}, 1\ns_lshl_b32 s{sT1}, s{sT1}, 2\ns_add_u32 s{sT1}, s{sT1}, {NW}\nv_mov_b32 v2, s{sT1}")
    k.stamp(5)
    e(f"s_cmp_ge_u32 s{sU}, 2\ns_cbranch_scc1 L_poller")
    e("L_wait_lists:\ns_sleep 1\nds_read_b32 v4, v2\ns_waitcnt lgkmcnt(0)\nv_cmp_eq_u32 vcc, 0, v4\ns_cbranch_vccnz L_wait_lists")
    e(f"v_cmp_eq_u32 vcc, 1, v4\ns_cbranch_vccnz L_poll1_ok\ns_branch L_gaveup")
    e(f"L_poller:\ns_sub_u32 s{sT1}, s{sT0}, 0x2000\nv_add_u32 v7, {(-0x2000)&0xffffffff:#x}, v{WA}")
    if DL1: e(f"s_sleep {DL1}")
    e("L_poll1:")
    for h in range(8): e(f"buffer_load_dwordx4 {vr(POLL+4*h,4)}, v3, {sr(S_LIST)}, s{sT1 if h<4 else sT0} offen offset:{1024*(h%4)}{SC}")
    for h in range(8):
        e(f"s_waitcnt vmcnt({7-h})")
        if h == 0: e(f"v_xor_b32 v4, s{sTAG}, v{POLL+3}")
        else: e(f"v_xor_b32 v5, s{sTAG}, v{POLL+4*h+3}\nv_or_b32 v4, v4, v5")
        e(f"ds_write_b128 v{7 if h<4 else WA}, {vr(POLL+4*h,4)} offset:{WL+1024*(h%4)}")
    e(f"v_cmp_ne_u32 vcc, 0, v4\ns_and_b64 vcc, vcc, s[{sEX}:{sEX+1}]\nv_mov_b32 v5, 1\ns_waitcnt lgkmcnt(0)")
    e("s_cbranch_vccnz L_poll1_again\nds_write_b32 v2, v5\nL_poll1_ok:")
    with rare():
        e("L_poll1_again:")
        if SL1: e(f"s_sleep {SL1}")
        e(f"s_add_u32 s{sNT}, s{sNT}, 1\ns_cmp_lt_u32 s{sNT}, {LIMIT}\ns_cbranch_scc1 L_poll1")
        for i in range(4): e(f"v_mov_b32 v{POLL+i}, 0")
        for h in range(8): e(f"ds_write_b128 v{7 if h<4 else WA}, {vr(POLL,4)} offset:{WL+1024*(h%4)}")
        e("v_mov_b32 v5, 2\ns_waitcnt lgkmcnt(0)\nds_write_b32 v2, v5\nL_gaveup:")
        for i in range(4): e(f"v_or_b32 v{cR+i}, 0x7fc00000, v{cR+i}")
        e("s_branch L_poll1_ok")
    k.stamp(6)
    if 'loprio0' in OPT: e("s_setprio 0")
    ND = opt('nd', 3); P1 = 2 * ND; P2 = opt('p2', 10)
    e(f"ds_read_b128 {vr(EN,4)}, v{WA+1} offset:{WL}\nds_read_b128 {vr(EN+12,4)}, v{WA+4} offset:{WL}")
    for g in (1, 2): e(f"ds_read_b128 {vr(EN+4*g,4)}, v{WA+1+g} offset:{WL}")
    e("s_waitcnt lgkmcnt(3)")
    def word(j, d, w): e(f"v_or_b32_sdwa v{d}, v{w}, sext(v{EN+j//2}) dst_sel:DWORD dst_unused:UNUSED_PAD src0_sel:DWORD src1_sel:WORD_{j&1}")
    for j in range(ND):
        if j: e(f"v_add_u32 v5, {j<<20:#x}, v{CW}")
        word(j, 6 + (j & 1), 5 if j else CW); e(f"ds_write_b32 v{CP}, v{6+(j&1)} offset:{256*j}")
    for n in range(P1): e(f"ds_read_b32 v{RM+n}, v{cFL} offset:{128*n}")
    e(f"s_waitcnt lgkmcnt({P1+ND+2})\nv_lshrrev_b32 v2, 1, v{EN+14}\nv_min_u32 v2, 24, v2\nv_sub_u32 v2, v2, {ND} clamp\nv_mov_b32 v3, v2\ns_nop 1")
    scan = [f"v_add_u32_dpp v3, v3, v3 {m} row_mask:0xf bank_mask:0xf" for m in ("row_shr:1", "row_shr:2", "row_shr:4", "row_shr:8")]
    scan += ["v_add_u32_dpp v3, v3, v3 row_bcast:15 row_mask:0xa bank_mask:0xf", "v_add_u32_dpp v3, v3, v3 row_bcast:31 row_mask:0xc bank_mask:0xf"]
    e(scan[0]); e(f"s_waitcnt lgkmcnt({max(P1-4,0)})")
    n0 = len(k.L); decode(list(range(min(4, P1))))
    if P1 > 4: e("s_waitcnt lgkmcnt(0)"); decode(list(range(4, P1)))
    body = k.L[n0:]; del k.L[n0:]
    for i, x in enumerate(body):
        k.L.append(x)
        if i % 3 == 2 and len(scan) > 1: e(scan.pop(1))
    for x in scan[1:]: e("s_nop 1"); e(x)
    e(f"v_cmp_eq_u32 vcc, 0, v2\nv_readlane_b32 s{sNT}, v3, 63\nv_sub_u32 v3, v3, v2\nv_lshl_add_u32 v3, v3, 2, s{sG+1}\nv_cndmask_b32 v3, v3, v{CD}, vcc")
    e(f"v_cmp_lt_u32 vcc, {16-ND}, v2\ns_or_b32 s{sBAD}, vcc_lo, vcc_hi\ns_add_u32 s{sNT}, s{sNT}, {64*ND}\ns_waitcnt lgkmcnt(0)\ns_cbranch_vccnz L_fl23")
    e(f"v_cmp_lt_u32 vcc, {14-ND}, v2\nv_add_u32 v5, {15<<20:#x}, v{CW}\ns_cbranch_vccnz L_fl15\nv_add_u32 v5, {13<<20:#x}, v{CW}\ns_branch L_fl13")
    def put(j):
        word(j, 6 + (j & 1), 5)
        if j > ND: e(f"v_add_u32 v5, 0xfff00000, v5")
        e(f"ds_write_b32 v3, v{6+(j&1)} offset:{256*ND+4*(j-ND)}")
    with rare():
        e(f"L_fl23:\nv_add_u32 v5, {23<<20:#x}, v{CW}")
        for j in range(23, 15, -1): put(j)
        e("s_waitcnt lgkmcnt(0)\ns_branch L_fl15")
    for j in range(15, ND - 1, -1):
        if j in (15, 13): e(f"L_fl{j}:")
        put(j)
        if j == 8: e("s_waitcnt lgkmcnt(4)")
    e(f"v_add_u32 v7, 1024, v{cDR}\nv_mov_b32 v6, v{cDR}\ns_waitcnt lgkmcnt(3)")
    for n in range(P1, 16): e(f"ds_read_b32 v{RM+n}, v{cFL} offset:{128*n}")
    e("L_round:")
    e(f"s_add_u32 s{sT2}, s{sNT}, 31\ns_lshr_b32 s{sT2}, s{sT2}, 5\ns_waitcnt lgkmcnt({16-P2})")
    for x in range(P1, P2, 4): decode(list(range(x, min(x + 4, P2))))
    dreads(6)
    k.stamp(7)
    sync_wait(5, 4, 'tab', 1)
    k.stamp(8)
    e(f"v_mov_b32 v5, 0x1ffc\nv_mov_b32 v6, s{sG+2}")
    dests()
    R = 16 - P2
    for n in range(16):
        e(f"s_waitcnt vmcnt({P2+min(n,R)-1-n})"); addrs(n, n & 1)
        if n: e("s_waitcnt lgkmcnt(7)"); mf(n - 1, (n - 1) & 1)
        if n < R: decode([P2 + n])
        if 11 <= n < 15:
            e(f"s_cmp_le_u32 s{sT2}, {n+1}\ns_cbranch_scc1 L_x{n}")
            with rare() if n not in (12, 13) else keep():
                pass
    e("s_waitcnt lgkmcnt(0)"); mf(15, 1); e("s_nop 4\ns_branch L_tiles_done")
    for n in (11, 14, 12, 13):
        e(f"L_x{n}:\ns_waitcnt lgkmcnt(0)"); mf(n, n & 1); e("s_nop 4")
        if n != 13: e("s_branch L_tiles_done")
    e("L_tiles_done:")
    scatter_first = True
    for q in (0, 1, 2, 3):
        a_ = AC + 4 * q
        e(f"v_cvt_pk_bf16_f32 v{a_}, v{a_+1}, v{a_}\nv_cvt_pk_bf16_f32 v{a_+2}, v{a_+3}, v{a_+2}")
        e(f"ds_write_b32 v{DX+2*q}, v{a_}\nds_write_b32 v{DX+2*q+1}, v{a_+2}")
    e(f"s_cmp_gt_u32 s{sNT}, 512\ns_cbranch_scc1 L_more")
    with rare():
        e(f"L_more:\ns_sub_u32 s{sNT}, s{sNT}, 512\nv_add_u32 v{cFL}, 2048, v{cFL}\nv_add_u32 v{cDR}, 2048, v{cDR}\nv_add_u32 v7, 1024, v{cDR}\nv_mov_b32 v6, v{cDR}")
        e("s_waitcnt vmcnt(0) lgkmcnt(0)")
        for n in range(16):
            e(f"ds_read_b32 v{RM+n}, v{cFL} offset:{128*n}")
            if n == 7: e("s_waitcnt lgkmcnt(0)")
        e("s_waitcnt lgkmcnt(0)")
        for x in range(0, P1, 4): decode(list(range(x, min(x + 4, P1))))
        e("s_branch L_round")
    e(f"s_mov_b32 s{sT0}, s{sG+3}")
    res_stores(0, sT0)
    e(f"s_cmp_lg_u32 s{sBAD}, 0\ns_cbranch_scc1 L_res2\nL_res2_ret:")
    with rare():
        e(f"L_res2:\ns_add_u32 s{sT0}, s{sG+3}, {RLV:#x}"); res_stores(1, sT0); e("s_branch L_res2_ret")
    for j in range(4): e(f"v_and_b32 v{cR+j}, 0x80000001, v{cR+j}")
    e("L_nobucket:")
    k.stamp(9)

def pos():
    if 'nopos' in OPT: e(f"s_mov_b32 s{sPOS}, s2")
    else: e(f"s_and_b32 s{sPOS}, s2, 6\ns_lshl_b32 s{sPOS}, s{sPOS}, 5\ns_lshr_b32 s{sT0}, s2, 3\ns_lshl_b32 s{sT0}, s{sT0}, 1\ns_or_b32 s{sPOS}, s{sPOS}, s{sT0}\ns_and_b32 s{sT0}, s2, 1\ns_or_b32 s{sPOS}, s{sPOS}, s{sT0}")

def hi_lookup():
    e("s_waitcnt lgkmcnt(0)")
    sync_add(5)
    e("L_hi_final:")
    pos()
    e(f"s_add_u32 s{sTAG}, s{sTAG}, 1")
    res_tags("v_and_b32 v4, 3, v0", 96)
    final_poll()
    k.stamp(6)

def final_poll():
    cR = 96
    e(f"s_load_dword s{sTAG}, s[{P_WS}:{P_WS+1}], {EPOCH:#x}") if False else None
    T = 32; X = 48; Y = 64; CN = 80; YA = 84
    e(f"v_and_b32 v2, 255, v0\nv_lshlrev_b32 v{T}, 4, v2\nv_add_u32 v{T+1}, 0x2000, v{T}\ns_lshl_b32 s{sT0}, s{sPOS}, 14\ns_add_u32 s{sT1}, s{sT0}, 0x1000")
    e(f"v_cmp_gt_u32 vcc, 232, v2\ns_mov_b64 s[{sEX}:{sEX+1}], vcc\ns_mov_b32 s{sNT}, 0\nv_mov_b32 v{T+4}, 0")
    sync_wait(0, 8, 'res', 2)
    e(f"ds_read_b32 v6, v5 offset:16\ns_waitcnt lgkmcnt(0)\nv_readfirstlane_b32 s{sRARE}, v6")
    for h in range(4): e(f"v_mov_b32 v{YA+h}, -1")
    e(f"s_cmp_lg_u32 s{sRARE}, 0\ns_cbranch_scc1 L_rare0\nL_rare0_ret:")
    with rare():
        e(f"L_rare0:\nv_and_b32 v4, -4, v2\ns_add_u32 s{sBAD}, s{sT0}, {RLV:#x}\nv_mov_b32 v7, 0x80000000")
        for h in range(4): e(f"ds_read_b32 v{CN+h}, v4 offset:{CNT+256*h}")
        e("s_waitcnt lgkmcnt(0)")
        for h in range(4):
            e(f"v_add_u32 v{CN+h}, -33, v{CN+h}\nv_add_u32 v4, {4096*h}, v{T}\nv_and_or_b32 v{YA+h}, v{CN+h}, v7, v4\nv_ashrrev_i32 v{CN+h}, 31, v{CN+h}")
        e("s_branch L_rare0_ret")
    if DL2: e(f"s_sleep {DL2}")
    e("L_poll2:")
    e(f"s_cmp_lg_u32 s{sRARE}, 0\ns_cbranch_scc1 L_rare1\nL_rare1_ret:")
    with rare():
        e("L_rare1:")
        for h in range(4): e(f"buffer_load_dwordx4 {vr(Y+4*h,4)}, v{YA+h}, {sr(S_RES)}, s{sBAD} offen{SC}")
        e("s_branch L_rare1_ret")
    for h in range(4): e(f"buffer_load_dwordx4 {vr(X+4*h,4)}, v{T+h//2}, {sr(S_RES)}, s{sT0 if h%2==0 else sT1} offen{SC}")
    for h in range(4):
        d = T + 2 if h < 3 else T + 3
        e(f"s_waitcnt vmcnt({3-h})")
        for j in range(4):
            if j == 0 and h in (0, 3): e(f"v_xor_b32 v{d}, v{X+4*h}, v{cR}")
            else: e(f"v_bitop3_b32 v{d}, v{d}, v{X+4*h+j}, v{cR+j} bitop3:0xf6")
        e(f"ds_write_b128 v{T}, {vr(X+4*h,4)} offset:{RS+4096*h}")
    e(f"s_cmp_lg_u32 s{sRARE}, 0\ns_cbranch_scc1 L_rare2\nL_rare2_ret:")
    with rare():
        e("L_rare2:")
        for h in range(4):
            for j in range(4):
                if j == 0: e(f"v_xor_b32 v4, v{Y+4*h}, v{cR}")
                else: e(f"v_bitop3_b32 v4, v4, v{Y+4*h+j}, v{cR+j} bitop3:0xf6")
            e(f"v_bitop3_b32 v{T+2}, v{T+2}, v4, v{CN+h} bitop3:0xf4")
            e(f"ds_write_b128 v{T}, {vr(Y+4*h,4)} offset:{RS+16384+4096*h}")
        e("s_branch L_rare2_ret")
    e(f"v_and_b32 v{T+3}, 0x80000001, v{T+3}\nv_and_b32 v{T+2}, 0x80000001, v{T+2}")
    e(f"v_cmp_ne_u32 vcc, 0, v{T+3}\ns_and_b64 s[{sU}:{sU+1}], vcc, s[{sEX}:{sEX+1}]\nv_cmp_ne_u32 vcc, 0, v{T+2}\ns_or_b64 vcc, vcc, s[{sU}:{sU+1}]")
    e("s_cbranch_vccnz L_poll2_again\nL_poll2_ok:")
    with rare():
        e("L_poll2_again:")
        if SL2: e(f"s_sleep {SL2}")
        e(f"s_waitcnt lgkmcnt(0)\ns_add_u32 s{sNT}, s{sNT}, 1\ns_cmp_lt_u32 s{sNT}, {LIMIT}\ns_cbranch_scc1 L_poll2")
        sync_add(3)
        e("s_branch L_poll2_ok")
    k.stamp(10)
    e("s_waitcnt lgkmcnt(0)\ns_barrier")

def final():
    T = 32; X = 48
    sync_add(0)
    for t in range(8): e(f"v_and_b32 v{T+8+t}, 0xffff, v{LOC+t}")
    e(f"s_lshl_b32 s{sT2}, s2, 7\ns_lshl_b32 s{sBAD}, s{sJ}, 5\ns_add_u32 s{sT2}, s{sT2}, s{sBAD}")
    e(f"v_lshrrev_b32 v3, 2, v{vL}\nv_lshlrev_b32 v3, 1, v3\ns_waitcnt lgkmcnt(0)\ns_barrier")
    k.stamp(10)
    e(f"s_or_b32 s{sCNT}, s2, s{sJ}\ns_cmp_eq_u32 s{sCNT}, 0\ns_cbranch_scc1 L_epoch\nL_epoch_ret:")
    with rare():
        e(f"L_epoch:\ns_mov_b64 exec, 1\nv_mov_b32 v4, {EPOCH:#x}\nv_mov_b32 v5, s{sTAG}\nglobal_store_dword v4, v5, s[{P_WS}:{P_WS+1}]{SC}\ns_mov_b64 exec, -1\ns_branch L_epoch_ret")
    e(f"v_mov_b32 v5, {SYNC+12}\nds_read_b32 v6, v5")
    for t in range(8): e(f"ds_read_b32 v{X+t}, v{T+8+t}")
    for t in range(8):
        e(f"s_waitcnt lgkmcnt({7-t})\nv_and_b32 v{T+t}, 0x7fff0000, v{X+t}\nv_lshlrev_b32 v{X+t}, 16, v{X+t}")
        if t % 2: e(f"v_add_f32 v{T+t-1}, v{T+t-1}, v{T+t}\nv_add_f32 v{X+t-1}, v{X+t-1}, v{X+t}")
        if t % 4 == 3: e(f"v_add_f32 v{T+t-3}, v{T+t-3}, v{T+t-1}\nv_add_f32 v{X+t-3}, v{X+t-3}, v{X+t-1}")
    e(f"v_add_f32 v{T}, v{T}, v{T+4}\nv_add_f32 v{X}, v{X}, v{X+4}\ns_nop 0")
    e(f"v_add_f32_dpp v{T+1}, v{T}, v{T} quad_perm:[1,0,3,2] row_mask:0xf bank_mask:0xf")
    e(f"v_add_f32_dpp v{X+1}, v{X}, v{X} quad_perm:[1,0,3,2] row_mask:0xf bank_mask:0xf")
    e("s_nop 0")
    e(f"v_add_f32_dpp v{T}, v{T+1}, v{T+1} quad_perm:[2,3,0,1] row_mask:0xf bank_mask:0xf")
    e(f"v_add_f32_dpp v{X}, v{X+1}, v{X+1} quad_perm:[2,3,0,1] row_mask:0xf bank_mask:0xf")
    e(f"v_rcp_f32 v{T+1}, v{T}")
    e(f"v_add_u32 v{T+2}, {(-0x17800000)&0xffffffff:#x}, v{T}\nv_mul_f32 v{X}, v{X}, v{T+1}\nv_cmp_gt_u32 vcc, 0x5a000000, v{T+2}")
    e(f"v_and_b32 v{T+3}, 0x7fffffff, v{X}\ns_mov_b64 s[{sEX}:{sEX+1}], vcc\nv_cmp_gt_u32 vcc, 0x7f800000, v{T+3}\nv_cvt_pk_bf16_f32 v{X}, v{X}, v{X}")
    e(f"s_and_b64 s[{sEX}:{sEX+1}], vcc, s[{sEX}:{sEX+1}]\nv_cmp_eq_u32 vcc, 0, v6")
    e(f"s_and_b64 vcc, vcc, s[{sEX}:{sEX+1}]\ns_cmp_eq_u64 vcc, -1\ns_cbranch_scc0 {'L_fallback' if not (OPT & {'nolds','nogather'}) else 'L_fin'}")
    e("s_mov_b32 exec_lo, 0x11111111\ns_mov_b32 exec_hi, 0x11111111")
    e(f"buffer_store_short v{X}, v3, {sr(S_OUT)}, s{sT2} offen")
    e("L_fin:")

def fallback():
    e("L_fallback:")
    A0 = 16; A1 = 20; C0 = 24; C1 = 28; AH = 32; AP = 36; EI = 40; EJ = 48; PK = 56; DD = 60; HK = 68; DS = 72; W16 = 80
    N, Q, IB, M, LL, ACc, T = 100, 101, 102, 103, 104, 105, 106
    e(f"v_and_b32 v{N}, 15, v{vL}\nv_lshrrev_b32 v{Q}, 4, v{vL}")
    e(f"v_lshlrev_b32 v{T}, 9, v{Q}\nv_lshl_add_u32 v{T}, v{N}, 1, v{T}")
    for half in range(2):
        for t in range(8): e(f"buffer_load_ushort v{W16+8*half+t}, v{T}, {sr(S_W)}, 0 offen offset:{t*64+half*32}")
    e(f"v_lshlrev_b32 v{T+1}, 3, v{Q}\nv_lshlrev_b32 v{Q}, 4, v{Q}")
    e(f"global_load_dwordx2 {vr(EI,2)}, v{T+1}, s[{P_B}:{P_B+1}]\nglobal_load_dwordx2 {vr(EI+2,2)}, v{T+1}, s[{P_B}:{P_B+1}] offset:32")
    e(f"global_load_dwordx2 {vr(AH,2)}, v{T+1}, s[{P_H}:{P_H+1}]\nglobal_load_dwordx2 {vr(AH+2,2)}, v{T+1}, s[{P_H}:{P_H+1}] offset:32")
    e(f"global_load_dwordx4 {vr(AP,4)}, v{Q}, s[{P_P}:{P_P+1}]")
    e(f"s_lshl_b32 s{sU}, s2, 6\ns_lshl_b32 s{sT1}, s{sJ}, 4\ns_add_u32 s{sU}, s{sU}, s{sT1}\nv_add_u32 v{IB}, s{sU}, v{N}\nv_mul_u32_u24 v{IB}, 104, v{IB}")
    e("s_waitcnt vmcnt(0)")
    for half in range(2):
        for t in range(4): e(f"v_lshl_or_b32 v{A0+4*half+t}, v{W16+8*half+2*t+1}, 16, v{W16+8*half+2*t}")
    for i in range(4): e(f"v_lshlrev_b32 v{C0+2*i}, 16, v{EI+i}\nv_and_b32 v{C0+2*i+1}, 0xffff0000, v{EI+i}")
    e(f"v_mov_b32 v{M}, 0xff800000\nv_mov_b32 v{LL}, 0\nv_mov_b32 v{ACc}, 0")
    e(f"s_mov_b32 s{sU}, 0")
    def getrow(dst, soff):
        e(f"buffer_load_dword v{T}, v{IB}, {sr(S_IDX)}, s{soff} offen\ns_waitcnt vmcnt(0)")
        e(f"v_lshl_add_u32 v{T}, v{T}, 6, v{Q}\nbuffer_load_dwordx4 {vr(dst+4,4)}, v{T}, {sr(S_TABL)}, 0 offen\ns_waitcnt vmcnt(0)")
        for t in range(4): e(f"v_lshlrev_b32 v{dst+2*t}, 16, v{dst+4+t}\nv_and_b32 v{dst+2*t+1}, 0xffff0000, v{dst+4+t}")
    e("L_fb_i:")
    getrow(EI, sU)
    e(f"s_add_u32 s{sCNT}, s{sU}, 4")
    e("L_fb_j:")
    getrow(EJ, sCNT)
    for t in range(8): e(f"v_mul_f32 v{EJ+t}, v{EJ+t}, v{EI+t}")
    for t in range(4): e(f"v_cvt_pk_bf16_f32 v{PK+t}, v{EJ+2*t}, v{EJ+2*t+1}")
    e("s_nop 1")
    e(f"v_mfma_f32_16x16x32_bf16 {vr(DD,4)}, {vr(A0,4)}, {vr(PK,4)}, {vr(C0,4)}")
    e(f"v_mfma_f32_16x16x32_bf16 {vr(DD+4,4)}, {vr(A1,4)}, {vr(PK,4)}, {vr(C1,4)}")
    e(f"v_mfma_f32_16x16x32_bf16 {vr(DS,4)}, {vr(AP,4)}, {vr(PK,4)}, 0")
    e("s_nop 7")
    for t in range(4): e(f"v_cvt_pk_bf16_f32 v{HK+t}, v{DD+2*t}, v{DD+2*t+1}")
    for t in range(4): e(f"v_pk_max_i16 v{HK+t}, v{HK+t}, 0")
    e("s_nop 1")
    e(f"v_mfma_f32_16x16x32_bf16 {vr(DD,4)}, {vr(AH,4)}, {vr(HK,4)}, 0")
    e("s_nop 7")
    e(f"v_mul_f32 v{DD}, 0x3fb8aa3b, v{DD}\nv_max_f32 v{DD+1}, v{M}, v{DD}\nv_sub_f32 v{DD+2}, v{M}, v{DD+1}\nv_sub_f32 v{DD+3}, v{DD}, v{DD+1}")
    e(f"v_exp_f32 v{DD+2}, v{DD+2}\nv_exp_f32 v{DD+3}, v{DD+3}\nv_mov_b32 v{M}, v{DD+1}")
    e(f"v_fma_f32 v{LL}, v{LL}, v{DD+2}, v{DD+3}\nv_mul_f32 v{ACc}, v{ACc}, v{DD+2}\nv_fma_f32 v{ACc}, v{DD+3}, v{DS}, v{ACc}")
    e(f"s_add_u32 s{sCNT}, s{sCNT}, 4\ns_cmp_lt_u32 s{sCNT}, 104\ns_cbranch_scc1 L_fb_j")
    e(f"s_add_u32 s{sU}, s{sU}, 4\ns_cmp_lt_u32 s{sU}, 100\ns_cbranch_scc1 L_fb_i")
    e(f"v_rcp_f32 v{LL}, v{LL}\nv_lshlrev_b32 v{N}, 1, v{N}\nv_mul_f32 v{ACc}, v{ACc}, v{LL}\nv_cvt_pk_bf16_f32 v{ACc}, v{ACc}, v{ACc}")
    e("s_mov_b64 exec, 0xffff")
    e(f"buffer_store_short v{ACc}, v{N}, {sr(S_OUT)}, s{sT2} offen")
    e("s_branch L_fin")

B_ = 8; A_ = 72; A5 = 104; CB = 120; HQ = 184; D_ = 200; ACC = 232; INIT = 248; TW = 249

PREF = 'nopref' not in OPT
NB0 = opt('nb0', 4); NB1 = opt('nb1', 8); CL0 = opt('cl0', 5)
def flag_store(nm, n):
    sync_wait(0, 8, nm)
    e(f"s_waitcnt vmcnt(0) lgkmcnt(0)\ns_add_u32 s{sTAG}, s{sTAG}, 0x9e3779b1\ns_lshl_b32 s{sT0}, s2, 4\ns_lshl_b32 s{sT1}, s{sU}, 2\ns_add_u32 s{sT0}, s{sT0}, s{sT1}\ns_add_u32 s{sT0}, s{sT0}, {FLG:#x}")
    e(f"v_mov_b32 v6, s{sT0}\nv_mov_b32 v7, s{sTAG}\ns_mov_b64 exec, 1\nglobal_store_dword v6, v7, s[{P_WS}:{P_WS+1}]{SC}\ns_mov_b64 exec, -1")

def hi():
    WV = 120; TP = 136; TU = 144; T = 184
    e("L_hi:")
    e(f"v_lshrrev_b32 v252, 5, v{vL}\nv_and_b32 v253, 7, v{vL}")
    e(f"v_lshlrev_b32 v4, 10, v252\nv_lshl_add_u32 v4, v253, 1, v4")
    e(f"v_bfe_u32 v5, v{vL}, 3, 2\nv_lshlrev_b32 v5, 6, v5\nv_lshl_add_u32 v5, v252, 5, v5")
    e(f"v_and_b32 v6, 31, v{vL}\nv_lshlrev_b32 v7, 6, v6\nv_lshlrev_b32 v6, 1, v6")
    e(f"v_lshl_add_u32 v250, v252, 5, v7\nv_add_u32 v251, 4096, v250")
    e(f"s_lshl_b32 s{sT0}, s{sU}, 4\ns_lshl_b32 s{sT1}, s2, 8\ns_lshl_b32 s{sT2}, s2, 14")
    e(f"v_add_u32 v3, -4096, v3")
    pre_addr()
    e("s_waitcnt lgkmcnt(0)")
    k.srd(S_TABL, P_TAB, 64000)
    k.srd(S_W, P_W, 2048)
    vm = []
    def vmem(lab, txt): e(txt); vm.append(lab)
    def vneed(lab): return len(vm) - 1 - max(i for i, x in enumerate(vm) if x == lab)
    e(f"s_load_dword s{sTAG}, s[{P_WS}:{P_WS+1}], {EPOCH:#x}")
    e("s_cmp_ge_u32 s2, 250\ns_cbranch_scc1 L_hi_skip")
    if PRE and PM != 2:
        vmem('s', f"global_load_dword v255, v2, s[{P_WS}:{P_WS+1}]")
    if PRE and 'preout' in OPT:
        vmem('s', f"global_load_dword v254, v6, s[{P_OUT}:{P_OUT+1}]")
    if PM == 0: vm[:] = []; hold = k.L[-(1 + ('preout' in OPT)):]; del k.L[-(1 + ('preout' in OPT)):]
    vmem('s', f"buffer_load_dwordx4 {vr(TP,4)}, v5, {sr(S_TABL)}, s{sT1} offen")
    vmem('s', f"buffer_load_short_d16_hi v{WV}, v4, {sr(S_W)}, s{sT0} offen")
    vmem('s', f"global_load_short_d16_hi v{T+1}, v6, s[{P_B}:{P_B+1}]")
    vmem('s', f"global_load_short_d16_hi v{T+2}, v6, s[{P_H}:{P_H+1}]")
    if PM == 0 and PRE:
        for x in hold: vmem('s', x)
    e("s_barrier")
    vmem('s', f"buffer_load_dwordx4 {vr(TP+4,4)}, v5, {sr(S_TABL)}, s{sT1} offen offset:16")
    for t in range(1, 16): vmem('s', f"buffer_load_short_d16_hi v{WV+t}, v4, {sr(S_W)}, s{sT0} offen offset:{t*64}")
    e(f"s_lshl_b32 s{sG}, s{sU}, 14\ns_add_u32 s{sG+1}, s{sG}, 0x2000")
    def bload(n):
        b, ks = n // 2, n % 2
        vmem(f"b{b//2}", f"buffer_load_dwordx4 {vr(B_+8*b+4*ks,4)}, v{250+(b//2)%2}, {sr(S_TABL)}, s{sG if b<4 else sG+1} offen offset:{(b%2)*2048+ks*16}")
    for n in range(NB0): bload(n)
    k.srd(S_RES, P_WS, 0x800000, R0)
    k.srd(S_ROW, P_WS, 0x100000, ROW0)
    def clear(h):
        vmem('c', f"buffer_store_dwordx4 {'v[240:243]' if CL0 < 0 else 'v[252:255]'}, v3, {sr(S_RES)}, s{sT2} offen{SC}")
        if h < 3: e(f"s_add_u32 s{sT2}, s{sT2}, 0x1000")
    def prefetch():
        e(f"s_getpc_b64 s[{sEX}:{sEX+1}]\nL_pc:\ns_sub_u32 s{sEX}, s{sEX}, L_pc-{KN}\ns_subb_u32 s{sEX+1}, s{sEX+1}, 0")
        e(f"v_lshlrev_b32 v6, 3, v3\nv_min_u32 v6, L_code_end-{KN}-4, v6\nv_mov_b32 v7, s{sEX+1}\nv_add_co_u32 v6, vcc, s{sEX}, v6\ns_nop 1\nv_addc_co_u32 v7, vcc, 0, v7, vcc")
        vmem("p", "global_load_dword v253, v[6:7], off")
    with rare():
        e("L_hi_skip:\ns_barrier"); k.srd(S_RES, P_WS, 0x800000, R0); e("s_waitcnt lgkmcnt(0)\ns_branch L_hi_final")
    e(f"s_lshl_b32 s{sT0}, s{sU}, 11\nv_lshlrev_b32 v4, 4, v{vL}\nv_add_u32 v5, s{sT0}, v4\nv_cmp_gt_u32 vcc, 32, v{vL}\nv_lshlrev_b32 v7, 2, v{vL}")
    e(f"s_lshl_b32 s{sT0}, s{sU}, 12\nv_add_u32 v{TW}, s{sT0}, v4")
    if PREF and opt('pf', 4) < 0:
        e("v_mov_b32 v254, v7"); prefetch(); e(f"v_mov_b32 v7, v254\nv_cmp_gt_u32 vcc, 32, v{vL}")
    e(f"s_waitcnt vmcnt({vneed('s')})")
    k.stamp(2)

    for t in range(8): e(f"v_lshlrev_b32 v{TU+2*t}, 16, v{TP+t}\nv_and_b32 v{TU+2*t+1}, 0xffff0000, v{TP+t}")
    for t in range(16): e(f"v_mul_f32 v{WV+t}, v{WV+t}, v{TU+t}")
    for t in range(8): e(f"v_cvt_pk_bf16_f32 v{TP+t}, v{WV+2*t}, v{WV+2*t+1}")
    e(f"ds_write_b128 v5, {vr(TP,4)} offset:{AIMG}\nds_write_b128 v5, {vr(TP+4,4)} offset:{AIMG+1024}")
    e(f"v_mul_f32 v{T+2}, {LOG2E_HALF:#x}, v{T+2}\nv_cndmask_b32 v6, v{T+2}, v{T+1}, vcc\nds_write_b32 v7, v6 offset:{BH}")
    for n in range(NB0, NB1): bload(n)
    e("s_waitcnt lgkmcnt(0)")
    sync_add(1)
    sync_wait(1, 4, 'hi')
    e("v_lshlrev_b32 v5, 4, v252")
    k.stamp(3)
    for i in range(2): e(f"ds_read_b128 {vr(A_+4*i,4)}, v4 offset:{AIMG+1024*i}")
    for i in range(4): e(f"ds_read_b128 {vr(CB+4*i,4)}, v5 offset:{BH}")
    for g in range(4): e(f"ds_read_b128 {vr(HQ+4*g,4)}, v5 offset:{BH+128+32*g}")
    for g in range(1, 4): e(f"ds_read_b128 {vr(CB+16*g,4)}, v5 offset:{BH+32*g}")
    e(f"s_waitcnt vmcnt({vneed('b0')}) lgkmcnt(7)"); k.stamp(7)
    later = []
    for g in range(1, 4):
        later += [f"ds_read_b128 {vr(A_+8*g+4*i,4)}, v4 offset:{AIMG+1024*(2*g+i)}" for i in range(2)]
        later += [f"ds_read_b128 {vr(CB+16*g+4*i,4)}, v5 offset:{BH+32*g}" for i in range(1, 4)]
    steps = []
    for bp in range(4): steps += [('r', bp, g, b) for g in range(4) for b in range(2)] + [('x', bp, 0, 0)]
    NS = len(steps)
    def mms(s):
        kind, bp, g, b = steps[s]; d = D_ + 16 * (s % 2)
        if kind == 'r':
            bb = B_ + 8 * (2 * bp + b)
            return [f"v_mfma_f32_32x32x16_bf16 {vr(d,16)}, {vr(A_+8*g,4)}, {vr(bb,4)}, {vr(CB+16*g,16)}",
                    f"v_mfma_f32_32x32x16_bf16 {vr(d,16)}, {vr(A_+8*g+4,4)}, {vr(bb+4,4)}, {vr(d,16)}"]
        return [f"v_mfma_f32_32x32x16_bf16 {vr(d,16)}, {vr(A5+8*b2+4*ks,4)}, {vr(B_+8*(2*bp+b2)+4*ks,4)}, {'0' if b2+ks==0 else vr(d,16)}"
                for b2 in range(2) for ks in range(2)]
    def valu(s):
        kind, bp, g, b = steps[s]; d = D_ + 16 * (s % 2); X = ACC + 8 * (bp % 2); Y = X + 4
        if kind == 'r':
            a = X + 4 * b
            return [f"v_fma_f32 v{a+v}, v{HQ+4*g+r}, |v{d+4*v+r}|, " + (f"-v{INIT}" if g == 0 and r == 0 else f"v{a+v}") for r in range(4) for v in range(4)]
        o = [f"v_permlane32_swap_b32 v{X+v}, v{Y+v}" for v in range(4)]
        o += [f"v_add_f32 v{X+v}, v{X+v}, v{Y+v}" for v in range(4)]
        o += [f"v_add_f32 v{X+v}, v{X+v}, v{d+4*v}" for v in range(4)]
        o += [f"v_exp_f32 v{X+v}, v{X+v}" for v in range(4)]
        o += [f"v_mul_f32 v{Y+v}, v{X+v}, v{d+4*v+1}" for v in range(4)]
        o += [f"v_cvt_pk_bf16_f32 v{X+v}, v{Y+v}, v{X+v}" for v in range(4)]
        o += [f"ds_write_b128 v{TW}, {vr(X,4)} offset:{TAB+16+1024*bp}"]
        return o
    m = mms(0)
    e(m[0])
    for x in later[:5]: e(x)
    e(m[1])
    e("s_waitcnt lgkmcnt(5)")
    for x in later[5:10]: e(x)
    e(f"v_mul_f32 v{INIT}, v{HQ}, |v{CB}|")
    for g in range(4):
        for r in range(4):
            if g or r: e(f"v_fma_f32 v{INIT}, v{HQ+4*g+r}, |v{CB+16*g+r}|, v{INIT}")
    nb_next = [NB1]
    for s in range(NS):
        v = valu(s); m = mms(s + 1) if s + 1 < NS else []
        if s + 1 < NS:
            kind, bp, g, b = steps[s + 1]
            if bp == 0 and kind == 'r' and b == 0 and g == 1: e("s_waitcnt lgkmcnt(5)"); [e(x) for x in later[10:15]]
            if bp == 0 and kind == 'r' and b == 0 and g == 2: e("s_waitcnt lgkmcnt(5)")
            if bp == 0 and kind == 'r' and b == 0 and g == 3:
                sync_wait(0, 4, 'a5')
                for i in range(4): e(f"ds_read_b128 {vr(A5+4*i,4)}, v4 offset:{AIMG+8192+1024*i}")
            if bp == 0 and kind == 'x': e("s_waitcnt lgkmcnt(0)")
            if kind == 'r' and g == 0 and b == 0 and bp > 0:
                e(f"s_waitcnt vmcnt({vneed(f'b{bp}')})"); k.stamp({1: 4, 2: 8, 3: 10}[bp])
            if bp == 0 and kind == 'r' and b == 0 and g == 3: k.stamp(1)

        for _ in range(opt('bps', 2)):
            if nb_next[0] < 16 and s >= opt('bs0', 0): bload(nb_next[0]); nb_next[0] += 1
        if s == 2: k.stamp(9)
        if s == opt('pf', 4) and PREF: prefetch()
        if len(m) == 2:
            n = 6 if steps[s][0] == 'x' else 5
            e(m[0]); [e(x) for x in v[:n]]; e(m[1]); [e(x) for x in v[n:]]
        elif len(m) == 4:
            e(m[0]); [e(x) for x in v[:4]]; e(m[1]); [e(x) for x in v[4:8]]; e(m[2]); [e(x) for x in v[8:12]]; e(m[3]); [e(x) for x in v[12:]]
        else:
            e("s_nop 1"); [e(x) for x in v]
    k.stamp(5)
    hi_lookup()
    e("L_hi_done:")

def finish():
    if STAMP:
        e(f"{CLK} s[{sH}:{sH+1}]\ns_waitcnt lgkmcnt(0)\ns_mov_b64 exec, 1")
        e(f"s_lshl_b32 s{sT0}, s2, 3\ns_add_u32 s{sT0}, s{sT0}, s{sJ}\ns_lshl_b32 s{sT0}, s{sT0}, 7\ns_add_u32 s{sT0}, s{sT0}, {STAMP0:#x}")
        e(f"v_mov_b32 v2, s{sT0}")
        for i in range(NST): e(f"v_mov_b32 v3, s{sST+2*i}\nglobal_store_dword v2, v3, s[{P_WS}:{P_WS+1}] offset:{4*i}")
        e(f"v_mov_b32 v3, s{sH}\nglobal_store_dword v2, v3, s[{P_WS}:{P_WS+1}] offset:{4*NST}")
        e(f"v_mov_b32 v3, {NST+1}\nglobal_store_dword v2, v3, s[{P_WS}:{P_WS+1}] offset:124")
    e("s_endpgm")

if STAMP:
    for i in range(NST): e(f"s_mov_b64 s[{sST+2*i}:{sST+2*i+1}], 0")
prologue()
route()
lo_lookup()
final()
finish()
hi()
finish()
e("L_end:\ns_endpgm")
with rare(): fallback()
hazard.check(k.L); hazard.check(k.tail)
src = HEADER + f"; @launch grid=(256,1,1) block=(512,1,1) lds={LDS_BYTES}\n"
src += f'.amdgcn_target "amdgcn-amd-amdhsa--gfx950"\n.text\n.globl {KN}\n.p2align 8\n.type {KN},@function\n{KN}:\n'
src += "\n".join(k.L) + "\n" + "\n".join(k.tail) + "\nL_code_end:\n"
src += '.section .rodata,"a"\n' + kd(KN, 256, 102)
open(sys.argv[1], "w").write(src)
print("lds", LDS_BYTES)
```

```python
import sys
from common import *
import hazard

OPT = set(sys.argv[2].split(',')) if len(sys.argv) > 2 else set()
def opt(name, d):
    for o in OPT:
        if o.startswith(name + '='): return int(o.split('=')[1])
    return d
STAMP = 'stamp' in OPT
NGLO = opt('nglo', 3)
CLK = 's_memtime' if 'cyc' in OPT else 's_memrealtime'
DL1, DL2, SL1, SL2 = opt('dl1', 0), opt('dl2', 0), opt('sl1', 0), opt('sl2', 0)
PRE = 'nopre' not in OPT

EPOCH, L0, ROW0, R0, R1 = 0x0, 0x10000, 0x400000, 0x800000, 0xC00000
STAMP0 = 0x1000000
FLG = 0x1000
TAB, CNT, BH, GP, AIMG, LIMG, WL = 0, 0x4100, 0x4500, 0x4600, 0x5000, 0x8000, 0xC000
RS = LIMG
NANW = 0x4080
ROWPF = 'rowpf' in OPT
SYNC = CNT + 1000
LIMIT = 0x4000
RLV = 0x400000
FL = 0x10000; FLS = 8192; RIM = 0x18000; NW = 0x4090; DUMP = 0x4C00
LDS_BYTES = RIM + 4 * 8192
S_IDX, S_TABL, S_W, S_LIST, S_ROW, S_RES, S_OUT = 4, 8, 12, 16, 20, 24, 28
sG = 32
P_IDX, P_TAB, P_W, P_B, P_H, P_P, P_OUT, P_WS = 36, 38, 40, 42, 44, 46, 48, 50
sJ, sRARE, sTAG, sT2, sT0, sT1, sNT, sBAD, sU, sCNT = 52, 53, 54, 55, 56, 57, 58, 59, 60, 61
sEX = 62
sRND = 3
sPOS = 36
sH = 64
sST = 80
NST = 11
LOG2E_HALF = 0x3f38aa3b
vL = 1
SC = " sc1"
KN = NAME + "_kernel"

class K:
    def __init__(s): s.L = []; s.tail = []; s.cur = s.L
    def e(s, x):
        for ln in x.split('\n'):
            ln = ln.strip()
            if ln: s.cur.append(ln if ln.endswith(':') else '    ' + ln)
    def stamp(s, i):
        if STAMP: s.e(f"{CLK} s[{sST+2*i}:{sST+2*i+1}]")
    def srd(s, d, p, n, off=0):
        if off: s.e(f"s_add_u32 s{d}, s{p}, {off:#x}\ns_addc_u32 s{d+1}, s{p+1}, 0")
        else: s.e(f"s_mov_b64 s[{d}:{d+1}], s[{p}:{p+1}]")
        s.e(f"s_mov_b32 s{d+2}, {n:#x}\ns_mov_b32 s{d+3}, 0x00020000")
k = K(); e = k.e
def vr(a, n): return f"v[{a}:{a+n-1}]"
def sr(a): return f"s[{a}:{a+3}]"
class keep:
    def __enter__(s): pass
    def __exit__(s, *a): pass
class rare:
    def __enter__(s): s.old = k.cur; k.cur = k.tail
    def __exit__(s, *a): k.cur = s.old

LOC = 8
G = 16; RM = 80; EN = 96; TQ = 112; AS = 166; AC = 182; BQ = 230; DX = 202
cA, cOFF, cBIT, cWR, cFL, cMSK = 246, 247, 248, 249, 250, 251
cR = 252
cAM, cDR, cRD, cRA = 198, 199, 200, 201
WA = 140

def prologue():
    e("s_cmp_ge_u32 s2, 256\ns_cbranch_scc1 L_end")
    k.stamp(0)
    e(f"s_load_dwordx4 s[{P_IDX}:{P_IDX+3}], s[0:1], 0")
    e(f"s_load_dwordx2 s[{P_WS}:{P_WS+1}], s[0:1], 80")
    e(f"s_load_dwordx8 s[{P_W}:{P_W+7}], s[0:1], 32")
    e(f"s_load_dwordx2 s[{P_OUT}:{P_OUT+1}], s[0:1], 64")
    e(f"v_lshrrev_b32 v2, 6, v0\nv_and_b32 v{vL}, 63, v0")
    e(f"v_readfirstlane_b32 s{sJ}, v2")
    e("v_mov_b32 v240, -1\nv_mov_b32 v241, -1\nv_mov_b32 v242, -1\nv_mov_b32 v243, -1")
    e(f"v_lshlrev_b32 v3, 4, v0\nds_write_b128 v3, v[240:243] offset:{LIMG}\nds_write_b128 v3, v[240:243] offset:{LIMG+8192}")
    e(f"s_and_b32 s{sU}, s{sJ}, 3\ns_cmp_ge_u32 s{sJ}, 4\ns_cbranch_scc1 L_hi")

def sync_add(i):
    e(f"v_mov_b32 v5, {SYNC+4*i}\nv_mov_b32 v6, 1\ns_mov_b64 exec, 1\nds_add_u32 v5, v6\ns_mov_b64 exec, -1")
def sync_wait(i, n, nm, sleep=0):
    e(f"v_mov_b32 v5, {SYNC+4*i}\nL_sync_{nm}:")
    if sleep: e(f"s_sleep {sleep}")
    e(f"ds_read_b32 v6, v5\ns_waitcnt lgkmcnt(0)\nv_cmp_gt_u32 vcc, {n}, v6\ns_cbranch_vccnz L_sync_{nm}")

def make_loc(KK, C4, full):
    e(f"v_mov_b32 v7, {RS}")
    if full: e(f"v_mov_b32 v6, {NANW}\nv_mov_b32 v4, -1\nds_write_b32 v6, v4")
    for t in range(8):
        if t == 2: e("s_mov_b32 exec_lo, 0x77777777\ns_mov_b32 exec_hi, 0x77777777")
        if full:
            e(f"v_and_b32 v4, 30, v{KK+t}\nv_lshlrev_b32 v5, 3, v{C4+t}\nv_add_lshl_u32 v4, v4, v5, 1\nv_cmp_le_u32 vcc, 48, v{KK+t}")
            e(f"v_lshrrev_b32 v5, 5, v{KK+t}\nv_lshlrev_b32 v5, 14, v5\nv_add3_u32 v4, v4, v5, v7\nv_cndmask_b32 v{LOC+t}, v4, v6, vcc")
        else:
            e(f"v_lshl_add_u32 v4, v{C4+t}, 3, v{KK+t}\nv_lshl_add_u32 v{LOC+t}, v4, 1, v7")
    e("s_mov_b64 exec, -1")

def lookup_consts():
    e(f"v_and_b32 v4, 15, v{vL}\nv_bfe_u32 v5, v{vL}, 4, 1\nv_lshrrev_b32 v{cBIT}, 5, v{vL}")
    e(f"s_mul_i32 s{sG+1}, s{sU}, {FLS}\ns_add_u32 s{sG+1}, s{sG+1}, {FL}\ns_lshl_b32 s{sG}, s{sU}, 18\ns_lshl_b32 s{sG+2}, s{sU}, 13\ns_add_u32 s{sG+2}, s{sG+2}, {RIM}")
    e(f"v_and_b32 v{cFL}, 31, v{vL}\nv_lshl_add_u32 v{cFL}, v{cFL}, 2, s{sG+1}")
    e(f"v_lshrrev_b32 v7, 4, v{vL}\nv_lshl_add_u32 v{cDR}, v7, 5, v4\nv_lshl_add_u32 v{cDR}, v{cDR}, 2, s{sG+1}")
    e(f"v_add_u32 v{cA}, -1, v{cBIT}\nv_and_b32 v{cA}, 0xffff0000, v{cA}")
    e(f"v_mul_u32_u24 v{cOFF}, 12, v{cBIT}\nv_mul_i32_i24 v{cWR}, -52, v{cBIT}\nv_mov_b32 v{cMSK}, 0x7ffffffe\nv_mov_b32 v{cAM}, 0x2003fffc")
    e(f"v_and_b32 v6, 1, v4\nv_lshlrev_b32 v6, 4, v6\nv_lshrrev_b32 v6, v6, 1.0")
    e(f"v_bfe_u32 v7, v4, 1, 1\nv_xor_b32 v7, v7, v5\nv_add_u32 v7, -1, v7\nv_and_b32 v6, v6, v7\nv_lshrrev_b32 v7, 2, v4")
    for q in range(4):
        e(f"v_xor_b32 v4, {q}, v7\nv_add_u32 v4, -1, v4\nv_ashrrev_i32 v4, 31, v4\nv_and_b32 v{AS+4*q}, v4, v6")
        for i in range(1, 4): e(f"v_mov_b32 v{AS+4*q+i}, v{AS+4*q}")
    e(f"v_mov_b32 v{BQ+7}, 0\nv_mov_b32 v{BQ+15}, 0")
    e(f"v_and_b32 v4, 3, v{vL}\nv_lshrrev_b32 v5, 2, v{vL}\nv_lshlrev_b32 v{cRD}, 10, v4\nv_lshl_add_u32 v{cRD}, v5, 2, v{cRD}\nv_add_u32 v{cRD}, s{sG+2}, v{cRD}")
    e(f"v_lshlrev_b32 v4, 4, v4\nv_lshl_add_u32 v{cRA}, v5, 14, v4")
    e(f"s_lshl_b32 s{sG+3}, s{sU}, 20\ns_lshl_b32 s{sT0}, s2, 6\ns_add_u32 s{sG+3}, s{sG+3}, s{sT0}")

def res_tags(lane_expr, cR=cR):
    e(f"s_and_b32 s{sT0}, s{sTAG}, 255\ns_xor_b32 s{sT1}, s{sTAG}, 1\ns_and_b32 s{sT1}, s{sT1}, 3\ns_lshl_b32 s{sT1}, s{sT1}, 8\ns_or_b32 s{sT0}, s{sT0}, s{sT1}")
    e(f"s_lshr_b32 s{sT1}, s{sTAG}, 8\ns_lshl_b32 s{sT1}, s{sT1}, 10\ns_or_b32 s{sT0}, s{sT0}, s{sT1}")
    e(lane_expr)
    e(f"v_lshlrev_b32 v4, 3, v4\nv_lshrrev_b32 v4, v4, s{sT0}")
    for j in range(4): e(f"v_bfe_u32 v5, v4, {2*j}, 2\nv_alignbit_b32 v{cR+j}, v5, v5, 1")

PM = opt('pm', 0)
def pre_addr():
    sh = opt('psh', 21); n = (1 << (24 - sh)) - 1
    e(f"v_and_b32 v2, {min(n,63)}, v{vL}\nv_lshlrev_b32 v2, {sh}, v2\nv_add_u32 v2, {(1<<sh)-128:#x}, v2")

def late_consts():
    lookup_consts()
    e(f"s_lshl_b32 s{sCNT}, s{sU}, 12\nv_lshrrev_b32 v4, 4, v{vL}\nv_xor_b32 v4, v4, v{vL}\nv_and_b32 v4, 3, v4\nv_and_b32 v5, 60, v{vL}\nv_or_b32 v4, v4, v5\nv_lshl_add_u32 v{WA}, v4, 4, s{sCNT}")
    e(f"v_lshrrev_b32 v4, 2, v{vL}\nv_lshl_add_u32 v5, v{vL}, 6, s{sCNT}")
    for g in range(4): e(f"v_xor_b32 v6, {g}, v4\nv_and_b32 v6, 3, v6\nv_lshl_add_u32 v{WA+1+g}, v6, 4, v5")
    e(f"v_lshl_add_u32 v4, v{vL}, 4, s{sG+1}")
    for i in range(8): e(f"ds_write_b128 v4, v[240:243] offset:{1024*i}")
    if 'lateconst' in OPT: res_tags("v_and_b32 v4, 3, v0")

def code_prefetch(nm, dst):
    e(f"s_getpc_b64 s[{sEX}:{sEX+1}]\nL_pc{nm}:\ns_sub_u32 s{sEX}, s{sEX}, L_pc{nm}-{KN}\ns_subb_u32 s{sEX+1}, s{sEX+1}, 0")
    e(f"v_and_b32 v6, 255, v0\nv_lshlrev_b32 v6, 7, v6\nv_min_u32 v6, L_code_end-{KN}-4, v6\nv_mov_b32 v7, s{sEX+1}\nv_add_co_u32 v6, vcc, s{sEX}, v6\ns_nop 1\nv_addc_co_u32 v7, vcc, 0, v7, vcc")
    e(f"global_load_dword v{dst}, v[6:7], off")

def route():
    V = 16; KK = 24; C4 = 32; RW = 40; EB = 44; T = 52
    TP = 64; TU = 72; WR = 88; WV = 104; MU = 120; PP = 128
    e("s_setprio 2")
    if 'pf0lo' in OPT: code_prefetch('b', 135)
    e(f"v_mov_b32 v4, 0\nv_lshlrev_b32 v5, 2, v0\nds_write_b32 v5, v4 offset:{CNT}\nv_and_b32 v5, 12, v5\nds_write_b32 v5, v4\nds_write_b32 v5, v4 offset:{NW}")
    e(f"v_lshrrev_b32 v{T}, 2, v0\nv_and_b32 v{T+1}, 3, v0\nv_lshlrev_b32 v{T+1}, 2, v{T+1}")
    e(f"v_mul_u32_u24 v{T+2}, 104, v{T}\ns_mul_i32 s{sT1}, s2, 6656")
    for t in range(4):
        e(f"v_add_u32 v{EB+2*t}, {t}, v{T+1}\nv_add_u32 v{T+3}, {t-13}, v{T+1}\nv_min_u32 v{EB+2*t}, v{EB+2*t}, v{T+3}")
        e(f"v_lshl_add_u32 v{T+4+t}, v{EB+2*t}, 3, v{T+2}")
    if PM == 2: pre_addr()
    e("s_waitcnt lgkmcnt(0)")
    if PM == 2: e(f"global_load_dword v129, v2, s[{P_WS}:{P_WS+1}]")
    k.srd(S_IDX, P_IDX, 16384 * 104)
    for t in range(4): e(f"buffer_load_dwordx2 {vr(V+2*t,2)}, v{T+4+t}, {sr(S_IDX)}, s{sT1} offen")
    e(f"s_load_dword s{sTAG}, s[{P_WS}:{P_WS+1}], {EPOCH:#x}")
    e(f"s_load_dwordx16 s[{sH}:{sH+15}], s[{P_H}:{P_H+1}], 0")
    e("s_barrier")
    if 'nopos' in OPT: e(f"s_mov_b32 s{sPOS}, s2")
    else: e(f"s_and_b32 s{sPOS}, s2, 6\ns_lshl_b32 s{sPOS}, s{sPOS}, 5\ns_lshr_b32 s{sT0}, s2, 3\ns_lshl_b32 s{sT0}, s{sT0}, 1\ns_or_b32 s{sPOS}, s{sPOS}, s{sT0}\ns_and_b32 s{sT0}, s2, 1\ns_or_b32 s{sPOS}, s{sPOS}, s{sT0}")
    k.srd(S_TABL, P_TAB, 64000)
    k.srd(S_W, P_W, 2048)
    e(f"v_lshrrev_b32 v130, 5, v{vL}\nv_and_b32 v131, 7, v{vL}")
    e(f"v_bfe_u32 v5, v{vL}, 3, 2\nv_lshlrev_b32 v5, 6, v5\nv_lshl_add_u32 v5, v130, 5, v5")
    e(f"v_and_b32 v6, 31, v{vL}\nv_lshlrev_b32 v7, 6, v6\nv_lshlrev_b32 v6, 1, v6\ns_lshl_b32 s{sT1}, s2, 8\ns_lshr_b32 s{sT2}, s{sU}, 1\ns_lshl_b32 s{sT0}, s{sT2}, 4\ns_add_u32 s{sT1}, s{sT1}, s{sT0}")
    e(f"buffer_load_dwordx4 {vr(TP,4)}, v5, {sr(S_TABL)}, s{sT1} offen")
    for t in range(4): e(f"buffer_load_dwordx4 {vr(WR+4*t,4)}, v7, {sr(S_W)}, 0 offen offset:{16*t}")
    e(f"global_load_short_d16_hi v{PP}, v6, s[{P_P}:{P_P+1}]")
    e(f"s_mul_i32 s{sT0}, s{sU}, 384\nv_lshlrev_b32 v132, 2, v{vL}\nv_add_u32 v132, s{sT0}, v132")
    e(f"v_mov_b32 v4, 0\nv_lshl_add_u32 v7, v6, 1, s{sT0}\nds_write_b32 v7, v4 offset:{GP+256}")
    e(f"s_and_b32 s{sT1}, s{sU}, 1\ns_lshl_b32 s{sNT}, s{sT1}, 2\nv_subrev_u32 v133, s{sNT}, v131\nv_min_u32 v133, 2, v133\nv_lshlrev_b32 v133, 7, v133\nv_lshl_add_u32 v133, v130, 6, v133")
    e(f"s_lshl_b32 s{sNT}, s{sT2}, 5\ns_add_u32 s{sT0}, s{sT0}, s{sNT}\nv_add_u32 v133, s{sT0}, v133")
    e(f"s_lshl_b32 s{sT1}, s{sT1}, 1\ns_add_u32 s{sT1}, s{sT1}, s{sT2}\ns_lshl_b32 s{sT1}, s{sT1}, 10\nv_lshlrev_b32 v134, 4, v{vL}\nv_add_u32 v134, s{sT1}, v134")
    k.srd(S_ROW, P_WS, 0x100000, ROW0)
    k.srd(S_LIST, P_WS, 250 * 16384, L0)
    k.srd(S_RES, P_WS, 0x800000, R0)
    k.srd(S_OUT, P_OUT, 32768)
    e(f"v_lshlrev_b32 v{T+3}, 8, v{T}")
    for t in range(4):
        e(f"v_add_u32 v4, 6, v{EB+2*t}\nv_lshl_or_b32 v{EB+2*t+1}, v{EB+2*t}, 4, v{T+3}")
        e(f"v_lshrrev_b32 v4, 4, v4\nv_lshl_or_b32 v{EB+2*t+1}, v4, 1, v{EB+2*t+1}\nv_or_b32 v{EB+2*t}, 1, v{EB+2*t+1}")
    for t in range(8): e(f"v_mov_b32 v{LOC+t}, 0\nv_mov_b32 v{KK+t}, 0")
    if 'lateconst' not in OPT: late_consts()
    e(f"v_mov_b32 v2, 2\nv_mov_b32 v7, 0x100010\ns_lshl_b32 s{sT0}, s2, 12")
    e(f"v_and_b32 v4, 3, v0\nv_lshlrev_b32 v{T+4}, 14, v{T}\nv_lshl_add_u32 v{T+4}, v4, 4, v{T+4}")
    e(f"v_add_u32 v{T+5}, 1, v4\nv_lshrrev_b32 v{T+5}, 2, v{T+5}\nv_sub_u32 v{T+5}, 0, v{T+5}")
    e(f"s_waitcnt lgkmcnt(0)\ns_add_u32 s{sTAG}, s{sTAG}, 1")
    if 'lateconst' not in OPT: res_tags("v_and_b32 v4, 3, v0")
    e(f"s_lshl_b32 s{sT0}, s{sPOS}, 12\ns_waitcnt vmcnt(6)")
    k.stamp(1)
    for t in range(4): e(f"v_lshl_or_b32 v{RW+t}, v{V+2*t+1}, 16, v{V+2*t}\nv_lshl_add_u32 v{RW+t}, v{RW+t}, 4, v7")
    e(f"buffer_store_dwordx4 {vr(RW,4)}, v3, {sr(S_ROW)}, s{sT0} offen{SC}")
    for t in range(8):
        if t == 2: e("s_mov_b32 exec_lo, 0x77777777\ns_mov_b32 exec_hi, 0x77777777")
        e(f"v_and_b32 v{C4+t}, -4, v{V+t}\nds_add_rtn_u32 v{KK+t}, v{C4+t}, v2 offset:{CNT}")
    e("s_mov_b64 exec, -1")
    for t in range(8): e(f"v_lshlrev_b32 v{V+t}, 2, v{V+t}\nv_and_or_b32 v{V+t}, v{V+t}, 12, v{EB+t}")
    e("s_waitcnt lgkmcnt(0)")
    for t in range(8):
        if t == 2: e("s_mov_b32 exec_lo, 0x77777777\ns_mov_b32 exec_hi, 0x77777777")
        e(f"v_min_u32 v4, 54, v{KK+t}\nv_lshl_add_u32 v4, v{C4+t}, 4, v4\nds_write_b16 v4, v{V+t} offset:{LIMG}")
    e("s_mov_b64 exec, -1")
    e(f"s_lshl_b32 s{sT0}, s{sPOS}, 6")
    k.stamp(2)
    e(f"s_waitcnt vmcnt(1)\nv_mov_b32 v6, 0\nv_cmp_gt_u32 vcc, 32, v{vL}")
    for t in range(16): e(f"v_dot2_f32_bf16 v6, v{WR+t}, s{sH+t}, v6")
    for t in range(4): e(f"v_lshlrev_b32 v{TU+2*t}, 16, v{TP+t}\nv_and_b32 v{TU+2*t+1}, 0xffff0000, v{TP+t}")
    e(f"v_mul_f32 v6, {LOG2E_HALF:#x}, v6\nv_cndmask_b32 v6, v{PP}, v6, vcc\nds_write_b32 v132, v6 offset:{GP}\ns_waitcnt lgkmcnt(0)")
    for t in range(2): e(f"ds_read_b128 {vr(WV+4*t,4)}, v133 offset:{GP+16*t}")
    e("s_waitcnt lgkmcnt(0)")
    for t in range(8): e(f"v_mul_f32 v{WV+t}, v{WV+t}, v{TU+t}")
    for t in range(4): e(f"v_cvt_pk_bf16_f32 v{MU+t}, v{WV+2*t}, v{WV+2*t+1}")
    e(f"ds_write_b128 v134, {vr(MU,4)} offset:{AIMG+8192}\nv_mov_b32 v7, s{sTAG}")
    e("s_waitcnt vmcnt(0) lgkmcnt(0)")
    sync_add(0)
    sync_wait(0, 4, 'lo')
    k.stamp(3)
    P = 64
    e(f"s_cmp_ge_u32 s{sU}, 2\ns_cbranch_scc1 L_nopub\nv_and_b32 v4, -4, v0")
    for h in range(7): e(f"ds_read_b128 {vr(P+4*h,4)}, v3 offset:{LIMG+2048*h}\nds_read_b32 v{P+32+h}, v4 offset:{CNT+128*h}")
    for h in range(8):
        e(f"s_waitcnt lgkmcnt({12 if h==0 else 14-2*h})")
        if h == 0: e(f"ds_read_b128 {vr(P+28,4)}, v3 offset:{LIMG+2048*7}\nds_read_b32 v{P+39}, v4 offset:{CNT+128*7}")
        e(f"v_bfi_b32 v{P+4*h+3}, v{T+5}, v7, v{P+4*h+3}\nv_bfi_b32 v{P+4*h+2}, v{T+5}, v{P+32+h}, v{P+4*h+2}")
        e(f"buffer_store_dwordx4 {vr(P+4*h,4)}, v{T+4}, {sr(S_LIST)}, s{sT0} offen{SC}")
        if h < 7: e(f"s_add_u32 s{sT0}, s{sT0}, 0x80000")
    e("L_nopub:")
    k.stamp(4)
    make_loc(KK, C4, False)
    e(f"v_max3_u32 v7, v{KK}, v{KK+1}, v{KK+2}\nv_max3_u32 v7, v7, v{KK+3}, v{KK+4}\nv_max3_u32 v7, v7, v{KK+5}, v{KK+6}\nv_max_u32 v7, v7, v{KK+7}")
    e(f"v_cmp_le_u32 vcc, 32, v7\ns_cbranch_vccnz L_mark\nL_mark_ret:")
    with rare():
        e("L_mark:"); make_loc(KK, C4, True); sync_add(4); e("s_branch L_mark_ret")

def decode(ns):
    for i, n in enumerate(ns): e(f"v_lshrrev_b32 v{TQ+i}, 2, v{RM+n}\nv_bfe_i32 v{TQ+4+i}, v{RM+n}, v{cBIT}, 1")
    for i, n in enumerate(ns): e(f"v_and_b32 v{TQ+i}, v{TQ+i}, v{cAM}\nv_and_b32 v{TQ+8+i}, v{TQ+4+i}, v{cWR}")
    for i, n in enumerate(ns): e(f"v_add3_u32 v{TQ+i}, v{TQ+i}, v{cOFF}, v{TQ+8+i}\nv_and_b32 v{TQ+4+i}, v{TQ+4+i}, v{cA}")
    for i, n in enumerate(ns):
        e(f"buffer_load_dwordx4 {vr(G+4*n,4)}, v{TQ+i}, {sr(S_ROW)}, s{sG} offen{SC}\nv_and_or_b32 v{RM+n}, v{RM+n}, 12, v{TQ+4+i}")
def addrs(n, buf):
    g = G + 4 * n; r = RM + n
    e(f"v_and_b32 v{g}, v{g}, v{r}")
    for t, (d, dw, hi) in enumerate([(2, 1, 0), (g + 1, 1, 1), (3, 2, 0), (g + 2, 2, 1), (4, 3, 0), (g + 3, 3, 1), (g, 0, 1)]):
        e(f"v_add_u32_sdwa v{d}, v{r}, v{g+dw} dst_sel:DWORD dst_unused:UNUSED_PAD src0_sel:WORD_0 src1_sel:WORD_{hi}")
        e(f"ds_read_b32 v{BQ+8*buf+t}, v{d}")
def mf(n, buf):
    a = AC + 4 * (n // 4); q = n & 3
    e(f"v_mfma_f32_16x16x32_bf16 {vr(a,4)}, {vr(AS+4*q,4)}, {vr(BQ+8*buf,4)}, {'0' if q==0 else vr(a,4)}")
    e(f"v_mfma_f32_16x16x32_bf16 {vr(a,4)}, {vr(AS+4*q,4)}, {vr(BQ+8*buf+4,4)}, {vr(a,4)}")
def dreads(addr):
    for q in range(4): e(f"ds_read2_b32 {vr(DX+2*q,2)}, v{addr+q//2} offset0:{128*(q%2)} offset1:{128*(q%2)+16}")
def dests():
    for q in range(8): e(f"v_lshrrev_b32 v{DX+q}, 12, v{DX+q}")
    for q in range(8): e(f"v_and_or_b32 v{DX+q}, v{DX+q}, v5, v6")
def scatter():
    for q in range(4):
        a = AC + 4 * q
        e(f"v_cvt_pk_bf16_f32 v{a}, v{a+1}, v{a}\nv_cvt_pk_bf16_f32 v{a+2}, v{a+3}, v{a+2}")
        e(f"ds_write_b32 v{DX+2*q}, v{a}\nds_write_b32 v{DX+2*q+1}, v{a+2}")
def res_stores(lvl, s0):
    T = G + 16 * lvl
    e(f"v_add_u32 v2, 64, v{cRD}\nv_add_u32 v3, 128, v{cRD}\nv_add_u32 v4, 192, v{cRD}\ns_waitcnt lgkmcnt(6)")
    for i in range(4):
        for x in range(2): e(f"ds_read2st64_b32 {vr(T+4*i+2*x,2)}, v{cRD if i==0 else 1+i} offset0:{16*lvl+2*x} offset1:{16*lvl+2*x+1}")
    for i in range(4):
        e(f"s_waitcnt lgkmcnt({6-2*i})")
        for j in range(4): e(f"v_and_or_b32 v{T+4*i+j}, v{T+4*i+j}, v{cMSK}, v{cR+j}")
        e(f"buffer_store_dwordx4 {vr(T+4*i,4)}, v{cRA}, {sr(S_RES)}, s{s0} offen{SC}")
        if i < 3: e(f"s_add_u32 s{s0}, s{s0}, 0x40000")

def lo_lookup():
    POLL = 16; NQ = 3
    e("s_cmp_ge_u32 s2, 250\ns_cbranch_scc1 L_nobucket0")
    with rare(): e("L_nobucket0:\ns_waitcnt lgkmcnt(0)\ns_branch L_nobucket")
    if 'lateconst' in OPT:
        e("s_setprio 0"); late_consts(); e("s_setprio 2")
    e(f"v_lshlrev_b32 v3, 4, v{vL}\ns_lshl_b32 s{sT0}, s2, 14\ns_add_u32 s{sT0}, s{sT0}, s{sCNT}")
    e(f"s_mov_b32 s{sNT}, 0\ns_mov_b32 s{sEX}, 0x88888888\ns_mov_b32 s{sEX+1}, 0x88888888")
    CW, CN1, CD, CP = DX + 8, DX + 9, DX + 10, DX + 11
    e(f"v_lshlrev_b32 v{CW}, 14, v{vL}\nv_mov_b32 v{CD}, {DUMP}\nv_lshl_add_u32 v{CP}, v{vL}, 2, s{sG+1}")
    for i in range(4): e(f"v_mov_b32 v{AC+12+i}, 0")
    e(f"s_mov_b32 s{sRND}, 0\ns_and_b32 s{sT1}, s{sU}, 1\ns_lshl_b32 s{sT1}, s{sT1}, 2\ns_add_u32 s{sT1}, s{sT1}, {NW}\nv_mov_b32 v2, s{sT1}")
    k.stamp(5)
    e(f"s_cmp_ge_u32 s{sU}, 2\ns_cbranch_scc1 L_poller")
    e("L_wait_lists:\ns_sleep 1\nds_read_b32 v4, v2\ns_waitcnt lgkmcnt(0)\nv_cmp_eq_u32 vcc, 0, v4\ns_cbranch_vccnz L_wait_lists")
    e(f"v_cmp_eq_u32 vcc, 1, v4\ns_cbranch_vccnz L_poll1_ok\ns_branch L_gaveup")
    e(f"L_poller:\ns_sub_u32 s{sT1}, s{sT0}, 0x2000\nv_add_u32 v7, {(-0x2000)&0xffffffff:#x}, v{WA}")
    if DL1: e(f"s_sleep {DL1}")
    e("L_poll1:")
    for h in range(8): e(f"buffer_load_dwordx4 {vr(POLL+4*h,4)}, v3, {sr(S_LIST)}, s{sT1 if h<4 else sT0} offen offset:{1024*(h%4)}{SC}")
    for h in range(8):
        e(f"s_waitcnt vmcnt({7-h})")
        if h == 0: e(f"v_xor_b32 v4, s{sTAG}, v{POLL+3}")
        else: e(f"v_xor_b32 v5, s{sTAG}, v{POLL+4*h+3}\nv_or_b32 v4, v4, v5")
        e(f"ds_write_b128 v{7 if h<4 else WA}, {vr(POLL+4*h,4)} offset:{WL+1024*(h%4)}")
    e(f"v_cmp_ne_u32 vcc, 0, v4\ns_and_b64 vcc, vcc, s[{sEX}:{sEX+1}]\nv_mov_b32 v5, 1\ns_waitcnt lgkmcnt(0)")
    e("s_cbranch_vccnz L_poll1_again\nds_write_b32 v2, v5\nL_poll1_ok:")
    with rare():
        e("L_poll1_again:")
        if SL1: e(f"s_sleep {SL1}")
        e(f"s_add_u32 s{sNT}, s{sNT}, 1\ns_cmp_lt_u32 s{sNT}, {LIMIT}\ns_cbranch_scc1 L_poll1")
        for i in range(4): e(f"v_mov_b32 v{POLL+i}, 0")
        for h in range(8): e(f"ds_write_b128 v{7 if h<4 else WA}, {vr(POLL,4)} offset:{WL+1024*(h%4)}")
        e("v_mov_b32 v5, 2\ns_waitcnt lgkmcnt(0)\nds_write_b32 v2, v5\nL_gaveup:")
        for i in range(4): e(f"v_or_b32 v{cR+i}, 0x7fc00000, v{cR+i}")
        e("s_branch L_poll1_ok")
    k.stamp(6)
    if 'loprio0' in OPT: e("s_setprio 0")
    ND = opt('nd', 3); P1 = 2 * ND; P2 = opt('p2', 10)
    e(f"ds_read_b128 {vr(EN,4)}, v{WA+1} offset:{WL}\nds_read_b128 {vr(EN+12,4)}, v{WA+4} offset:{WL}")
    for g in (1, 2): e(f"ds_read_b128 {vr(EN+4*g,4)}, v{WA+1+g} offset:{WL}")
    e("s_waitcnt lgkmcnt(3)")
    def word(j, d, w): e(f"v_or_b32_sdwa v{d}, v{w}, sext(v{EN+j//2}) dst_sel:DWORD dst_unused:UNUSED_PAD src0_sel:DWORD src1_sel:WORD_{j&1}")
    for j in range(ND):
        if j: e(f"v_add_u32 v5, {j<<20:#x}, v{CW}")
        word(j, 6 + (j & 1), 5 if j else CW); e(f"ds_write_b32 v{CP}, v{6+(j&1)} offset:{256*j}")
    for n in range(P1): e(f"ds_read_b32 v{RM+n}, v{cFL} offset:{128*n}")
    e(f"s_waitcnt lgkmcnt({P1+ND+2})\nv_lshrrev_b32 v2, 1, v{EN+14}\nv_min_u32 v2, 24, v2\nv_sub_u32 v2, v2, {ND} clamp\nv_mov_b32 v3, v2\ns_nop 1")
    scan = [f"v_add_u32_dpp v3, v3, v3 {m} row_mask:0xf bank_mask:0xf" for m in ("row_shr:1", "row_shr:2", "row_shr:4", "row_shr:8")]
    scan += ["v_add_u32_dpp v3, v3, v3 row_bcast:15 row_mask:0xa bank_mask:0xf", "v_add_u32_dpp v3, v3, v3 row_bcast:31 row_mask:0xc bank_mask:0xf"]
    e(scan[0]); e(f"s_waitcnt lgkmcnt({max(P1-4,0)})")
    n0 = len(k.L); decode(list(range(min(4, P1))))
    if P1 > 4: e("s_waitcnt lgkmcnt(0)"); decode(list(range(4, P1)))
    body = k.L[n0:]; del k.L[n0:]
    for i, x in enumerate(body):
        k.L.append(x)
        if i % 3 == 2 and len(scan) > 1: e(scan.pop(1))
    for x in scan[1:]: e("s_nop 1"); e(x)
    e(f"v_cmp_eq_u32 vcc, 0, v2\nv_readlane_b32 s{sNT}, v3, 63\nv_sub_u32 v3, v3, v2\nv_lshl_add_u32 v3, v3, 2, s{sG+1}\nv_cndmask_b32 v3, v3, v{CD}, vcc")
    e(f"v_cmp_lt_u32 vcc, {16-ND}, v2\ns_or_b32 s{sBAD}, vcc_lo, vcc_hi\ns_add_u32 s{sNT}, s{sNT}, {64*ND}\ns_waitcnt lgkmcnt(0)\ns_cbranch_vccnz L_fl23")
    e(f"v_cmp_lt_u32 vcc, {14-ND}, v2\nv_add_u32 v5, {15<<20:#x}, v{CW}\ns_cbranch_vccnz L_fl15\nv_add_u32 v5, {13<<20:#x}, v{CW}\ns_branch L_fl13")
    def put(j):
        word(j, 6 + (j & 1), 5)
        if j > ND: e(f"v_add_u32 v5, 0xfff00000, v5")
        e(f"ds_write_b32 v3, v{6+(j&1)} offset:{256*ND+4*(j-ND)}")
    with rare():
        e(f"L_fl23:\nv_add_u32 v5, {23<<20:#x}, v{CW}")
        for j in range(23, 15, -1): put(j)
        e("s_waitcnt lgkmcnt(0)\ns_branch L_fl15")
    for j in range(15, ND - 1, -1):
        if j in (15, 13): e(f"L_fl{j}:")
        put(j)
        if j == 8: e("s_waitcnt lgkmcnt(4)")
    e(f"v_add_u32 v7, 1024, v{cDR}\nv_mov_b32 v6, v{cDR}\ns_waitcnt lgkmcnt(3)")
    for n in range(P1, 16): e(f"ds_read_b32 v{RM+n}, v{cFL} offset:{128*n}")
    e("L_round:")
    e(f"s_add_u32 s{sT2}, s{sNT}, 31\ns_lshr_b32 s{sT2}, s{sT2}, 5\ns_waitcnt lgkmcnt({16-P2})")
    for x in range(P1, P2, 4): decode(list(range(x, min(x + 4, P2))))
    dreads(6)
    k.stamp(7)
    sync_wait(5, 4, 'tab', 1)
    k.stamp(8)
    e(f"v_mov_b32 v5, 0x1ffc\nv_mov_b32 v6, s{sG+2}")
    dests()
    R = 16 - P2
    for n in range(16):
        e(f"s_waitcnt vmcnt({P2+min(n,R)-1-n})"); addrs(n, n & 1)
        if n: e("s_waitcnt lgkmcnt(7)"); mf(n - 1, (n - 1) & 1)
        if n < R: decode([P2 + n])
        if 11 <= n < 15:
            e(f"s_cmp_le_u32 s{sT2}, {n+1}\ns_cbranch_scc1 L_x{n}")
            with rare() if n not in (12, 13) else keep():
                pass
    e("s_waitcnt lgkmcnt(0)"); mf(15, 1); e("s_nop 4\ns_branch L_tiles_done")
    for n in (11, 14, 12, 13):
        e(f"L_x{n}:\ns_waitcnt lgkmcnt(0)"); mf(n, n & 1); e("s_nop 4")
        if n != 13: e("s_branch L_tiles_done")
    e("L_tiles_done:")
    scatter_first = True
    for q in (0, 1, 2, 3):
        a_ = AC + 4 * q
        e(f"v_cvt_pk_bf16_f32 v{a_}, v{a_+1}, v{a_}\nv_cvt_pk_bf16_f32 v{a_+2}, v{a_+3}, v{a_+2}")
        e(f"ds_write_b32 v{DX+2*q}, v{a_}\nds_write_b32 v{DX+2*q+1}, v{a_+2}")
    e(f"s_cmp_gt_u32 s{sNT}, 512\ns_cbranch_scc1 L_more")
    with rare():
        e(f"L_more:\ns_sub_u32 s{sNT}, s{sNT}, 512\nv_add_u32 v{cFL}, 2048, v{cFL}\nv_add_u32 v{cDR}, 2048, v{cDR}\nv_add_u32 v7, 1024, v{cDR}\nv_mov_b32 v6, v{cDR}")
        e("s_waitcnt vmcnt(0) lgkmcnt(0)")
        for n in range(16):
            e(f"ds_read_b32 v{RM+n}, v{cFL} offset:{128*n}")
            if n == 7: e("s_waitcnt lgkmcnt(0)")
        e("s_waitcnt lgkmcnt(0)")
        for x in range(0, P1, 4): decode(list(range(x, min(x + 4, P1))))
        e("s_branch L_round")
    e(f"s_mov_b32 s{sT0}, s{sG+3}")
    res_stores(0, sT0)
    e(f"s_cmp_lg_u32 s{sBAD}, 0\ns_cbranch_scc1 L_res2\nL_res2_ret:")
    with rare():
        e(f"L_res2:\ns_add_u32 s{sT0}, s{sG+3}, {RLV:#x}"); res_stores(1, sT0); e("s_branch L_res2_ret")
    for j in range(4): e(f"v_and_b32 v{cR+j}, 0x80000001, v{cR+j}")
    e("L_nobucket:")
    k.stamp(9)

def pos():
    if 'nopos' in OPT: e(f"s_mov_b32 s{sPOS}, s2")
    else: e(f"s_and_b32 s{sPOS}, s2, 6\ns_lshl_b32 s{sPOS}, s{sPOS}, 5\ns_lshr_b32 s{sT0}, s2, 3\ns_lshl_b32 s{sT0}, s{sT0}, 1\ns_or_b32 s{sPOS}, s{sPOS}, s{sT0}\ns_and_b32 s{sT0}, s2, 1\ns_or_b32 s{sPOS}, s{sPOS}, s{sT0}")

def hi_lookup():
    e("s_waitcnt lgkmcnt(0)")
    sync_add(5)
    e("L_hi_final:")
    pos()
    e(f"s_add_u32 s{sTAG}, s{sTAG}, 1")
    res_tags("v_and_b32 v4, 3, v0", 96)
    final_poll()
    k.stamp(6)

def final_poll():
    cR = 96
    e(f"s_load_dword s{sTAG}, s[{P_WS}:{P_WS+1}], {EPOCH:#x}") if False else None
    T = 32; X = 48; Y = 64; CN = 80; YA = 84
    e(f"v_and_b32 v2, 255, v0\nv_lshlrev_b32 v{T}, 4, v2\nv_add_u32 v{T+1}, 0x2000, v{T}\ns_lshl_b32 s{sT0}, s{sPOS}, 14\ns_add_u32 s{sT1}, s{sT0}, 0x1000")
    e(f"v_cmp_gt_u32 vcc, 232, v2\ns_mov_b64 s[{sEX}:{sEX+1}], vcc\ns_mov_b32 s{sNT}, 0\nv_mov_b32 v{T+4}, 0")
    sync_wait(0, 8, 'res', 2)
    e(f"ds_read_b32 v6, v5 offset:16\ns_waitcnt lgkmcnt(0)\nv_readfirstlane_b32 s{sRARE}, v6")
    for h in range(4): e(f"v_mov_b32 v{YA+h}, -1")
    e(f"s_cmp_lg_u32 s{sRARE}, 0\ns_cbranch_scc1 L_rare0\nL_rare0_ret:")
    with rare():
        e(f"L_rare0:\nv_and_b32 v4, -4, v2\ns_add_u32 s{sBAD}, s{sT0}, {RLV:#x}\nv_mov_b32 v7, 0x80000000")
        for h in range(4): e(f"ds_read_b32 v{CN+h}, v4 offset:{CNT+256*h}")
        e("s_waitcnt lgkmcnt(0)")
        for h in range(4):
            e(f"v_add_u32 v{CN+h}, -33, v{CN+h}\nv_add_u32 v4, {4096*h}, v{T}\nv_and_or_b32 v{YA+h}, v{CN+h}, v7, v4\nv_ashrrev_i32 v{CN+h}, 31, v{CN+h}")
        e("s_branch L_rare0_ret")
    if DL2: e(f"s_sleep {DL2}")
    e("L_poll2:")
    e(f"s_cmp_lg_u32 s{sRARE}, 0\ns_cbranch_scc1 L_rare1\nL_rare1_ret:")
    with rare():
        e("L_rare1:")
        for h in range(4): e(f"buffer_load_dwordx4 {vr(Y+4*h,4)}, v{YA+h}, {sr(S_RES)}, s{sBAD} offen{SC}")
        e("s_branch L_rare1_ret")
    for h in range(4): e(f"buffer_load_dwordx4 {vr(X+4*h,4)}, v{T+h//2}, {sr(S_RES)}, s{sT0 if h%2==0 else sT1} offen{SC}")
    for h in range(4):
        d = T + 2 if h < 3 else T + 3
        e(f"s_waitcnt vmcnt({3-h})")
        for j in range(4):
            if j == 0 and h in (0, 3): e(f"v_xor_b32 v{d}, v{X+4*h}, v{cR}")
            else: e(f"v_bitop3_b32 v{d}, v{d}, v{X+4*h+j}, v{cR+j} bitop3:0xf6")
        e(f"ds_write_b128 v{T}, {vr(X+4*h,4)} offset:{RS+4096*h}")
    e(f"s_cmp_lg_u32 s{sRARE}, 0\ns_cbranch_scc1 L_rare2\nL_rare2_ret:")
    with rare():
        e("L_rare2:")
        for h in range(4):
            for j in range(4):
                if j == 0: e(f"v_xor_b32 v4, v{Y+4*h}, v{cR}")
                else: e(f"v_bitop3_b32 v4, v4, v{Y+4*h+j}, v{cR+j} bitop3:0xf6")
            e(f"v_bitop3_b32 v{T+2}, v{T+2}, v4, v{CN+h} bitop3:0xf4")
            e(f"ds_write_b128 v{T}, {vr(Y+4*h,4)} offset:{RS+16384+4096*h}")
        e("s_branch L_rare2_ret")
    e(f"v_and_b32 v{T+3}, 0x80000001, v{T+3}\nv_and_b32 v{T+2}, 0x80000001, v{T+2}")
    e(f"v_cmp_ne_u32 vcc, 0, v{T+3}\ns_and_b64 s[{sU}:{sU+1}], vcc, s[{sEX}:{sEX+1}]\nv_cmp_ne_u32 vcc, 0, v{T+2}\ns_or_b64 vcc, vcc, s[{sU}:{sU+1}]")
    e("s_cbranch_vccnz L_poll2_again\nL_poll2_ok:")
    with rare():
        e("L_poll2_again:")
        if SL2: e(f"s_sleep {SL2}")
        e(f"s_waitcnt lgkmcnt(0)\ns_add_u32 s{sNT}, s{sNT}, 1\ns_cmp_lt_u32 s{sNT}, {LIMIT}\ns_cbranch_scc1 L_poll2")
        sync_add(3)
        e("s_branch L_poll2_ok")
    k.stamp(10)
    e("s_waitcnt lgkmcnt(0)\ns_barrier")

def final():
    T = 32; X = 48
    sync_add(0)
    for t in range(8): e(f"v_and_b32 v{T+8+t}, 0xffff, v{LOC+t}")
    e(f"s_lshl_b32 s{sT2}, s2, 7\ns_lshl_b32 s{sBAD}, s{sJ}, 5\ns_add_u32 s{sT2}, s{sT2}, s{sBAD}")
    e(f"v_lshrrev_b32 v3, 2, v{vL}\nv_lshlrev_b32 v3, 1, v3\ns_waitcnt lgkmcnt(0)\ns_barrier")
    k.stamp(10)
    e(f"s_or_b32 s{sCNT}, s2, s{sJ}\ns_cmp_eq_u32 s{sCNT}, 0\ns_cbranch_scc1 L_epoch\nL_epoch_ret:")
    with rare():
        e(f"L_epoch:\ns_mov_b64 exec, 1\nv_mov_b32 v4, {EPOCH:#x}\nv_mov_b32 v5, s{sTAG}\nglobal_store_dword v4, v5, s[{P_WS}:{P_WS+1}]{SC}\ns_mov_b64 exec, -1\ns_branch L_epoch_ret")
    e(f"v_mov_b32 v5, {SYNC+12}\nds_read_b32 v6, v5")
    for t in range(8): e(f"ds_read_b32 v{X+t}, v{T+8+t}")
    for t in range(8):
        e(f"s_waitcnt lgkmcnt({7-t})\nv_and_b32 v{T+t}, 0x7fff0000, v{X+t}\nv_lshlrev_b32 v{X+t}, 16, v{X+t}")
        if t % 2: e(f"v_add_f32 v{T+t-1}, v{T+t-1}, v{T+t}\nv_add_f32 v{X+t-1}, v{X+t-1}, v{X+t}")
        if t % 4 == 3: e(f"v_add_f32 v{T+t-3}, v{T+t-3}, v{T+t-1}\nv_add_f32 v{X+t-3}, v{X+t-3}, v{X+t-1}")
    e(f"v_add_f32 v{T}, v{T}, v{T+4}\nv_add_f32 v{X}, v{X}, v{X+4}\ns_nop 0")
    e(f"v_add_f32_dpp v{T+1}, v{T}, v{T} quad_perm:[1,0,3,2] row_mask:0xf bank_mask:0xf")
    e(f"v_add_f32_dpp v{X+1}, v{X}, v{X} quad_perm:[1,0,3,2] row_mask:0xf bank_mask:0xf")
    e("s_nop 0")
    e(f"v_add_f32_dpp v{T}, v{T+1}, v{T+1} quad_perm:[2,3,0,1] row_mask:0xf bank_mask:0xf")
    e(f"v_add_f32_dpp v{X}, v{X+1}, v{X+1} quad_perm:[2,3,0,1] row_mask:0xf bank_mask:0xf")
    e(f"v_rcp_f32 v{T+1}, v{T}")
    e(f"v_add_u32 v{T+2}, {(-0x17800000)&0xffffffff:#x}, v{T}\nv_mul_f32 v{X}, v{X}, v{T+1}\nv_cmp_gt_u32 vcc, 0x5a000000, v{T+2}")
    e(f"v_and_b32 v{T+3}, 0x7fffffff, v{X}\ns_mov_b64 s[{sEX}:{sEX+1}], vcc\nv_cmp_gt_u32 vcc, 0x7f800000, v{T+3}\nv_cvt_pk_bf16_f32 v{X}, v{X}, v{X}")
    e(f"s_and_b64 s[{sEX}:{sEX+1}], vcc, s[{sEX}:{sEX+1}]\nv_cmp_eq_u32 vcc, 0, v6")
    e(f"s_and_b64 vcc, vcc, s[{sEX}:{sEX+1}]\ns_cmp_eq_u64 vcc, -1\ns_cbranch_scc0 {'L_fallback' if not (OPT & {'nolds','nogather'}) else 'L_fin'}")
    e("s_mov_b32 exec_lo, 0x11111111\ns_mov_b32 exec_hi, 0x11111111")
    e(f"buffer_store_short v{X}, v3, {sr(S_OUT)}, s{sT2} offen")
    e("L_fin:")

def fallback():
    e("L_fallback:")
    A0 = 16; A1 = 20; C0 = 24; C1 = 28; AH = 32; AP = 36; EI = 40; EJ = 48; PK = 56; DD = 60; HK = 68; DS = 72; W16 = 80
    N, Q, IB, M, LL, ACc, T = 100, 101, 102, 103, 104, 105, 106
    e(f"v_and_b32 v{N}, 15, v{vL}\nv_lshrrev_b32 v{Q}, 4, v{vL}")
    e(f"v_lshlrev_b32 v{T}, 9, v{Q}\nv_lshl_add_u32 v{T}, v{N}, 1, v{T}")
    for half in range(2):
        for t in range(8): e(f"buffer_load_ushort v{W16+8*half+t}, v{T}, {sr(S_W)}, 0 offen offset:{t*64+half*32}")
    e(f"v_lshlrev_b32 v{T+1}, 3, v{Q}\nv_lshlrev_b32 v{Q}, 4, v{Q}")
    e(f"global_load_dwordx2 {vr(EI,2)}, v{T+1}, s[{P_B}:{P_B+1}]\nglobal_load_dwordx2 {vr(EI+2,2)}, v{T+1}, s[{P_B}:{P_B+1}] offset:32")
    e(f"global_load_dwordx2 {vr(AH,2)}, v{T+1}, s[{P_H}:{P_H+1}]\nglobal_load_dwordx2 {vr(AH+2,2)}, v{T+1}, s[{P_H}:{P_H+1}] offset:32")
    e(f"global_load_dwordx4 {vr(AP,4)}, v{Q}, s[{P_P}:{P_P+1}]")
    e(f"s_lshl_b32 s{sU}, s2, 6\ns_lshl_b32 s{sT1}, s{sJ}, 4\ns_add_u32 s{sU}, s{sU}, s{sT1}\nv_add_u32 v{IB}, s{sU}, v{N}\nv_mul_u32_u24 v{IB}, 104, v{IB}")
    e("s_waitcnt vmcnt(0)")
    for half in range(2):
        for t in range(4): e(f"v_lshl_or_b32 v{A0+4*half+t}, v{W16+8*half+2*t+1}, 16, v{W16+8*half+2*t}")
    for i in range(4): e(f"v_lshlrev_b32 v{C0+2*i}, 16, v{EI+i}\nv_and_b32 v{C0+2*i+1}, 0xffff0000, v{EI+i}")
    e(f"v_mov_b32 v{M}, 0xff800000\nv_mov_b32 v{LL}, 0\nv_mov_b32 v{ACc}, 0")
    e(f"s_mov_b32 s{sU}, 0")
    def getrow(dst, soff):
        e(f"buffer_load_dword v{T}, v{IB}, {sr(S_IDX)}, s{soff} offen\ns_waitcnt vmcnt(0)")
        e(f"v_lshl_add_u32 v{T}, v{T}, 6, v{Q}\nbuffer_load_dwordx4 {vr(dst+4,4)}, v{T}, {sr(S_TABL)}, 0 offen\ns_waitcnt vmcnt(0)")
        for t in range(4): e(f"v_lshlrev_b32 v{dst+2*t}, 16, v{dst+4+t}\nv_and_b32 v{dst+2*t+1}, 0xffff0000, v{dst+4+t}")
    e("L_fb_i:")
    getrow(EI, sU)
    e(f"s_add_u32 s{sCNT}, s{sU}, 4")
    e("L_fb_j:")
    getrow(EJ, sCNT)
    for t in range(8): e(f"v_mul_f32 v{EJ+t}, v{EJ+t}, v{EI+t}")
    for t in range(4): e(f"v_cvt_pk_bf16_f32 v{PK+t}, v{EJ+2*t}, v{EJ+2*t+1}")
    e("s_nop 1")
    e(f"v_mfma_f32_16x16x32_bf16 {vr(DD,4)}, {vr(A0,4)}, {vr(PK,4)}, {vr(C0,4)}")
    e(f"v_mfma_f32_16x16x32_bf16 {vr(DD+4,4)}, {vr(A1,4)}, {vr(PK,4)}, {vr(C1,4)}")
    e(f"v_mfma_f32_16x16x32_bf16 {vr(DS,4)}, {vr(AP,4)}, {vr(PK,4)}, 0")
    e("s_nop 7")
    for t in range(4): e(f"v_cvt_pk_bf16_f32 v{HK+t}, v{DD+2*t}, v{DD+2*t+1}")
    for t in range(4): e(f"v_pk_max_i16 v{HK+t}, v{HK+t}, 0")
    e("s_nop 1")
    e(f"v_mfma_f32_16x16x32_bf16 {vr(DD,4)}, {vr(AH,4)}, {vr(HK,4)}, 0")
    e("s_nop 7")
    e(f"v_mul_f32 v{DD}, 0x3fb8aa3b, v{DD}\nv_max_f32 v{DD+1}, v{M}, v{DD}\nv_sub_f32 v{DD+2}, v{M}, v{DD+1}\nv_sub_f32 v{DD+3}, v{DD}, v{DD+1}")
    e(f"v_exp_f32 v{DD+2}, v{DD+2}\nv_exp_f32 v{DD+3}, v{DD+3}\nv_mov_b32 v{M}, v{DD+1}")
    e(f"v_fma_f32 v{LL}, v{LL}, v{DD+2}, v{DD+3}\nv_mul_f32 v{ACc}, v{ACc}, v{DD+2}\nv_fma_f32 v{ACc}, v{DD+3}, v{DS}, v{ACc}")
    e(f"s_add_u32 s{sCNT}, s{sCNT}, 4\ns_cmp_lt_u32 s{sCNT}, 104\ns_cbranch_scc1 L_fb_j")
    e(f"s_add_u32 s{sU}, s{sU}, 4\ns_cmp_lt_u32 s{sU}, 100\ns_cbranch_scc1 L_fb_i")
    e(f"v_rcp_f32 v{LL}, v{LL}\nv_lshlrev_b32 v{N}, 1, v{N}\nv_mul_f32 v{ACc}, v{ACc}, v{LL}\nv_cvt_pk_bf16_f32 v{ACc}, v{ACc}, v{ACc}")
    e("s_mov_b64 exec, 0xffff")
    e(f"buffer_store_short v{ACc}, v{N}, {sr(S_OUT)}, s{sT2} offen")
    e("s_branch L_fin")

B_ = 8; A_ = 72; A5 = 104; CB = 120; HQ = 184; D_ = 200; ACC = 232; INIT = 248; TW = 249

PREF = 'nopref' not in OPT
NB0 = opt('nb0', 4); NB1 = opt('nb1', 8); CL0 = opt('cl0', 5)
def flag_store(nm, n):
    sync_wait(0, 8, nm)
    e(f"s_waitcnt vmcnt(0) lgkmcnt(0)\ns_add_u32 s{sTAG}, s{sTAG}, 0x9e3779b1\ns_lshl_b32 s{sT0}, s2, 4\ns_lshl_b32 s{sT1}, s{sU}, 2\ns_add_u32 s{sT0}, s{sT0}, s{sT1}\ns_add_u32 s{sT0}, s{sT0}, {FLG:#x}")
    e(f"v_mov_b32 v6, s{sT0}\nv_mov_b32 v7, s{sTAG}\ns_mov_b64 exec, 1\nglobal_store_dword v6, v7, s[{P_WS}:{P_WS+1}]{SC}\ns_mov_b64 exec, -1")

def hi():
    WV = 120; TP = 136; TU = 144; T = 184
    e("L_hi:")
    if 'pf0' in OPT: code_prefetch('a', 253)
    e(f"v_lshrrev_b32 v252, 5, v{vL}\nv_and_b32 v4, 7, v{vL}\nv_lshlrev_b32 v4, 1, v4")
    e(f"v_lshl_add_u32 v4, v252, 10, v4")
    e(f"v_bfe_u32 v5, v{vL}, 3, 2\nv_lshlrev_b32 v5, 6, v5\nv_lshl_add_u32 v5, v252, 5, v5")
    e(f"v_and_b32 v6, 31, v{vL}\nv_lshlrev_b32 v7, 6, v6\nv_lshlrev_b32 v6, 1, v6")
    e(f"v_lshl_add_u32 v250, v252, 5, v7\nv_add_u32 v251, 4096, v250")
    e(f"s_lshl_b32 s{sT0}, s{sU}, 4\ns_lshl_b32 s{sT1}, s2, 8\ns_lshl_b32 s{sT2}, s2, 14")
    e(f"v_add_u32 v3, -4096, v3")
    pre_addr()
    e("s_waitcnt lgkmcnt(0)")
    k.srd(S_TABL, P_TAB, 64000)
    k.srd(S_W, P_W, 2048)
    vm = []
    def vmem(lab, txt): e(txt); vm.append(lab)
    def vneed(lab): return len(vm) - 1 - max(i for i, x in enumerate(vm) if x == lab)
    e(f"s_load_dword s{sTAG}, s[{P_WS}:{P_WS+1}], {EPOCH:#x}")
    e("s_cmp_ge_u32 s2, 250\ns_cbranch_scc1 L_hi_skip")
    if PRE and PM != 2:
        vmem('s', f"global_load_dword v255, v2, s[{P_WS}:{P_WS+1}]")
    if PRE and 'preout' in OPT:
        vmem('s', f"global_load_dword v254, v6, s[{P_OUT}:{P_OUT+1}]")
    if PM == 0: vm[:] = []; hold = k.L[-(1 + ('preout' in OPT)):]; del k.L[-(1 + ('preout' in OPT)):]
    vmem('s', f"buffer_load_dwordx4 {vr(TP,4)}, v5, {sr(S_TABL)}, s{sT1} offen")
    vmem('s', f"buffer_load_short_d16_hi v{WV}, v4, {sr(S_W)}, s{sT0} offen")
    vmem('s', f"global_load_short_d16_hi v{T+1}, v6, s[{P_B}:{P_B+1}]")
    vmem('s', f"global_load_short_d16_hi v{T+2}, v6, s[{P_H}:{P_H+1}]")
    if PM == 0 and PRE:
        for x in hold: vmem('s', x)
    e("s_barrier")
    vmem('s', f"buffer_load_dwordx4 {vr(TP+4,4)}, v5, {sr(S_TABL)}, s{sT1} offen offset:16")
    for t in range(1, 16): vmem('s', f"buffer_load_short_d16_hi v{WV+t}, v4, {sr(S_W)}, s{sT0} offen offset:{t*64}")
    e(f"s_lshl_b32 s{sG}, s{sU}, 14\ns_add_u32 s{sG+1}, s{sG}, 0x2000")
    def bload(n):
        b, ks = n // 2, n % 2
        vmem(f"b{b//2}", f"buffer_load_dwordx4 {vr(B_+8*b+4*ks,4)}, v{250+(b//2)%2}, {sr(S_TABL)}, s{sG if b<4 else sG+1} offen offset:{(b%2)*2048+ks*16}")
    for n in range(NB0): bload(n)
    k.srd(S_RES, P_WS, 0x800000, R0)
    k.srd(S_ROW, P_WS, 0x100000, ROW0)
    def clear(h):
        vmem('c', f"buffer_store_dwordx4 {'v[240:243]' if CL0 < 0 else 'v[252:255]'}, v3, {sr(S_RES)}, s{sT2} offen{SC}")
        if h < 3: e(f"s_add_u32 s{sT2}, s{sT2}, 0x1000")
    def prefetch():
        e(f"s_getpc_b64 s[{sEX}:{sEX+1}]\nL_pc:\ns_sub_u32 s{sEX}, s{sEX}, L_pc-{KN}\ns_subb_u32 s{sEX+1}, s{sEX+1}, 0")
        e(f"v_lshlrev_b32 v6, 3, v3\nv_min_u32 v6, L_code_end-{KN}-4, v6\nv_mov_b32 v7, s{sEX+1}\nv_add_co_u32 v6, vcc, s{sEX}, v6\ns_nop 1\nv_addc_co_u32 v7, vcc, 0, v7, vcc")
        vmem("p", "global_load_dword v253, v[6:7], off")
    with rare():
        e("L_hi_skip:\ns_barrier"); k.srd(S_RES, P_WS, 0x800000, R0); e("s_waitcnt lgkmcnt(0)\ns_branch L_hi_final")
    e(f"s_lshl_b32 s{sT0}, s{sU}, 11\nv_lshlrev_b32 v4, 4, v{vL}\nv_add_u32 v5, s{sT0}, v4\nv_cmp_gt_u32 vcc, 32, v{vL}\nv_lshlrev_b32 v7, 2, v{vL}")
    e(f"s_lshl_b32 s{sT0}, s{sU}, 12\nv_add_u32 v{TW}, s{sT0}, v4")
    if PREF and opt('pf', 4) < 0:
        e("v_mov_b32 v254, v7"); prefetch(); e(f"v_mov_b32 v7, v254\nv_cmp_gt_u32 vcc, 32, v{vL}")
    e(f"s_waitcnt vmcnt({vneed('s')})")
    k.stamp(2)

    for t in range(8): e(f"v_lshlrev_b32 v{TU+2*t}, 16, v{TP+t}\nv_and_b32 v{TU+2*t+1}, 0xffff0000, v{TP+t}")
    for t in range(16): e(f"v_mul_f32 v{WV+t}, v{WV+t}, v{TU+t}")
    for t in range(8): e(f"v_cvt_pk_bf16_f32 v{TP+t}, v{WV+2*t}, v{WV+2*t+1}")
    e(f"ds_write_b128 v5, {vr(TP,4)} offset:{AIMG}\nds_write_b128 v5, {vr(TP+4,4)} offset:{AIMG+1024}")
    e(f"v_mul_f32 v{T+2}, {LOG2E_HALF:#x}, v{T+2}\nv_cndmask_b32 v6, v{T+2}, v{T+1}, vcc\nds_write_b32 v7, v6 offset:{BH}")
    for n in range(NB0, NB1): bload(n)
    e("s_waitcnt lgkmcnt(0)")
    sync_add(1)
    sync_wait(1, 4, 'hi')
    e("v_lshlrev_b32 v5, 4, v252")
    k.stamp(3)
    for i in range(2): e(f"ds_read_b128 {vr(A_+4*i,4)}, v4 offset:{AIMG+1024*i}")
    for i in range(4): e(f"ds_read_b128 {vr(CB+4*i,4)}, v5 offset:{BH}")
    for g in range(4): e(f"ds_read_b128 {vr(HQ+4*g,4)}, v5 offset:{BH+128+32*g}")
    for g in range(1, 4): e(f"ds_read_b128 {vr(CB+16*g,4)}, v5 offset:{BH+32*g}")
    e(f"s_waitcnt vmcnt({vneed('b0')}) lgkmcnt(7)"); k.stamp(7)
    later = []
    for g in range(1, 4):
        later += [f"ds_read_b128 {vr(A_+8*g+4*i,4)}, v4 offset:{AIMG+1024*(2*g+i)}" for i in range(2)]
        later += [f"ds_read_b128 {vr(CB+16*g+4*i,4)}, v5 offset:{BH+32*g}" for i in range(1, 4)]
    steps = []
    for bp in range(4): steps += [('r', bp, g, b) for g in range(4) for b in range(2)] + [('x', bp, 0, 0)]
    NS = len(steps)
    def mms(s):
        kind, bp, g, b = steps[s]; d = D_ + 16 * (s % 2)
        if kind == 'r':
            bb = B_ + 8 * (2 * bp + b)
            return [f"v_mfma_f32_32x32x16_bf16 {vr(d,16)}, {vr(A_+8*g,4)}, {vr(bb,4)}, {vr(CB+16*g,16)}",
                    f"v_mfma_f32_32x32x16_bf16 {vr(d,16)}, {vr(A_+8*g+4,4)}, {vr(bb+4,4)}, {vr(d,16)}"]
        return [f"v_mfma_f32_32x32x16_bf16 {vr(d,16)}, {vr(A5+8*b2+4*ks,4)}, {vr(B_+8*(2*bp+b2)+4*ks,4)}, {'0' if b2+ks==0 else vr(d,16)}"
                for b2 in range(2) for ks in range(2)]
    def valu(s):
        kind, bp, g, b = steps[s]; d = D_ + 16 * (s % 2); X = ACC + 8 * (bp % 2); Y = X + 4
        if kind == 'r':
            a = X + 4 * b
            return [f"v_fma_f32 v{a+v}, v{HQ+4*g+r}, |v{d+4*v+r}|, " + (f"-v{INIT}" if g == 0 and r == 0 else f"v{a+v}") for r in range(4) for v in range(4)]
        o = [f"v_permlane32_swap_b32 v{X+v}, v{Y+v}" for v in range(4)]
        o += [f"v_add_f32 v{X+v}, v{X+v}, v{Y+v}" for v in range(4)]
        o += [f"v_add_f32 v{X+v}, v{X+v}, v{d+4*v}" for v in range(4)]
        o += [f"v_exp_f32 v{X+v}, v{X+v}" for v in range(4)]
        o += [f"v_mul_f32 v{Y+v}, v{X+v}, v{d+4*v+1}" for v in range(4)]
        o += [f"v_cvt_pk_bf16_f32 v{X+v}, v{Y+v}, v{X+v}" for v in range(4)]
        o += [f"ds_write_b128 v{TW}, {vr(X,4)} offset:{TAB+16+1024*bp}"]
        return o
    m = mms(0)
    e(m[0])
    for x in later[:5]: e(x)
    e(m[1])
    e("s_waitcnt lgkmcnt(5)")
    for x in later[5:10]: e(x)
    e(f"v_mul_f32 v{INIT}, v{HQ}, |v{CB}|")
    for g in range(4):
        for r in range(4):
            if g or r: e(f"v_fma_f32 v{INIT}, v{HQ+4*g+r}, |v{CB+16*g+r}|, v{INIT}")
    nb_next = [NB1]
    for s in range(NS):
        v = valu(s); m = mms(s + 1) if s + 1 < NS else []
        if s + 1 < NS:
            kind, bp, g, b = steps[s + 1]
            if bp == 0 and kind == 'r' and b == 0 and g == 1: e("s_waitcnt lgkmcnt(5)"); [e(x) for x in later[10:15]]
            if bp == 0 and kind == 'r' and b == 0 and g == 2: e("s_waitcnt lgkmcnt(5)")
            if bp == 0 and kind == 'r' and b == 0 and g == 3:
                sync_wait(0, 4, 'a5')
                for i in range(4): e(f"ds_read_b128 {vr(A5+4*i,4)}, v4 offset:{AIMG+8192+1024*i}")
            if bp == 0 and kind == 'x': e("s_waitcnt lgkmcnt(0)")
            if kind == 'r' and g == 0 and b == 0 and bp > 0:
                e(f"s_waitcnt vmcnt({vneed(f'b{bp}')})"); k.stamp({1: 4, 2: 8, 3: 10}[bp])
            if bp == 0 and kind == 'r' and b == 0 and g == 3: k.stamp(1)

        for _ in range(opt('bps', 2)):
            if nb_next[0] < 16 and s >= opt('bs0', 0): bload(nb_next[0]); nb_next[0] += 1
        if s == 2: k.stamp(9)
        if s == opt('pf', 4) and PREF: prefetch()
        if len(m) == 2:
            n = 6 if steps[s][0] == 'x' else 5
            e(m[0]); [e(x) for x in v[:n]]; e(m[1]); [e(x) for x in v[n:]]
        elif len(m) == 4:
            e(m[0]); [e(x) for x in v[:4]]; e(m[1]); [e(x) for x in v[4:8]]; e(m[2]); [e(x) for x in v[8:12]]; e(m[3]); [e(x) for x in v[12:]]
        else:
            e("s_nop 1"); [e(x) for x in v]
    k.stamp(5)
    hi_lookup()
    e("L_hi_done:")

def finish():
    if STAMP:
        e(f"{CLK} s[{sH}:{sH+1}]\ns_waitcnt lgkmcnt(0)\ns_mov_b64 exec, 1")
        e(f"s_lshl_b32 s{sT0}, s2, 3\ns_add_u32 s{sT0}, s{sT0}, s{sJ}\ns_lshl_b32 s{sT0}, s{sT0}, 7\ns_add_u32 s{sT0}, s{sT0}, {STAMP0:#x}")
        e(f"v_mov_b32 v2, s{sT0}")
        for i in range(NST): e(f"v_mov_b32 v3, s{sST+2*i}\nglobal_store_dword v2, v3, s[{P_WS}:{P_WS+1}] offset:{4*i}")
        e(f"v_mov_b32 v3, s{sH}\nglobal_store_dword v2, v3, s[{P_WS}:{P_WS+1}] offset:{4*NST}")
        e(f"v_mov_b32 v3, {NST+1}\nglobal_store_dword v2, v3, s[{P_WS}:{P_WS+1}] offset:124")
    e("s_endpgm")

if STAMP:
    for i in range(NST): e(f"s_mov_b64 s[{sST+2*i}:{sST+2*i+1}], 0")
prologue()
route()
lo_lookup()
final()
finish()
hi()
finish()
e("L_end:\ns_endpgm")
with rare(): fallback()
hazard.check(k.L); hazard.check(k.tail)
src = HEADER + f"; @launch grid=(256,1,1) block=(512,1,1) lds={LDS_BYTES}\n"
src += f'.amdgcn_target "amdgcn-amd-amdhsa--gfx950"\n.text\n.globl {KN}\n.p2align 8\n.type {KN},@function\n{KN}:\n'
src += "\n".join(k.L) + "\n" + "\n".join(k.tail) + "\nL_code_end:\n"
src += '.section .rodata,"a"\n' + kd(KN, 256, 102)
open(sys.argv[1], "w").write(src)
print("lds", LDS_BYTES)
```

```python
import sys
from common import *
import hazard

OPT = set(sys.argv[2].split(',')) if len(sys.argv) > 2 else set()
def opt(name, d):
    for o in OPT:
        if o.startswith(name + '='): return int(o.split('=')[1])
    return d
STAMP = 'stamp' in OPT
NGLO = opt('nglo', 3)
CLK = 's_memtime' if 'cyc' in OPT else 's_memrealtime'
DL1, DL2, SL1, SL2 = opt('dl1', 0), opt('dl2', 0), opt('sl1', 0), opt('sl2', 0)
PRE = 'nopre' not in OPT

EPOCH, L0, ROW0, R0, R1 = 0x0, 0x10000, 0x400000, 0x800000, 0xC00000
STAMP0 = 0x1000000
FLG = 0x1000
TAB, CNT, BH, GP, AIMG, LIMG, WL = 0, 0x4100, 0x4500, 0x4600, 0x5000, 0x8000, 0xC000
RS = LIMG
NANW = 0x4080
ROWPF = 'rowpf' in OPT
SYNC = CNT + 1000
LIMIT = 0x4000
RLV = 0x400000
FL = 0x10000; FLS = 8192; RIM = 0x18000; NW = 0x4090; DUMP = 0x4C00
LDS_BYTES = RIM + 4 * 8192
S_IDX, S_TABL, S_W, S_LIST, S_ROW, S_RES, S_OUT = 4, 8, 12, 16, 20, 24, 28
sG = 32
P_IDX, P_TAB, P_W, P_B, P_H, P_P, P_OUT, P_WS = 36, 38, 40, 42, 44, 46, 48, 50
sJ, sRARE, sTAG, sT2, sT0, sT1, sNT, sBAD, sU, sCNT = 52, 53, 54, 55, 56, 57, 58, 59, 60, 61
sEX = 62
sRND = 3
sPOS = 36
sH = 64
sST = 80
NST = 11
LOG2E_HALF = 0x3f38aa3b
vL = 1
SC = " sc1"
KN = NAME + "_kernel"

class K:
    def __init__(s): s.L = []; s.tail = []; s.cur = s.L
    def e(s, x):
        for ln in x.split('\n'):
            ln = ln.strip()
            if ln: s.cur.append(ln if ln.endswith(':') else '    ' + ln)
    def stamp(s, i):
        if STAMP: s.e(f"{CLK} s[{sST+2*i}:{sST+2*i+1}]")
    def srd(s, d, p, n, off=0):
        if off: s.e(f"s_add_u32 s{d}, s{p}, {off:#x}\ns_addc_u32 s{d+1}, s{p+1}, 0")
        else: s.e(f"s_mov_b64 s[{d}:{d+1}], s[{p}:{p+1}]")
        s.e(f"s_mov_b32 s{d+2}, {n:#x}\ns_mov_b32 s{d+3}, 0x00020000")
k = K(); e = k.e
def vr(a, n): return f"v[{a}:{a+n-1}]"
def sr(a): return f"s[{a}:{a+3}]"
class keep:
    def __enter__(s): pass
    def __exit__(s, *a): pass
class rare:
    def __enter__(s): s.old = k.cur; k.cur = k.tail
    def __exit__(s, *a): k.cur = s.old

LOC = 8
G = 16; RM = 80; EN = 96; TQ = 112; AS = 166; AC = 182; BQ = 230; DX = 202
cA, cOFF, cBIT, cWR, cFL, cMSK = 246, 247, 248, 249, 250, 251
cR = 252
cAM, cDR, cRD, cRA = 198, 199, 200, 201
WA = 140

def prologue():
    e("s_cmp_ge_u32 s2, 256\ns_cbranch_scc1 L_end")
    k.stamp(0)
    if 'pftop' in OPT:
        sh = opt('pfs', 6)
        e(f"s_getpc_b64 s[{sEX}:{sEX+1}]\nv_lshlrev_b32 v4, {sh}, v0\nv_min_u32 v4, L_code_end-{KN}-64, v4\nv_mov_b32 v5, s{sEX+1}\nv_add_co_u32 v4, vcc, s{sEX}, v4\ns_nop 1\nv_addc_co_u32 v5, vcc, 0, v5, vcc")
        e("global_load_dword v135, v[4:5], off")
    e(f"s_load_dwordx4 s[{P_IDX}:{P_IDX+3}], s[0:1], 0")
    e(f"s_load_dwordx2 s[{P_WS}:{P_WS+1}], s[0:1], 80")
    e(f"s_load_dwordx8 s[{P_W}:{P_W+7}], s[0:1], 32")
    e(f"s_load_dwordx2 s[{P_OUT}:{P_OUT+1}], s[0:1], 64")
    e(f"v_lshrrev_b32 v2, 6, v0\nv_and_b32 v{vL}, 63, v0")
    e(f"v_readfirstlane_b32 s{sJ}, v2")
    e("v_mov_b32 v240, -1\nv_mov_b32 v241, -1\nv_mov_b32 v242, -1\nv_mov_b32 v243, -1")
    e(f"v_lshlrev_b32 v3, 4, v0\nds_write_b128 v3, v[240:243] offset:{LIMG}\nds_write_b128 v3, v[240:243] offset:{LIMG+8192}")
    e(f"s_and_b32 s{sU}, s{sJ}, 3\ns_cmp_ge_u32 s{sJ}, 4\ns_cbranch_scc1 L_hi")

def sync_add(i):
    e(f"v_mov_b32 v5, {SYNC+4*i}\nv_mov_b32 v6, 1\ns_mov_b64 exec, 1\nds_add_u32 v5, v6\ns_mov_b64 exec, -1")
def sync_wait(i, n, nm, sleep=0):
    e(f"v_mov_b32 v5, {SYNC+4*i}\nL_sync_{nm}:")
    if sleep: e(f"s_sleep {sleep}")
    e(f"ds_read_b32 v6, v5\ns_waitcnt lgkmcnt(0)\nv_cmp_gt_u32 vcc, {n}, v6\ns_cbranch_vccnz L_sync_{nm}")

def make_loc(KK, C4, full):
    e(f"v_mov_b32 v7, {RS}")
    if full: e(f"v_mov_b32 v6, {NANW}\nv_mov_b32 v4, -1\nds_write_b32 v6, v4")
    for t in range(8):
        if t == 2: e("s_mov_b32 exec_lo, 0x77777777\ns_mov_b32 exec_hi, 0x77777777")
        if full:
            e(f"v_and_b32 v4, 30, v{KK+t}\nv_lshlrev_b32 v5, 3, v{C4+t}\nv_add_lshl_u32 v4, v4, v5, 1\nv_cmp_le_u32 vcc, 48, v{KK+t}")
            e(f"v_lshrrev_b32 v5, 5, v{KK+t}\nv_lshlrev_b32 v5, 14, v5\nv_add3_u32 v4, v4, v5, v7\nv_cndmask_b32 v{LOC+t}, v4, v6, vcc")
        else:
            e(f"v_lshl_add_u32 v4, v{C4+t}, 3, v{KK+t}\nv_lshl_add_u32 v{LOC+t}, v4, 1, v7")
    e("s_mov_b64 exec, -1")

def lookup_consts():
    e(f"v_and_b32 v4, 15, v{vL}\nv_bfe_u32 v5, v{vL}, 4, 1\nv_lshrrev_b32 v{cBIT}, 5, v{vL}")
    e(f"s_mul_i32 s{sG+1}, s{sU}, {FLS}\ns_add_u32 s{sG+1}, s{sG+1}, {FL}\ns_lshl_b32 s{sG}, s{sU}, 18\ns_lshl_b32 s{sG+2}, s{sU}, 13\ns_add_u32 s{sG+2}, s{sG+2}, {RIM}")
    e(f"v_and_b32 v{cFL}, 31, v{vL}\nv_lshl_add_u32 v{cFL}, v{cFL}, 2, s{sG+1}")
    e(f"v_lshrrev_b32 v7, 4, v{vL}\nv_lshl_add_u32 v{cDR}, v7, 5, v4\nv_lshl_add_u32 v{cDR}, v{cDR}, 2, s{sG+1}")
    e(f"v_add_u32 v{cA}, -1, v{cBIT}\nv_and_b32 v{cA}, 0xffff0000, v{cA}")
    e(f"v_mul_u32_u24 v{cOFF}, 12, v{cBIT}\nv_mul_i32_i24 v{cWR}, -52, v{cBIT}\nv_mov_b32 v{cMSK}, 0x7ffffffe\nv_mov_b32 v{cAM}, 0x2003fffc")
    e(f"v_and_b32 v6, 1, v4\nv_lshlrev_b32 v6, 4, v6\nv_lshrrev_b32 v6, v6, 1.0")
    e(f"v_bfe_u32 v7, v4, 1, 1\nv_xor_b32 v7, v7, v5\nv_add_u32 v7, -1, v7\nv_and_b32 v6, v6, v7\nv_lshrrev_b32 v7, 2, v4")
    for q in range(4):
        e(f"v_xor_b32 v4, {q}, v7\nv_add_u32 v4, -1, v4\nv_ashrrev_i32 v4, 31, v4\nv_and_b32 v{AS+4*q}, v4, v6")
        for i in range(1, 4): e(f"v_mov_b32 v{AS+4*q+i}, v{AS+4*q}")
    e(f"v_mov_b32 v{BQ+7}, 0\nv_mov_b32 v{BQ+15}, 0")
    e(f"v_and_b32 v4, 3, v{vL}\nv_lshrrev_b32 v5, 2, v{vL}\nv_lshlrev_b32 v{cRD}, 10, v4\nv_lshl_add_u32 v{cRD}, v5, 2, v{cRD}\nv_add_u32 v{cRD}, s{sG+2}, v{cRD}")
    e(f"v_lshlrev_b32 v4, 4, v4\nv_lshl_add_u32 v{cRA}, v5, 14, v4")
    e(f"s_lshl_b32 s{sG+3}, s{sU}, 20\ns_lshl_b32 s{sT0}, s2, 6\ns_add_u32 s{sG+3}, s{sG+3}, s{sT0}")

def res_tags(lane_expr, cR=cR):
    e(f"s_and_b32 s{sT0}, s{sTAG}, 255\ns_xor_b32 s{sT1}, s{sTAG}, 1\ns_and_b32 s{sT1}, s{sT1}, 3\ns_lshl_b32 s{sT1}, s{sT1}, 8\ns_or_b32 s{sT0}, s{sT0}, s{sT1}")
    e(f"s_lshr_b32 s{sT1}, s{sTAG}, 8\ns_lshl_b32 s{sT1}, s{sT1}, 10\ns_or_b32 s{sT0}, s{sT0}, s{sT1}")
    e(lane_expr)
    e(f"v_lshlrev_b32 v4, 3, v4\nv_lshrrev_b32 v4, v4, s{sT0}")
    for j in range(4): e(f"v_bfe_u32 v5, v4, {2*j}, 2\nv_alignbit_b32 v{cR+j}, v5, v5, 1")

PM = opt('pm', 0)
def pre_addr():
    sh = opt('psh', 21); n = (1 << (24 - sh)) - 1
    e(f"v_and_b32 v2, {min(n,63)}, v{vL}\nv_lshlrev_b32 v2, {sh}, v2\nv_add_u32 v2, {(1<<sh)-128:#x}, v2")

def late_consts():
    lookup_consts()
    e(f"s_lshl_b32 s{sCNT}, s{sU}, 12\nv_lshrrev_b32 v4, 4, v{vL}\nv_xor_b32 v4, v4, v{vL}\nv_and_b32 v4, 3, v4\nv_and_b32 v5, 60, v{vL}\nv_or_b32 v4, v4, v5\nv_lshl_add_u32 v{WA}, v4, 4, s{sCNT}")
    e(f"v_lshrrev_b32 v4, 2, v{vL}\nv_lshl_add_u32 v5, v{vL}, 6, s{sCNT}")
    for g in range(4): e(f"v_xor_b32 v6, {g}, v4\nv_and_b32 v6, 3, v6\nv_lshl_add_u32 v{WA+1+g}, v6, 4, v5")
    e(f"v_lshl_add_u32 v4, v{vL}, 4, s{sG+1}")
    for i in range(8): e(f"ds_write_b128 v4, v[240:243] offset:{1024*i}")
    if 'lateconst' in OPT: res_tags("v_and_b32 v4, 3, v0")

def code_prefetch(nm, dst):
    e(f"s_getpc_b64 s[{sEX}:{sEX+1}]\nL_pc{nm}:\ns_sub_u32 s{sEX}, s{sEX}, L_pc{nm}-{KN}\ns_subb_u32 s{sEX+1}, s{sEX+1}, 0")
    e(f"v_and_b32 v6, 255, v0\nv_lshlrev_b32 v6, 7, v6\nv_min_u32 v6, L_code_end-{KN}-4, v6\nv_mov_b32 v7, s{sEX+1}\nv_add_co_u32 v6, vcc, s{sEX}, v6\ns_nop 1\nv_addc_co_u32 v7, vcc, 0, v7, vcc")
    e(f"global_load_dword v{dst}, v[6:7], off")

def route():
    V = 16; KK = 24; C4 = 32; RW = 40; EB = 44; T = 52
    TP = 64; TU = 72; WR = 88; WV = 104; MU = 120; PP = 128
    e("s_setprio 2")
    if 'pf0lo' in OPT: code_prefetch('b', 135)
    e(f"v_mov_b32 v4, 0\nv_lshlrev_b32 v5, 2, v0\nds_write_b32 v5, v4 offset:{CNT}\nv_and_b32 v5, 12, v5\nds_write_b32 v5, v4\nds_write_b32 v5, v4 offset:{NW}")
    e(f"v_lshrrev_b32 v{T}, 2, v0\nv_and_b32 v{T+1}, 3, v0\nv_lshlrev_b32 v{T+1}, 2, v{T+1}")
    e(f"v_mul_u32_u24 v{T+2}, 104, v{T}\ns_mul_i32 s{sT1}, s2, 6656")
    for t in range(4):
        e(f"v_add_u32 v{EB+2*t}, {t}, v{T+1}\nv_add_u32 v{T+3}, {t-13}, v{T+1}\nv_min_u32 v{EB+2*t}, v{EB+2*t}, v{T+3}")
        e(f"v_lshl_add_u32 v{T+4+t}, v{EB+2*t}, 3, v{T+2}")
    if PM == 2: pre_addr()
    e("s_waitcnt lgkmcnt(0)")
    if PM == 2: e(f"global_load_dword v129, v2, s[{P_WS}:{P_WS+1}]")
    k.srd(S_IDX, P_IDX, 16384 * 104)
    for t in range(4): e(f"buffer_load_dwordx2 {vr(V+2*t,2)}, v{T+4+t}, {sr(S_IDX)}, s{sT1} offen")
    e(f"s_load_dword s{sTAG}, s[{P_WS}:{P_WS+1}], {EPOCH:#x}")
    e(f"s_load_dwordx16 s[{sH}:{sH+15}], s[{P_H}:{P_H+1}], 0")
    e("s_barrier")
    if 'nopos' in OPT: e(f"s_mov_b32 s{sPOS}, s2")
    else: e(f"s_and_b32 s{sPOS}, s2, 6\ns_lshl_b32 s{sPOS}, s{sPOS}, 5\ns_lshr_b32 s{sT0}, s2, 3\ns_lshl_b32 s{sT0}, s{sT0}, 1\ns_or_b32 s{sPOS}, s{sPOS}, s{sT0}\ns_and_b32 s{sT0}, s2, 1\ns_or_b32 s{sPOS}, s{sPOS}, s{sT0}")
    k.srd(S_TABL, P_TAB, 64000)
    k.srd(S_W, P_W, 2048)
    e(f"v_lshrrev_b32 v130, 5, v{vL}\nv_and_b32 v131, 7, v{vL}")
    e(f"v_bfe_u32 v5, v{vL}, 3, 2\nv_lshlrev_b32 v5, 6, v5\nv_lshl_add_u32 v5, v130, 5, v5")
    e(f"v_and_b32 v6, 31, v{vL}\nv_lshlrev_b32 v7, 6, v6\nv_lshlrev_b32 v6, 1, v6\ns_lshl_b32 s{sT1}, s2, 8\ns_lshr_b32 s{sT2}, s{sU}, 1\ns_lshl_b32 s{sT0}, s{sT2}, 4\ns_add_u32 s{sT1}, s{sT1}, s{sT0}")
    e(f"buffer_load_dwordx4 {vr(TP,4)}, v5, {sr(S_TABL)}, s{sT1} offen")
    for t in range(4): e(f"buffer_load_dwordx4 {vr(WR+4*t,4)}, v7, {sr(S_W)}, 0 offen offset:{16*t}")
    e(f"global_load_short_d16_hi v{PP}, v6, s[{P_P}:{P_P+1}]")
    e(f"s_mul_i32 s{sT0}, s{sU}, 384\nv_lshlrev_b32 v132, 2, v{vL}\nv_add_u32 v132, s{sT0}, v132")
    e(f"v_mov_b32 v4, 0\nv_lshl_add_u32 v7, v6, 1, s{sT0}\nds_write_b32 v7, v4 offset:{GP+256}")
    e(f"s_and_b32 s{sT1}, s{sU}, 1\ns_lshl_b32 s{sNT}, s{sT1}, 2\nv_subrev_u32 v133, s{sNT}, v131\nv_min_u32 v133, 2, v133\nv_lshlrev_b32 v133, 7, v133\nv_lshl_add_u32 v133, v130, 6, v133")
    e(f"s_lshl_b32 s{sNT}, s{sT2}, 5\ns_add_u32 s{sT0}, s{sT0}, s{sNT}\nv_add_u32 v133, s{sT0}, v133")
    e(f"s_lshl_b32 s{sT1}, s{sT1}, 1\ns_add_u32 s{sT1}, s{sT1}, s{sT2}\ns_lshl_b32 s{sT1}, s{sT1}, 10\nv_lshlrev_b32 v134, 4, v{vL}\nv_add_u32 v134, s{sT1}, v134")
    k.srd(S_ROW, P_WS, 0x100000, ROW0)
    k.srd(S_LIST, P_WS, 250 * 16384, L0)
    k.srd(S_RES, P_WS, 0x800000, R0)
    k.srd(S_OUT, P_OUT, 32768)
    e(f"v_lshlrev_b32 v{T+3}, 8, v{T}")
    for t in range(4):
        e(f"v_add_u32 v4, 6, v{EB+2*t}\nv_lshl_or_b32 v{EB+2*t+1}, v{EB+2*t}, 4, v{T+3}")
        e(f"v_lshrrev_b32 v4, 4, v4\nv_lshl_or_b32 v{EB+2*t+1}, v4, 1, v{EB+2*t+1}\nv_or_b32 v{EB+2*t}, 1, v{EB+2*t+1}")
    for t in range(8): e(f"v_mov_b32 v{LOC+t}, 0\nv_mov_b32 v{KK+t}, 0")
    if 'lateconst' not in OPT: late_consts()
    e(f"v_mov_b32 v2, 2\nv_mov_b32 v7, 0x100010\ns_lshl_b32 s{sT0}, s2, 12")
    e(f"v_and_b32 v4, 3, v0\nv_lshlrev_b32 v{T+4}, 14, v{T}\nv_lshl_add_u32 v{T+4}, v4, 4, v{T+4}")
    e(f"v_add_u32 v{T+5}, 1, v4\nv_lshrrev_b32 v{T+5}, 2, v{T+5}\nv_sub_u32 v{T+5}, 0, v{T+5}")
    e(f"s_waitcnt lgkmcnt(0)\ns_add_u32 s{sTAG}, s{sTAG}, 1")
    if 'lateconst' not in OPT: res_tags("v_and_b32 v4, 3, v0")
    e(f"s_lshl_b32 s{sT0}, s{sPOS}, 12\ns_waitcnt vmcnt(6)")
    k.stamp(1)
    for t in range(4): e(f"v_lshl_or_b32 v{RW+t}, v{V+2*t+1}, 16, v{V+2*t}\nv_lshl_add_u32 v{RW+t}, v{RW+t}, 4, v7")
    e(f"buffer_store_dwordx4 {vr(RW,4)}, v3, {sr(S_ROW)}, s{sT0} offen{SC}")
    for t in range(8):
        if t == 2: e("s_mov_b32 exec_lo, 0x77777777\ns_mov_b32 exec_hi, 0x77777777")
        e(f"v_and_b32 v{C4+t}, -4, v{V+t}\nds_add_rtn_u32 v{KK+t}, v{C4+t}, v2 offset:{CNT}")
    e("s_mov_b64 exec, -1")
    for t in range(8): e(f"v_lshlrev_b32 v{V+t}, 2, v{V+t}\nv_and_or_b32 v{V+t}, v{V+t}, 12, v{EB+t}")
    e("s_waitcnt lgkmcnt(0)")
    for t in range(8):
        if t == 2: e("s_mov_b32 exec_lo, 0x77777777\ns_mov_b32 exec_hi, 0x77777777")
        e(f"v_min_u32 v4, 54, v{KK+t}\nv_lshl_add_u32 v4, v{C4+t}, 4, v4\nds_write_b16 v4, v{V+t} offset:{LIMG}")
    e("s_mov_b64 exec, -1")
    e(f"s_lshl_b32 s{sT0}, s{sPOS}, 6")
    k.stamp(2)
    e(f"s_waitcnt vmcnt(1)\nv_mov_b32 v6, 0\nv_cmp_gt_u32 vcc, 32, v{vL}")
    for t in range(16): e(f"v_dot2_f32_bf16 v6, v{WR+t}, s{sH+t}, v6")
    for t in range(4): e(f"v_lshlrev_b32 v{TU+2*t}, 16, v{TP+t}\nv_and_b32 v{TU+2*t+1}, 0xffff0000, v{TP+t}")
    e(f"v_mul_f32 v6, {LOG2E_HALF:#x}, v6\nv_cndmask_b32 v6, v{PP}, v6, vcc\nds_write_b32 v132, v6 offset:{GP}\ns_waitcnt lgkmcnt(0)")
    for t in range(2): e(f"ds_read_b128 {vr(WV+4*t,4)}, v133 offset:{GP+16*t}")
    e("s_waitcnt lgkmcnt(0)")
    for t in range(8): e(f"v_mul_f32 v{WV+t}, v{WV+t}, v{TU+t}")
    for t in range(4): e(f"v_cvt_pk_bf16_f32 v{MU+t}, v{WV+2*t}, v{WV+2*t+1}")
    e(f"ds_write_b128 v134, {vr(MU,4)} offset:{AIMG+8192}\nv_mov_b32 v7, s{sTAG}")
    e("s_waitcnt vmcnt(0) lgkmcnt(0)")
    sync_add(0)
    sync_wait(0, 4, 'lo')
    k.stamp(3)
    P = 64
    e(f"s_cmp_ge_u32 s{sU}, 2\ns_cbranch_scc1 L_nopub\nv_and_b32 v4, -4, v0")
    for h in range(7): e(f"ds_read_b128 {vr(P+4*h,4)}, v3 offset:{LIMG+2048*h}\nds_read_b32 v{P+32+h}, v4 offset:{CNT+128*h}")
    for h in range(8):
        e(f"s_waitcnt lgkmcnt({12 if h==0 else 14-2*h})")
        if h == 0: e(f"ds_read_b128 {vr(P+28,4)}, v3 offset:{LIMG+2048*7}\nds_read_b32 v{P+39}, v4 offset:{CNT+128*7}")
        e(f"v_bfi_b32 v{P+4*h+3}, v{T+5}, v7, v{P+4*h+3}\nv_bfi_b32 v{P+4*h+2}, v{T+5}, v{P+32+h}, v{P+4*h+2}")
        e(f"buffer_store_dwordx4 {vr(P+4*h,4)}, v{T+4}, {sr(S_LIST)}, s{sT0} offen{SC}")
        if h < 7: e(f"s_add_u32 s{sT0}, s{sT0}, 0x80000")
    e("L_nopub:")
    k.stamp(4)
    make_loc(KK, C4, False)
    e(f"v_max3_u32 v7, v{KK}, v{KK+1}, v{KK+2}\nv_max3_u32 v7, v7, v{KK+3}, v{KK+4}\nv_max3_u32 v7, v7, v{KK+5}, v{KK+6}\nv_max_u32 v7, v7, v{KK+7}")
    e(f"v_cmp_le_u32 vcc, 32, v7\ns_cbranch_vccnz L_mark\nL_mark_ret:")
    with rare():
        e("L_mark:"); make_loc(KK, C4, True); sync_add(4); e("s_branch L_mark_ret")

def decode(ns):
    for i, n in enumerate(ns): e(f"v_lshrrev_b32 v{TQ+i}, 2, v{RM+n}\nv_bfe_i32 v{TQ+4+i}, v{RM+n}, v{cBIT}, 1")
    for i, n in enumerate(ns): e(f"v_and_b32 v{TQ+i}, v{TQ+i}, v{cAM}\nv_and_b32 v{TQ+8+i}, v{TQ+4+i}, v{cWR}")
    for i, n in enumerate(ns): e(f"v_add3_u32 v{TQ+i}, v{TQ+i}, v{cOFF}, v{TQ+8+i}\nv_and_b32 v{TQ+4+i}, v{TQ+4+i}, v{cA}")
    for i, n in enumerate(ns):
        e(f"buffer_load_dwordx4 {vr(G+4*n,4)}, v{TQ+i}, {sr(S_ROW)}, s{sG} offen{SC}\nv_and_or_b32 v{RM+n}, v{RM+n}, 12, v{TQ+4+i}")
def addrs(n, buf):
    g = G + 4 * n; r = RM + n
    e(f"v_and_b32 v{g}, v{g}, v{r}")
    for t, (d, dw, hi) in enumerate([(2, 1, 0), (g + 1, 1, 1), (3, 2, 0), (g + 2, 2, 1), (4, 3, 0), (g + 3, 3, 1), (g, 0, 1)]):
        e(f"v_add_u32_sdwa v{d}, v{r}, v{g+dw} dst_sel:DWORD dst_unused:UNUSED_PAD src0_sel:WORD_0 src1_sel:WORD_{hi}")
        e(f"ds_read_b32 v{BQ+8*buf+t}, v{d}")
def mf(n, buf):
    a = AC + 4 * (n // 4); q = n & 3
    e(f"v_mfma_f32_16x16x32_bf16 {vr(a,4)}, {vr(AS+4*q,4)}, {vr(BQ+8*buf,4)}, {'0' if q==0 else vr(a,4)}")
    e(f"v_mfma_f32_16x16x32_bf16 {vr(a,4)}, {vr(AS+4*q,4)}, {vr(BQ+8*buf+4,4)}, {vr(a,4)}")
def dreads(addr):
    for q in range(4): e(f"ds_read2_b32 {vr(DX+2*q,2)}, v{addr+q//2} offset0:{128*(q%2)} offset1:{128*(q%2)+16}")
def dests():
    for q in range(8): e(f"v_lshrrev_b32 v{DX+q}, 12, v{DX+q}")
    for q in range(8): e(f"v_and_or_b32 v{DX+q}, v{DX+q}, v5, v6")
def scatter():
    for q in range(4):
        a = AC + 4 * q
        e(f"v_cvt_pk_bf16_f32 v{a}, v{a+1}, v{a}\nv_cvt_pk_bf16_f32 v{a+2}, v{a+3}, v{a+2}")
        e(f"ds_write_b32 v{DX+2*q}, v{a}\nds_write_b32 v{DX+2*q+1}, v{a+2}")
def res_stores(lvl, s0):
    T = G + 16 * lvl
    e(f"v_add_u32 v2, 64, v{cRD}\nv_add_u32 v3, 128, v{cRD}\nv_add_u32 v4, 192, v{cRD}\ns_waitcnt lgkmcnt(6)")
    for i in range(4):
        for x in range(2): e(f"ds_read2st64_b32 {vr(T+4*i+2*x,2)}, v{cRD if i==0 else 1+i} offset0:{16*lvl+2*x} offset1:{16*lvl+2*x+1}")
    for i in range(4):
        e(f"s_waitcnt lgkmcnt({6-2*i})")
        for j in range(4): e(f"v_and_or_b32 v{T+4*i+j}, v{T+4*i+j}, v{cMSK}, v{cR+j}")
        e(f"buffer_store_dwordx4 {vr(T+4*i,4)}, v{cRA}, {sr(S_RES)}, s{s0} offen{SC}")
        if i < 3: e(f"s_add_u32 s{s0}, s{s0}, 0x40000")

def lo_lookup():
    POLL = 16; NQ = 3
    e("s_cmp_ge_u32 s2, 250\ns_cbranch_scc1 L_nobucket0")
    with rare(): e("L_nobucket0:\ns_waitcnt lgkmcnt(0)\ns_branch L_nobucket")
    if 'lateconst' in OPT:
        e("s_setprio 0"); late_consts(); e("s_setprio 2")
    e(f"v_lshlrev_b32 v3, 4, v{vL}\ns_lshl_b32 s{sT0}, s2, 14\ns_add_u32 s{sT0}, s{sT0}, s{sCNT}")
    e(f"s_mov_b32 s{sNT}, 0\ns_mov_b32 s{sEX}, 0x88888888\ns_mov_b32 s{sEX+1}, 0x88888888")
    CW, CN1, CD, CP = DX + 8, DX + 9, DX + 10, DX + 11
    e(f"v_lshlrev_b32 v{CW}, 14, v{vL}\nv_mov_b32 v{CD}, {DUMP}\nv_lshl_add_u32 v{CP}, v{vL}, 2, s{sG+1}")
    for i in range(4): e(f"v_mov_b32 v{AC+12+i}, 0")
    e(f"s_mov_b32 s{sRND}, 0\ns_and_b32 s{sT1}, s{sU}, 1\ns_lshl_b32 s{sT1}, s{sT1}, 2\ns_add_u32 s{sT1}, s{sT1}, {NW}\nv_mov_b32 v2, s{sT1}")
    k.stamp(5)
    e(f"s_cmp_ge_u32 s{sU}, 2\ns_cbranch_scc1 L_poller")
    e("L_wait_lists:\ns_sleep 1\nds_read_b32 v4, v2\ns_waitcnt lgkmcnt(0)\nv_cmp_eq_u32 vcc, 0, v4\ns_cbranch_vccnz L_wait_lists")
    e(f"v_cmp_eq_u32 vcc, 1, v4\ns_cbranch_vccnz L_poll1_ok\ns_branch L_gaveup")
    e(f"L_poller:\ns_sub_u32 s{sT1}, s{sT0}, 0x2000\nv_add_u32 v7, {(-0x2000)&0xffffffff:#x}, v{WA}")
    if DL1: e(f"s_sleep {DL1}")
    e("L_poll1:")
    for h in range(8): e(f"buffer_load_dwordx4 {vr(POLL+4*h,4)}, v3, {sr(S_LIST)}, s{sT1 if h<4 else sT0} offen offset:{1024*(h%4)}{SC}")
    for h in range(8):
        e(f"s_waitcnt vmcnt({7-h})")
        if h == 0: e(f"v_xor_b32 v4, s{sTAG}, v{POLL+3}")
        else: e(f"v_xor_b32 v5, s{sTAG}, v{POLL+4*h+3}\nv_or_b32 v4, v4, v5")
        e(f"ds_write_b128 v{7 if h<4 else WA}, {vr(POLL+4*h,4)} offset:{WL+1024*(h%4)}")
    e(f"v_cmp_ne_u32 vcc, 0, v4\ns_and_b64 vcc, vcc, s[{sEX}:{sEX+1}]\nv_mov_b32 v5, 1\ns_waitcnt lgkmcnt(0)")
    e("s_cbranch_vccnz L_poll1_again\nds_write_b32 v2, v5\nL_poll1_ok:")
    with rare():
        e("L_poll1_again:")
        if SL1: e(f"s_sleep {SL1}")
        e(f"s_add_u32 s{sNT}, s{sNT}, 1\ns_cmp_lt_u32 s{sNT}, {LIMIT}\ns_cbranch_scc1 L_poll1")
        for i in range(4): e(f"v_mov_b32 v{POLL+i}, 0")
        for h in range(8): e(f"ds_write_b128 v{7 if h<4 else WA}, {vr(POLL,4)} offset:{WL+1024*(h%4)}")
        e("v_mov_b32 v5, 2\ns_waitcnt lgkmcnt(0)\nds_write_b32 v2, v5\nL_gaveup:")
        for i in range(4): e(f"v_or_b32 v{cR+i}, 0x7fc00000, v{cR+i}")
        e("s_branch L_poll1_ok")
    k.stamp(6)
    if 'loprio0' in OPT: e("s_setprio 0")
    ND = opt('nd', 3); P1 = 2 * ND; P2 = opt('p2', 10)
    e(f"ds_read_b128 {vr(EN,4)}, v{WA+1} offset:{WL}\nds_read_b128 {vr(EN+12,4)}, v{WA+4} offset:{WL}")
    for g in (1, 2): e(f"ds_read_b128 {vr(EN+4*g,4)}, v{WA+1+g} offset:{WL}")
    e("s_waitcnt lgkmcnt(3)")
    def word(j, d, w): e(f"v_or_b32_sdwa v{d}, v{w}, sext(v{EN+j//2}) dst_sel:DWORD dst_unused:UNUSED_PAD src0_sel:DWORD src1_sel:WORD_{j&1}")
    for j in range(ND):
        if j: e(f"v_add_u32 v5, {j<<20:#x}, v{CW}")
        word(j, 6 + (j & 1), 5 if j else CW); e(f"ds_write_b32 v{CP}, v{6+(j&1)} offset:{256*j}")
    for n in range(P1): e(f"ds_read_b32 v{RM+n}, v{cFL} offset:{128*n}")
    e(f"s_waitcnt lgkmcnt({P1+ND+2})\nv_lshrrev_b32 v2, 1, v{EN+14}\nv_min_u32 v2, 24, v2\nv_sub_u32 v2, v2, {ND} clamp\nv_mov_b32 v3, v2\ns_nop 1")
    scan = [f"v_add_u32_dpp v3, v3, v3 {m} row_mask:0xf bank_mask:0xf" for m in ("row_shr:1", "row_shr:2", "row_shr:4", "row_shr:8")]
    scan += ["v_add_u32_dpp v3, v3, v3 row_bcast:15 row_mask:0xa bank_mask:0xf", "v_add_u32_dpp v3, v3, v3 row_bcast:31 row_mask:0xc bank_mask:0xf"]
    e(scan[0]); e(f"s_waitcnt lgkmcnt({max(P1-4,0)})")
    n0 = len(k.L); decode(list(range(min(4, P1))))
    if P1 > 4: e("s_waitcnt lgkmcnt(0)"); decode(list(range(4, P1)))
    body = k.L[n0:]; del k.L[n0:]
    for i, x in enumerate(body):
        k.L.append(x)
        if i % 3 == 2 and len(scan) > 1: e(scan.pop(1))
    for x in scan[1:]: e("s_nop 1"); e(x)
    e(f"v_cmp_eq_u32 vcc, 0, v2\nv_readlane_b32 s{sNT}, v3, 63\nv_sub_u32 v3, v3, v2\nv_lshl_add_u32 v3, v3, 2, s{sG+1}\nv_cndmask_b32 v3, v3, v{CD}, vcc")
    e(f"v_cmp_lt_u32 vcc, {16-ND}, v2\ns_or_b32 s{sBAD}, vcc_lo, vcc_hi\ns_add_u32 s{sNT}, s{sNT}, {64*ND}\ns_waitcnt lgkmcnt(0)\ns_cbranch_vccnz L_fl23")
    e(f"v_cmp_lt_u32 vcc, {14-ND}, v2\nv_add_u32 v5, {15<<20:#x}, v{CW}\ns_cbranch_vccnz L_fl15\nv_add_u32 v5, {13<<20:#x}, v{CW}\ns_branch L_fl13")
    def put(j):
        word(j, 6 + (j & 1), 5)
        if j > ND: e(f"v_add_u32 v5, 0xfff00000, v5")
        e(f"ds_write_b32 v3, v{6+(j&1)} offset:{256*ND+4*(j-ND)}")
    with rare():
        e(f"L_fl23:\nv_add_u32 v5, {23<<20:#x}, v{CW}")
        for j in range(23, 15, -1): put(j)
        e("s_waitcnt lgkmcnt(0)\ns_branch L_fl15")
    for j in range(15, ND - 1, -1):
        if j in (15, 13): e(f"L_fl{j}:")
        put(j)
        if j == 8: e("s_waitcnt lgkmcnt(4)")
    e(f"v_add_u32 v7, 1024, v{cDR}\nv_mov_b32 v6, v{cDR}\ns_waitcnt lgkmcnt(3)")
    for n in range(P1, 16): e(f"ds_read_b32 v{RM+n}, v{cFL} offset:{128*n}")
    e("L_round:")
    e(f"s_add_u32 s{sT2}, s{sNT}, 31\ns_lshr_b32 s{sT2}, s{sT2}, 5\ns_waitcnt lgkmcnt({16-P2})")
    for x in range(P1, P2, 4): decode(list(range(x, min(x + 4, P2))))
    dreads(6)
    k.stamp(7)
    sync_wait(5, 4, 'tab', 1)
    k.stamp(8)
    e(f"v_mov_b32 v5, 0x1ffc\nv_mov_b32 v6, s{sG+2}")
    dests()
    R = 16 - P2
    for n in range(16):
        e(f"s_waitcnt vmcnt({P2+min(n,R)-1-n})"); addrs(n, n & 1)
        if n: e("s_waitcnt lgkmcnt(7)"); mf(n - 1, (n - 1) & 1)
        if n < R: decode([P2 + n])
        if 11 <= n < 15:
            e(f"s_cmp_le_u32 s{sT2}, {n+1}\ns_cbranch_scc1 L_x{n}")
            with rare() if n not in (12, 13) else keep():
                pass
    e("s_waitcnt lgkmcnt(0)"); mf(15, 1); e("s_nop 4\ns_branch L_tiles_done")
    for n in (11, 14, 12, 13):
        e(f"L_x{n}:\ns_waitcnt lgkmcnt(0)"); mf(n, n & 1); e("s_nop 4")
        if n != 13: e("s_branch L_tiles_done")
    e("L_tiles_done:")
    scatter_first = True
    for q in (0, 1, 2, 3):
        a_ = AC + 4 * q
        e(f"v_cvt_pk_bf16_f32 v{a_}, v{a_+1}, v{a_}\nv_cvt_pk_bf16_f32 v{a_+2}, v{a_+3}, v{a_+2}")
        e(f"ds_write_b32 v{DX+2*q}, v{a_}\nds_write_b32 v{DX+2*q+1}, v{a_+2}")
    e(f"s_cmp_gt_u32 s{sNT}, 512\ns_cbranch_scc1 L_more")
    with rare():
        e(f"L_more:\ns_sub_u32 s{sNT}, s{sNT}, 512\nv_add_u32 v{cFL}, 2048, v{cFL}\nv_add_u32 v{cDR}, 2048, v{cDR}\nv_add_u32 v7, 1024, v{cDR}\nv_mov_b32 v6, v{cDR}")
        e("s_waitcnt vmcnt(0) lgkmcnt(0)")
        for n in range(16):
            e(f"ds_read_b32 v{RM+n}, v{cFL} offset:{128*n}")
            if n == 7: e("s_waitcnt lgkmcnt(0)")
        e("s_waitcnt lgkmcnt(0)")
        for x in range(0, P1, 4): decode(list(range(x, min(x + 4, P1))))
        e("s_branch L_round")
    e(f"s_mov_b32 s{sT0}, s{sG+3}")
    res_stores(0, sT0)
    e(f"s_cmp_lg_u32 s{sBAD}, 0\ns_cbranch_scc1 L_res2\nL_res2_ret:")
    with rare():
        e(f"L_res2:\ns_add_u32 s{sT0}, s{sG+3}, {RLV:#x}"); res_stores(1, sT0); e("s_branch L_res2_ret")
    for j in range(4): e(f"v_and_b32 v{cR+j}, 0x80000001, v{cR+j}")
    e("L_nobucket:")
    k.stamp(9)

def pos():
    if 'nopos' in OPT: e(f"s_mov_b32 s{sPOS}, s2")
    else: e(f"s_and_b32 s{sPOS}, s2, 6\ns_lshl_b32 s{sPOS}, s{sPOS}, 5\ns_lshr_b32 s{sT0}, s2, 3\ns_lshl_b32 s{sT0}, s{sT0}, 1\ns_or_b32 s{sPOS}, s{sPOS}, s{sT0}\ns_and_b32 s{sT0}, s2, 1\ns_or_b32 s{sPOS}, s{sPOS}, s{sT0}")

def hi_lookup():
    e("s_waitcnt lgkmcnt(0)")
    sync_add(5)
    e("L_hi_final:")
    pos()
    e(f"s_add_u32 s{sTAG}, s{sTAG}, 1")
    res_tags("v_and_b32 v4, 3, v0", 96)
    final_poll()
    k.stamp(6)

def final_poll():
    cR = 96
    e(f"s_load_dword s{sTAG}, s[{P_WS}:{P_WS+1}], {EPOCH:#x}") if False else None
    T = 32; X = 48; Y = 64; CN = 80; YA = 84
    e(f"v_and_b32 v2, 255, v0\nv_lshlrev_b32 v{T}, 4, v2\nv_add_u32 v{T+1}, 0x2000, v{T}\ns_lshl_b32 s{sT0}, s{sPOS}, 14\ns_add_u32 s{sT1}, s{sT0}, 0x1000")
    e(f"v_cmp_gt_u32 vcc, 232, v2\ns_mov_b64 s[{sEX}:{sEX+1}], vcc\ns_mov_b32 s{sNT}, 0\nv_mov_b32 v{T+4}, 0")
    sync_wait(0, 8, 'res', 2)
    e(f"ds_read_b32 v6, v5 offset:16\ns_waitcnt lgkmcnt(0)\nv_readfirstlane_b32 s{sRARE}, v6")
    for h in range(4): e(f"v_mov_b32 v{YA+h}, -1")
    e(f"s_cmp_lg_u32 s{sRARE}, 0\ns_cbranch_scc1 L_rare0\nL_rare0_ret:")
    with rare():
        e(f"L_rare0:\nv_and_b32 v4, -4, v2\ns_add_u32 s{sBAD}, s{sT0}, {RLV:#x}\nv_mov_b32 v7, 0x80000000")
        for h in range(4): e(f"ds_read_b32 v{CN+h}, v4 offset:{CNT+256*h}")
        e("s_waitcnt lgkmcnt(0)")
        for h in range(4):
            e(f"v_add_u32 v{CN+h}, -33, v{CN+h}\nv_add_u32 v4, {4096*h}, v{T}\nv_and_or_b32 v{YA+h}, v{CN+h}, v7, v4\nv_ashrrev_i32 v{CN+h}, 31, v{CN+h}")
        e("s_branch L_rare0_ret")
    if DL2: e(f"s_sleep {DL2}")
    e("L_poll2:")
    e(f"s_cmp_lg_u32 s{sRARE}, 0\ns_cbranch_scc1 L_rare1\nL_rare1_ret:")
    with rare():
        e("L_rare1:")
        for h in range(4): e(f"buffer_load_dwordx4 {vr(Y+4*h,4)}, v{YA+h}, {sr(S_RES)}, s{sBAD} offen{SC}")
        e("s_branch L_rare1_ret")
    for h in range(4): e(f"buffer_load_dwordx4 {vr(X+4*h,4)}, v{T+h//2}, {sr(S_RES)}, s{sT0 if h%2==0 else sT1} offen{SC}")
    for h in range(4):
        d = T + 2 if h < 3 else T + 3
        e(f"s_waitcnt vmcnt({3-h})")
        for j in range(4):
            if j == 0 and h in (0, 3): e(f"v_xor_b32 v{d}, v{X+4*h}, v{cR}")
            else: e(f"v_bitop3_b32 v{d}, v{d}, v{X+4*h+j}, v{cR+j} bitop3:0xf6")
        e(f"ds_write_b128 v{T}, {vr(X+4*h,4)} offset:{RS+4096*h}")
    e(f"s_cmp_lg_u32 s{sRARE}, 0\ns_cbranch_scc1 L_rare2\nL_rare2_ret:")
    with rare():
        e("L_rare2:")
        for h in range(4):
            for j in range(4):
                if j == 0: e(f"v_xor_b32 v4, v{Y+4*h}, v{cR}")
                else: e(f"v_bitop3_b32 v4, v4, v{Y+4*h+j}, v{cR+j} bitop3:0xf6")
            e(f"v_bitop3_b32 v{T+2}, v{T+2}, v4, v{CN+h} bitop3:0xf4")
            e(f"ds_write_b128 v{T}, {vr(Y+4*h,4)} offset:{RS+16384+4096*h}")
        e("s_branch L_rare2_ret")
    e(f"v_and_b32 v{T+3}, 0x80000001, v{T+3}\nv_and_b32 v{T+2}, 0x80000001, v{T+2}")
    e(f"v_cmp_ne_u32 vcc, 0, v{T+3}\ns_and_b64 s[{sU}:{sU+1}], vcc, s[{sEX}:{sEX+1}]\nv_cmp_ne_u32 vcc, 0, v{T+2}\ns_or_b64 vcc, vcc, s[{sU}:{sU+1}]")
    e("s_cbranch_vccnz L_poll2_again\nL_poll2_ok:")
    with rare():
        e("L_poll2_again:")
        if SL2: e(f"s_sleep {SL2}")
        e(f"s_waitcnt lgkmcnt(0)\ns_add_u32 s{sNT}, s{sNT}, 1\ns_cmp_lt_u32 s{sNT}, {LIMIT}\ns_cbranch_scc1 L_poll2")
        sync_add(3)
        e("s_branch L_poll2_ok")
    k.stamp(10)
    e("s_waitcnt lgkmcnt(0)\ns_barrier")

def final():
    T = 32; X = 48
    sync_add(0)
    for t in range(8): e(f"v_and_b32 v{T+8+t}, 0xffff, v{LOC+t}")
    e(f"s_lshl_b32 s{sT2}, s2, 7\ns_lshl_b32 s{sBAD}, s{sJ}, 5\ns_add_u32 s{sT2}, s{sT2}, s{sBAD}")
    e(f"v_lshrrev_b32 v3, 2, v{vL}\nv_lshlrev_b32 v3, 1, v3\ns_waitcnt lgkmcnt(0)\ns_barrier")
    k.stamp(10)
    e(f"s_or_b32 s{sCNT}, s2, s{sJ}\ns_cmp_eq_u32 s{sCNT}, 0\ns_cbranch_scc1 L_epoch\nL_epoch_ret:")
    with rare():
        e(f"L_epoch:\ns_mov_b64 exec, 1\nv_mov_b32 v4, {EPOCH:#x}\nv_mov_b32 v5, s{sTAG}\nglobal_store_dword v4, v5, s[{P_WS}:{P_WS+1}]{SC}\ns_mov_b64 exec, -1\ns_branch L_epoch_ret")
    e(f"v_mov_b32 v5, {SYNC+12}\nds_read_b32 v6, v5")
    for t in range(8): e(f"ds_read_b32 v{X+t}, v{T+8+t}")
    for t in range(8):
        e(f"s_waitcnt lgkmcnt({7-t})\nv_and_b32 v{T+t}, 0x7fff0000, v{X+t}\nv_lshlrev_b32 v{X+t}, 16, v{X+t}")
        if t % 2: e(f"v_add_f32 v{T+t-1}, v{T+t-1}, v{T+t}\nv_add_f32 v{X+t-1}, v{X+t-1}, v{X+t}")
        if t % 4 == 3: e(f"v_add_f32 v{T+t-3}, v{T+t-3}, v{T+t-1}\nv_add_f32 v{X+t-3}, v{X+t-3}, v{X+t-1}")
    e(f"v_add_f32 v{T}, v{T}, v{T+4}\nv_add_f32 v{X}, v{X}, v{X+4}\ns_nop 0")
    e(f"v_add_f32_dpp v{T+1}, v{T}, v{T} quad_perm:[1,0,3,2] row_mask:0xf bank_mask:0xf")
    e(f"v_add_f32_dpp v{X+1}, v{X}, v{X} quad_perm:[1,0,3,2] row_mask:0xf bank_mask:0xf")
    e("s_nop 0")
    e(f"v_add_f32_dpp v{T}, v{T+1}, v{T+1} quad_perm:[2,3,0,1] row_mask:0xf bank_mask:0xf")
    e(f"v_add_f32_dpp v{X}, v{X+1}, v{X+1} quad_perm:[2,3,0,1] row_mask:0xf bank_mask:0xf")
    e(f"v_rcp_f32 v{T+1}, v{T}")
    e(f"v_add_u32 v{T+2}, {(-0x17800000)&0xffffffff:#x}, v{T}\nv_mul_f32 v{X}, v{X}, v{T+1}\nv_cmp_gt_u32 vcc, 0x5a000000, v{T+2}")
    e(f"v_and_b32 v{T+3}, 0x7fffffff, v{X}\ns_mov_b64 s[{sEX}:{sEX+1}], vcc\nv_cmp_gt_u32 vcc, 0x7f800000, v{T+3}\nv_cvt_pk_bf16_f32 v{X}, v{X}, v{X}")
    e(f"s_and_b64 s[{sEX}:{sEX+1}], vcc, s[{sEX}:{sEX+1}]\nv_cmp_eq_u32 vcc, 0, v6")
    e(f"s_and_b64 vcc, vcc, s[{sEX}:{sEX+1}]\ns_cmp_eq_u64 vcc, -1\ns_cbranch_scc0 {'L_fallback' if not (OPT & {'nolds','nogather'}) else 'L_fin'}")
    e("s_mov_b32 exec_lo, 0x11111111\ns_mov_b32 exec_hi, 0x11111111")
    e(f"buffer_store_short v{X}, v3, {sr(S_OUT)}, s{sT2} offen")
    e("L_fin:")

def fallback():
    e("L_fallback:")
    A0 = 16; A1 = 20; C0 = 24; C1 = 28; AH = 32; AP = 36; EI = 40; EJ = 48; PK = 56; DD = 60; HK = 68; DS = 72; W16 = 80
    N, Q, IB, M, LL, ACc, T = 100, 101, 102, 103, 104, 105, 106
    e(f"v_and_b32 v{N}, 15, v{vL}\nv_lshrrev_b32 v{Q}, 4, v{vL}")
    e(f"v_lshlrev_b32 v{T}, 9, v{Q}\nv_lshl_add_u32 v{T}, v{N}, 1, v{T}")
    for half in range(2):
        for t in range(8): e(f"buffer_load_ushort v{W16+8*half+t}, v{T}, {sr(S_W)}, 0 offen offset:{t*64+half*32}")
    e(f"v_lshlrev_b32 v{T+1}, 3, v{Q}\nv_lshlrev_b32 v{Q}, 4, v{Q}")
    e(f"global_load_dwordx2 {vr(EI,2)}, v{T+1}, s[{P_B}:{P_B+1}]\nglobal_load_dwordx2 {vr(EI+2,2)}, v{T+1}, s[{P_B}:{P_B+1}] offset:32")
    e(f"global_load_dwordx2 {vr(AH,2)}, v{T+1}, s[{P_H}:{P_H+1}]\nglobal_load_dwordx2 {vr(AH+2,2)}, v{T+1}, s[{P_H}:{P_H+1}] offset:32")
    e(f"global_load_dwordx4 {vr(AP,4)}, v{Q}, s[{P_P}:{P_P+1}]")
    e(f"s_lshl_b32 s{sU}, s2, 6\ns_lshl_b32 s{sT1}, s{sJ}, 4\ns_add_u32 s{sU}, s{sU}, s{sT1}\nv_add_u32 v{IB}, s{sU}, v{N}\nv_mul_u32_u24 v{IB}, 104, v{IB}")
    e("s_waitcnt vmcnt(0)")
    for half in range(2):
        for t in range(4): e(f"v_lshl_or_b32 v{A0+4*half+t}, v{W16+8*half+2*t+1}, 16, v{W16+8*half+2*t}")
    for i in range(4): e(f"v_lshlrev_b32 v{C0+2*i}, 16, v{EI+i}\nv_and_b32 v{C0+2*i+1}, 0xffff0000, v{EI+i}")
    e(f"v_mov_b32 v{M}, 0xff800000\nv_mov_b32 v{LL}, 0\nv_mov_b32 v{ACc}, 0")
    e(f"s_mov_b32 s{sU}, 0")
    def getrow(dst, soff):
        e(f"buffer_load_dword v{T}, v{IB}, {sr(S_IDX)}, s{soff} offen\ns_waitcnt vmcnt(0)")
        e(f"v_lshl_add_u32 v{T}, v{T}, 6, v{Q}\nbuffer_load_dwordx4 {vr(dst+4,4)}, v{T}, {sr(S_TABL)}, 0 offen\ns_waitcnt vmcnt(0)")
        for t in range(4): e(f"v_lshlrev_b32 v{dst+2*t}, 16, v{dst+4+t}\nv_and_b32 v{dst+2*t+1}, 0xffff0000, v{dst+4+t}")
    e("L_fb_i:")
    getrow(EI, sU)
    e(f"s_add_u32 s{sCNT}, s{sU}, 4")
    e("L_fb_j:")
    getrow(EJ, sCNT)
    for t in range(8): e(f"v_mul_f32 v{EJ+t}, v{EJ+t}, v{EI+t}")
    for t in range(4): e(f"v_cvt_pk_bf16_f32 v{PK+t}, v{EJ+2*t}, v{EJ+2*t+1}")
    e("s_nop 1")
    e(f"v_mfma_f32_16x16x32_bf16 {vr(DD,4)}, {vr(A0,4)}, {vr(PK,4)}, {vr(C0,4)}")
    e(f"v_mfma_f32_16x16x32_bf16 {vr(DD+4,4)}, {vr(A1,4)}, {vr(PK,4)}, {vr(C1,4)}")
    e(f"v_mfma_f32_16x16x32_bf16 {vr(DS,4)}, {vr(AP,4)}, {vr(PK,4)}, 0")
    e("s_nop 7")
    for t in range(4): e(f"v_cvt_pk_bf16_f32 v{HK+t}, v{DD+2*t}, v{DD+2*t+1}")
    for t in range(4): e(f"v_pk_max_i16 v{HK+t}, v{HK+t}, 0")
    e("s_nop 1")
    e(f"v_mfma_f32_16x16x32_bf16 {vr(DD,4)}, {vr(AH,4)}, {vr(HK,4)}, 0")
    e("s_nop 7")
    e(f"v_mul_f32 v{DD}, 0x3fb8aa3b, v{DD}\nv_max_f32 v{DD+1}, v{M}, v{DD}\nv_sub_f32 v{DD+2}, v{M}, v{DD+1}\nv_sub_f32 v{DD+3}, v{DD}, v{DD+1}")
    e(f"v_exp_f32 v{DD+2}, v{DD+2}\nv_exp_f32 v{DD+3}, v{DD+3}\nv_mov_b32 v{M}, v{DD+1}")
    e(f"v_fma_f32 v{LL}, v{LL}, v{DD+2}, v{DD+3}\nv_mul_f32 v{ACc}, v{ACc}, v{DD+2}\nv_fma_f32 v{ACc}, v{DD+3}, v{DS}, v{ACc}")
    e(f"s_add_u32 s{sCNT}, s{sCNT}, 4\ns_cmp_lt_u32 s{sCNT}, 104\ns_cbranch_scc1 L_fb_j")
    e(f"s_add_u32 s{sU}, s{sU}, 4\ns_cmp_lt_u32 s{sU}, 100\ns_cbranch_scc1 L_fb_i")
    e(f"v_rcp_f32 v{LL}, v{LL}\nv_lshlrev_b32 v{N}, 1, v{N}\nv_mul_f32 v{ACc}, v{ACc}, v{LL}\nv_cvt_pk_bf16_f32 v{ACc}, v{ACc}, v{ACc}")
    e("s_mov_b64 exec, 0xffff")
    e(f"buffer_store_short v{ACc}, v{N}, {sr(S_OUT)}, s{sT2} offen")
    e("s_branch L_fin")

B_ = 8; A_ = 72; A5 = 104; CB = 120; HQ = 184; D_ = 200; ACC = 232; INIT = 248; TW = 249

PREF = 'nopref' not in OPT
NB0 = opt('nb0', 4); NB1 = opt('nb1', 8); CL0 = opt('cl0', 5)
def flag_store(nm, n):
    sync_wait(0, 8, nm)
    e(f"s_waitcnt vmcnt(0) lgkmcnt(0)\ns_add_u32 s{sTAG}, s{sTAG}, 0x9e3779b1\ns_lshl_b32 s{sT0}, s2, 4\ns_lshl_b32 s{sT1}, s{sU}, 2\ns_add_u32 s{sT0}, s{sT0}, s{sT1}\ns_add_u32 s{sT0}, s{sT0}, {FLG:#x}")
    e(f"v_mov_b32 v6, s{sT0}\nv_mov_b32 v7, s{sTAG}\ns_mov_b64 exec, 1\nglobal_store_dword v6, v7, s[{P_WS}:{P_WS+1}]{SC}\ns_mov_b64 exec, -1")

def hi():
    WV = 120; TP = 136; TU = 144; T = 184
    e("L_hi:")
    if 'pf0' in OPT: code_prefetch('a', 253)
    e(f"v_lshrrev_b32 v252, 5, v{vL}\nv_and_b32 v4, 7, v{vL}\nv_lshlrev_b32 v4, 1, v4")
    e(f"v_lshl_add_u32 v4, v252, 10, v4")
    e(f"v_bfe_u32 v5, v{vL}, 3, 2\nv_lshlrev_b32 v5, 6, v5\nv_lshl_add_u32 v5, v252, 5, v5")
    e(f"v_and_b32 v6, 31, v{vL}\nv_lshlrev_b32 v7, 6, v6\nv_lshlrev_b32 v6, 1, v6")
    e(f"v_lshl_add_u32 v250, v252, 5, v7\nv_add_u32 v251, 4096, v250")
    e(f"s_lshl_b32 s{sT0}, s{sU}, 4\ns_lshl_b32 s{sT1}, s2, 8\ns_lshl_b32 s{sT2}, s2, 14")
    e(f"v_add_u32 v3, -4096, v3")
    pre_addr()
    e("s_waitcnt lgkmcnt(0)")
    k.srd(S_TABL, P_TAB, 64000)
    k.srd(S_W, P_W, 2048)
    vm = []
    def vmem(lab, txt): e(txt); vm.append(lab)
    def vneed(lab): return len(vm) - 1 - max(i for i, x in enumerate(vm) if x == lab)
    e(f"s_load_dword s{sTAG}, s[{P_WS}:{P_WS+1}], {EPOCH:#x}")
    e("s_cmp_ge_u32 s2, 250\ns_cbranch_scc1 L_hi_skip")
    if PRE and PM != 2:
        vmem('s', f"global_load_dword v255, v2, s[{P_WS}:{P_WS+1}]")
    if PRE and 'preout' in OPT:
        vmem('s', f"global_load_dword v254, v6, s[{P_OUT}:{P_OUT+1}]")
    if PM == 0: vm[:] = []; hold = k.L[-(1 + ('preout' in OPT)):]; del k.L[-(1 + ('preout' in OPT)):]
    vmem('s', f"buffer_load_dwordx4 {vr(TP,4)}, v5, {sr(S_TABL)}, s{sT1} offen")
    vmem('s', f"buffer_load_short_d16_hi v{WV}, v4, {sr(S_W)}, s{sT0} offen")
    vmem('s', f"global_load_short_d16_hi v{T+1}, v6, s[{P_B}:{P_B+1}]")
    vmem('s', f"global_load_short_d16_hi v{T+2}, v6, s[{P_H}:{P_H+1}]")
    if PM == 0 and PRE:
        for x in hold: vmem('s', x)
    e("s_barrier")
    vmem('s', f"buffer_load_dwordx4 {vr(TP+4,4)}, v5, {sr(S_TABL)}, s{sT1} offen offset:16")
    for t in range(1, 16): vmem('s', f"buffer_load_short_d16_hi v{WV+t}, v4, {sr(S_W)}, s{sT0} offen offset:{t*64}")
    e(f"s_lshl_b32 s{sG}, s{sU}, 14\ns_add_u32 s{sG+1}, s{sG}, 0x2000")
    def bload(n):
        b, ks = n // 2, n % 2
        vmem(f"b{b//2}", f"buffer_load_dwordx4 {vr(B_+8*b+4*ks,4)}, v{250+(b//2)%2}, {sr(S_TABL)}, s{sG if b<4 else sG+1} offen offset:{(b%2)*2048+ks*16}")
    for n in range(NB0): bload(n)
    k.srd(S_RES, P_WS, 0x800000, R0)
    k.srd(S_ROW, P_WS, 0x100000, ROW0)
    def clear(h):
        vmem('c', f"buffer_store_dwordx4 {'v[240:243]' if CL0 < 0 else 'v[252:255]'}, v3, {sr(S_RES)}, s{sT2} offen{SC}")
        if h < 3: e(f"s_add_u32 s{sT2}, s{sT2}, 0x1000")
    def prefetch():
        e(f"s_getpc_b64 s[{sEX}:{sEX+1}]\nL_pc:\ns_sub_u32 s{sEX}, s{sEX}, L_pc-{KN}\ns_subb_u32 s{sEX+1}, s{sEX+1}, 0")
        e(f"v_lshlrev_b32 v6, 3, v3\nv_min_u32 v6, L_code_end-{KN}-4, v6\nv_mov_b32 v7, s{sEX+1}\nv_add_co_u32 v6, vcc, s{sEX}, v6\ns_nop 1\nv_addc_co_u32 v7, vcc, 0, v7, vcc")
        vmem("p", "global_load_dword v253, v[6:7], off")
    with rare():
        e("L_hi_skip:\ns_barrier"); k.srd(S_RES, P_WS, 0x800000, R0); e("s_waitcnt lgkmcnt(0)\ns_branch L_hi_final")
    e(f"s_lshl_b32 s{sT0}, s{sU}, 11\nv_lshlrev_b32 v4, 4, v{vL}\nv_add_u32 v5, s{sT0}, v4\nv_cmp_gt_u32 vcc, 32, v{vL}\nv_lshlrev_b32 v7, 2, v{vL}")
    e(f"s_lshl_b32 s{sT0}, s{sU}, 12\nv_add_u32 v{TW}, s{sT0}, v4")
    if PREF and opt('pf', 4) < 0:
        e("v_mov_b32 v254, v7"); prefetch(); e(f"v_mov_b32 v7, v254\nv_cmp_gt_u32 vcc, 32, v{vL}")
    e(f"s_waitcnt vmcnt({vneed('s')})")
    k.stamp(2)

    for t in range(8): e(f"v_lshlrev_b32 v{TU+2*t}, 16, v{TP+t}\nv_and_b32 v{TU+2*t+1}, 0xffff0000, v{TP+t}")
    for t in range(16): e(f"v_mul_f32 v{WV+t}, v{WV+t}, v{TU+t}")
    for t in range(8): e(f"v_cvt_pk_bf16_f32 v{TP+t}, v{WV+2*t}, v{WV+2*t+1}")
    e(f"ds_write_b128 v5, {vr(TP,4)} offset:{AIMG}\nds_write_b128 v5, {vr(TP+4,4)} offset:{AIMG+1024}")
    e(f"v_mul_f32 v{T+2}, {LOG2E_HALF:#x}, v{T+2}\nv_cndmask_b32 v6, v{T+2}, v{T+1}, vcc\nds_write_b32 v7, v6 offset:{BH}")
    for n in range(NB0, NB1): bload(n)
    e("s_waitcnt lgkmcnt(0)")
    sync_add(1)
    sync_wait(1, 4, 'hi')
    e("v_lshlrev_b32 v5, 4, v252")
    k.stamp(3)
    for i in range(2): e(f"ds_read_b128 {vr(A_+4*i,4)}, v4 offset:{AIMG+1024*i}")
    for i in range(4): e(f"ds_read_b128 {vr(CB+4*i,4)}, v5 offset:{BH}")
    for g in range(4): e(f"ds_read_b128 {vr(HQ+4*g,4)}, v5 offset:{BH+128+32*g}")
    for g in range(1, 4): e(f"ds_read_b128 {vr(CB+16*g,4)}, v5 offset:{BH+32*g}")
    e(f"s_waitcnt vmcnt({vneed('b0')}) lgkmcnt(7)"); k.stamp(7)
    later = []
    for g in range(1, 4):
        later += [f"ds_read_b128 {vr(A_+8*g+4*i,4)}, v4 offset:{AIMG+1024*(2*g+i)}" for i in range(2)]
        later += [f"ds_read_b128 {vr(CB+16*g+4*i,4)}, v5 offset:{BH+32*g}" for i in range(1, 4)]
    steps = []
    for bp in range(4): steps += [('r', bp, g, b) for g in range(4) for b in range(2)] + [('x', bp, 0, 0)]
    NS = len(steps)
    def mms(s):
        kind, bp, g, b = steps[s]; d = D_ + 16 * (s % 2)
        if kind == 'r':
            bb = B_ + 8 * (2 * bp + b)
            return [f"v_mfma_f32_32x32x16_bf16 {vr(d,16)}, {vr(A_+8*g,4)}, {vr(bb,4)}, {vr(CB+16*g,16)}",
                    f"v_mfma_f32_32x32x16_bf16 {vr(d,16)}, {vr(A_+8*g+4,4)}, {vr(bb+4,4)}, {vr(d,16)}"]
        return [f"v_mfma_f32_32x32x16_bf16 {vr(d,16)}, {vr(A5+8*b2+4*ks,4)}, {vr(B_+8*(2*bp+b2)+4*ks,4)}, {'0' if b2+ks==0 else vr(d,16)}"
                for b2 in range(2) for ks in range(2)]
    def valu(s):
        kind, bp, g, b = steps[s]; d = D_ + 16 * (s % 2); X = ACC + 8 * (bp % 2); Y = X + 4
        if kind == 'r':
            a = X + 4 * b
            return [f"v_fma_f32 v{a+v}, v{HQ+4*g+r}, |v{d+4*v+r}|, " + (f"-v{INIT}" if g == 0 and r == 0 else f"v{a+v}") for r in range(4) for v in range(4)]
        o = [f"v_permlane32_swap_b32 v{X+v}, v{Y+v}" for v in range(4)]
        o += [f"v_add_f32 v{X+v}, v{X+v}, v{Y+v}" for v in range(4)]
        o += [f"v_add_f32 v{X+v}, v{X+v}, v{d+4*v}" for v in range(4)]
        o += [f"v_exp_f32 v{X+v}, v{X+v}" for v in range(4)]
        o += [f"v_mul_f32 v{Y+v}, v{X+v}, v{d+4*v+1}" for v in range(4)]
        o += [f"v_cvt_pk_bf16_f32 v{X+v}, v{Y+v}, v{X+v}" for v in range(4)]
        o += [f"ds_write_b128 v{TW}, {vr(X,4)} offset:{TAB+16+1024*bp}"]
        return o
    m = mms(0)
    e(m[0])
    for x in later[:5]: e(x)
    e(m[1])
    e("s_waitcnt lgkmcnt(5)")
    for x in later[5:10]: e(x)
    e(f"v_mul_f32 v{INIT}, v{HQ}, |v{CB}|")
    for g in range(4):
        for r in range(4):
            if g or r: e(f"v_fma_f32 v{INIT}, v{HQ+4*g+r}, |v{CB+16*g+r}|, v{INIT}")
    nb_next = [NB1]
    for s in range(NS):
        v = valu(s); m = mms(s + 1) if s + 1 < NS else []
        if s + 1 < NS:
            kind, bp, g, b = steps[s + 1]
            if bp == 0 and kind == 'r' and b == 0 and g == 1: e("s_waitcnt lgkmcnt(5)"); [e(x) for x in later[10:15]]
            if bp == 0 and kind == 'r' and b == 0 and g == 2: e("s_waitcnt lgkmcnt(5)")
            if bp == 0 and kind == 'r' and b == 0 and g == 3:
                sync_wait(0, 4, 'a5')
                for i in range(4): e(f"ds_read_b128 {vr(A5+4*i,4)}, v4 offset:{AIMG+8192+1024*i}")
            if bp == 0 and kind == 'x': e("s_waitcnt lgkmcnt(0)")
            if kind == 'r' and g == 0 and b == 0 and bp > 0:
                e(f"s_waitcnt vmcnt({vneed(f'b{bp}')})"); k.stamp({1: 4, 2: 8, 3: 10}[bp])
            if bp == 0 and kind == 'r' and b == 0 and g == 3: k.stamp(1)

        for _ in range(opt('bps', 2)):
            if nb_next[0] < 16 and s >= opt('bs0', 0): bload(nb_next[0]); nb_next[0] += 1
        if s == 2: k.stamp(9)
        if s == opt('pf', 4) and PREF: prefetch()
        if len(m) == 2:
            n = 6 if steps[s][0] == 'x' else 5
            e(m[0]); [e(x) for x in v[:n]]; e(m[1]); [e(x) for x in v[n:]]
        elif len(m) == 4:
            e(m[0]); [e(x) for x in v[:4]]; e(m[1]); [e(x) for x in v[4:8]]; e(m[2]); [e(x) for x in v[8:12]]; e(m[3]); [e(x) for x in v[12:]]
        else:
            e("s_nop 1"); [e(x) for x in v]
    k.stamp(5)
    hi_lookup()
    e("L_hi_done:")

def finish():
    if STAMP:
        e(f"{CLK} s[{sH}:{sH+1}]\ns_waitcnt lgkmcnt(0)\ns_mov_b64 exec, 1")
        e(f"s_lshl_b32 s{sT0}, s2, 3\ns_add_u32 s{sT0}, s{sT0}, s{sJ}\ns_lshl_b32 s{sT0}, s{sT0}, 7\ns_add_u32 s{sT0}, s{sT0}, {STAMP0:#x}")
        e(f"v_mov_b32 v2, s{sT0}")
        for i in range(NST): e(f"v_mov_b32 v3, s{sST+2*i}\nglobal_store_dword v2, v3, s[{P_WS}:{P_WS+1}] offset:{4*i}")
        e(f"v_mov_b32 v3, s{sH}\nglobal_store_dword v2, v3, s[{P_WS}:{P_WS+1}] offset:{4*NST}")
        e(f"v_mov_b32 v3, {NST+1}\nglobal_store_dword v2, v3, s[{P_WS}:{P_WS+1}] offset:124")
    e("s_endpgm")

if STAMP:
    for i in range(NST): e(f"s_mov_b64 s[{sST+2*i}:{sST+2*i+1}], 0")
prologue()
route()
lo_lookup()
final()
finish()
hi()
finish()
e("L_end:\ns_endpgm")
with rare(): fallback()
hazard.check(k.L); hazard.check(k.tail)
src = HEADER + f"; @launch grid=(256,1,1) block=(512,1,1) lds={LDS_BYTES}\n"
src += f'.amdgcn_target "amdgcn-amd-amdhsa--gfx950"\n.text\n.globl {KN}\n.p2align 8\n.type {KN},@function\n{KN}:\n'
src += "\n".join(k.L) + "\n" + "\n".join(k.tail) + "\nL_code_end:\n"
src += '.section .rodata,"a"\n' + kd(KN, 256, 102)
open(sys.argv[1], "w").write(src)
print("lds", LDS_BYTES)
```

```python
import sys
from common import *
import hazard

OPT = set(sys.argv[2].split(',')) if len(sys.argv) > 2 else set()
def opt(name, d):
    for o in OPT:
        if o.startswith(name + '='): return int(o.split('=')[1])
    return d
STAMP = 'stamp' in OPT
NGLO = opt('nglo', 3)
CLK = 's_memtime' if 'cyc' in OPT else 's_memrealtime'
DL1, DL2, SL1, SL2 = opt('dl1', 0), opt('dl2', 0), opt('sl1', 0), opt('sl2', 0)
PRE = 'nopre' not in OPT

EPOCH, L0, ROW0, R0, R1 = 0x0, 0x10000, 0x400000, 0x800000, 0xC00000
STAMP0 = 0x1000000
FLG = 0x1000
TAB, CNT, BH, GP, AIMG, LIMG, WL = 0, 0x4100, 0x4500, 0x4600, 0x5000, 0x8000, 0xC000
RS = LIMG
NANW = 0x4080
ROWPF = 'rowpf' in OPT
SYNC = CNT + 1000
LIMIT = 0x4000
RLV = 0x400000
FL = 0x10000; FLS = 8192; RIM = 0x18000; NW = 0x4090; DUMP = 0x4C00
DRY = 'dry' in OPT
LDS_BYTES = RIM + 4 * 8192 + (16384 if DRY else 0)
S_IDX, S_TABL, S_W, S_LIST, S_ROW, S_RES, S_OUT = 4, 8, 12, 16, 20, 24, 28
sG = 32
P_IDX, P_TAB, P_W, P_B, P_H, P_P, P_OUT, P_WS = 36, 38, 40, 42, 44, 46, 48, 50
sJ, sRARE, sTAG, sT2, sT0, sT1, sNT, sBAD, sU, sCNT = 52, 53, 54, 55, 56, 57, 58, 59, 60, 61
sEX = 62
sRND = 3
sPOS = 36
sH = 64
sST = 80
NST = 11
LOG2E_HALF = 0x3f38aa3b
vL = 1
SC = " sc0 sc1" if "sys" in OPT else " sc1"
KN = NAME + "_kernel"

class K:
    def __init__(s): s.L = []; s.tail = []; s.cur = s.L
    def e(s, x):
        for ln in x.split('\n'):
            ln = ln.strip()
            if ln: s.cur.append(ln if ln.endswith(':') else '    ' + ln)
    def stamp(s, i):
        if STAMP: s.e(f"{CLK} s[{sST+2*i}:{sST+2*i+1}]")
    def srd(s, d, p, n, off=0):
        if off: s.e(f"s_add_u32 s{d}, s{p}, {off:#x}\ns_addc_u32 s{d+1}, s{p+1}, 0")
        else: s.e(f"s_mov_b64 s[{d}:{d+1}], s[{p}:{p+1}]")
        s.e(f"s_mov_b32 s{d+2}, {n:#x}\ns_mov_b32 s{d+3}, 0x00020000")
k = K(); e = k.e
def vr(a, n): return f"v[{a}:{a+n-1}]"
def sr(a): return f"s[{a}:{a+3}]"
class keep:
    def __enter__(s): pass
    def __exit__(s, *a): pass
class rare:
    def __enter__(s): s.old = k.cur; k.cur = k.tail
    def __exit__(s, *a): k.cur = s.old

LOC = 8
G = 16; RM = 80; EN = 96; TQ = 112; AS = 166; AC = 182; BQ = 230; DX = 202
cA, cOFF, cBIT, cWR, cFL, cMSK = 246, 247, 248, 249, 250, 251
cR = 252
cAM, cDR, cRD, cRA = 198, 199, 200, 201
WA = 140

def prologue():
    V = 16; T = 52; WV = 120; TP = 136; TH = 184
    e("s_cmp_ge_u32 s2, 256\ns_cbranch_scc1 L_end")
    e(f"s_load_dwordx4 s[{P_IDX}:{P_IDX+3}], s[0:1], 0")
    e(f"s_load_dwordx8 s[{P_W}:{P_W+7}], s[0:1], 32")
    e(f"s_load_dwordx2 s[{P_WS}:{P_WS+1}], s[0:1], 80")
    k.stamp(0)
    e(f"s_getpc_b64 s[{sEX}:{sEX+1}]\nv_lshlrev_b32 v4, 6, v0\nv_min_u32 v4, L_code_end-{KN}-64, v4\nv_mov_b32 v5, s{sEX+1}\nv_add_co_u32 v4, vcc, s{sEX}, v4\nv_lshrrev_b32 v2, 6, v0\nv_and_b32 v{vL}, 63, v0\nv_addc_co_u32 v5, vcc, 0, v5, vcc")
    e("global_load_dword v135, v[4:5], off")
    e(f"v_readfirstlane_b32 s{sJ}, v2\nv_cmp_lt_u32 vcc, 255, v0\ns_cbranch_vccnz L_hi0")
    e(f"v_lshrrev_b32 v{T}, 2, v0\nv_and_b32 v{T+1}, 3, v0\ns_mul_i32 s{sT1}, s2, 6656\nv_mov_b32 v2, 104\nv_mad_u32_u24 v{T+2}, v{T}, v2, s{sT1}")
    e(f"v_lshl_add_u32 v{T+2}, v{T+1}, 5, v{T+2}\nv_add_u32 v{T+3}, 1, v{T+1}\nv_lshrrev_b32 v{T+3}, 2, v{T+3}\nv_mul_i32_i24 v4, -104, v{T+3}\nv_add3_u32 v4, v{T+2}, v4, 8")
    e("s_waitcnt lgkmcnt(0)")
    e(f"global_load_dwordx2 {vr(V,2)}, v{T+2}, s[{P_IDX}:{P_IDX+1}]\nglobal_load_dwordx4 {vr(V+2,4)}, v4, s[{P_IDX}:{P_IDX+1}]\nglobal_load_dwordx2 {vr(V+6,2)}, v4, s[{P_IDX}:{P_IDX+1}] offset:16")
    e("s_branch L_lo")
    e("L_hi0:")
    e(f"v_lshrrev_b32 v252, 5, v{vL}\nv_bfe_u32 v5, v{vL}, 3, 2\ns_lshl_b32 s{sT1}, s2, 8\nv_lshl_add_u32 v5, v5, 6, s{sT1}\nv_lshl_add_u32 v5, v252, 5, v5\nv_min_u32 v5, {64000-32}, v5")
    e(f"v_and_b32 v4, 7, v{vL}\nv_lshl_add_u32 v4, v2, 3, v4\nv_lshlrev_b32 v4, 1, v4\nv_lshl_add_u32 v4, v252, 10, v4\nv_and_b32 v6, 31, v{vL}\nv_lshlrev_b32 v7, 1, v6")
    e("s_waitcnt lgkmcnt(0)")
    e(f"global_load_dwordx4 {vr(TP,4)}, v5, s[{P_TAB}:{P_TAB+1}]\nglobal_load_short_d16_hi v{WV}, v4, s[{P_W}:{P_W+1}] offset:-64")
    e(f"global_load_short_d16_hi v{TH+1}, v7, s[{P_B}:{P_B+1}]\nglobal_load_short_d16_hi v{TH+2}, v7, s[{P_H}:{P_H+1}]\nglobal_load_short_d16_hi v{TH}, v7, s[{P_P}:{P_P+1}]")
    e("s_branch L_hi")

def lds_common():
    e("v_mov_b32 v240, -1\nv_mov_b32 v241, -1\nv_mov_b32 v242, -1\nv_mov_b32 v243, -1")
    e(f"v_lshlrev_b32 v3, 4, v0\nds_write_b128 v3, v[240:243] offset:{LIMG}\nds_write_b128 v3, v[240:243] offset:{LIMG+8192}")
    e(f"s_and_b32 s{sU}, s{sJ}, 3")

def sync_add(i):
    e(f"v_mov_b32 v5, {SYNC+4*i}\nv_mov_b32 v6, 1\ns_mov_b64 exec, 1\nds_add_u32 v5, v6\ns_mov_b64 exec, -1")
def sync_wait(i, n, nm, sleep=0):
    e(f"v_mov_b32 v5, {SYNC+4*i}\nL_sync_{nm}:")
    if sleep: e(f"s_sleep {sleep}")
    e(f"ds_read_b32 v6, v5\ns_waitcnt lgkmcnt(0)\nv_cmp_gt_u32 vcc, {n}, v6\ns_cbranch_vccnz L_sync_{nm}")

def make_loc(KK, C4, full):
    e(f"v_mov_b32 v7, {RS}")
    if full: e(f"v_mov_b32 v6, {NANW}\nv_mov_b32 v4, -1\nds_write_b32 v6, v4")
    for t in range(8):
        if t == 2: e("s_mov_b32 exec_lo, 0x77777777\ns_mov_b32 exec_hi, 0x77777777")
        if full:
            e(f"v_and_b32 v4, 30, v{KK+t}\nv_lshlrev_b32 v5, 3, v{C4+t}\nv_add_lshl_u32 v4, v4, v5, 1\nv_cmp_le_u32 vcc, 48, v{KK+t}")
            e(f"v_lshrrev_b32 v5, 5, v{KK+t}\nv_lshlrev_b32 v5, 14, v5\nv_add3_u32 v4, v4, v5, v7\nv_cndmask_b32 v{LOC+t}, v4, v6, vcc")
        else:
            e(f"v_lshl_add_u32 v4, v{C4+t}, 3, v{KK+t}\nv_lshl_add_u32 v{LOC+t}, v4, 1, v7")
    e("s_mov_b64 exec, -1")

def lookup_consts():
    e(f"v_and_b32 v4, 15, v{vL}\nv_bfe_u32 v5, v{vL}, 4, 1\nv_lshrrev_b32 v{cBIT}, 5, v{vL}")
    e(f"s_mul_i32 s{sG+1}, s{sU}, {FLS}\ns_add_u32 s{sG+1}, s{sG+1}, {FL}\ns_lshl_b32 s{sG}, s{sU}, 18\ns_lshl_b32 s{sG+2}, s{sU}, 13\ns_add_u32 s{sG+2}, s{sG+2}, {RIM}")
    e(f"v_and_b32 v{cFL}, 31, v{vL}\nv_lshl_add_u32 v{cFL}, v{cFL}, 2, s{sG+1}")
    e(f"v_lshrrev_b32 v7, 4, v{vL}\nv_lshl_add_u32 v{cDR}, v7, 5, v4\nv_lshl_add_u32 v{cDR}, v{cDR}, 2, s{sG+1}")
    e(f"v_add_u32 v{cA}, -1, v{cBIT}\nv_and_b32 v{cA}, 0xffff0000, v{cA}")
    e(f"v_mul_u32_u24 v{cOFF}, 12, v{cBIT}\nv_mul_i32_i24 v{cWR}, -52, v{cBIT}\nv_mov_b32 v{cMSK}, 0x7ffffffe\nv_mov_b32 v{cAM}, 0x2003fffc")
    e(f"v_and_b32 v6, 1, v4\nv_lshlrev_b32 v6, 4, v6\nv_lshrrev_b32 v6, v6, 1.0")
    e(f"v_bfe_u32 v7, v4, 1, 1\nv_xor_b32 v7, v7, v5\nv_add_u32 v7, -1, v7\nv_and_b32 v6, v6, v7\nv_lshrrev_b32 v7, 2, v4")
    for q in range(4):
        e(f"v_xor_b32 v4, {q}, v7\nv_add_u32 v4, -1, v4\nv_ashrrev_i32 v4, 31, v4\nv_and_b32 v{AS+4*q}, v4, v6")
        for i in range(1, 4): e(f"v_mov_b32 v{AS+4*q+i}, v{AS+4*q}")
    e(f"v_mov_b32 v{BQ+7}, 0\nv_mov_b32 v{BQ+15}, 0")
    e(f"v_and_b32 v4, 3, v{vL}\nv_lshrrev_b32 v5, 2, v{vL}\nv_lshlrev_b32 v{cRD}, 10, v4\nv_lshl_add_u32 v{cRD}, v5, 2, v{cRD}\nv_add_u32 v{cRD}, s{sG+2}, v{cRD}")
    e(f"v_lshlrev_b32 v4, 4, v4\nv_lshl_add_u32 v{cRA}, v5, 14, v4")
    e(f"s_lshl_b32 s{sG+3}, s{sU}, 20\ns_lshl_b32 s{sT0}, s2, 6\ns_add_u32 s{sG+3}, s{sG+3}, s{sT0}")

def res_tags(lane_expr, cR=cR):
    e(f"s_and_b32 s{sT0}, s{sTAG}, 255\ns_xor_b32 s{sT1}, s{sTAG}, 1\ns_and_b32 s{sT1}, s{sT1}, 3\ns_lshl_b32 s{sT1}, s{sT1}, 8\ns_or_b32 s{sT0}, s{sT0}, s{sT1}")
    e(f"s_lshr_b32 s{sT1}, s{sTAG}, 8\ns_lshl_b32 s{sT1}, s{sT1}, 10\ns_or_b32 s{sT0}, s{sT0}, s{sT1}")
    e(lane_expr)
    e(f"v_lshlrev_b32 v4, 3, v4\nv_lshrrev_b32 v4, v4, s{sT0}")
    for j in range(4): e(f"v_bfe_u32 v5, v4, {2*j}, 2\nv_alignbit_b32 v{cR+j}, v5, v5, 1")

PM = opt('pm', 0)
def pre_addr():
    sh = opt('psh', 21); n = (1 << (24 - sh)) - 1
    e(f"v_and_b32 v2, {min(n,63)}, v{vL}\nv_lshlrev_b32 v2, {sh}, v2\nv_add_u32 v2, {(1<<sh)-128:#x}, v2")

def late_consts():
    lookup_consts()
    e(f"s_lshl_b32 s{sCNT}, s{sU}, 12\nv_lshrrev_b32 v4, 4, v{vL}\nv_xor_b32 v4, v4, v{vL}\nv_and_b32 v4, 3, v4\nv_and_b32 v5, 60, v{vL}\nv_or_b32 v4, v4, v5\nv_lshl_add_u32 v{WA}, v4, 4, s{sCNT}")
    e(f"v_lshrrev_b32 v4, 2, v{vL}\nv_lshl_add_u32 v5, v{vL}, 6, s{sCNT}")
    for g in range(4): e(f"v_xor_b32 v6, {g}, v4\nv_and_b32 v6, 3, v6\nv_lshl_add_u32 v{WA+1+g}, v6, 4, v5")
    e(f"v_lshl_add_u32 v4, v{vL}, 4, s{sG+1}")
    for i in range(8): e(f"ds_write_b128 v4, v[240:243] offset:{1024*i}")
    if 'lateconst' in OPT: res_tags("v_and_b32 v4, 3, v0")

def code_prefetch(nm, dst):
    e(f"s_getpc_b64 s[{sEX}:{sEX+1}]\nL_pc{nm}:\ns_sub_u32 s{sEX}, s{sEX}, L_pc{nm}-{KN}\ns_subb_u32 s{sEX+1}, s{sEX+1}, 0")
    e(f"v_and_b32 v6, 255, v0\nv_lshlrev_b32 v6, 7, v6\nv_min_u32 v6, L_code_end-{KN}-4, v6\nv_mov_b32 v7, s{sEX+1}\nv_add_co_u32 v6, vcc, s{sEX}, v6\ns_nop 1\nv_addc_co_u32 v7, vcc, 0, v7, vcc")
    e(f"global_load_dword v{dst}, v[6:7], off")

def route():
    V = 16; KK = 24; C4 = 32; RW = 40; EB = 44; T = 52
    TP = 64; TU = 72; WR = 88; WV = 104; MU = 120; PP = 128
    e("L_lo:\ns_setprio 2")
    lds_common()
    e(f"v_mov_b32 v4, 0\nv_lshlrev_b32 v5, 2, v0\nds_write_b32 v5, v4 offset:{CNT}\nv_and_b32 v5, 12, v5\nds_write_b32 v5, v4\nds_write_b32 v5, v4 offset:{NW}")
    k.srd(S_IDX, P_IDX, 16384 * 104)
    e(f"v_lshlrev_b32 v{EB}, 2, v{T+1}\nv_mul_u32_u24 v4, 13, v{T+3}\nv_sub_u32 v4, v{EB}, v4")
    for t in range(1, 4): e(f"v_add_u32 v{EB+2*t}, {t}, v4")
    e("s_waitcnt lgkmcnt(0)")
    e(f"s_load_dword s{sTAG}, s[{P_WS}:{P_WS+1}], {EPOCH:#x}")
    e(f"s_load_dwordx16 s[{sH}:{sH+15}], s[{P_H}:{P_H+1}], 0")
    e(f"s_load_dwordx2 s[{P_OUT}:{P_OUT+1}], s[0:1], 64")
    e("s_barrier")
    if 'nopos' in OPT: e(f"s_mov_b32 s{sPOS}, s2")
    else: e(f"s_and_b32 s{sPOS}, s2, 6\ns_lshl_b32 s{sPOS}, s{sPOS}, 5\ns_lshr_b32 s{sT0}, s2, 3\ns_lshl_b32 s{sT0}, s{sT0}, 1\ns_or_b32 s{sPOS}, s{sPOS}, s{sT0}\ns_and_b32 s{sT0}, s2, 1\ns_or_b32 s{sPOS}, s{sPOS}, s{sT0}")
    k.srd(S_TABL, P_TAB, 64000)
    k.srd(S_W, P_W, 2048)
    e(f"v_lshrrev_b32 v130, 5, v{vL}\nv_bfe_u32 v131, v{vL}, 3, 2\nv_lshlrev_b32 v131, 6, v131\nv_lshl_add_u32 v131, v130, 5, v131")
    e(f"v_and_b32 v133, 31, v{vL}\nv_lshlrev_b32 v132, 6, v133\nv_lshlrev_b32 v133, 1, v133")
    k.srd(S_ROW, P_WS, 0x100000, ROW0)
    k.srd(S_LIST, P_WS, 250 * 16384, L0)
    k.srd(S_RES, P_WS, 0x800000, R0)
    e(f"v_lshlrev_b32 v{T+3}, 8, v{T}")
    for t in range(4):
        e(f"v_add_u32 v4, 6, v{EB+2*t}\nv_lshl_or_b32 v{EB+2*t+1}, v{EB+2*t}, 4, v{T+3}")
        e(f"v_lshrrev_b32 v4, 4, v4\nv_lshl_or_b32 v{EB+2*t+1}, v4, 1, v{EB+2*t+1}\nv_or_b32 v{EB+2*t}, 1, v{EB+2*t+1}")
    for t in range(8): e(f"v_mov_b32 v{LOC+t}, 0\nv_mov_b32 v{KK+t}, 0")
    if 'lateconst' not in OPT: late_consts()
    e(f"v_mov_b32 v2, 2\nv_mov_b32 v7, 0x100010\ns_lshl_b32 s{sT0}, s2, 12")
    e(f"v_and_b32 v4, 3, v0\nv_lshlrev_b32 v{T+4}, 14, v{T}\nv_lshl_add_u32 v{T+4}, v4, 4, v{T+4}")
    e(f"v_add_u32 v{T+5}, 1, v4\nv_lshrrev_b32 v{T+5}, 2, v{T+5}\nv_sub_u32 v{T+5}, 0, v{T+5}")
    if 'lateconst' not in OPT:
        e(f"s_waitcnt lgkmcnt(0)\ns_add_u32 s{sTAG}, s{sTAG}, 1"); res_tags("v_and_b32 v4, 3, v0")
    e(f"s_lshl_b32 s{sT0}, s{sPOS}, 12\ns_waitcnt vmcnt(0)")
    k.stamp(1)
    for t in range(4): e(f"v_lshl_or_b32 v{RW+t}, v{V+2*t+1}, 16, v{V+2*t}\nv_lshl_add_u32 v{RW+t}, v{RW+t}, 4, v7")
    e(f"buffer_store_dwordx4 {vr(RW,4)}, v3, {sr(S_ROW)}, s{sT0} offen{SC}")
    e(f"s_lshl_b32 s{sT1}, s2, 8")
    for x in range(2): e(f"buffer_load_dwordx4 {vr(TP+4*x,4)}, v131, {sr(S_TABL)}, s{sT1} offen offset:{16*x}")
    for t in range(4): e(f"buffer_load_dwordx4 {vr(WR+4*t,4)}, v132, {sr(S_W)}, 0 offen offset:{16*t}")
    e(f"global_load_short_d16_hi v{PP}, v133, s[{P_P}:{P_P+1}]")
    for t in range(8):
        if t == 2: e("s_mov_b32 exec_lo, 0x77777777\ns_mov_b32 exec_hi, 0x77777777")
        e(f"v_and_b32 v{C4+t}, -4, v{V+t}\nds_add_rtn_u32 v{KK+t}, v{C4+t}, v2 offset:{CNT}")
    e("s_mov_b64 exec, -1")
    for t in range(8): e(f"v_lshlrev_b32 v{V+t}, 2, v{V+t}\nv_and_or_b32 v{V+t}, v{V+t}, 12, v{EB+t}")
    e("s_waitcnt lgkmcnt(0)")
    for t in range(8):
        if t == 2: e("s_mov_b32 exec_lo, 0x77777777\ns_mov_b32 exec_hi, 0x77777777")
        e(f"v_min_u32 v4, 54, v{KK+t}\nv_lshl_add_u32 v4, v{C4+t}, 4, v4\nds_write_b16 v4, v{V+t} offset:{LIMG}")
    e("s_mov_b64 exec, -1")
    e(f"s_lshl_b32 s{sT0}, s{sPOS}, 6")
    if 'lateconst' in OPT: e(f"s_add_u32 s{sTAG}, s{sTAG}, 1")
    k.srd(S_OUT, P_OUT, 32768)
    k.stamp(2)
    e(f"v_mov_b32 v7, s{sTAG}\ns_waitcnt vmcnt(7) lgkmcnt(0)")
    sync_add(0)
    sync_wait(0, 4, 'lo')
    k.stamp(3)
    PR = lambda h: 146 + 4 * h if h < 5 else 202 + 4 * (h - 5)
    e(f"s_cmp_ge_u32 s{sU}, 2\ns_cbranch_scc1 L_nopub\nv_and_b32 v4, -4, v0")
    for h in range(7): e(f"ds_read_b128 {vr(PR(h),4)}, v3 offset:{LIMG+2048*h}\nds_read_b32 v{216+h}, v4 offset:{CNT+128*h}")
    for h in range(8):
        e(f"s_waitcnt lgkmcnt({12 if h==0 else 14-2*h})")
        if h == 0: e(f"ds_read_b128 {vr(PR(7),4)}, v3 offset:{LIMG+2048*7}\nds_read_b32 v223, v4 offset:{CNT+128*7}")
        e(f"v_bfi_b32 v{PR(h)+3}, v{T+5}, v7, v{PR(h)+3}\nv_bfi_b32 v{PR(h)+2}, v{T+5}, v{216+h}, v{PR(h)+2}")
        e(f"buffer_store_dwordx4 {vr(PR(h),4)}, v{T+4}, {sr(S_LIST)}, s{sT0} offen{SC}")
        if h < 7: e(f"s_add_u32 s{sT0}, s{sT0}, 0x80000")
    e("s_waitcnt vmcnt(8)\ns_branch L_noa5\nL_nopub:")
    e(f"s_and_b32 s{sT1}, s{sU}, 1\ns_mul_i32 s{sT0}, s{sT1}, 384\nv_lshl_add_u32 v134, v{vL}, 2, s{sT0}\nv_mov_b32 v6, 0\nv_lshl_add_u32 v4, v133, 1, s{sT0}\nds_write_b32 v4, v6 offset:{GP+256}")
    e(f"s_lshl_b32 s{sNT}, s{sT1}, 2\nv_and_b32 v4, 7, v{vL}\nv_subrev_u32 v4, s{sNT}, v4\nv_min_u32 v4, 2, v4\nv_lshlrev_b32 v4, 7, v4\nv_lshl_add_u32 v4, v130, 6, v4\nv_add_u32 v132, s{sT0}, v4")
    e(f"s_lshl_b32 s{sT1}, s{sT1}, 11\nv_lshl_add_u32 v131, v{vL}, 4, s{sT1}\nv_cmp_gt_u32 vcc, 32, v{vL}\ns_waitcnt vmcnt(0)")
    for t in range(16): e(f"v_dot2_f32_bf16 v6, v{WR+t}, s{sH+t}, v6")
    for t in range(8): e(f"v_lshlrev_b32 v{TU+2*t}, 16, v{TP+t}\nv_and_b32 v{TU+2*t+1}, 0xffff0000, v{TP+t}")
    e(f"v_mul_f32 v6, {LOG2E_HALF:#x}, v6\nv_cndmask_b32 v6, v{PP}, v6, vcc\nds_write_b32 v134, v6 offset:{GP}\ns_waitcnt lgkmcnt(0)")
    for t in range(4): e(f"ds_read_b128 {vr(WV+4*t,4)}, v132 offset:{GP+16*t}")
    e("s_waitcnt lgkmcnt(0)")
    for t in range(16): e(f"v_mul_f32 v{WV+t}, v{WV+t}, v{TU+t}")
    for t in range(8): e(f"v_cvt_pk_bf16_f32 v{MU+t}, v{WV+2*t}, v{WV+2*t+1}")
    e(f"ds_write_b128 v131, {vr(MU,4)} offset:{AIMG+8192}\nds_write_b128 v131, {vr(MU+4,4)} offset:{AIMG+8192+1024}\ns_waitcnt lgkmcnt(0)")
    sync_add(2)
    e("L_noa5:")
    k.stamp(4)
    make_loc(KK, C4, False)
    e(f"v_max3_u32 v7, v{KK}, v{KK+1}, v{KK+2}\nv_max3_u32 v7, v7, v{KK+3}, v{KK+4}\nv_max3_u32 v7, v7, v{KK+5}, v{KK+6}\nv_max_u32 v7, v7, v{KK+7}")
    e(f"v_cmp_le_u32 vcc, 32, v7\ns_cbranch_vccnz L_mark\nL_mark_ret:")
    with rare():
        e("L_mark:"); make_loc(KK, C4, True); sync_add(4); e("s_branch L_mark_ret")

def decode(ns):
    for i, n in enumerate(ns): e(f"v_lshrrev_b32 v{TQ+i}, 2, v{RM+n}\nv_bfe_i32 v{TQ+4+i}, v{RM+n}, v{cBIT}, 1")
    for i, n in enumerate(ns): e(f"v_and_b32 v{TQ+i}, v{TQ+i}, v{cAM}\nv_and_b32 v{TQ+8+i}, v{TQ+4+i}, v{cWR}")
    for i, n in enumerate(ns): e(f"v_add3_u32 v{TQ+i}, v{TQ+i}, v{cOFF}, v{TQ+8+i}\nv_and_b32 v{TQ+4+i}, v{TQ+4+i}, v{cA}")
    for i, n in enumerate(ns):
        e(f"buffer_load_dwordx4 {vr(G+4*n,4)}, v{TQ+i}, {sr(S_ROW)}, s{sG} offen{SC}\nv_and_or_b32 v{RM+n}, v{RM+n}, 12, v{TQ+4+i}")
def addrs(n, buf):
    g = G + 4 * n; r = RM + n
    e(f"v_and_b32 v{g}, v{g}, v{r}")
    for t, (d, dw, hi) in enumerate([(2, 1, 0), (g + 1, 1, 1), (3, 2, 0), (g + 2, 2, 1), (4, 3, 0), (g + 3, 3, 1), (g, 0, 1)]):
        e(f"v_add_u32_sdwa v{d}, v{r}, v{g+dw} dst_sel:DWORD dst_unused:UNUSED_PAD src0_sel:WORD_0 src1_sel:WORD_{hi}")
        e(f"ds_read_b32 v{BQ+8*buf+t}, v{d}")
def mf(n, buf):
    a = AC + 4 * (n // 4); q = n & 3
    e(f"v_mfma_f32_16x16x32_bf16 {vr(a,4)}, {vr(AS+4*q,4)}, {vr(BQ+8*buf,4)}, {'0' if q==0 else vr(a,4)}")
    e(f"v_mfma_f32_16x16x32_bf16 {vr(a,4)}, {vr(AS+4*q,4)}, {vr(BQ+8*buf+4,4)}, {vr(a,4)}")
def dreads(addr):
    for q in range(4): e(f"ds_read2_b32 {vr(DX+2*q,2)}, v{addr+q//2} offset0:{128*(q%2)} offset1:{128*(q%2)+16}")
def dests():
    for q in range(8): e(f"v_lshrrev_b32 v{DX+q}, 12, v{DX+q}")
    for q in range(8): e(f"v_and_or_b32 v{DX+q}, v{DX+q}, v5, v6")
def scatter():
    for q in range(4):
        a = AC + 4 * q
        e(f"v_cvt_pk_bf16_f32 v{a}, v{a+1}, v{a}\nv_cvt_pk_bf16_f32 v{a+2}, v{a+3}, v{a+2}")
        e(f"ds_write_b32 v{DX+2*q}, v{a}\nds_write_b32 v{DX+2*q+1}, v{a+2}")
def res_stores(lvl, s0):
    T = G + 16 * lvl
    e(f"v_add_u32 v2, 64, v{cRD}\nv_add_u32 v3, 128, v{cRD}\nv_add_u32 v4, 192, v{cRD}\ns_waitcnt lgkmcnt(6)")
    for i in range(4):
        for x in range(2): e(f"ds_read2st64_b32 {vr(T+4*i+2*x,2)}, v{cRD if i==0 else 1+i} offset0:{16*lvl+2*x} offset1:{16*lvl+2*x+1}")
    for i in range(4):
        e(f"s_waitcnt lgkmcnt({6-2*i})")
        for j in range(4): e(f"v_and_or_b32 v{T+4*i+j}, v{T+4*i+j}, v{cMSK}, v{cR+j}")
        e(f"buffer_store_dwordx4 {vr(T+4*i,4)}, v{cRA}, {sr(S_RES)}, s{s0} offen{SC}")
        if i < 3: e(f"s_add_u32 s{s0}, s{s0}, 0x40000")

def lo_lookup():
    POLL = 16; NQ = 3
    e("s_cmp_ge_u32 s2, 250\ns_cbranch_scc1 L_nobucket0")
    with rare(): e("L_nobucket0:\ns_waitcnt lgkmcnt(0)\ns_branch L_nobucket")
    if 'lateconst' in OPT:
        e("s_setprio 0"); late_consts(); e("s_setprio 2")
    e(f"v_lshlrev_b32 v3, 4, v{vL}\ns_lshl_b32 s{sT0}, s2, 14\ns_add_u32 s{sT0}, s{sT0}, s{sCNT}")
    e(f"s_mov_b32 s{sNT}, 0\ns_mov_b32 s{sEX}, 0x88888888\ns_mov_b32 s{sEX+1}, 0x88888888")
    CW, CN1, CD, CP = DX + 8, DX + 9, DX + 10, DX + 11
    e(f"v_lshlrev_b32 v{CW}, 14, v{vL}\nv_mov_b32 v{CD}, {DUMP}\nv_lshl_add_u32 v{CP}, v{vL}, 2, s{sG+1}")
    for i in range(4): e(f"v_mov_b32 v{AC+12+i}, 0")
    e(f"s_mov_b32 s{sRND}, 0\ns_and_b32 s{sT1}, s{sU}, 1\ns_lshl_b32 s{sT1}, s{sT1}, 2\ns_add_u32 s{sT1}, s{sT1}, {NW}\nv_mov_b32 v2, s{sT1}")
    k.stamp(5)
    e(f"s_cmp_ge_u32 s{sU}, 2\ns_cbranch_scc1 L_poller")
    e("L_wait_lists:\ns_sleep 1\nds_read_b32 v4, v2\ns_waitcnt lgkmcnt(0)\nv_cmp_eq_u32 vcc, 0, v4\ns_cbranch_vccnz L_wait_lists")
    e(f"v_cmp_eq_u32 vcc, 1, v4\ns_cbranch_vccnz L_poll1_ok\ns_branch L_gaveup")
    e(f"L_poller:\ns_sub_u32 s{sT1}, s{sT0}, 0x2000\nv_add_u32 v7, {(-0x2000)&0xffffffff:#x}, v{WA}")
    if DL1: e(f"s_sleep {DL1}")
    e("L_poll1:")
    for h in range(8): e(f"buffer_load_dwordx4 {vr(POLL+4*h,4)}, v3, {sr(S_LIST)}, s{sT1 if h<4 else sT0} offen offset:{1024*(h%4)}{SC}")
    for h in range(8):
        e(f"s_waitcnt vmcnt({7-h})")
        if h == 0: e(f"v_xor_b32 v4, s{sTAG}, v{POLL+3}")
        else: e(f"v_xor_b32 v5, s{sTAG}, v{POLL+4*h+3}\nv_or_b32 v4, v4, v5")
        e(f"ds_write_b128 v{7 if h<4 else WA}, {vr(POLL+4*h,4)} offset:{WL+1024*(h%4)}")
    e(f"v_cmp_ne_u32 vcc, 0, v4\ns_and_b64 vcc, vcc, s[{sEX}:{sEX+1}]\nv_mov_b32 v5, 1\ns_waitcnt lgkmcnt(0)")
    e("s_cbranch_vccnz L_poll1_again\nds_write_b32 v2, v5\nL_poll1_ok:")
    with rare():
        e("L_poll1_again:")
        if SL1: e(f"s_sleep {SL1}")
        e(f"s_add_u32 s{sNT}, s{sNT}, 1\ns_cmp_lt_u32 s{sNT}, {LIMIT}\ns_cbranch_scc1 L_poll1")
        for i in range(4): e(f"v_mov_b32 v{POLL+i}, 0")
        for h in range(8): e(f"ds_write_b128 v{7 if h<4 else WA}, {vr(POLL,4)} offset:{WL+1024*(h%4)}")
        e("v_mov_b32 v5, 2\ns_waitcnt lgkmcnt(0)\nds_write_b32 v2, v5\nL_gaveup:")
        for i in range(4): e(f"v_or_b32 v{cR+i}, 0x7fc00000, v{cR+i}")
        e("s_branch L_poll1_ok")
    k.stamp(6)
    if 'loprio0' in OPT: e("s_setprio 0")
    ND = opt('nd', 3); P1 = 2 * ND; P2 = opt('p2', 10)
    e(f"ds_read_b128 {vr(EN,4)}, v{WA+1} offset:{WL}\nds_read_b128 {vr(EN+12,4)}, v{WA+4} offset:{WL}")
    for g in (1, 2): e(f"ds_read_b128 {vr(EN+4*g,4)}, v{WA+1+g} offset:{WL}")
    e("s_waitcnt lgkmcnt(3)")
    def word(j, d, w): e(f"v_or_b32_sdwa v{d}, v{w}, sext(v{EN+j//2}) dst_sel:DWORD dst_unused:UNUSED_PAD src0_sel:DWORD src1_sel:WORD_{j&1}")
    for j in range(ND):
        if j: e(f"v_add_u32 v5, {j<<20:#x}, v{CW}")
        word(j, 6 + (j & 1), 5 if j else CW); e(f"ds_write_b32 v{CP}, v{6+(j&1)} offset:{256*j}")
    for n in range(P1): e(f"ds_read_b32 v{RM+n}, v{cFL} offset:{128*n}")
    e(f"s_waitcnt lgkmcnt({P1+ND+2})\nv_lshrrev_b32 v2, 1, v{EN+14}\nv_min_u32 v2, 24, v2\nv_sub_u32 v2, v2, {ND} clamp\nv_mov_b32 v3, v2\ns_nop 1")
    scan = [f"v_add_u32_dpp v3, v3, v3 {m} row_mask:0xf bank_mask:0xf" for m in ("row_shr:1", "row_shr:2", "row_shr:4", "row_shr:8")]
    scan += ["v_add_u32_dpp v3, v3, v3 row_bcast:15 row_mask:0xa bank_mask:0xf", "v_add_u32_dpp v3, v3, v3 row_bcast:31 row_mask:0xc bank_mask:0xf"]
    e(scan[0]); e(f"s_waitcnt lgkmcnt({max(P1-4,0)})")
    n0 = len(k.L); decode(list(range(min(4, P1))))
    if P1 > 4: e("s_waitcnt lgkmcnt(0)"); decode(list(range(4, P1)))
    body = k.L[n0:]; del k.L[n0:]
    for i, x in enumerate(body):
        k.L.append(x)
        if i % 3 == 2 and len(scan) > 1: e(scan.pop(1))
    for x in scan[1:]: e("s_nop 1"); e(x)
    e(f"v_cmp_eq_u32 vcc, 0, v2\nv_readlane_b32 s{sNT}, v3, 63\nv_sub_u32 v3, v3, v2\nv_lshl_add_u32 v3, v3, 2, s{sG+1}\nv_cndmask_b32 v3, v3, v{CD}, vcc")
    e(f"v_cmp_lt_u32 vcc, {16-ND}, v2\ns_or_b32 s{sBAD}, vcc_lo, vcc_hi\ns_add_u32 s{sNT}, s{sNT}, {64*ND}\ns_waitcnt lgkmcnt(0)\ns_cbranch_vccnz L_fl23")
    e(f"v_cmp_lt_u32 vcc, {14-ND}, v2\nv_add_u32 v5, {15<<20:#x}, v{CW}\ns_cbranch_vccnz L_fl15\nv_add_u32 v5, {13<<20:#x}, v{CW}\ns_branch L_fl13")
    def put(j):
        word(j, 6 + (j & 1), 5)
        if j > ND: e(f"v_add_u32 v5, 0xfff00000, v5")
        e(f"ds_write_b32 v3, v{6+(j&1)} offset:{256*ND+4*(j-ND)}")
    with rare():
        e(f"L_fl23:\nv_add_u32 v5, {23<<20:#x}, v{CW}")
        for j in range(23, 15, -1): put(j)
        e("s_waitcnt lgkmcnt(0)\ns_branch L_fl15")
    for j in range(15, ND - 1, -1):
        if j in (15, 13): e(f"L_fl{j}:")
        put(j)
        if j == 8: e("s_waitcnt lgkmcnt(4)")
    e(f"v_add_u32 v7, 1024, v{cDR}\nv_mov_b32 v6, v{cDR}\ns_waitcnt lgkmcnt(3)")
    for n in range(P1, 16): e(f"ds_read_b32 v{RM+n}, v{cFL} offset:{128*n}")
    e("L_round:")
    e(f"s_add_u32 s{sT2}, s{sNT}, 31\ns_lshr_b32 s{sT2}, s{sT2}, 5\ns_waitcnt lgkmcnt({16-P2})")
    for x in range(P1, P2, 4): decode(list(range(x, min(x + 4, P2))))
    dreads(6)
    k.stamp(7)
    sync_wait(5, 4, 'tab', 1)
    k.stamp(8)
    e(f"v_mov_b32 v5, 0x1ffc\nv_mov_b32 v6, s{sG+2}")
    dests()
    R = 16 - P2
    for n in range(16):
        e(f"s_waitcnt vmcnt({P2+min(n,R)-1-n})"); addrs(n, n & 1)
        if n: e("s_waitcnt lgkmcnt(7)"); mf(n - 1, (n - 1) & 1)
        if n < R: decode([P2 + n])
        if 11 <= n < 15:
            e(f"s_cmp_le_u32 s{sT2}, {n+1}\ns_cbranch_scc1 L_x{n}")
            with rare() if n not in (12, 13) else keep():
                pass
    e("s_waitcnt lgkmcnt(0)"); mf(15, 1); e("s_nop 4\ns_branch L_tiles_done")
    for n in (11, 14, 12, 13):
        e(f"L_x{n}:\ns_waitcnt lgkmcnt(0)"); mf(n, n & 1); e("s_nop 4")
        if n != 13: e("s_branch L_tiles_done")
    e("L_tiles_done:")
    scatter_first = True
    for q in (0, 1, 2, 3):
        a_ = AC + 4 * q
        e(f"v_cvt_pk_bf16_f32 v{a_}, v{a_+1}, v{a_}\nv_cvt_pk_bf16_f32 v{a_+2}, v{a_+3}, v{a_+2}")
        e(f"ds_write_b32 v{DX+2*q}, v{a_}\nds_write_b32 v{DX+2*q+1}, v{a_+2}")
    e(f"s_cmp_gt_u32 s{sNT}, 512\ns_cbranch_scc1 L_more")
    with rare():
        e(f"L_more:\ns_sub_u32 s{sNT}, s{sNT}, 512\nv_add_u32 v{cFL}, 2048, v{cFL}\nv_add_u32 v{cDR}, 2048, v{cDR}\nv_add_u32 v7, 1024, v{cDR}\nv_mov_b32 v6, v{cDR}")
        e("s_waitcnt vmcnt(0) lgkmcnt(0)")
        for n in range(16):
            e(f"ds_read_b32 v{RM+n}, v{cFL} offset:{128*n}")
            if n == 7: e("s_waitcnt lgkmcnt(0)")
        e("s_waitcnt lgkmcnt(0)")
        for x in range(0, P1, 4): decode(list(range(x, min(x + 4, P1))))
        e("s_branch L_round")
    e(f"s_mov_b32 s{sT0}, s{sG+3}")
    res_stores(0, sT0)
    e(f"s_cmp_lg_u32 s{sBAD}, 0\ns_cbranch_scc1 L_res2\nL_res2_ret:")
    with rare():
        e(f"L_res2:\ns_add_u32 s{sT0}, s{sG+3}, {RLV:#x}"); res_stores(1, sT0); e("s_branch L_res2_ret")
    for j in range(4): e(f"v_and_b32 v{cR+j}, 0x80000001, v{cR+j}")
    e("L_nobucket:")
    k.stamp(9)

def pos():
    if 'nopos' in OPT: e(f"s_mov_b32 s{sPOS}, s2")
    else: e(f"s_and_b32 s{sPOS}, s2, 6\ns_lshl_b32 s{sPOS}, s{sPOS}, 5\ns_lshr_b32 s{sT0}, s2, 3\ns_lshl_b32 s{sT0}, s{sT0}, 1\ns_or_b32 s{sPOS}, s{sPOS}, s{sT0}\ns_and_b32 s{sT0}, s2, 1\ns_or_b32 s{sPOS}, s{sPOS}, s{sT0}")

def hi_lookup():
    e("s_waitcnt lgkmcnt(0)")
    sync_add(5)
    e("L_hi_final:")
    pos()
    e(f"s_add_u32 s{sTAG}, s{sTAG}, 1")
    res_tags("v_and_b32 v4, 3, v0", 96)
    final_poll()
    k.stamp(6)

def final_poll():
    cR = 96
    e(f"s_load_dword s{sTAG}, s[{P_WS}:{P_WS+1}], {EPOCH:#x}") if False else None
    T = 32; X = 48; Y = 64; CN = 80; YA = 84
    e(f"v_and_b32 v2, 255, v0\nv_lshlrev_b32 v{T}, 4, v2\nv_add_u32 v{T+1}, 0x2000, v{T}\ns_lshl_b32 s{sT0}, s{sPOS}, 14\ns_add_u32 s{sT1}, s{sT0}, 0x1000")
    e(f"v_cmp_gt_u32 vcc, 232, v2\ns_mov_b64 s[{sEX}:{sEX+1}], vcc\ns_mov_b32 s{sNT}, 0\nv_mov_b32 v{T+4}, 0")
    if DRY:
        e(f"s_mov_b32 s{sRARE}, 0\ns_mov_b32 s{sRND}, 1\nv_add_u32 v{T+5}, {RIM+4*8192-RS}, v{T}\ns_add_u32 s{sT0}, s{sT0}, 0x800000\ns_add_u32 s{sT1}, s{sT1}, 0x800000\ns_branch L_poll2")
        e(f"L_dry_done:\ns_mov_b32 s{sRND}, 0\ns_sub_u32 s{sT0}, s{sT0}, 0x800000\ns_sub_u32 s{sT1}, s{sT1}, 0x800000")
    e(f"v_mov_b32 v{T+5}, v{T}")
    sync_wait(0, 8, 'res', 2)
    e(f"ds_read_b32 v6, v5 offset:16\ns_waitcnt lgkmcnt(0)\nv_readfirstlane_b32 s{sRARE}, v6")
    for h in range(4): e(f"v_mov_b32 v{YA+h}, -1")
    e(f"s_cmp_lg_u32 s{sRARE}, 0\ns_cbranch_scc1 L_rare0\nL_rare0_ret:")
    with rare():
        e(f"L_rare0:\nv_and_b32 v4, -4, v2\ns_add_u32 s{sBAD}, s{sT0}, {RLV:#x}\nv_mov_b32 v7, 0x80000000")
        for h in range(4): e(f"ds_read_b32 v{CN+h}, v4 offset:{CNT+256*h}")
        e("s_waitcnt lgkmcnt(0)")
        for h in range(4):
            e(f"v_add_u32 v{CN+h}, -33, v{CN+h}\nv_add_u32 v4, {4096*h}, v{T}\nv_and_or_b32 v{YA+h}, v{CN+h}, v7, v4\nv_ashrrev_i32 v{CN+h}, 31, v{CN+h}")
        e("s_branch L_rare0_ret")
    if DL2: e(f"s_sleep {DL2}")
    e("L_poll2:")
    e(f"s_cmp_lg_u32 s{sRARE}, 0\ns_cbranch_scc1 L_rare1\nL_rare1_ret:")
    with rare():
        e("L_rare1:")
        for h in range(4): e(f"buffer_load_dwordx4 {vr(Y+4*h,4)}, v{YA+h}, {sr(S_RES)}, s{sBAD} offen{SC}")
        e("s_branch L_rare1_ret")
    for h in range(4): e(f"buffer_load_dwordx4 {vr(X+4*h,4)}, v{T+h//2}, {sr(S_RES)}, s{sT0 if h%2==0 else sT1} offen{SC}")
    for h in range(4):
        d = T + 2 if h < 3 else T + 3
        e(f"s_waitcnt vmcnt({3-h})")
        for j in range(4):
            if j == 0 and h in (0, 3): e(f"v_xor_b32 v{d}, v{X+4*h}, v{cR}")
            else: e(f"v_bitop3_b32 v{d}, v{d}, v{X+4*h+j}, v{cR+j} bitop3:0xf6")
        e(f"ds_write_b128 v{T+5}, {vr(X+4*h,4)} offset:{RS+4096*h}")
    e(f"s_cmp_lg_u32 s{sRARE}, 0\ns_cbranch_scc1 L_rare2\nL_rare2_ret:")
    with rare():
        e("L_rare2:")
        for h in range(4):
            for j in range(4):
                if j == 0: e(f"v_xor_b32 v4, v{Y+4*h}, v{cR}")
                else: e(f"v_bitop3_b32 v4, v4, v{Y+4*h+j}, v{cR+j} bitop3:0xf6")
            e(f"v_bitop3_b32 v{T+2}, v{T+2}, v4, v{CN+h} bitop3:0xf4")
            e(f"ds_write_b128 v{T}, {vr(Y+4*h,4)} offset:{RS+16384+4096*h}")
        e("s_branch L_rare2_ret")
    e(f"v_and_b32 v{T+3}, 0x80000001, v{T+3}\nv_and_b32 v{T+2}, 0x80000001, v{T+2}")
    e(f"v_cmp_ne_u32 vcc, 0, v{T+3}\ns_and_b64 s[{sU}:{sU+1}], vcc, s[{sEX}:{sEX+1}]\nv_cmp_ne_u32 vcc, 0, v{T+2}\ns_or_b64 vcc, vcc, s[{sU}:{sU+1}]")
    if DRY: e(f"s_cmp_lg_u32 s{sRND}, 0\ns_cbranch_scc1 L_dry_done")
    e("s_cbranch_vccnz L_poll2_again\nL_poll2_ok:")
    with rare():
        e("L_poll2_again:")
        if SL2: e(f"s_sleep {SL2}")
        e(f"s_waitcnt lgkmcnt(0)\ns_add_u32 s{sNT}, s{sNT}, 1\ns_cmp_lt_u32 s{sNT}, {LIMIT}\ns_cbranch_scc1 L_poll2")
        sync_add(3)
        e("s_branch L_poll2_ok")
    k.stamp(10)
    e("s_waitcnt lgkmcnt(0)\ns_barrier")

def final():
    T = 32; X = 48
    sync_add(0)
    for t in range(8): e(f"v_and_b32 v{T+8+t}, 0xffff, v{LOC+t}")
    e(f"s_lshl_b32 s{sT2}, s2, 7\ns_lshl_b32 s{sBAD}, s{sJ}, 5\ns_add_u32 s{sT2}, s{sT2}, s{sBAD}")
    e(f"v_lshrrev_b32 v3, 2, v{vL}\nv_lshlrev_b32 v3, 1, v3\ns_waitcnt lgkmcnt(0)\ns_barrier")
    k.stamp(10)
    e(f"s_or_b32 s{sCNT}, s2, s{sJ}\ns_cmp_eq_u32 s{sCNT}, 0\ns_cbranch_scc1 L_epoch\nL_epoch_ret:")
    with rare():
        e(f"L_epoch:\ns_mov_b64 exec, 1\nv_mov_b32 v4, {EPOCH:#x}\nv_mov_b32 v5, s{sTAG}\nglobal_store_dword v4, v5, s[{P_WS}:{P_WS+1}]{SC}\ns_mov_b64 exec, -1\ns_branch L_epoch_ret")
    e(f"v_mov_b32 v5, {SYNC+12}\nds_read_b32 v6, v5")
    for t in range(8): e(f"ds_read_b32 v{X+t}, v{T+8+t}")
    for t in range(8):
        e(f"s_waitcnt lgkmcnt({7-t})\nv_and_b32 v{T+t}, 0x7fff0000, v{X+t}\nv_lshlrev_b32 v{X+t}, 16, v{X+t}")
        if t % 2: e(f"v_add_f32 v{T+t-1}, v{T+t-1}, v{T+t}\nv_add_f32 v{X+t-1}, v{X+t-1}, v{X+t}")
        if t % 4 == 3: e(f"v_add_f32 v{T+t-3}, v{T+t-3}, v{T+t-1}\nv_add_f32 v{X+t-3}, v{X+t-3}, v{X+t-1}")
    e(f"v_add_f32 v{T}, v{T}, v{T+4}\nv_add_f32 v{X}, v{X}, v{X+4}\ns_nop 0")
    e(f"v_add_f32_dpp v{T+1}, v{T}, v{T} quad_perm:[1,0,3,2] row_mask:0xf bank_mask:0xf")
    e(f"v_add_f32_dpp v{X+1}, v{X}, v{X} quad_perm:[1,0,3,2] row_mask:0xf bank_mask:0xf")
    e("s_nop 0")
    e(f"v_add_f32_dpp v{T}, v{T+1}, v{T+1} quad_perm:[2,3,0,1] row_mask:0xf bank_mask:0xf")
    e(f"v_add_f32_dpp v{X}, v{X+1}, v{X+1} quad_perm:[2,3,0,1] row_mask:0xf bank_mask:0xf")
    e(f"v_rcp_f32 v{T+1}, v{T}")
    e(f"v_add_u32 v{T+2}, {(-0x17800000)&0xffffffff:#x}, v{T}\nv_mul_f32 v{X}, v{X}, v{T+1}\nv_cmp_gt_u32 vcc, 0x5a000000, v{T+2}")
    e(f"v_and_b32 v{T+3}, 0x7fffffff, v{X}\ns_mov_b64 s[{sEX}:{sEX+1}], vcc\nv_cmp_gt_u32 vcc, 0x7f800000, v{T+3}\nv_cvt_pk_bf16_f32 v{X}, v{X}, v{X}")
    e(f"s_and_b64 s[{sEX}:{sEX+1}], vcc, s[{sEX}:{sEX+1}]\nv_cmp_eq_u32 vcc, 0, v6")
    e(f"s_and_b64 vcc, vcc, s[{sEX}:{sEX+1}]\ns_cmp_eq_u64 vcc, -1\ns_cbranch_scc0 {'L_fallback' if not (OPT & {'nolds','nogather'}) else 'L_fin'}")
    e("s_mov_b32 exec_lo, 0x11111111\ns_mov_b32 exec_hi, 0x11111111")
    e(f"buffer_store_short v{X}, v3, {sr(S_OUT)}, s{sT2} offen")
    e("L_fin:")

def fallback():
    e("L_fallback:")
    A0 = 16; A1 = 20; C0 = 24; C1 = 28; AH = 32; AP = 36; EI = 40; EJ = 48; PK = 56; DD = 60; HK = 68; DS = 72; W16 = 80
    N, Q, IB, M, LL, ACc, T = 100, 101, 102, 103, 104, 105, 106
    e(f"v_and_b32 v{N}, 15, v{vL}\nv_lshrrev_b32 v{Q}, 4, v{vL}")
    e(f"v_lshlrev_b32 v{T}, 9, v{Q}\nv_lshl_add_u32 v{T}, v{N}, 1, v{T}")
    for half in range(2):
        for t in range(8): e(f"buffer_load_ushort v{W16+8*half+t}, v{T}, {sr(S_W)}, 0 offen offset:{t*64+half*32}")
    e(f"v_lshlrev_b32 v{T+1}, 3, v{Q}\nv_lshlrev_b32 v{Q}, 4, v{Q}")
    e(f"global_load_dwordx2 {vr(EI,2)}, v{T+1}, s[{P_B}:{P_B+1}]\nglobal_load_dwordx2 {vr(EI+2,2)}, v{T+1}, s[{P_B}:{P_B+1}] offset:32")
    e(f"global_load_dwordx2 {vr(AH,2)}, v{T+1}, s[{P_H}:{P_H+1}]\nglobal_load_dwordx2 {vr(AH+2,2)}, v{T+1}, s[{P_H}:{P_H+1}] offset:32")
    e(f"global_load_dwordx4 {vr(AP,4)}, v{Q}, s[{P_P}:{P_P+1}]")
    e(f"s_lshl_b32 s{sU}, s2, 6\ns_lshl_b32 s{sT1}, s{sJ}, 4\ns_add_u32 s{sU}, s{sU}, s{sT1}\nv_add_u32 v{IB}, s{sU}, v{N}\nv_mul_u32_u24 v{IB}, 104, v{IB}")
    e("s_waitcnt vmcnt(0)")
    for half in range(2):
        for t in range(4): e(f"v_lshl_or_b32 v{A0+4*half+t}, v{W16+8*half+2*t+1}, 16, v{W16+8*half+2*t}")
    for i in range(4): e(f"v_lshlrev_b32 v{C0+2*i}, 16, v{EI+i}\nv_and_b32 v{C0+2*i+1}, 0xffff0000, v{EI+i}")
    e(f"v_mov_b32 v{M}, 0xff800000\nv_mov_b32 v{LL}, 0\nv_mov_b32 v{ACc}, 0")
    e(f"s_mov_b32 s{sU}, 0")
    def getrow(dst, soff):
        e(f"buffer_load_dword v{T}, v{IB}, {sr(S_IDX)}, s{soff} offen\ns_waitcnt vmcnt(0)")
        e(f"v_lshl_add_u32 v{T}, v{T}, 6, v{Q}\nbuffer_load_dwordx4 {vr(dst+4,4)}, v{T}, {sr(S_TABL)}, 0 offen\ns_waitcnt vmcnt(0)")
        for t in range(4): e(f"v_lshlrev_b32 v{dst+2*t}, 16, v{dst+4+t}\nv_and_b32 v{dst+2*t+1}, 0xffff0000, v{dst+4+t}")
    e("L_fb_i:")
    getrow(EI, sU)
    e(f"s_add_u32 s{sCNT}, s{sU}, 4")
    e("L_fb_j:")
    getrow(EJ, sCNT)
    for t in range(8): e(f"v_mul_f32 v{EJ+t}, v{EJ+t}, v{EI+t}")
    for t in range(4): e(f"v_cvt_pk_bf16_f32 v{PK+t}, v{EJ+2*t}, v{EJ+2*t+1}")
    e("s_nop 1")
    e(f"v_mfma_f32_16x16x32_bf16 {vr(DD,4)}, {vr(A0,4)}, {vr(PK,4)}, {vr(C0,4)}")
    e(f"v_mfma_f32_16x16x32_bf16 {vr(DD+4,4)}, {vr(A1,4)}, {vr(PK,4)}, {vr(C1,4)}")
    e(f"v_mfma_f32_16x16x32_bf16 {vr(DS,4)}, {vr(AP,4)}, {vr(PK,4)}, 0")
    e("s_nop 7")
    for t in range(4): e(f"v_cvt_pk_bf16_f32 v{HK+t}, v{DD+2*t}, v{DD+2*t+1}")
    for t in range(4): e(f"v_pk_max_i16 v{HK+t}, v{HK+t}, 0")
    e("s_nop 1")
    e(f"v_mfma_f32_16x16x32_bf16 {vr(DD,4)}, {vr(AH,4)}, {vr(HK,4)}, 0")
    e("s_nop 7")
    e(f"v_mul_f32 v{DD}, 0x3fb8aa3b, v{DD}\nv_max_f32 v{DD+1}, v{M}, v{DD}\nv_sub_f32 v{DD+2}, v{M}, v{DD+1}\nv_sub_f32 v{DD+3}, v{DD}, v{DD+1}")
    e(f"v_exp_f32 v{DD+2}, v{DD+2}\nv_exp_f32 v{DD+3}, v{DD+3}\nv_mov_b32 v{M}, v{DD+1}")
    e(f"v_fma_f32 v{LL}, v{LL}, v{DD+2}, v{DD+3}\nv_mul_f32 v{ACc}, v{ACc}, v{DD+2}\nv_fma_f32 v{ACc}, v{DD+3}, v{DS}, v{ACc}")
    e(f"s_add_u32 s{sCNT}, s{sCNT}, 4\ns_cmp_lt_u32 s{sCNT}, 104\ns_cbranch_scc1 L_fb_j")
    e(f"s_add_u32 s{sU}, s{sU}, 4\ns_cmp_lt_u32 s{sU}, 100\ns_cbranch_scc1 L_fb_i")
    e(f"v_rcp_f32 v{LL}, v{LL}\nv_lshlrev_b32 v{N}, 1, v{N}\nv_mul_f32 v{ACc}, v{ACc}, v{LL}\nv_cvt_pk_bf16_f32 v{ACc}, v{ACc}, v{ACc}")
    e("s_mov_b64 exec, 0xffff")
    e(f"buffer_store_short v{ACc}, v{N}, {sr(S_OUT)}, s{sT2} offen")
    e("s_branch L_fin")

B_ = 8; A_ = 72; A5 = 104; CB = 120; HQ = 184; D_ = 200; ACC = 232; INIT = 248; TW = 249

PREF = False
NB0 = opt('nb0', 4); NB1 = opt('nb1', 8); CL0 = opt('cl0', 5)
def flag_store(nm, n):
    sync_wait(0, 8, nm)
    e(f"s_waitcnt vmcnt(0) lgkmcnt(0)\ns_add_u32 s{sTAG}, s{sTAG}, 0x9e3779b1\ns_lshl_b32 s{sT0}, s2, 4\ns_lshl_b32 s{sT1}, s{sU}, 2\ns_add_u32 s{sT0}, s{sT0}, s{sT1}\ns_add_u32 s{sT0}, s{sT0}, {FLG:#x}")
    e(f"v_mov_b32 v6, s{sT0}\nv_mov_b32 v7, s{sTAG}\ns_mov_b64 exec, 1\nglobal_store_dword v6, v7, s[{P_WS}:{P_WS+1}]{SC}\ns_mov_b64 exec, -1")

def hi():
    WV = 120; TP = 136; TU = 144; T = 184
    e("L_hi:")
    vm = ['s'] * 5
    def vmem(lab, txt): e(txt); vm.append(lab)
    def vneed(lab): return len(vm) - 1 - max(i for i, x in enumerate(vm) if x == lab)
    vmem('s', f"global_load_dwordx4 {vr(TP+4,4)}, v5, s[{P_TAB}:{P_TAB+1}] offset:16")
    for t in range(1, 16): vmem('s', f"global_load_short_d16_hi v{WV+t}, v4, s[{P_W}:{P_W+1}] offset:{t*64-64}")
    pre_addr()
    vmem('x', f"global_load_dword v255, v2, s[{P_WS}:{P_WS+1}]")
    lds_common()
    k.srd(S_TABL, P_TAB, 64000)
    e(f"v_lshlrev_b32 v7, 6, v6\nv_lshl_add_u32 v250, v252, 5, v7\nv_add_u32 v251, 4096, v250\nv_add_u32 v3, -4096, v3")
    e(f"s_waitcnt lgkmcnt(0)\ns_load_dword s{sTAG}, s[{P_WS}:{P_WS+1}], {EPOCH:#x}\ns_barrier")
    e("s_cmp_ge_u32 s2, 250\ns_cbranch_scc1 L_hi_skip")
    e(f"s_lshl_b32 s{sG}, s{sU}, 14\ns_add_u32 s{sG+1}, s{sG}, 0x2000")
    def bload(n):
        b, ks = n // 2, n % 2
        vmem(f"b{b//2}", f"buffer_load_dwordx4 {vr(B_+8*b+4*ks,4)}, v{250+(b//2)%2}, {sr(S_TABL)}, s{sG if b<4 else sG+1} offen offset:{(b%2)*2048+ks*16}")
    for n in range(NB0): bload(n)
    k.srd(S_RES, P_WS, 0x800000, R0)
    k.srd(S_ROW, P_WS, 0x100000, ROW0)
    def clear(h):
        vmem('c', f"buffer_store_dwordx4 {'v[240:243]' if CL0 < 0 else 'v[252:255]'}, v3, {sr(S_RES)}, s{sT2} offen{SC}")
        if h < 3: e(f"s_add_u32 s{sT2}, s{sT2}, 0x1000")
    def prefetch():
        e(f"s_getpc_b64 s[{sEX}:{sEX+1}]\nL_pc:\ns_sub_u32 s{sEX}, s{sEX}, L_pc-{KN}\ns_subb_u32 s{sEX+1}, s{sEX+1}, 0")
        e(f"v_lshlrev_b32 v6, 3, v3\nv_min_u32 v6, L_code_end-{KN}-4, v6\nv_mov_b32 v7, s{sEX+1}\nv_add_co_u32 v6, vcc, s{sEX}, v6\ns_nop 1\nv_addc_co_u32 v7, vcc, 0, v7, vcc")
        vmem("p", "global_load_dword v253, v[6:7], off")
    with rare():
        e("L_hi_skip:"); k.srd(S_RES, P_WS, 0x800000, R0); e("s_waitcnt lgkmcnt(0)\ns_branch L_hi_final")
    e(f"s_lshl_b32 s{sT0}, s{sU}, 11\nv_lshlrev_b32 v4, 4, v{vL}\nv_add_u32 v5, s{sT0}, v4\nv_cmp_gt_u32 vcc, 32, v{vL}\nv_lshlrev_b32 v7, 2, v{vL}")
    e(f"s_lshl_b32 s{sT0}, s{sU}, 12\nv_add_u32 v{TW}, s{sT0}, v4")
    if PREF and opt('pf', 4) < 0:
        e("v_mov_b32 v254, v7"); prefetch(); e(f"v_mov_b32 v7, v254\nv_cmp_gt_u32 vcc, 32, v{vL}")
    e(f"s_waitcnt vmcnt({vneed('s')})")
    k.stamp(2)

    for t in range(8): e(f"v_lshlrev_b32 v{TU+2*t}, 16, v{TP+t}\nv_and_b32 v{TU+2*t+1}, 0xffff0000, v{TP+t}")
    for t in range(16): e(f"v_mul_f32 v{WV+t}, v{WV+t}, v{TU+t}")
    for t in range(8): e(f"v_cvt_pk_bf16_f32 v{TP+t}, v{WV+2*t}, v{WV+2*t+1}")
    e(f"ds_write_b128 v5, {vr(TP,4)} offset:{AIMG}\nds_write_b128 v5, {vr(TP+4,4)} offset:{AIMG+1024}")
    e(f"v_mul_f32 v{T+2}, {LOG2E_HALF:#x}, v{T+2}\nv_cndmask_b32 v6, v{T+2}, v{T+1}, vcc\nds_write_b32 v7, v6 offset:{BH}")
    for n in range(NB0, NB1): bload(n)
    e("s_waitcnt lgkmcnt(0)")
    sync_add(1)
    sync_wait(1, 4, 'hi')
    e("v_lshlrev_b32 v5, 4, v252")
    k.stamp(3)
    for i in range(2): e(f"ds_read_b128 {vr(A_+4*i,4)}, v4 offset:{AIMG+1024*i}")
    for i in range(4): e(f"ds_read_b128 {vr(CB+4*i,4)}, v5 offset:{BH}")
    for g in range(4): e(f"ds_read_b128 {vr(HQ+4*g,4)}, v5 offset:{BH+128+32*g}")
    for g in range(1, 4): e(f"ds_read_b128 {vr(CB+16*g,4)}, v5 offset:{BH+32*g}")
    e(f"s_waitcnt vmcnt({vneed('b0')}) lgkmcnt(7)"); k.stamp(7)
    later = []
    for g in range(1, 4):
        later += [f"ds_read_b128 {vr(A_+8*g+4*i,4)}, v4 offset:{AIMG+1024*(2*g+i)}" for i in range(2)]
        later += [f"ds_read_b128 {vr(CB+16*g+4*i,4)}, v5 offset:{BH+32*g}" for i in range(1, 4)]
    steps = []
    for bp in range(4): steps += [('r', bp, g, b) for g in range(4) for b in range(2)] + [('x', bp, 0, 0)]
    NS = len(steps)
    def mms(s):
        kind, bp, g, b = steps[s]; d = D_ + 16 * (s % 2)
        if kind == 'r':
            bb = B_ + 8 * (2 * bp + b)
            return [f"v_mfma_f32_32x32x16_bf16 {vr(d,16)}, {vr(A_+8*g,4)}, {vr(bb,4)}, {vr(CB+16*g,16)}",
                    f"v_mfma_f32_32x32x16_bf16 {vr(d,16)}, {vr(A_+8*g+4,4)}, {vr(bb+4,4)}, {vr(d,16)}"]
        return [f"v_mfma_f32_32x32x16_bf16 {vr(d,16)}, {vr(A5+8*b2+4*ks,4)}, {vr(B_+8*(2*bp+b2)+4*ks,4)}, {'0' if b2+ks==0 else vr(d,16)}"
                for b2 in range(2) for ks in range(2)]
    def valu(s):
        kind, bp, g, b = steps[s]; d = D_ + 16 * (s % 2); X = ACC + 8 * (bp % 2); Y = X + 4
        if kind == 'r':
            a = X + 4 * b
            return [f"v_fma_f32 v{a+v}, v{HQ+4*g+r}, |v{d+4*v+r}|, " + (f"-v{INIT}" if g == 0 and r == 0 else f"v{a+v}") for r in range(4) for v in range(4)]
        o = [f"v_permlane32_swap_b32 v{X+v}, v{Y+v}" for v in range(4)]
        o += [f"v_add_f32 v{X+v}, v{X+v}, v{Y+v}" for v in range(4)]
        o += [f"v_add_f32 v{X+v}, v{X+v}, v{d+4*v}" for v in range(4)]
        o += [f"v_exp_f32 v{X+v}, v{X+v}" for v in range(4)]
        o += [f"v_mul_f32 v{Y+v}, v{X+v}, v{d+4*v+1}" for v in range(4)]
        o += [f"v_cvt_pk_bf16_f32 v{X+v}, v{Y+v}, v{X+v}" for v in range(4)]
        o += [f"ds_write_b128 v{TW}, {vr(X,4)} offset:{TAB+16+1024*bp}"]
        return o
    m = mms(0)
    e(m[0])
    for x in later[:5]: e(x)
    e(m[1])
    e("s_waitcnt lgkmcnt(5)")
    for x in later[5:10]: e(x)
    e(f"v_mul_f32 v{INIT}, v{HQ}, |v{CB}|")
    for g in range(4):
        for r in range(4):
            if g or r: e(f"v_fma_f32 v{INIT}, v{HQ+4*g+r}, |v{CB+16*g+r}|, v{INIT}")
    nb_next = [NB1]
    for s in range(NS):
        v = valu(s); m = mms(s + 1) if s + 1 < NS else []
        if s + 1 < NS:
            kind, bp, g, b = steps[s + 1]
            if bp == 0 and kind == 'r' and b == 0 and g == 1: e("s_waitcnt lgkmcnt(5)"); [e(x) for x in later[10:15]]
            if bp == 0 and kind == 'r' and b == 0 and g == 2: e("s_waitcnt lgkmcnt(5)")
            if bp == 0 and kind == 'r' and b == 0 and g == 3:
                sync_wait(2, 2, 'a5')
                for i in range(4): e(f"ds_read_b128 {vr(A5+4*i,4)}, v4 offset:{AIMG+8192+1024*i}")
            if bp == 0 and kind == 'x': e("s_waitcnt lgkmcnt(0)")
            if kind == 'r' and g == 0 and b == 0 and bp > 0:
                e(f"s_waitcnt vmcnt({vneed(f'b{bp}')})"); k.stamp({1: 4, 2: 8, 3: 10}[bp])
            if bp == 0 and kind == 'r' and b == 0 and g == 3: k.stamp(1)

        for _ in range(opt('bps', 2)):
            if nb_next[0] < 16 and s >= opt('bs0', 0): bload(nb_next[0]); nb_next[0] += 1
        if s == 2: k.stamp(9)
        if s == opt('pf', 4) and PREF: prefetch()
        if len(m) == 2:
            n = 6 if steps[s][0] == 'x' else 5
            e(m[0]); [e(x) for x in v[:n]]; e(m[1]); [e(x) for x in v[n:]]
        elif len(m) == 4:
            e(m[0]); [e(x) for x in v[:4]]; e(m[1]); [e(x) for x in v[4:8]]; e(m[2]); [e(x) for x in v[8:12]]; e(m[3]); [e(x) for x in v[12:]]
        else:
            e("s_nop 1"); [e(x) for x in v]
    k.stamp(5)
    hi_lookup()
    e("L_hi_done:")

def finish():
    if STAMP:
        e(f"{CLK} s[{sH}:{sH+1}]\ns_waitcnt lgkmcnt(0)\ns_mov_b64 exec, 1")
        e(f"s_lshl_b32 s{sT0}, s2, 3\ns_add_u32 s{sT0}, s{sT0}, s{sJ}\ns_lshl_b32 s{sT0}, s{sT0}, 7\ns_add_u32 s{sT0}, s{sT0}, {STAMP0:#x}")
        e(f"v_mov_b32 v2, s{sT0}")
        for i in range(NST): e(f"v_mov_b32 v3, s{sST+2*i}\nglobal_store_dword v2, v3, s[{P_WS}:{P_WS+1}] offset:{4*i}")
        e(f"v_mov_b32 v3, s{sH}\nglobal_store_dword v2, v3, s[{P_WS}:{P_WS+1}] offset:{4*NST}")
        e(f"v_mov_b32 v3, {NST+1}\nglobal_store_dword v2, v3, s[{P_WS}:{P_WS+1}] offset:124")
    e("s_endpgm")

prologue()
route()
lo_lookup()
final()
finish()
hi()
finish()
e("L_end:\ns_endpgm")
with rare(): fallback()
hazard.check(k.L); hazard.check(k.tail)
src = HEADER + f"; @launch grid=(256,1,1) block=(512,1,1) lds={LDS_BYTES}\n"
src += f'.amdgcn_target "amdgcn-amd-amdhsa--gfx950"\n.text\n.globl {KN}\n.p2align 8\n.type {KN},@function\n{KN}:\n'
src += "\n".join(k.L) + "\n" + "\n".join(k.tail) + "\nL_code_end:\n"
src += '.section .rodata,"a"\n' + kd(KN, 256, 102)
open(sys.argv[1], "w").write(src)
print("lds", LDS_BYTES)
```

```python
import sys
from common import *
import hazard

OPT = set(sys.argv[2].split(',')) if len(sys.argv) > 2 else set()
def opt(name, d):
    for o in OPT:
        if o.startswith(name + '='): return int(o.split('=')[1])
    return d
STAMP = 'stamp' in OPT
NGLO = opt('nglo', 3)
CLK = 's_memtime' if 'cyc' in OPT else 's_memrealtime'
DL1, DL2, SL1, SL2 = opt('dl1', 0), opt('dl2', 0), opt('sl1', 0), opt('sl2', 0)
PRE = 'nopre' not in OPT

EPOCH, L0, ROW0, R0, R1 = 0x0, 0x10000, 0x400000, 0x800000, 0xC00000
STAMP0 = 0x1000000
FLG = 0x1000
TAB, CNT, BH, GP, AIMG, LIMG, WL = 0, 0x4100, 0x4500, 0x4600, 0x5000, 0x8000, 0xC000
RS = LIMG
NANW = 0x4080
ROWPF = 'rowpf' in OPT
SYNC = CNT + 1000
LIMIT = 0x4000
RLV = 0x400000
FL = 0x10000; FLS = 8192; RIM = 0x18000; NW = 0x4090; DUMP = 0x4C00
DRY = 'dry' in OPT
LDS_BYTES = RIM + 4 * 8192 + (16384 if DRY else 0)
S_IDX, S_TABL, S_W, S_LIST, S_ROW, S_RES, S_OUT = 4, 8, 12, 16, 20, 24, 28
sG = 32
P_IDX, P_TAB, P_W, P_B, P_H, P_P, P_OUT, P_WS = 36, 38, 40, 42, 44, 46, 48, 50
sJ, sRARE, sTAG, sT2, sT0, sT1, sNT, sBAD, sU, sCNT = 52, 53, 54, 55, 56, 57, 58, 59, 60, 61
sEX = 62
sRND = 3
sPOS = 36
sH = 64
sST = 80
NST = 11
LOG2E_HALF = 0x3f38aa3b
vL = 1
SC = " sc0 sc1" if "sys" in OPT else " sc1"
PF = " sc0 sc1" if "pollsys" in OPT else " sc0 sc1 nt" if "pollnt" in OPT else " sc1 nt" if "pollnt1" in OPT else SC
KN = NAME + "_kernel"

class K:
    def __init__(s): s.L = []; s.tail = []; s.cur = s.L
    def e(s, x):
        for ln in x.split('\n'):
            ln = ln.strip()
            if ln: s.cur.append(ln if ln.endswith(':') else '    ' + ln)
    def stamp(s, i):
        if STAMP: s.e(f"{CLK} s[{sST+2*i}:{sST+2*i+1}]")
    def srd(s, d, p, n, off=0):
        if off: s.e(f"s_add_u32 s{d}, s{p}, {off:#x}\ns_addc_u32 s{d+1}, s{p+1}, 0")
        else: s.e(f"s_mov_b64 s[{d}:{d+1}], s[{p}:{p+1}]")
        s.e(f"s_mov_b32 s{d+2}, {n:#x}\ns_mov_b32 s{d+3}, 0x00020000")
k = K(); e = k.e
def vr(a, n): return f"v[{a}:{a+n-1}]"
def sr(a): return f"s[{a}:{a+3}]"
class keep:
    def __enter__(s): pass
    def __exit__(s, *a): pass
class rare:
    def __enter__(s): s.old = k.cur; k.cur = k.tail
    def __exit__(s, *a): k.cur = s.old

LOC = 8
G = 16; RM = 80; EN = 96; TQ = 112; AS = 166; AC = 182; BQ = 230; DX = 202
cA, cOFF, cBIT, cWR, cFL, cMSK = 246, 247, 248, 249, 250, 251
cR = 252
cAM, cDR, cRD, cRA = 198, 199, 200, 201
WA = 140

def prologue():
    e("s_cmp_ge_u32 s2, 256\ns_cbranch_scc1 L_end")
    k.stamp(0)
    if 'pftop' in OPT:
        sh = opt('pfs', 6)
        e(f"s_getpc_b64 s[{sEX}:{sEX+1}]\nv_lshlrev_b32 v4, {sh}, v0\nv_min_u32 v4, L_code_end-{KN}-64, v4\nv_mov_b32 v5, s{sEX+1}\nv_add_co_u32 v4, vcc, s{sEX}, v4\ns_nop 1\nv_addc_co_u32 v5, vcc, 0, v5, vcc")
        e("global_load_dword v135, v[4:5], off")
    e(f"s_load_dwordx4 s[{P_IDX}:{P_IDX+3}], s[0:1], 0")
    e(f"s_load_dwordx2 s[{P_WS}:{P_WS+1}], s[0:1], 80")
    e(f"s_load_dwordx8 s[{P_W}:{P_W+7}], s[0:1], 32")
    e(f"s_load_dwordx2 s[{P_OUT}:{P_OUT+1}], s[0:1], 64")
    e(f"v_lshrrev_b32 v2, 6, v0\nv_and_b32 v{vL}, 63, v0")
    e(f"v_readfirstlane_b32 s{sJ}, v2")
    e("v_mov_b32 v240, -1\nv_mov_b32 v241, -1\nv_mov_b32 v242, -1\nv_mov_b32 v243, -1")
    e(f"v_lshlrev_b32 v3, 4, v0\nds_write_b128 v3, v[240:243] offset:{LIMG}\nds_write_b128 v3, v[240:243] offset:{LIMG+8192}")
    e(f"s_and_b32 s{sU}, s{sJ}, 3\ns_cmp_ge_u32 s{sJ}, 4\ns_cbranch_scc1 L_hi")

def sync_add(i):
    e(f"v_mov_b32 v5, {SYNC+4*i}\nv_mov_b32 v6, 1\ns_mov_b64 exec, 1\nds_add_u32 v5, v6\ns_mov_b64 exec, -1")
def sync_wait(i, n, nm, sleep=0):
    e(f"v_mov_b32 v5, {SYNC+4*i}\nL_sync_{nm}:")
    if sleep: e(f"s_sleep {sleep}")
    e(f"ds_read_b32 v6, v5\ns_waitcnt lgkmcnt(0)\nv_cmp_gt_u32 vcc, {n}, v6\ns_cbranch_vccnz L_sync_{nm}")

def make_loc(KK, C4, full):
    e(f"v_mov_b32 v7, {RS}")
    if full: e(f"v_mov_b32 v6, {NANW}\nv_mov_b32 v4, -1\nds_write_b32 v6, v4")
    for t in range(8):
        if t == 2: e("s_mov_b32 exec_lo, 0x77777777\ns_mov_b32 exec_hi, 0x77777777")
        if full:
            e(f"v_and_b32 v4, 30, v{KK+t}\nv_lshlrev_b32 v5, 3, v{C4+t}\nv_add_lshl_u32 v4, v4, v5, 1\nv_cmp_le_u32 vcc, 48, v{KK+t}")
            e(f"v_lshrrev_b32 v5, 5, v{KK+t}\nv_lshlrev_b32 v5, 14, v5\nv_add3_u32 v4, v4, v5, v7\nv_cndmask_b32 v{LOC+t}, v4, v6, vcc")
        else:
            e(f"v_lshl_add_u32 v4, v{C4+t}, 3, v{KK+t}\nv_lshl_add_u32 v{LOC+t}, v4, 1, v7")
    e("s_mov_b64 exec, -1")

def lookup_consts():
    e(f"v_and_b32 v4, 15, v{vL}\nv_bfe_u32 v5, v{vL}, 4, 1\nv_lshrrev_b32 v{cBIT}, 5, v{vL}")
    e(f"s_mul_i32 s{sG+1}, s{sU}, {FLS}\ns_add_u32 s{sG+1}, s{sG+1}, {FL}\ns_lshl_b32 s{sG}, s{sU}, 18\ns_lshl_b32 s{sG+2}, s{sU}, 13\ns_add_u32 s{sG+2}, s{sG+2}, {RIM}")
    e(f"v_and_b32 v{cFL}, 31, v{vL}\nv_lshl_add_u32 v{cFL}, v{cFL}, 2, s{sG+1}")
    e(f"v_lshrrev_b32 v7, 4, v{vL}\nv_lshl_add_u32 v{cDR}, v7, 5, v4\nv_lshl_add_u32 v{cDR}, v{cDR}, 2, s{sG+1}")
    e(f"v_add_u32 v{cA}, -1, v{cBIT}\nv_and_b32 v{cA}, 0xffff0000, v{cA}")
    e(f"v_mul_u32_u24 v{cOFF}, 12, v{cBIT}\nv_mul_i32_i24 v{cWR}, -52, v{cBIT}\nv_mov_b32 v{cMSK}, 0x7ffffffe\nv_mov_b32 v{cAM}, 0x2003fffc")
    e(f"v_and_b32 v6, 1, v4\nv_lshlrev_b32 v6, 4, v6\nv_lshrrev_b32 v6, v6, 1.0")
    e(f"v_bfe_u32 v7, v4, 1, 1\nv_xor_b32 v7, v7, v5\nv_add_u32 v7, -1, v7\nv_and_b32 v6, v6, v7\nv_lshrrev_b32 v7, 2, v4")
    for q in range(4):
        e(f"v_xor_b32 v4, {q}, v7\nv_add_u32 v4, -1, v4\nv_ashrrev_i32 v4, 31, v4\nv_and_b32 v{AS+4*q}, v4, v6")
        for i in range(1, 4): e(f"v_mov_b32 v{AS+4*q+i}, v{AS+4*q}")
    e(f"v_mov_b32 v{BQ+7}, 0\nv_mov_b32 v{BQ+15}, 0")
    e(f"v_and_b32 v4, 3, v{vL}\nv_lshrrev_b32 v5, 2, v{vL}\nv_lshlrev_b32 v{cRD}, 10, v4\nv_lshl_add_u32 v{cRD}, v5, 2, v{cRD}\nv_add_u32 v{cRD}, s{sG+2}, v{cRD}")
    e(f"v_lshlrev_b32 v4, 4, v4\nv_lshl_add_u32 v{cRA}, v5, 14, v4")
    e(f"s_lshl_b32 s{sG+3}, s{sU}, 20\ns_lshl_b32 s{sT0}, s2, 6\ns_add_u32 s{sG+3}, s{sG+3}, s{sT0}")

def res_tags(lane_expr, cR=cR):
    e(f"s_and_b32 s{sT0}, s{sTAG}, 255\ns_xor_b32 s{sT1}, s{sTAG}, 1\ns_and_b32 s{sT1}, s{sT1}, 3\ns_lshl_b32 s{sT1}, s{sT1}, 8\ns_or_b32 s{sT0}, s{sT0}, s{sT1}")
    e(f"s_lshr_b32 s{sT1}, s{sTAG}, 8\ns_lshl_b32 s{sT1}, s{sT1}, 10\ns_or_b32 s{sT0}, s{sT0}, s{sT1}")
    e(lane_expr)
    e(f"v_lshlrev_b32 v4, 3, v4\nv_lshrrev_b32 v4, v4, s{sT0}")
    for j in range(4): e(f"v_bfe_u32 v5, v4, {2*j}, 2\nv_alignbit_b32 v{cR+j}, v5, v5, 1")

PM = opt('pm', 0)
def pre_addr():
    sh = opt('psh', 21); n = (1 << (24 - sh)) - 1
    e(f"v_and_b32 v2, {min(n,63)}, v{vL}\nv_lshlrev_b32 v2, {sh}, v2\nv_add_u32 v2, {(1<<sh)-128:#x}, v2")

def late_consts():
    lookup_consts()
    e(f"s_lshl_b32 s{sCNT}, s{sU}, 12\nv_lshrrev_b32 v4, 4, v{vL}\nv_xor_b32 v4, v4, v{vL}\nv_and_b32 v4, 3, v4\nv_and_b32 v5, 60, v{vL}\nv_or_b32 v4, v4, v5\nv_lshl_add_u32 v{WA}, v4, 4, s{sCNT}")
    e(f"v_lshrrev_b32 v4, 2, v{vL}\nv_lshl_add_u32 v5, v{vL}, 6, s{sCNT}")
    for g in range(4): e(f"v_xor_b32 v6, {g}, v4\nv_and_b32 v6, 3, v6\nv_lshl_add_u32 v{WA+1+g}, v6, 4, v5")
    e(f"v_lshl_add_u32 v4, v{vL}, 4, s{sG+1}")
    for i in range(8): e(f"ds_write_b128 v4, v[240:243] offset:{1024*i}")
    if 'lateconst' in OPT: res_tags("v_and_b32 v4, 3, v0")

def code_prefetch(nm, dst):
    e(f"s_getpc_b64 s[{sEX}:{sEX+1}]\nL_pc{nm}:\ns_sub_u32 s{sEX}, s{sEX}, L_pc{nm}-{KN}\ns_subb_u32 s{sEX+1}, s{sEX+1}, 0")
    e(f"v_and_b32 v6, 255, v0\nv_lshlrev_b32 v6, 7, v6\nv_min_u32 v6, L_code_end-{KN}-4, v6\nv_mov_b32 v7, s{sEX+1}\nv_add_co_u32 v6, vcc, s{sEX}, v6\ns_nop 1\nv_addc_co_u32 v7, vcc, 0, v7, vcc")
    e(f"global_load_dword v{dst}, v[6:7], off")

def route():
    V = 16; KK = 24; C4 = 32; RW = 40; EB = 44; T = 52
    TP = 64; TU = 72; WR = 88; WV = 104; MU = 120; PP = 128
    e(f"s_setprio {opt('prio', 2)}")
    if 'pf0lo' in OPT: code_prefetch('b', 135)
    e(f"v_mov_b32 v4, 0\nv_lshlrev_b32 v5, 2, v0\nds_write_b32 v5, v4 offset:{CNT}\nv_and_b32 v5, 12, v5\nds_write_b32 v5, v4\nds_write_b32 v5, v4 offset:{NW}")
    e(f"v_lshrrev_b32 v{T}, 2, v0\nv_and_b32 v{T+1}, 3, v0\nv_lshlrev_b32 v{T+1}, 2, v{T+1}")
    e(f"v_mul_u32_u24 v{T+2}, 104, v{T}\ns_mul_i32 s{sT1}, s2, 6656")
    for t in range(4):
        e(f"v_add_u32 v{EB+2*t}, {t}, v{T+1}\nv_add_u32 v{T+3}, {t-13}, v{T+1}\nv_min_u32 v{EB+2*t}, v{EB+2*t}, v{T+3}")
        e(f"v_lshl_add_u32 v{T+4+t}, v{EB+2*t}, 3, v{T+2}")
    if PM == 2: pre_addr()
    e("s_waitcnt lgkmcnt(0)")
    if PM == 2: e(f"global_load_dword v129, v2, s[{P_WS}:{P_WS+1}]")
    k.srd(S_IDX, P_IDX, 16384 * 104)
    for t in range(4): e(f"buffer_load_dwordx2 {vr(V+2*t,2)}, v{T+4+t}, {sr(S_IDX)}, s{sT1} offen")
    e(f"s_load_dword s{sTAG}, s[{P_WS}:{P_WS+1}], {EPOCH:#x}")
    e(f"s_load_dwordx16 s[{sH}:{sH+15}], s[{P_H}:{P_H+1}], 0")
    e("s_barrier")
    if 'nopos' in OPT: e(f"s_mov_b32 s{sPOS}, s2")
    else: e(f"s_and_b32 s{sPOS}, s2, 6\ns_lshl_b32 s{sPOS}, s{sPOS}, 5\ns_lshr_b32 s{sT0}, s2, 3\ns_lshl_b32 s{sT0}, s{sT0}, 1\ns_or_b32 s{sPOS}, s{sPOS}, s{sT0}\ns_and_b32 s{sT0}, s2, 1\ns_or_b32 s{sPOS}, s{sPOS}, s{sT0}")
    k.srd(S_TABL, P_TAB, 64000)
    k.srd(S_W, P_W, 2048)
    e(f"v_lshrrev_b32 v130, 5, v{vL}\nv_and_b32 v131, 7, v{vL}")
    e(f"v_bfe_u32 v5, v{vL}, 3, 2\nv_lshlrev_b32 v5, 6, v5\nv_lshl_add_u32 v5, v130, 5, v5")
    e(f"v_and_b32 v6, 31, v{vL}\nv_lshlrev_b32 v7, 6, v6\nv_lshlrev_b32 v6, 1, v6\ns_lshl_b32 s{sT1}, s2, 8\ns_lshr_b32 s{sT2}, s{sU}, 1\ns_lshl_b32 s{sT0}, s{sT2}, 4\ns_add_u32 s{sT1}, s{sT1}, s{sT0}")
    e(f"buffer_load_dwordx4 {vr(TP,4)}, v5, {sr(S_TABL)}, s{sT1} offen")
    for t in range(4): e(f"buffer_load_dwordx4 {vr(WR+4*t,4)}, v7, {sr(S_W)}, 0 offen offset:{16*t}")
    e(f"global_load_short_d16_hi v{PP}, v6, s[{P_P}:{P_P+1}]")
    e(f"s_mul_i32 s{sT0}, s{sU}, 384\nv_lshlrev_b32 v132, 2, v{vL}\nv_add_u32 v132, s{sT0}, v132")
    e(f"v_mov_b32 v4, 0\nv_lshl_add_u32 v7, v6, 1, s{sT0}\nds_write_b32 v7, v4 offset:{GP+256}")
    e(f"s_and_b32 s{sT1}, s{sU}, 1\ns_lshl_b32 s{sNT}, s{sT1}, 2\nv_subrev_u32 v133, s{sNT}, v131\nv_min_u32 v133, 2, v133\nv_lshlrev_b32 v133, 7, v133\nv_lshl_add_u32 v133, v130, 6, v133")
    e(f"s_lshl_b32 s{sNT}, s{sT2}, 5\ns_add_u32 s{sT0}, s{sT0}, s{sNT}\nv_add_u32 v133, s{sT0}, v133")
    e(f"s_lshl_b32 s{sT1}, s{sT1}, 1\ns_add_u32 s{sT1}, s{sT1}, s{sT2}\ns_lshl_b32 s{sT1}, s{sT1}, 10\nv_lshlrev_b32 v134, 4, v{vL}\nv_add_u32 v134, s{sT1}, v134")
    k.srd(S_ROW, P_WS, 0x100000, ROW0)
    k.srd(S_LIST, P_WS, 250 * 16384, L0)
    k.srd(S_RES, P_WS, 0x800000, R0)
    k.srd(S_OUT, P_OUT, 32768)
    e(f"v_lshlrev_b32 v{T+3}, 8, v{T}")
    for t in range(4):
        e(f"v_add_u32 v4, 6, v{EB+2*t}\nv_lshl_or_b32 v{EB+2*t+1}, v{EB+2*t}, 4, v{T+3}")
        e(f"v_lshrrev_b32 v4, 4, v4\nv_lshl_or_b32 v{EB+2*t+1}, v4, 1, v{EB+2*t+1}\nv_or_b32 v{EB+2*t}, 1, v{EB+2*t+1}")
    for t in range(8): e(f"v_mov_b32 v{LOC+t}, 0\nv_mov_b32 v{KK+t}, 0")
    if 'lateconst' not in OPT: late_consts()
    e(f"v_mov_b32 v2, 2\nv_mov_b32 v7, 0x100010\ns_lshl_b32 s{sT0}, s2, 12")
    e(f"v_and_b32 v4, 3, v0\nv_lshlrev_b32 v{T+4}, 14, v{T}\nv_lshl_add_u32 v{T+4}, v4, 4, v{T+4}")
    e(f"v_add_u32 v{T+5}, 1, v4\nv_lshrrev_b32 v{T+5}, 2, v{T+5}\nv_sub_u32 v{T+5}, 0, v{T+5}")
    e(f"s_waitcnt lgkmcnt(0)\ns_add_u32 s{sTAG}, s{sTAG}, 1")
    if 'lateconst' not in OPT: res_tags("v_and_b32 v4, 3, v0")
    e(f"s_lshl_b32 s{sT0}, s{sPOS}, 12\ns_waitcnt vmcnt(6)")
    k.stamp(1)
    for t in range(4): e(f"v_lshl_or_b32 v{RW+t}, v{V+2*t+1}, 16, v{V+2*t}\nv_lshl_add_u32 v{RW+t}, v{RW+t}, 4, v7")
    e(f"buffer_store_dwordx4 {vr(RW,4)}, v3, {sr(S_ROW)}, s{sT0} offen{SC}")
    for t in range(8):
        if t == 2: e("s_mov_b32 exec_lo, 0x77777777\ns_mov_b32 exec_hi, 0x77777777")
        e(f"v_and_b32 v{C4+t}, -4, v{V+t}\nds_add_rtn_u32 v{KK+t}, v{C4+t}, v2 offset:{CNT}")
    e("s_mov_b64 exec, -1")
    for t in range(8): e(f"v_lshlrev_b32 v{V+t}, 2, v{V+t}\nv_and_or_b32 v{V+t}, v{V+t}, 12, v{EB+t}")
    e("s_waitcnt lgkmcnt(0)")
    for t in range(8):
        if t == 2: e("s_mov_b32 exec_lo, 0x77777777\ns_mov_b32 exec_hi, 0x77777777")
        e(f"v_min_u32 v4, 54, v{KK+t}\nv_lshl_add_u32 v4, v{C4+t}, 4, v4\nds_write_b16 v4, v{V+t} offset:{LIMG}")
    e("s_mov_b64 exec, -1")
    e(f"s_lshl_b32 s{sT0}, s{sPOS}, 6")
    k.stamp(2)
    e(f"s_waitcnt vmcnt(1)\nv_mov_b32 v6, 0\nv_cmp_gt_u32 vcc, 32, v{vL}")
    for t in range(16): e(f"v_dot2_f32_bf16 v6, v{WR+t}, s{sH+t}, v6")
    for t in range(4): e(f"v_lshlrev_b32 v{TU+2*t}, 16, v{TP+t}\nv_and_b32 v{TU+2*t+1}, 0xffff0000, v{TP+t}")
    e(f"v_mul_f32 v6, {LOG2E_HALF:#x}, v6\nv_cndmask_b32 v6, v{PP}, v6, vcc\nds_write_b32 v132, v6 offset:{GP}\ns_waitcnt lgkmcnt(0)")
    for t in range(2): e(f"ds_read_b128 {vr(WV+4*t,4)}, v133 offset:{GP+16*t}")
    e("s_waitcnt lgkmcnt(0)")
    for t in range(8): e(f"v_mul_f32 v{WV+t}, v{WV+t}, v{TU+t}")
    for t in range(4): e(f"v_cvt_pk_bf16_f32 v{MU+t}, v{WV+2*t}, v{WV+2*t+1}")
    e(f"ds_write_b128 v134, {vr(MU,4)} offset:{AIMG+8192}\nv_mov_b32 v7, s{sTAG}")
    e("s_waitcnt vmcnt(0) lgkmcnt(0)")
    sync_add(0)
    sync_wait(0, 4, 'lo')
    k.stamp(3)
    P = 64
    e(f"s_cmp_ge_u32 s{sU}, 2\ns_cbranch_scc1 L_nopub\nv_and_b32 v4, -4, v0")
    for h in range(7): e(f"ds_read_b128 {vr(P+4*h,4)}, v3 offset:{LIMG+2048*h}\nds_read_b32 v{P+32+h}, v4 offset:{CNT+128*h}")
    for h in range(8):
        e(f"s_waitcnt lgkmcnt({12 if h==0 else 14-2*h})")
        if h == 0: e(f"ds_read_b128 {vr(P+28,4)}, v3 offset:{LIMG+2048*7}\nds_read_b32 v{P+39}, v4 offset:{CNT+128*7}")
        e(f"v_bfi_b32 v{P+4*h+3}, v{T+5}, v7, v{P+4*h+3}\nv_bfi_b32 v{P+4*h+2}, v{T+5}, v{P+32+h}, v{P+4*h+2}")
        e(f"buffer_store_dwordx4 {vr(P+4*h,4)}, v{T+4}, {sr(S_LIST)}, s{sT0} offen{SC}")
        if h < 7: e(f"s_add_u32 s{sT0}, s{sT0}, 0x80000")
    e("L_nopub:")
    k.stamp(4)
    make_loc(KK, C4, False)
    e(f"v_max3_u32 v7, v{KK}, v{KK+1}, v{KK+2}\nv_max3_u32 v7, v7, v{KK+3}, v{KK+4}\nv_max3_u32 v7, v7, v{KK+5}, v{KK+6}\nv_max_u32 v7, v7, v{KK+7}")
    e(f"v_cmp_le_u32 vcc, 32, v7\ns_cbranch_vccnz L_mark\nL_mark_ret:")
    with rare():
        e("L_mark:"); make_loc(KK, C4, True); sync_add(4); e("s_branch L_mark_ret")

def decode(ns):
    for i, n in enumerate(ns): e(f"v_lshrrev_b32 v{TQ+i}, 2, v{RM+n}\nv_bfe_i32 v{TQ+4+i}, v{RM+n}, v{cBIT}, 1")
    for i, n in enumerate(ns): e(f"v_and_b32 v{TQ+i}, v{TQ+i}, v{cAM}\nv_and_b32 v{TQ+8+i}, v{TQ+4+i}, v{cWR}")
    for i, n in enumerate(ns): e(f"v_add3_u32 v{TQ+i}, v{TQ+i}, v{cOFF}, v{TQ+8+i}\nv_and_b32 v{TQ+4+i}, v{TQ+4+i}, v{cA}")
    for i, n in enumerate(ns):
        e(f"buffer_load_dwordx4 {vr(G+4*n,4)}, v{TQ+i}, {sr(S_ROW)}, s{sG} offen{SC}\nv_and_or_b32 v{RM+n}, v{RM+n}, 12, v{TQ+4+i}")
def addrs(n, buf):
    g = G + 4 * n; r = RM + n
    e(f"v_and_b32 v{g}, v{g}, v{r}")
    for t, (d, dw, hi) in enumerate([(2, 1, 0), (g + 1, 1, 1), (3, 2, 0), (g + 2, 2, 1), (4, 3, 0), (g + 3, 3, 1), (g, 0, 1)]):
        e(f"v_add_u32_sdwa v{d}, v{r}, v{g+dw} dst_sel:DWORD dst_unused:UNUSED_PAD src0_sel:WORD_0 src1_sel:WORD_{hi}")
        e(f"ds_read_b32 v{BQ+8*buf+t}, v{d}")
def mf(n, buf):
    a = AC + 4 * (n // 4); q = n & 3
    e(f"v_mfma_f32_16x16x32_bf16 {vr(a,4)}, {vr(AS+4*q,4)}, {vr(BQ+8*buf,4)}, {'0' if q==0 else vr(a,4)}")
    e(f"v_mfma_f32_16x16x32_bf16 {vr(a,4)}, {vr(AS+4*q,4)}, {vr(BQ+8*buf+4,4)}, {vr(a,4)}")
def dreads(addr):
    for q in range(4): e(f"ds_read2_b32 {vr(DX+2*q,2)}, v{addr+q//2} offset0:{128*(q%2)} offset1:{128*(q%2)+16}")
def dests():
    for q in range(8): e(f"v_lshrrev_b32 v{DX+q}, 12, v{DX+q}")
    for q in range(8): e(f"v_and_or_b32 v{DX+q}, v{DX+q}, v5, v6")
def scatter():
    for q in range(4):
        a = AC + 4 * q
        e(f"v_cvt_pk_bf16_f32 v{a}, v{a+1}, v{a}\nv_cvt_pk_bf16_f32 v{a+2}, v{a+3}, v{a+2}")
        e(f"ds_write_b32 v{DX+2*q}, v{a}\nds_write_b32 v{DX+2*q+1}, v{a+2}")
def res_stores(lvl, s0):
    T = G + 16 * lvl
    e(f"v_add_u32 v2, 64, v{cRD}\nv_add_u32 v3, 128, v{cRD}\nv_add_u32 v4, 192, v{cRD}\ns_waitcnt lgkmcnt(6)")
    for i in range(4):
        for x in range(2): e(f"ds_read2st64_b32 {vr(T+4*i+2*x,2)}, v{cRD if i==0 else 1+i} offset0:{16*lvl+2*x} offset1:{16*lvl+2*x+1}")
    for i in range(4):
        e(f"s_waitcnt lgkmcnt({6-2*i})")
        for j in range(4): e(f"v_and_or_b32 v{T+4*i+j}, v{T+4*i+j}, v{cMSK}, v{cR+j}")
        e(f"buffer_store_dwordx4 {vr(T+4*i,4)}, v{cRA}, {sr(S_RES)}, s{s0} offen{SC}")
        if i < 3: e(f"s_add_u32 s{s0}, s{s0}, 0x40000")

def lo_lookup():
    POLL = 16; NQ = 3
    e("s_cmp_ge_u32 s2, 250\ns_cbranch_scc1 L_nobucket0")
    with rare(): e("L_nobucket0:\ns_waitcnt lgkmcnt(0)\ns_branch L_nobucket")
    if 'lateconst' in OPT:
        e("s_setprio 0"); late_consts(); e("s_setprio 2")
    e(f"v_lshlrev_b32 v3, 4, v{vL}\ns_lshl_b32 s{sT0}, s2, 14\ns_add_u32 s{sT0}, s{sT0}, s{sCNT}")
    e(f"s_mov_b32 s{sNT}, 0\ns_mov_b32 s{sEX}, 0x88888888\ns_mov_b32 s{sEX+1}, 0x88888888")
    CW, CN1, CD, CP = DX + 8, DX + 9, DX + 10, DX + 11
    e(f"v_lshlrev_b32 v{CW}, 14, v{vL}\nv_mov_b32 v{CD}, {DUMP}\nv_lshl_add_u32 v{CP}, v{vL}, 2, s{sG+1}")
    for i in range(4): e(f"v_mov_b32 v{AC+12+i}, 0")
    e(f"s_mov_b32 s{sRND}, 0\ns_and_b32 s{sT1}, s{sU}, 1\ns_lshl_b32 s{sT1}, s{sT1}, 2\ns_add_u32 s{sT1}, s{sT1}, {NW}\nv_mov_b32 v2, s{sT1}")
    k.stamp(5)
    e(f"s_cmp_ge_u32 s{sU}, 2\ns_cbranch_scc1 L_poller")
    e("L_wait_lists:\ns_sleep 1\nds_read_b32 v4, v2\ns_waitcnt lgkmcnt(0)\nv_cmp_eq_u32 vcc, 0, v4\ns_cbranch_vccnz L_wait_lists")
    e(f"v_cmp_eq_u32 vcc, 1, v4\ns_cbranch_vccnz L_poll1_ok\ns_branch L_gaveup")
    e(f"L_poller:\ns_sub_u32 s{sT1}, s{sT0}, 0x2000\nv_add_u32 v7, {(-0x2000)&0xffffffff:#x}, v{WA}")
    if DL1: e(f"s_sleep {DL1}")
    e("L_poll1:")
    for h in range(8): e(f"buffer_load_dwordx4 {vr(POLL+4*h,4)}, v3, {sr(S_LIST)}, s{sT1 if h<4 else sT0} offen offset:{1024*(h%4)}{PF}")
    for h in range(8):
        e(f"s_waitcnt vmcnt({7-h})")
        if h == 0: e(f"v_xor_b32 v4, s{sTAG}, v{POLL+3}")
        else: e(f"v_xor_b32 v5, s{sTAG}, v{POLL+4*h+3}\nv_or_b32 v4, v4, v5")
        e(f"ds_write_b128 v{7 if h<4 else WA}, {vr(POLL+4*h,4)} offset:{WL+1024*(h%4)}")
    e(f"v_cmp_ne_u32 vcc, 0, v4\ns_and_b64 vcc, vcc, s[{sEX}:{sEX+1}]\nv_mov_b32 v5, 1\ns_waitcnt lgkmcnt(0)")
    e("s_cbranch_vccnz L_poll1_again\nds_write_b32 v2, v5\nL_poll1_ok:")
    with rare():
        e("L_poll1_again:")
        if SL1: e(f"s_sleep {SL1}")
        e(f"s_add_u32 s{sNT}, s{sNT}, 1\ns_cmp_lt_u32 s{sNT}, {LIMIT}\ns_cbranch_scc1 L_poll1")
        for i in range(4): e(f"v_mov_b32 v{POLL+i}, 0")
        for h in range(8): e(f"ds_write_b128 v{7 if h<4 else WA}, {vr(POLL,4)} offset:{WL+1024*(h%4)}")
        e("v_mov_b32 v5, 2\ns_waitcnt lgkmcnt(0)\nds_write_b32 v2, v5\nL_gaveup:")
        for i in range(4): e(f"v_or_b32 v{cR+i}, 0x7fc00000, v{cR+i}")
        e("s_branch L_poll1_ok")
    k.stamp(6)
    if 'loprio0' in OPT: e("s_setprio 0")
    ND = opt('nd', 3); P1 = 2 * ND; P2 = opt('p2', 10)
    e(f"ds_read_b128 {vr(EN,4)}, v{WA+1} offset:{WL}\nds_read_b128 {vr(EN+12,4)}, v{WA+4} offset:{WL}")
    for g in (1, 2): e(f"ds_read_b128 {vr(EN+4*g,4)}, v{WA+1+g} offset:{WL}")
    e("s_waitcnt lgkmcnt(3)")
    def word(j, d, w): e(f"v_or_b32_sdwa v{d}, v{w}, sext(v{EN+j//2}) dst_sel:DWORD dst_unused:UNUSED_PAD src0_sel:DWORD src1_sel:WORD_{j&1}")
    for j in range(ND):
        if j: e(f"v_add_u32 v5, {j<<20:#x}, v{CW}")
        word(j, 6 + (j & 1), 5 if j else CW); e(f"ds_write_b32 v{CP}, v{6+(j&1)} offset:{256*j}")
    for n in range(P1): e(f"ds_read_b32 v{RM+n}, v{cFL} offset:{128*n}")
    e(f"s_waitcnt lgkmcnt({P1+ND+2})\nv_lshrrev_b32 v2, 1, v{EN+14}\nv_min_u32 v2, 24, v2\nv_sub_u32 v2, v2, {ND} clamp\nv_mov_b32 v3, v2\ns_nop 1")
    scan = [f"v_add_u32_dpp v3, v3, v3 {m} row_mask:0xf bank_mask:0xf" for m in ("row_shr:1", "row_shr:2", "row_shr:4", "row_shr:8")]
    scan += ["v_add_u32_dpp v3, v3, v3 row_bcast:15 row_mask:0xa bank_mask:0xf", "v_add_u32_dpp v3, v3, v3 row_bcast:31 row_mask:0xc bank_mask:0xf"]
    e(scan[0]); e(f"s_waitcnt lgkmcnt({max(P1-4,0)})")
    n0 = len(k.L); decode(list(range(min(4, P1))))
    if P1 > 4: e("s_waitcnt lgkmcnt(0)"); decode(list(range(4, P1)))
    body = k.L[n0:]; del k.L[n0:]
    for i, x in enumerate(body):
        k.L.append(x)
        if i % 3 == 2 and len(scan) > 1: e(scan.pop(1))
    for x in scan[1:]: e("s_nop 1"); e(x)
    e(f"v_cmp_eq_u32 vcc, 0, v2\nv_readlane_b32 s{sNT}, v3, 63\nv_sub_u32 v3, v3, v2\nv_lshl_add_u32 v3, v3, 2, s{sG+1}\nv_cndmask_b32 v3, v3, v{CD}, vcc")
    e(f"v_cmp_lt_u32 vcc, {16-ND}, v2\ns_or_b32 s{sBAD}, vcc_lo, vcc_hi\ns_add_u32 s{sNT}, s{sNT}, {64*ND}\ns_waitcnt lgkmcnt(0)\ns_cbranch_vccnz L_fl23")
    e(f"v_cmp_lt_u32 vcc, {14-ND}, v2\nv_add_u32 v5, {15<<20:#x}, v{CW}\ns_cbranch_vccnz L_fl15\nv_add_u32 v5, {13<<20:#x}, v{CW}\ns_branch L_fl13")
    def put(j):
        word(j, 6 + (j & 1), 5)
        if j > ND: e(f"v_add_u32 v5, 0xfff00000, v5")
        e(f"ds_write_b32 v3, v{6+(j&1)} offset:{256*ND+4*(j-ND)}")
    with rare():
        e(f"L_fl23:\nv_add_u32 v5, {23<<20:#x}, v{CW}")
        for j in range(23, 15, -1): put(j)
        e("s_waitcnt lgkmcnt(0)\ns_branch L_fl15")
    for j in range(15, ND - 1, -1):
        if j in (15, 13): e(f"L_fl{j}:")
        put(j)
        if j == 8: e("s_waitcnt lgkmcnt(4)")
    e(f"v_add_u32 v7, 1024, v{cDR}\nv_mov_b32 v6, v{cDR}\ns_waitcnt lgkmcnt(3)")
    for n in range(P1, 16): e(f"ds_read_b32 v{RM+n}, v{cFL} offset:{128*n}")
    e("L_round:")
    e(f"s_add_u32 s{sT2}, s{sNT}, 31\ns_lshr_b32 s{sT2}, s{sT2}, 5\ns_waitcnt lgkmcnt({16-P2})")
    for x in range(P1, P2, 4): decode(list(range(x, min(x + 4, P2))))
    dreads(6)
    k.stamp(7)
    sync_wait(5, 4, 'tab', 1)
    k.stamp(8)
    e(f"v_mov_b32 v5, 0x1ffc\nv_mov_b32 v6, s{sG+2}")
    dests()
    R = 16 - P2
    for n in range(16):
        e(f"s_waitcnt vmcnt({P2+min(n,R)-1-n})"); addrs(n, n & 1)
        if n: e("s_waitcnt lgkmcnt(7)"); mf(n - 1, (n - 1) & 1)
        if n < R: decode([P2 + n])
        if 11 <= n < 15:
            e(f"s_cmp_le_u32 s{sT2}, {n+1}\ns_cbranch_scc1 L_x{n}")
            with rare() if n not in (12, 13) else keep():
                pass
    e("s_waitcnt lgkmcnt(0)"); mf(15, 1); e("s_nop 4\ns_branch L_tiles_done")
    for n in (11, 14, 12, 13):
        e(f"L_x{n}:\ns_waitcnt lgkmcnt(0)"); mf(n, n & 1); e("s_nop 4")
        if n != 13: e("s_branch L_tiles_done")
    e("L_tiles_done:")
    scatter_first = True
    for q in (0, 1, 2, 3):
        a_ = AC + 4 * q
        e(f"v_cvt_pk_bf16_f32 v{a_}, v{a_+1}, v{a_}\nv_cvt_pk_bf16_f32 v{a_+2}, v{a_+3}, v{a_+2}")
        e(f"ds_write_b32 v{DX+2*q}, v{a_}\nds_write_b32 v{DX+2*q+1}, v{a_+2}")
    e(f"s_cmp_gt_u32 s{sNT}, 512\ns_cbranch_scc1 L_more")
    with rare():
        e(f"L_more:\ns_sub_u32 s{sNT}, s{sNT}, 512\nv_add_u32 v{cFL}, 2048, v{cFL}\nv_add_u32 v{cDR}, 2048, v{cDR}\nv_add_u32 v7, 1024, v{cDR}\nv_mov_b32 v6, v{cDR}")
        e("s_waitcnt vmcnt(0) lgkmcnt(0)")
        for n in range(16):
            e(f"ds_read_b32 v{RM+n}, v{cFL} offset:{128*n}")
            if n == 7: e("s_waitcnt lgkmcnt(0)")
        e("s_waitcnt lgkmcnt(0)")
        for x in range(0, P1, 4): decode(list(range(x, min(x + 4, P1))))
        e("s_branch L_round")
    e(f"s_mov_b32 s{sT0}, s{sG+3}")
    res_stores(0, sT0)
    e(f"s_cmp_lg_u32 s{sBAD}, 0\ns_cbranch_scc1 L_res2\nL_res2_ret:")
    with rare():
        e(f"L_res2:\ns_add_u32 s{sT0}, s{sG+3}, {RLV:#x}"); res_stores(1, sT0); e("s_branch L_res2_ret")
    for j in range(4): e(f"v_and_b32 v{cR+j}, 0x80000001, v{cR+j}")
    e("L_nobucket:")
    k.stamp(9)

def pos():
    if 'nopos' in OPT: e(f"s_mov_b32 s{sPOS}, s2")
    else: e(f"s_and_b32 s{sPOS}, s2, 6\ns_lshl_b32 s{sPOS}, s{sPOS}, 5\ns_lshr_b32 s{sT0}, s2, 3\ns_lshl_b32 s{sT0}, s{sT0}, 1\ns_or_b32 s{sPOS}, s{sPOS}, s{sT0}\ns_and_b32 s{sT0}, s2, 1\ns_or_b32 s{sPOS}, s{sPOS}, s{sT0}")

def hi_lookup():
    e("s_waitcnt lgkmcnt(0)")
    sync_add(5)
    e("L_hi_final:")
    pos()
    e(f"s_add_u32 s{sTAG}, s{sTAG}, 1")
    res_tags("v_and_b32 v4, 3, v0", 96)
    final_poll()
    k.stamp(6)

def final_poll():
    cR = 96
    e(f"s_load_dword s{sTAG}, s[{P_WS}:{P_WS+1}], {EPOCH:#x}") if False else None
    T = 32; X = 48; Y = 64; CN = 80; YA = 84
    e(f"v_and_b32 v2, 255, v0\nv_lshlrev_b32 v{T}, 4, v2\nv_add_u32 v{T+1}, 0x2000, v{T}\ns_lshl_b32 s{sT0}, s{sPOS}, 14\ns_add_u32 s{sT1}, s{sT0}, 0x1000")
    e(f"v_cmp_gt_u32 vcc, 232, v2\ns_mov_b64 s[{sEX}:{sEX+1}], vcc\ns_mov_b32 s{sNT}, 0\nv_mov_b32 v{T+4}, 0")
    if DRY:
        e(f"s_mov_b32 s{sRARE}, 0\ns_mov_b32 s{sRND}, 1\nv_add_u32 v{T+5}, {RIM+4*8192-RS}, v{T}\ns_add_u32 s{sT0}, s{sT0}, 0x800000\ns_add_u32 s{sT1}, s{sT1}, 0x800000\ns_branch L_poll2")
        e(f"L_dry_done:\ns_mov_b32 s{sRND}, 0\ns_sub_u32 s{sT0}, s{sT0}, 0x800000\ns_sub_u32 s{sT1}, s{sT1}, 0x800000")
    e(f"v_mov_b32 v{T+5}, v{T}")
    sync_wait(0, 8, 'res', 2)
    e(f"ds_read_b32 v6, v5 offset:16\ns_waitcnt lgkmcnt(0)\nv_readfirstlane_b32 s{sRARE}, v6")
    for h in range(4): e(f"v_mov_b32 v{YA+h}, -1")
    e(f"s_cmp_lg_u32 s{sRARE}, 0\ns_cbranch_scc1 L_rare0\nL_rare0_ret:")
    with rare():
        e(f"L_rare0:\nv_and_b32 v4, -4, v2\ns_add_u32 s{sBAD}, s{sT0}, {RLV:#x}\nv_mov_b32 v7, 0x80000000")
        for h in range(4): e(f"ds_read_b32 v{CN+h}, v4 offset:{CNT+256*h}")
        e("s_waitcnt lgkmcnt(0)")
        for h in range(4):
            e(f"v_add_u32 v{CN+h}, -33, v{CN+h}\nv_add_u32 v4, {4096*h}, v{T}\nv_and_or_b32 v{YA+h}, v{CN+h}, v7, v4\nv_ashrrev_i32 v{CN+h}, 31, v{CN+h}")
        e("s_branch L_rare0_ret")
    if DL2: e(f"s_sleep {DL2}")
    e("L_poll2:")
    e(f"s_cmp_lg_u32 s{sRARE}, 0\ns_cbranch_scc1 L_rare1\nL_rare1_ret:")
    with rare():
        e("L_rare1:")
        for h in range(4): e(f"buffer_load_dwordx4 {vr(Y+4*h,4)}, v{YA+h}, {sr(S_RES)}, s{sBAD} offen{SC}")
        e("s_branch L_rare1_ret")
    for h in range(4): e(f"buffer_load_dwordx4 {vr(X+4*h,4)}, v{T+h//2}, {sr(S_RES)}, s{sT0 if h%2==0 else sT1} offen{PF}")
    for h in range(4):
        d = T + 2 if h < 3 else T + 3
        e(f"s_waitcnt vmcnt({3-h})")
        for j in range(4):
            if j == 0 and h in (0, 3): e(f"v_xor_b32 v{d}, v{X+4*h}, v{cR}")
            else: e(f"v_bitop3_b32 v{d}, v{d}, v{X+4*h+j}, v{cR+j} bitop3:0xf6")
        e(f"ds_write_b128 v{T+5}, {vr(X+4*h,4)} offset:{RS+4096*h}")
    e(f"s_cmp_lg_u32 s{sRARE}, 0\ns_cbranch_scc1 L_rare2\nL_rare2_ret:")
    with rare():
        e("L_rare2:")
        for h in range(4):
            for j in range(4):
                if j == 0: e(f"v_xor_b32 v4, v{Y+4*h}, v{cR}")
                else: e(f"v_bitop3_b32 v4, v4, v{Y+4*h+j}, v{cR+j} bitop3:0xf6")
            e(f"v_bitop3_b32 v{T+2}, v{T+2}, v4, v{CN+h} bitop3:0xf4")
            e(f"ds_write_b128 v{T}, {vr(Y+4*h,4)} offset:{RS+16384+4096*h}")
        e("s_branch L_rare2_ret")
    e(f"v_and_b32 v{T+3}, 0x80000001, v{T+3}\nv_and_b32 v{T+2}, 0x80000001, v{T+2}")
    e(f"v_cmp_ne_u32 vcc, 0, v{T+3}\ns_and_b64 s[{sU}:{sU+1}], vcc, s[{sEX}:{sEX+1}]\nv_cmp_ne_u32 vcc, 0, v{T+2}\ns_or_b64 vcc, vcc, s[{sU}:{sU+1}]")
    if DRY: e(f"s_cmp_lg_u32 s{sRND}, 0\ns_cbranch_scc1 L_dry_done")
    e("s_cbranch_vccnz L_poll2_again\nL_poll2_ok:")
    with rare():
        e("L_poll2_again:")
        if SL2: e(f"s_sleep {SL2}")
        e(f"s_waitcnt lgkmcnt(0)\ns_add_u32 s{sNT}, s{sNT}, 1\ns_cmp_lt_u32 s{sNT}, {LIMIT}\ns_cbranch_scc1 L_poll2")
        sync_add(3)
        e("s_branch L_poll2_ok")
    k.stamp(10)
    e("s_waitcnt lgkmcnt(0)\ns_barrier")

def final():
    T = 32; X = 48
    sync_add(0)
    for t in range(8): e(f"v_and_b32 v{T+8+t}, 0xffff, v{LOC+t}")
    e(f"s_lshl_b32 s{sT2}, s2, 7\ns_lshl_b32 s{sBAD}, s{sJ}, 5\ns_add_u32 s{sT2}, s{sT2}, s{sBAD}")
    e(f"v_lshrrev_b32 v3, 2, v{vL}\nv_lshlrev_b32 v3, 1, v3\ns_waitcnt lgkmcnt(0)\ns_barrier")
    k.stamp(10)
    e(f"s_or_b32 s{sCNT}, s2, s{sJ}\ns_cmp_eq_u32 s{sCNT}, 0\ns_cbranch_scc1 L_epoch\nL_epoch_ret:")
    with rare():
        e(f"L_epoch:\ns_mov_b64 exec, 1\nv_mov_b32 v4, {EPOCH:#x}\nv_mov_b32 v5, s{sTAG}\nglobal_store_dword v4, v5, s[{P_WS}:{P_WS+1}]{SC}\ns_mov_b64 exec, -1\ns_branch L_epoch_ret")
    e(f"v_mov_b32 v5, {SYNC+12}\nds_read_b32 v6, v5")
    for t in range(8): e(f"ds_read_b32 v{X+t}, v{T+8+t}")
    for t in range(8):
        e(f"s_waitcnt lgkmcnt({7-t})\nv_and_b32 v{T+t}, 0x7fff0000, v{X+t}\nv_lshlrev_b32 v{X+t}, 16, v{X+t}")
        if t % 2: e(f"v_add_f32 v{T+t-1}, v{T+t-1}, v{T+t}\nv_add_f32 v{X+t-1}, v{X+t-1}, v{X+t}")
        if t % 4 == 3: e(f"v_add_f32 v{T+t-3}, v{T+t-3}, v{T+t-1}\nv_add_f32 v{X+t-3}, v{X+t-3}, v{X+t-1}")
    e(f"v_add_f32 v{T}, v{T}, v{T+4}\nv_add_f32 v{X}, v{X}, v{X+4}\ns_nop 0")
    e(f"v_add_f32_dpp v{T+1}, v{T}, v{T} quad_perm:[1,0,3,2] row_mask:0xf bank_mask:0xf")
    e(f"v_add_f32_dpp v{X+1}, v{X}, v{X} quad_perm:[1,0,3,2] row_mask:0xf bank_mask:0xf")
    e("s_nop 0")
    e(f"v_add_f32_dpp v{T}, v{T+1}, v{T+1} quad_perm:[2,3,0,1] row_mask:0xf bank_mask:0xf")
    e(f"v_add_f32_dpp v{X}, v{X+1}, v{X+1} quad_perm:[2,3,0,1] row_mask:0xf bank_mask:0xf")
    e(f"v_rcp_f32 v{T+1}, v{T}")
    e(f"v_add_u32 v{T+2}, {(-0x17800000)&0xffffffff:#x}, v{T}\nv_mul_f32 v{X}, v{X}, v{T+1}\nv_cmp_gt_u32 vcc, 0x5a000000, v{T+2}")
    e(f"v_and_b32 v{T+3}, 0x7fffffff, v{X}\ns_mov_b64 s[{sEX}:{sEX+1}], vcc\nv_cmp_gt_u32 vcc, 0x7f800000, v{T+3}\nv_cvt_pk_bf16_f32 v{X}, v{X}, v{X}")
    e(f"s_and_b64 s[{sEX}:{sEX+1}], vcc, s[{sEX}:{sEX+1}]\nv_cmp_eq_u32 vcc, 0, v6")
    e(f"s_and_b64 vcc, vcc, s[{sEX}:{sEX+1}]\ns_cmp_eq_u64 vcc, -1\ns_cbranch_scc0 {'L_fallback' if not (OPT & {'nolds','nogather'}) else 'L_fin'}")
    e("s_mov_b32 exec_lo, 0x11111111\ns_mov_b32 exec_hi, 0x11111111")
    e(f"buffer_store_short v{X}, v3, {sr(S_OUT)}, s{sT2} offen")
    e("L_fin:")

def fallback():
    e("L_fallback:")
    A0 = 16; A1 = 20; C0 = 24; C1 = 28; AH = 32; AP = 36; EI = 40; EJ = 48; PK = 56; DD = 60; HK = 68; DS = 72; W16 = 80
    N, Q, IB, M, LL, ACc, T = 100, 101, 102, 103, 104, 105, 106
    e(f"v_and_b32 v{N}, 15, v{vL}\nv_lshrrev_b32 v{Q}, 4, v{vL}")
    e(f"v_lshlrev_b32 v{T}, 9, v{Q}\nv_lshl_add_u32 v{T}, v{N}, 1, v{T}")
    for half in range(2):
        for t in range(8): e(f"buffer_load_ushort v{W16+8*half+t}, v{T}, {sr(S_W)}, 0 offen offset:{t*64+half*32}")
    e(f"v_lshlrev_b32 v{T+1}, 3, v{Q}\nv_lshlrev_b32 v{Q}, 4, v{Q}")
    e(f"global_load_dwordx2 {vr(EI,2)}, v{T+1}, s[{P_B}:{P_B+1}]\nglobal_load_dwordx2 {vr(EI+2,2)}, v{T+1}, s[{P_B}:{P_B+1}] offset:32")
    e(f"global_load_dwordx2 {vr(AH,2)}, v{T+1}, s[{P_H}:{P_H+1}]\nglobal_load_dwordx2 {vr(AH+2,2)}, v{T+1}, s[{P_H}:{P_H+1}] offset:32")
    e(f"global_load_dwordx4 {vr(AP,4)}, v{Q}, s[{P_P}:{P_P+1}]")
    e(f"s_lshl_b32 s{sU}, s2, 6\ns_lshl_b32 s{sT1}, s{sJ}, 4\ns_add_u32 s{sU}, s{sU}, s{sT1}\nv_add_u32 v{IB}, s{sU}, v{N}\nv_mul_u32_u24 v{IB}, 104, v{IB}")
    e("s_waitcnt vmcnt(0)")
    for half in range(2):
        for t in range(4): e(f"v_lshl_or_b32 v{A0+4*half+t}, v{W16+8*half+2*t+1}, 16, v{W16+8*half+2*t}")
    for i in range(4): e(f"v_lshlrev_b32 v{C0+2*i}, 16, v{EI+i}\nv_and_b32 v{C0+2*i+1}, 0xffff0000, v{EI+i}")
    e(f"v_mov_b32 v{M}, 0xff800000\nv_mov_b32 v{LL}, 0\nv_mov_b32 v{ACc}, 0")
    e(f"s_mov_b32 s{sU}, 0")
    def getrow(dst, soff):
        e(f"buffer_load_dword v{T}, v{IB}, {sr(S_IDX)}, s{soff} offen\ns_waitcnt vmcnt(0)")
        e(f"v_lshl_add_u32 v{T}, v{T}, 6, v{Q}\nbuffer_load_dwordx4 {vr(dst+4,4)}, v{T}, {sr(S_TABL)}, 0 offen\ns_waitcnt vmcnt(0)")
        for t in range(4): e(f"v_lshlrev_b32 v{dst+2*t}, 16, v{dst+4+t}\nv_and_b32 v{dst+2*t+1}, 0xffff0000, v{dst+4+t}")
    e("L_fb_i:")
    getrow(EI, sU)
    e(f"s_add_u32 s{sCNT}, s{sU}, 4")
    e("L_fb_j:")
    getrow(EJ, sCNT)
    for t in range(8): e(f"v_mul_f32 v{EJ+t}, v{EJ+t}, v{EI+t}")
    for t in range(4): e(f"v_cvt_pk_bf16_f32 v{PK+t}, v{EJ+2*t}, v{EJ+2*t+1}")
    e("s_nop 1")
    e(f"v_mfma_f32_16x16x32_bf16 {vr(DD,4)}, {vr(A0,4)}, {vr(PK,4)}, {vr(C0,4)}")
    e(f"v_mfma_f32_16x16x32_bf16 {vr(DD+4,4)}, {vr(A1,4)}, {vr(PK,4)}, {vr(C1,4)}")
    e(f"v_mfma_f32_16x16x32_bf16 {vr(DS,4)}, {vr(AP,4)}, {vr(PK,4)}, 0")
    e("s_nop 7")
    for t in range(4): e(f"v_cvt_pk_bf16_f32 v{HK+t}, v{DD+2*t}, v{DD+2*t+1}")
    for t in range(4): e(f"v_pk_max_i16 v{HK+t}, v{HK+t}, 0")
    e("s_nop 1")
    e(f"v_mfma_f32_16x16x32_bf16 {vr(DD,4)}, {vr(AH,4)}, {vr(HK,4)}, 0")
    e("s_nop 7")
    e(f"v_mul_f32 v{DD}, 0x3fb8aa3b, v{DD}\nv_max_f32 v{DD+1}, v{M}, v{DD}\nv_sub_f32 v{DD+2}, v{M}, v{DD+1}\nv_sub_f32 v{DD+3}, v{DD}, v{DD+1}")
    e(f"v_exp_f32 v{DD+2}, v{DD+2}\nv_exp_f32 v{DD+3}, v{DD+3}\nv_mov_b32 v{M}, v{DD+1}")
    e(f"v_fma_f32 v{LL}, v{LL}, v{DD+2}, v{DD+3}\nv_mul_f32 v{ACc}, v{ACc}, v{DD+2}\nv_fma_f32 v{ACc}, v{DD+3}, v{DS}, v{ACc}")
    e(f"s_add_u32 s{sCNT}, s{sCNT}, 4\ns_cmp_lt_u32 s{sCNT}, 104\ns_cbranch_scc1 L_fb_j")
    e(f"s_add_u32 s{sU}, s{sU}, 4\ns_cmp_lt_u32 s{sU}, 100\ns_cbranch_scc1 L_fb_i")
    e(f"v_rcp_f32 v{LL}, v{LL}\nv_lshlrev_b32 v{N}, 1, v{N}\nv_mul_f32 v{ACc}, v{ACc}, v{LL}\nv_cvt_pk_bf16_f32 v{ACc}, v{ACc}, v{ACc}")
    e("s_mov_b64 exec, 0xffff")
    e(f"buffer_store_short v{ACc}, v{N}, {sr(S_OUT)}, s{sT2} offen")
    e("s_branch L_fin")

B_ = 8; A_ = 72; A5 = 104; CB = 120; HQ = 184; D_ = 200; ACC = 232; INIT = 248; TW = 249

PREF = 'nopref' not in OPT
NB0 = opt('nb0', 4); NB1 = opt('nb1', 8); CL0 = opt('cl0', 5)
def flag_store(nm, n):
    sync_wait(0, 8, nm)
    e(f"s_waitcnt vmcnt(0) lgkmcnt(0)\ns_add_u32 s{sTAG}, s{sTAG}, 0x9e3779b1\ns_lshl_b32 s{sT0}, s2, 4\ns_lshl_b32 s{sT1}, s{sU}, 2\ns_add_u32 s{sT0}, s{sT0}, s{sT1}\ns_add_u32 s{sT0}, s{sT0}, {FLG:#x}")
    e(f"v_mov_b32 v6, s{sT0}\nv_mov_b32 v7, s{sTAG}\ns_mov_b64 exec, 1\nglobal_store_dword v6, v7, s[{P_WS}:{P_WS+1}]{SC}\ns_mov_b64 exec, -1")

def hi():
    WV = 120; TP = 136; TU = 144; T = 184
    e("L_hi:")
    if 'pf0' in OPT: code_prefetch('a', 253)
    e(f"v_lshrrev_b32 v252, 5, v{vL}\nv_and_b32 v4, 7, v{vL}\nv_lshlrev_b32 v4, 1, v4")
    e(f"v_lshl_add_u32 v4, v252, 10, v4")
    e(f"v_bfe_u32 v5, v{vL}, 3, 2\nv_lshlrev_b32 v5, 6, v5\nv_lshl_add_u32 v5, v252, 5, v5")
    e(f"v_and_b32 v6, 31, v{vL}\nv_lshlrev_b32 v7, 6, v6\nv_lshlrev_b32 v6, 1, v6")
    e(f"v_lshl_add_u32 v250, v252, 5, v7\nv_add_u32 v251, 4096, v250")
    e(f"s_lshl_b32 s{sT0}, s{sU}, 4\ns_lshl_b32 s{sT1}, s2, 8\ns_lshl_b32 s{sT2}, s2, 14")
    e(f"v_add_u32 v3, -4096, v3")
    pre_addr()
    e("s_waitcnt lgkmcnt(0)")
    k.srd(S_TABL, P_TAB, 64000)
    k.srd(S_W, P_W, 2048)
    vm = []
    def vmem(lab, txt): e(txt); vm.append(lab)
    def vneed(lab): return len(vm) - 1 - max(i for i, x in enumerate(vm) if x == lab)
    e(f"s_load_dword s{sTAG}, s[{P_WS}:{P_WS+1}], {EPOCH:#x}")
    e("s_cmp_ge_u32 s2, 250\ns_cbranch_scc1 L_hi_skip")
    if PRE and PM != 2:
        vmem('s', f"global_load_dword v255, v2, s[{P_WS}:{P_WS+1}]")
    if PRE and 'preout' in OPT:
        vmem('s', f"global_load_dword v254, v6, s[{P_OUT}:{P_OUT+1}]")
    if PM == 0: vm[:] = []; hold = k.L[-(1 + ('preout' in OPT)):]; del k.L[-(1 + ('preout' in OPT)):]
    vmem('s', f"buffer_load_dwordx4 {vr(TP,4)}, v5, {sr(S_TABL)}, s{sT1} offen")
    vmem('s', f"buffer_load_short_d16_hi v{WV}, v4, {sr(S_W)}, s{sT0} offen")
    vmem('s', f"global_load_short_d16_hi v{T+1}, v6, s[{P_B}:{P_B+1}]")
    vmem('s', f"global_load_short_d16_hi v{T+2}, v6, s[{P_H}:{P_H+1}]")
    if PM == 0 and PRE:
        for x in hold: vmem('s', x)
    e("s_barrier")
    vmem('s', f"buffer_load_dwordx4 {vr(TP+4,4)}, v5, {sr(S_TABL)}, s{sT1} offen offset:16")
    for t in range(1, 16): vmem('s', f"buffer_load_short_d16_hi v{WV+t}, v4, {sr(S_W)}, s{sT0} offen offset:{t*64}")
    e(f"s_lshl_b32 s{sG}, s{sU}, 14\ns_add_u32 s{sG+1}, s{sG}, 0x2000")
    def bload(n):
        b, ks = n // 2, n % 2
        vmem(f"b{b//2}", f"buffer_load_dwordx4 {vr(B_+8*b+4*ks,4)}, v{250+(b//2)%2}, {sr(S_TABL)}, s{sG if b<4 else sG+1} offen offset:{(b%2)*2048+ks*16}")
    for n in range(NB0): bload(n)
    k.srd(S_RES, P_WS, 0x800000, R0)
    k.srd(S_ROW, P_WS, 0x100000, ROW0)
    def clear(h):
        vmem('c', f"buffer_store_dwordx4 {'v[240:243]' if CL0 < 0 else 'v[252:255]'}, v3, {sr(S_RES)}, s{sT2} offen{SC}")
        if h < 3: e(f"s_add_u32 s{sT2}, s{sT2}, 0x1000")
    def prefetch():
        e(f"s_getpc_b64 s[{sEX}:{sEX+1}]\nL_pc:\ns_sub_u32 s{sEX}, s{sEX}, L_pc-{KN}\ns_subb_u32 s{sEX+1}, s{sEX+1}, 0")
        e(f"v_lshlrev_b32 v6, 3, v3\nv_min_u32 v6, L_code_end-{KN}-4, v6\nv_mov_b32 v7, s{sEX+1}\nv_add_co_u32 v6, vcc, s{sEX}, v6\ns_nop 1\nv_addc_co_u32 v7, vcc, 0, v7, vcc")
        vmem("p", "global_load_dword v253, v[6:7], off")
    with rare():
        e("L_hi_skip:\ns_barrier"); k.srd(S_RES, P_WS, 0x800000, R0); e("s_waitcnt lgkmcnt(0)\ns_branch L_hi_final")
    e(f"s_lshl_b32 s{sT0}, s{sU}, 11\nv_lshlrev_b32 v4, 4, v{vL}\nv_add_u32 v5, s{sT0}, v4\nv_cmp_gt_u32 vcc, 32, v{vL}\nv_lshlrev_b32 v7, 2, v{vL}")
    e(f"s_lshl_b32 s{sT0}, s{sU}, 12\nv_add_u32 v{TW}, s{sT0}, v4")
    if PREF and opt('pf', 4) < 0:
        e("v_mov_b32 v254, v7"); prefetch(); e(f"v_mov_b32 v7, v254\nv_cmp_gt_u32 vcc, 32, v{vL}")
    e(f"s_waitcnt vmcnt({vneed('s')})")
    k.stamp(2)

    for t in range(8): e(f"v_lshlrev_b32 v{TU+2*t}, 16, v{TP+t}\nv_and_b32 v{TU+2*t+1}, 0xffff0000, v{TP+t}")
    for t in range(16): e(f"v_mul_f32 v{WV+t}, v{WV+t}, v{TU+t}")
    for t in range(8): e(f"v_cvt_pk_bf16_f32 v{TP+t}, v{WV+2*t}, v{WV+2*t+1}")
    e(f"ds_write_b128 v5, {vr(TP,4)} offset:{AIMG}\nds_write_b128 v5, {vr(TP+4,4)} offset:{AIMG+1024}")
    e(f"v_mul_f32 v{T+2}, {LOG2E_HALF:#x}, v{T+2}\nv_cndmask_b32 v6, v{T+2}, v{T+1}, vcc\nds_write_b32 v7, v6 offset:{BH}")
    for n in range(NB0, NB1): bload(n)
    e("s_waitcnt lgkmcnt(0)")
    sync_add(1)
    sync_wait(1, 4, 'hi')
    e("v_lshlrev_b32 v5, 4, v252")
    k.stamp(3)
    for i in range(2): e(f"ds_read_b128 {vr(A_+4*i,4)}, v4 offset:{AIMG+1024*i}")
    for i in range(4): e(f"ds_read_b128 {vr(CB+4*i,4)}, v5 offset:{BH}")
    for g in range(4): e(f"ds_read_b128 {vr(HQ+4*g,4)}, v5 offset:{BH+128+32*g}")
    for g in range(1, 4): e(f"ds_read_b128 {vr(CB+16*g,4)}, v5 offset:{BH+32*g}")
    e(f"s_waitcnt vmcnt({vneed('b0')}) lgkmcnt(7)"); k.stamp(7)
    later = []
    for g in range(1, 4):
        later += [f"ds_read_b128 {vr(A_+8*g+4*i,4)}, v4 offset:{AIMG+1024*(2*g+i)}" for i in range(2)]
        later += [f"ds_read_b128 {vr(CB+16*g+4*i,4)}, v5 offset:{BH+32*g}" for i in range(1, 4)]
    steps = []
    for bp in range(4): steps += [('r', bp, g, b) for g in range(4) for b in range(2)] + [('x', bp, 0, 0)]
    NS = len(steps)
    def mms(s):
        kind, bp, g, b = steps[s]; d = D_ + 16 * (s % 2)
        if kind == 'r':
            bb = B_ + 8 * (2 * bp + b)
            return [f"v_mfma_f32_32x32x16_bf16 {vr(d,16)}, {vr(A_+8*g,4)}, {vr(bb,4)}, {vr(CB+16*g,16)}",
                    f"v_mfma_f32_32x32x16_bf16 {vr(d,16)}, {vr(A_+8*g+4,4)}, {vr(bb+4,4)}, {vr(d,16)}"]
        return [f"v_mfma_f32_32x32x16_bf16 {vr(d,16)}, {vr(A5+8*b2+4*ks,4)}, {vr(B_+8*(2*bp+b2)+4*ks,4)}, {'0' if b2+ks==0 else vr(d,16)}"
                for b2 in range(2) for ks in range(2)]
    def valu(s):
        kind, bp, g, b = steps[s]; d = D_ + 16 * (s % 2); X = ACC + 8 * (bp % 2); Y = X + 4
        if kind == 'r':
            a = X + 4 * b
            return [f"v_fma_f32 v{a+v}, v{HQ+4*g+r}, |v{d+4*v+r}|, " + (f"-v{INIT}" if g == 0 and r == 0 else f"v{a+v}") for r in range(4) for v in range(4)]
        o = [f"v_permlane32_swap_b32 v{X+v}, v{Y+v}" for v in range(4)]
        o += [f"v_add_f32 v{X+v}, v{X+v}, v{Y+v}" for v in range(4)]
        o += [f"v_add_f32 v{X+v}, v{X+v}, v{d+4*v}" for v in range(4)]
        o += [f"v_exp_f32 v{X+v}, v{X+v}" for v in range(4)]
        o += [f"v_mul_f32 v{Y+v}, v{X+v}, v{d+4*v+1}" for v in range(4)]
        o += [f"v_cvt_pk_bf16_f32 v{X+v}, v{Y+v}, v{X+v}" for v in range(4)]
        o += [f"ds_write_b128 v{TW}, {vr(X,4)} offset:{TAB+16+1024*bp}"]
        return o
    m = mms(0)
    e(m[0])
    for x in later[:5]: e(x)
    e(m[1])
    e("s_waitcnt lgkmcnt(5)")
    for x in later[5:10]: e(x)
    e(f"v_mul_f32 v{INIT}, v{HQ}, |v{CB}|")
    for g in range(4):
        for r in range(4):
            if g or r: e(f"v_fma_f32 v{INIT}, v{HQ+4*g+r}, |v{CB+16*g+r}|, v{INIT}")
    nb_next = [NB1]
    for s in range(NS):
        v = valu(s); m = mms(s + 1) if s + 1 < NS else []
        if s + 1 < NS:
            kind, bp, g, b = steps[s + 1]
            if bp == 0 and kind == 'r' and b == 0 and g == 1: e("s_waitcnt lgkmcnt(5)"); [e(x) for x in later[10:15]]
            if bp == 0 and kind == 'r' and b == 0 and g == 2: e("s_waitcnt lgkmcnt(5)")
            if bp == 0 and kind == 'r' and b == 0 and g == 3:
                sync_wait(0, 4, 'a5')
                for i in range(4): e(f"ds_read_b128 {vr(A5+4*i,4)}, v4 offset:{AIMG+8192+1024*i}")
            if bp == 0 and kind == 'x': e("s_waitcnt lgkmcnt(0)")
            if kind == 'r' and g == 0 and b == 0 and bp > 0:
                e(f"s_waitcnt vmcnt({vneed(f'b{bp}')})"); k.stamp({1: 4, 2: 8, 3: 10}[bp])
            if bp == 0 and kind == 'r' and b == 0 and g == 3: k.stamp(1)

        for _ in range(opt('bps', 2)):
            if nb_next[0] < 16 and s >= opt('bs0', 0): bload(nb_next[0]); nb_next[0] += 1
        if s == 2: k.stamp(9)
        if s == opt('pf', 4) and PREF: prefetch()
        if len(m) == 2:
            n = 6 if steps[s][0] == 'x' else 5
            e(m[0]); [e(x) for x in v[:n]]; e(m[1]); [e(x) for x in v[n:]]
        elif len(m) == 4:
            e(m[0]); [e(x) for x in v[:4]]; e(m[1]); [e(x) for x in v[4:8]]; e(m[2]); [e(x) for x in v[8:12]]; e(m[3]); [e(x) for x in v[12:]]
        else:
            e("s_nop 1"); [e(x) for x in v]
    k.stamp(5)
    hi_lookup()
    e("L_hi_done:")

def finish():
    if STAMP:
        e(f"{CLK} s[{sH}:{sH+1}]\ns_waitcnt lgkmcnt(0)\ns_mov_b64 exec, 1")
        e(f"s_lshl_b32 s{sT0}, s2, 3\ns_add_u32 s{sT0}, s{sT0}, s{sJ}\ns_lshl_b32 s{sT0}, s{sT0}, 7\ns_add_u32 s{sT0}, s{sT0}, {STAMP0:#x}")
        e(f"v_mov_b32 v2, s{sT0}")
        for i in range(NST): e(f"v_mov_b32 v3, s{sST+2*i}\nglobal_store_dword v2, v3, s[{P_WS}:{P_WS+1}] offset:{4*i}")
        e(f"v_mov_b32 v3, s{sH}\nglobal_store_dword v2, v3, s[{P_WS}:{P_WS+1}] offset:{4*NST}")
        e(f"v_mov_b32 v3, {NST+1}\nglobal_store_dword v2, v3, s[{P_WS}:{P_WS+1}] offset:124")
    e("s_endpgm")

if STAMP:
    for i in range(NST): e(f"s_mov_b64 s[{sST+2*i}:{sST+2*i+1}], 0")
prologue()
route()
lo_lookup()
final()
finish()
hi()
finish()
e("L_end:\ns_endpgm")
with rare(): fallback()
hazard.check(k.L); hazard.check(k.tail)
src = HEADER + f"; @launch grid=(256,1,1) block=(512,1,1) lds={LDS_BYTES}\n"
src += f'.amdgcn_target "amdgcn-amd-amdhsa--gfx950"\n.text\n.globl {KN}\n.p2align 8\n.type {KN},@function\n{KN}:\n'
src += "\n".join(k.L) + "\n" + "\n".join(k.tail) + "\nL_code_end:\n"
src += '.section .rodata,"a"\n' + kd(KN, 256, 102)
open(sys.argv[1], "w").write(src)
print("lds", LDS_BYTES)
```

```python
import sys
from common import *
import hazard

OPT = set(sys.argv[2].split(',')) if len(sys.argv) > 2 else set()
def opt(name, d):
    for o in OPT:
        if o.startswith(name + '='): return int(o.split('=')[1])
    return d
STAMP = 'stamp' in OPT
CLK = 's_memtime' if 'cyc' in OPT else 's_memrealtime'
DL1, DL2 = opt('dl1', 24), opt('dl2', 18)
OPT.add('lateconst')

EPOCH, L0, ROW0, R0 = 0x0, 0x10000, 0x400000, 0x800000
STAMP0 = 0x1000000
BCN = 0x1000
B1ON = 'nob1' not in OPT; B2ON = 'nob2' not in OPT
S_BCN = 96
TAB, CNT, BH, GP, AIMG, LIMG, WL = 0, 0x4100, 0x4500, 0x4600, 0x5000, 0x8000, 0xC000
RS = LIMG
NANW = 0x4080
SYNC = CNT + 1000
LIMIT = 0x4000
RLV = 0x400000
FL = 0x10000; FLS = 8192; RIM = 0x18000; NW = 0x4090; DUMP = 0x4C00
LDS_BYTES = RIM + 4 * 8192
S_IDX, S_TABL, S_W, S_LIST, S_ROW, S_RES, S_OUT = 4, 8, 12, 16, 20, 24, 28
sG = 32
P_IDX, P_TAB, P_W, P_B, P_H, P_P, P_OUT, P_WS = 36, 38, 40, 42, 44, 46, 48, 50
sJ, sRARE, sTAG, sT2, sT0, sT1, sNT, sBAD, sU, sCNT = 52, 53, 54, 55, 56, 57, 58, 59, 60, 61
sEX = 62
sPOS = 36
sH = 64
sST = 80
NST = 11
LOG2E_HALF = 0x3f38aa3b
vL = 1
SC = " sc1"
KN = NAME + "_kernel"

class K:
    def __init__(s): s.L = []; s.tail = []; s.cur = s.L
    def e(s, x):
        for ln in x.split('\n'):
            ln = ln.strip()
            if ln: s.cur.append(ln if ln.endswith(':') else '    ' + ln)
    def stamp(s, i):
        if STAMP: s.e(f"{CLK} s[{sST+2*i}:{sST+2*i+1}]")
    def srd(s, d, p, n, off=0):
        if off: s.e(f"s_add_u32 s{d}, s{p}, {off:#x}\ns_addc_u32 s{d+1}, s{p+1}, 0")
        else: s.e(f"s_mov_b64 s[{d}:{d+1}], s[{p}:{p+1}]")
        s.e(f"s_mov_b32 s{d+2}, {n:#x}\ns_mov_b32 s{d+3}, 0x00020000")
k = K(); e = k.e
def c(x):
    for ln in x.split('\n'): k.cur.append('    ; ' + ln)
def vr(a, n): return f"v[{a}:{a+n-1}]"
def sr(a): return f"s[{a}:{a+3}]"
class rare:
    def __enter__(s): s.old = k.cur; k.cur = k.tail
    def __exit__(s, *a): k.cur = s.old

LOC = 8
G = 16; RM = 80; EN = 96; TQ = 112; AS = 166; AC = 182; BQ = 230; DX = 202
cA, cOFF, cBIT, cWR, cFL, cMSK = 246, 247, 248, 249, 250, 251
cR = 252
cAM, cDR, cRD, cRA = 198, 199, 200, 201
WA = 140

def prologue():
    V = 16; T = 52; WV = 120; TP = 136; TH = 184
    e("s_cmp_ge_u32 s2, 256\ns_cbranch_scc1 L_end")
    e(f"s_load_dwordx4 s[{P_IDX}:{P_IDX+3}], s[0:1], 0")
    e(f"s_load_dwordx8 s[{P_W}:{P_W+7}], s[0:1], 32")
    e(f"s_load_dwordx2 s[{P_WS}:{P_WS+1}], s[0:1], 80")
    k.stamp(0)
    c("first touches of memory come first: this kernel's own code (into the L2), then idx (lo) / table rows, W, b, h, p (hi)")
    e(f"s_getpc_b64 s[{sEX}:{sEX+1}]\nv_lshlrev_b32 v4, 6, v0\nv_min_u32 v4, L_code_end-{KN}-64, v4\nv_mov_b32 v5, s{sEX+1}\nv_add_co_u32 v4, vcc, s{sEX}, v4\nv_lshrrev_b32 v2, 6, v0\nv_and_b32 v{vL}, 63, v0\nv_addc_co_u32 v5, vcc, 0, v5, vcc")
    e("global_load_dword v135, v[4:5], off")
    e(f"v_readfirstlane_b32 s{sJ}, v2\nv_cmp_lt_u32 vcc, 255, v0\ns_cbranch_vccnz L_hi0")
    c('lo: lane = (sample, quarter); it loads field pairs 4q..4q+3 (the last quarter: pair 12 and the repeats 0,1,2)')
    e(f"v_lshrrev_b32 v{T}, 2, v0\nv_and_b32 v{T+1}, 3, v0\ns_mul_i32 s{sT1}, s2, 6656\nv_mov_b32 v2, 104\nv_mad_u32_u24 v{T+2}, v{T}, v2, s{sT1}")
    e(f"v_lshl_add_u32 v{T+2}, v{T+1}, 5, v{T+2}\nv_add_u32 v{T+3}, 1, v{T+1}\nv_lshrrev_b32 v{T+3}, 2, v{T+3}\nv_mul_i32_i24 v4, -104, v{T+3}\nv_add3_u32 v4, v{T+2}, v4, 8")
    e("s_waitcnt lgkmcnt(0)")
    e(f"global_load_dwordx2 {vr(V,2)}, v{T+2}, s[{P_IDX}:{P_IDX+1}]\nglobal_load_dwordx4 {vr(V+2,4)}, v4, s[{P_IDX}:{P_IDX+1}]\nglobal_load_dwordx2 {vr(V+6,2)}, v4, s[{P_IDX}:{P_IDX+1}] offset:16")
    e("s_branch L_lo")
    e("L_hi0:")
    e(f"v_lshrrev_b32 v252, 5, v{vL}\nv_bfe_u32 v5, v{vL}, 3, 2\ns_lshl_b32 s{sT1}, s2, 8\nv_lshl_add_u32 v5, v5, 6, s{sT1}\nv_lshl_add_u32 v5, v252, 5, v5\nv_min_u32 v5, {64000-32}, v5")
    e(f"v_and_b32 v4, 7, v{vL}\nv_lshl_add_u32 v4, v2, 3, v4\nv_lshlrev_b32 v4, 1, v4\nv_lshl_add_u32 v4, v252, 10, v4\nv_and_b32 v6, 31, v{vL}\nv_lshlrev_b32 v7, 1, v6")
    e("s_waitcnt lgkmcnt(0)")
    e(f"global_load_dwordx4 {vr(TP,4)}, v5, s[{P_TAB}:{P_TAB+1}]\nglobal_load_short_d16_hi v{WV}, v4, s[{P_W}:{P_W+1}] offset:-64")
    e(f"global_load_short_d16_hi v{TH+1}, v7, s[{P_B}:{P_B+1}]\nglobal_load_short_d16_hi v{TH+2}, v7, s[{P_H}:{P_H+1}]\nglobal_load_short_d16_hi v{TH}, v7, s[{P_P}:{P_P+1}]")
    e("s_branch L_hi")

def lds_common():
    e("v_mov_b32 v240, -1\nv_mov_b32 v241, -1\nv_mov_b32 v242, -1\nv_mov_b32 v243, -1")
    e(f"v_lshlrev_b32 v3, 4, v0\nds_write_b128 v3, v[240:243] offset:{LIMG}\nds_write_b128 v3, v[240:243] offset:{LIMG+8192}")
    e(f"s_and_b32 s{sU}, s{sJ}, 3")

def sync_add(i):
    e(f"v_mov_b32 v5, {SYNC+4*i}\nv_mov_b32 v6, 1\ns_mov_b64 exec, 1\nds_add_u32 v5, v6\ns_mov_b64 exec, -1")
def sync_wait(i, n, nm, sleep=0):
    e(f"v_mov_b32 v5, {SYNC+4*i}")
    if sleep: e(f"s_branch L_sync_{nm}\nL_sync_{nm}_z:\ns_sleep {sleep}")
    e(f"L_sync_{nm}:\nds_read_b32 v6, v5\ns_waitcnt lgkmcnt(0)\nv_cmp_gt_u32 vcc, {n}, v6\ns_cbranch_vccnz L_sync_{nm}{'_z' if sleep else ''}")

def make_loc(KK, C4, full):
    e(f"v_mov_b32 v7, {RS}")
    if full: e(f"v_mov_b32 v6, {NANW}\nv_mov_b32 v4, -1\nds_write_b32 v6, v4")
    for t in range(8):
        if t == 2: e("s_mov_b32 exec_lo, 0x77777777\ns_mov_b32 exec_hi, 0x77777777")
        if full:
            e(f"v_and_b32 v4, 30, v{KK+t}\nv_lshlrev_b32 v5, 3, v{C4+t}\nv_add_lshl_u32 v4, v4, v5, 1\nv_cmp_le_u32 vcc, 48, v{KK+t}")
            e(f"v_lshrrev_b32 v5, 5, v{KK+t}\nv_lshlrev_b32 v5, 14, v5\nv_add3_u32 v4, v4, v5, v7\nv_cndmask_b32 v{LOC+t}, v4, v6, vcc")
        else:
            e(f"v_lshl_add_u32 v4, v{C4+t}, 3, v{KK+t}\nv_lshl_add_u32 v{LOC+t}, v4, 1, v7")
    e("s_mov_b64 exec, -1")

def lookup_consts():
    e(f"v_and_b32 v4, 15, v{vL}\nv_bfe_u32 v5, v{vL}, 4, 1\nv_lshrrev_b32 v{cBIT}, 5, v{vL}")
    e(f"s_mul_i32 s{sG+1}, s{sU}, {FLS}\ns_add_u32 s{sG+1}, s{sG+1}, {FL}\ns_lshl_b32 s{sG}, s{sU}, 18\ns_lshl_b32 s{sG+2}, s{sU}, 13\ns_add_u32 s{sG+2}, s{sG+2}, {RIM}")
    e(f"v_and_b32 v{cFL}, 31, v{vL}\nv_lshl_add_u32 v{cFL}, v{cFL}, 2, s{sG+1}")
    e(f"v_lshrrev_b32 v7, 4, v{vL}\nv_lshl_add_u32 v{cDR}, v7, 5, v4\nv_lshl_add_u32 v{cDR}, v{cDR}, 2, s{sG+1}")
    e(f"v_add_u32 v{cA}, -1, v{cBIT}\nv_and_b32 v{cA}, 0xffff0000, v{cA}")
    e(f"v_mul_u32_u24 v{cOFF}, 12, v{cBIT}\nv_mul_i32_i24 v{cWR}, -52, v{cBIT}\nv_mov_b32 v{cMSK}, 0x7ffffffe\nv_mov_b32 v{cAM}, 0x2003fffc")
    e(f"v_and_b32 v6, 1, v4\nv_lshlrev_b32 v6, 4, v6\nv_lshrrev_b32 v6, v6, 1.0")
    e(f"v_bfe_u32 v7, v4, 1, 1\nv_xor_b32 v7, v7, v5\nv_add_u32 v7, -1, v7\nv_and_b32 v6, v6, v7\nv_lshrrev_b32 v7, 2, v4")
    for q in range(4):
        e(f"v_xor_b32 v4, {q}, v7\nv_add_u32 v4, -1, v4\nv_ashrrev_i32 v4, 31, v4\nv_and_b32 v{AS+4*q}, v4, v6")
        for i in range(1, 4): e(f"v_mov_b32 v{AS+4*q+i}, v{AS+4*q}")
    e(f"v_mov_b32 v{BQ+7}, 0\nv_mov_b32 v{BQ+15}, 0")
    e(f"v_and_b32 v4, 3, v{vL}\nv_lshrrev_b32 v5, 2, v{vL}\nv_lshlrev_b32 v{cRD}, 10, v4\nv_lshl_add_u32 v{cRD}, v5, 2, v{cRD}\nv_add_u32 v{cRD}, s{sG+2}, v{cRD}")
    e(f"v_lshlrev_b32 v4, 4, v4\nv_lshl_add_u32 v{cRA}, v5, 14, v4")
    e(f"s_lshl_b32 s{sG+3}, s{sU}, 20\ns_lshl_b32 s{sT0}, s2, 6\ns_add_u32 s{sG+3}, s{sG+3}, s{sT0}")

def res_tags(lane_expr, cR=cR):
    e(f"s_and_b32 s{sT0}, s{sTAG}, 255\ns_xor_b32 s{sT1}, s{sTAG}, 1\ns_and_b32 s{sT1}, s{sT1}, 3\ns_lshl_b32 s{sT1}, s{sT1}, 8\ns_or_b32 s{sT0}, s{sT0}, s{sT1}")
    e(f"s_lshr_b32 s{sT1}, s{sTAG}, 8\ns_lshl_b32 s{sT1}, s{sT1}, 10\ns_or_b32 s{sT0}, s{sT0}, s{sT1}")
    e(lane_expr)
    e(f"v_lshlrev_b32 v4, 3, v4\nv_lshrrev_b32 v4, v4, s{sT0}")
    for j in range(4): e(f"v_bfe_u32 v5, v4, {2*j}, 2\nv_alignbit_b32 v{cR+j}, v5, v5, 1")

def pos():
    c("exchange position: workgroups with equal id mod 8 (usually one die) become neighbours; speed only")
    e(f"s_and_b32 s{sPOS}, s2, 6\ns_lshl_b32 s{sPOS}, s{sPOS}, 5\ns_lshr_b32 s{sT0}, s2, 3\ns_lshl_b32 s{sT0}, s{sT0}, 1\ns_or_b32 s{sPOS}, s{sPOS}, s{sT0}\ns_and_b32 s{sT0}, s2, 1\ns_or_b32 s{sPOS}, s{sPOS}, s{sT0}")

def late_consts():
    lookup_consts()
    e(f"s_lshl_b32 s{sCNT}, s{sU}, 12\nv_lshrrev_b32 v4, 4, v{vL}\nv_xor_b32 v4, v4, v{vL}\nv_and_b32 v4, 3, v4\nv_and_b32 v5, 60, v{vL}\nv_or_b32 v4, v4, v5\nv_lshl_add_u32 v{WA}, v4, 4, s{sCNT}")
    e(f"v_lshrrev_b32 v4, 2, v{vL}\nv_lshl_add_u32 v5, v{vL}, 6, s{sCNT}")
    for g in range(4): e(f"v_xor_b32 v6, {g}, v4\nv_and_b32 v6, 3, v6\nv_lshl_add_u32 v{WA+1+g}, v6, 4, v5")
    e(f"v_lshl_add_u32 v4, v{vL}, 4, s{sG+1}")
    for i in range(8): e(f"ds_write_b128 v4, v[240:243] offset:{1024*i}")
    res_tags("v_and_b32 v4, 3, v0")

def route():
    V = 16; KK = 24; C4 = 32; RW = 40; EB = 44; T = 52
    TP = 64; TU = 72; WR = 88; WV = 104; MU = 120; PP = 128
    c('================ lo waves (0-3): route ================')
    e("L_lo:\ns_setprio 2")
    lds_common()
    e(f"v_mov_b32 v4, 0\nv_lshlrev_b32 v5, 2, v0\nds_write_b32 v5, v4 offset:{CNT}\nv_and_b32 v5, 12, v5\nds_write_b32 v5, v4\nds_write_b32 v5, v4 offset:{NW}")
    k.srd(S_IDX, P_IDX, 16384 * 104)
    e(f"v_lshlrev_b32 v{EB}, 2, v{T+1}\nv_mul_u32_u24 v4, 13, v{T+3}\nv_sub_u32 v4, v{EB}, v4")
    for t in range(1, 4): e(f"v_add_u32 v{EB+2*t}, {t}, v4")
    e("s_waitcnt lgkmcnt(0)")
    e(f"s_load_dword s{sTAG}, s[{P_WS}:{P_WS+1}], {EPOCH:#x}")
    e(f"s_load_dwordx16 s[{sH}:{sH+15}], s[{P_H}:{P_H+1}], 0")
    e(f"s_load_dwordx2 s[{P_OUT}:{P_OUT+1}], s[0:1], 64")
    e("s_barrier")
    pos()
    k.srd(S_TABL, P_TAB, 64000)
    k.srd(S_W, P_W, 2048)
    e(f"v_lshrrev_b32 v130, 5, v{vL}\nv_bfe_u32 v131, v{vL}, 3, 2\nv_lshlrev_b32 v131, 6, v131\nv_lshl_add_u32 v131, v130, 5, v131")
    e(f"v_and_b32 v133, 31, v{vL}\nv_lshlrev_b32 v132, 6, v133\nv_lshlrev_b32 v133, 1, v133")
    k.srd(S_ROW, P_WS, 0x100000, ROW0)
    k.srd(S_LIST, P_WS, 250 * 16384, L0)
    k.srd(S_RES, P_WS, 0x800000, R0)
    e(f"v_lshlrev_b32 v{T+3}, 8, v{T}")
    for t in range(4):
        e(f"v_add_u32 v4, 6, v{EB+2*t}\nv_lshl_or_b32 v{EB+2*t+1}, v{EB+2*t}, 4, v{T+3}")
        e(f"v_lshrrev_b32 v4, 4, v4\nv_lshl_or_b32 v{EB+2*t+1}, v4, 1, v{EB+2*t+1}\nv_or_b32 v{EB+2*t}, 1, v{EB+2*t+1}")
    for t in range(8): e(f"v_mov_b32 v{LOC+t}, 0\nv_mov_b32 v{KK+t}, 0")
    e(f"v_mov_b32 v2, 2\nv_mov_b32 v7, 0x100010")
    e(f"v_and_b32 v4, 3, v0\nv_lshlrev_b32 v{T+4}, 14, v{T}\nv_lshl_add_u32 v{T+4}, v4, 4, v{T+4}")
    e(f"v_add_u32 v{T+5}, 1, v4\nv_lshrrev_b32 v{T+5}, 2, v{T+5}\nv_sub_u32 v{T+5}, 0, v{T+5}")
    e(f"s_lshl_b32 s{sT0}, s{sPOS}, 12\ns_waitcnt vmcnt(0)")
    k.stamp(1)
    c('row of the sample: 16 dwords of two u16 table offsets (id+1)*16; 13 field pairs + the first three again')
    for t in range(4): e(f"v_lshl_or_b32 v{RW+t}, v{V+2*t+1}, 16, v{V+2*t}\nv_lshl_add_u32 v{RW+t}, v{RW+t}, 4, v7")
    e(f"buffer_store_dwordx4 {vr(RW,4)}, v3, {sr(S_ROW)}, s{sT0} offen{SC}")
    e(f"s_lshl_b32 s{sT1}, s2, 8")
    for x in range(2): e(f"buffer_load_dwordx4 {vr(TP+4*x,4)}, v131, {sr(S_TABL)}, s{sT1} offen offset:{16*x}")
    for t in range(4): e(f"buffer_load_dwordx4 {vr(WR+4*t,4)}, v132, {sr(S_W)}, 0 offen offset:{16*t}")
    e(f"global_load_short_d16_hi v{PP}, v133, s[{P_P}:{P_P+1}]")
    c('rank of every occurrence inside its bucket (bucket = id>>2), entry = sample<<8 | pair<<4 | (id&3)<<2 | wrap<<1 | first')
    for t in range(8):
        if t == 2: e("s_mov_b32 exec_lo, 0x77777777\ns_mov_b32 exec_hi, 0x77777777")
        e(f"v_and_b32 v{C4+t}, -4, v{V+t}\nds_add_rtn_u32 v{KK+t}, v{C4+t}, v2 offset:{CNT}")
    e("s_mov_b64 exec, -1")
    for t in range(8): e(f"v_lshlrev_b32 v{V+t}, 2, v{V+t}\nv_and_or_b32 v{V+t}, v{V+t}, 12, v{EB+t}")
    e("s_waitcnt lgkmcnt(0)")
    for t in range(8):
        if t == 2: e("s_mov_b32 exec_lo, 0x77777777\ns_mov_b32 exec_hi, 0x77777777")
        e(f"v_min_u32 v4, 54, v{KK+t}\nv_lshl_add_u32 v4, v{C4+t}, 4, v4\nds_write_b16 v4, v{V+t} offset:{LIMG}")
    e("s_mov_b64 exec, -1")
    e(f"s_lshl_b32 s{sT0}, s{sPOS}, 6")
    e(f"s_add_u32 s{sTAG}, s{sTAG}, 1")
    k.srd(S_OUT, P_OUT, 32768)
    k.stamp(2)
    if B1ON:
        c("progress beacon (a hint only): one workgroup per die tells the others that it has its indices")
        e(f"s_sub_u32 s{sT1}, s2, 248\ns_lshl_b32 s{sT2}, s{sJ}, 3\ns_or_b32 s{sT2}, s{sT2}, s{sT1}\ns_cmp_lt_u32 s{sT2}, 8\ns_cbranch_scc1 L_bc1\nL_bc1_ret:")
        with rare():
            e(f"L_bc1:\ns_lshl_b32 s{sT1}, s{sT1}, 7\ns_add_u32 s{sT1}, s{sT1}, {BCN:#x}\nv_lshl_add_u32 v4, v{vL}, 4, s{sT1}")
            for i in range(4): e(f"v_mov_b32 v{RW+i}, s{sTAG}")
            e(f"s_mov_b64 exec, 15\nglobal_store_dwordx4 v4, {vr(RW,4)}, s[{P_WS}:{P_WS+1}]{SC}\ns_mov_b64 exec, -1\nv_mov_b32 v7, s{sTAG}\ns_waitcnt vmcnt(8) lgkmcnt(0)\ns_branch L_bc1_done")
    e(f"v_mov_b32 v7, s{sTAG}\ns_waitcnt vmcnt(7) lgkmcnt(0)")
    if B1ON: e("L_bc1_done:")
    sync_add(0)
    sync_wait(0, 4, 'lo')
    k.stamp(3)
    c('all rows of this workgroup are in memory: waves 0,1 publish the 250 list cells (64 B: entries, count, epoch tag)\nwaves 2,3 build the operand images of the linear term (W h / 2) and of the value (p)')
    PR = lambda h: 146 + 4 * h if h < 5 else 202 + 4 * (h - 5)
    e(f"s_cmp_ge_u32 s{sU}, 2\ns_cbranch_scc1 L_nopub\nv_and_b32 v4, -4, v0")
    for h in range(7): e(f"ds_read_b128 {vr(PR(h),4)}, v3 offset:{LIMG+2048*h}\nds_read_b32 v{216+h}, v4 offset:{CNT+128*h}")
    for h in range(8):
        e(f"s_waitcnt lgkmcnt({12 if h==0 else 14-2*h})")
        if h == 0: e(f"ds_read_b128 {vr(PR(7),4)}, v3 offset:{LIMG+2048*7}\nds_read_b32 v223, v4 offset:{CNT+128*7}")
        e(f"v_bfi_b32 v{PR(h)+3}, v{T+5}, v7, v{PR(h)+3}\nv_bfi_b32 v{PR(h)+2}, v{T+5}, v{216+h}, v{PR(h)+2}")
        e(f"buffer_store_dwordx4 {vr(PR(h),4)}, v{T+4}, {sr(S_LIST)}, s{sT0} offen{SC}")
        if h < 7: e(f"s_add_u32 s{sT0}, s{sT0}, 0x80000")
    e("s_waitcnt vmcnt(8)\ns_branch L_noa5\nL_nopub:")
    e(f"s_and_b32 s{sT1}, s{sU}, 1\ns_mul_i32 s{sT0}, s{sT1}, 384\nv_lshl_add_u32 v134, v{vL}, 2, s{sT0}\nv_mov_b32 v6, 0\nv_lshl_add_u32 v4, v133, 1, s{sT0}\nds_write_b32 v4, v6 offset:{GP+256}")
    e(f"s_lshl_b32 s{sNT}, s{sT1}, 2\nv_and_b32 v4, 7, v{vL}\nv_subrev_u32 v4, s{sNT}, v4\nv_min_u32 v4, 2, v4\nv_lshlrev_b32 v4, 7, v4\nv_lshl_add_u32 v4, v130, 6, v4\nv_add_u32 v132, s{sT0}, v4")
    e(f"s_lshl_b32 s{sT1}, s{sT1}, 11\nv_lshl_add_u32 v131, v{vL}, 4, s{sT1}\nv_cmp_gt_u32 vcc, 32, v{vL}\ns_waitcnt vmcnt(0)")
    for t in range(16): e(f"v_dot2_f32_bf16 v6, v{WR+t}, s{sH+t}, v6")
    for t in range(8): e(f"v_lshlrev_b32 v{TU+2*t}, 16, v{TP+t}\nv_and_b32 v{TU+2*t+1}, 0xffff0000, v{TP+t}")
    e(f"v_mul_f32 v6, {LOG2E_HALF:#x}, v6\nv_cndmask_b32 v6, v{PP}, v6, vcc\nds_write_b32 v134, v6 offset:{GP}\ns_waitcnt lgkmcnt(0)")
    for t in range(4): e(f"ds_read_b128 {vr(WV+4*t,4)}, v132 offset:{GP+16*t}")
    e("s_waitcnt lgkmcnt(0)")
    for t in range(16): e(f"v_mul_f32 v{WV+t}, v{WV+t}, v{TU+t}")
    for t in range(8): e(f"v_cvt_pk_bf16_f32 v{MU+t}, v{WV+2*t}, v{WV+2*t+1}")
    e(f"ds_write_b128 v131, {vr(MU,4)} offset:{AIMG+8192}\nds_write_b128 v131, {vr(MU+4,4)} offset:{AIMG+8192+1024}\ns_waitcnt lgkmcnt(0)")
    sync_add(2)
    e("L_noa5:")
    k.stamp(4)
    c("where the sums of this lane's occurrences will be found")
    make_loc(KK, C4, False)
    e(f"v_max3_u32 v7, v{KK}, v{KK+1}, v{KK+2}\nv_max3_u32 v7, v7, v{KK+3}, v{KK+4}\nv_max3_u32 v7, v7, v{KK+5}, v{KK+6}\nv_max_u32 v7, v7, v{KK+7}")
    e(f"v_cmp_le_u32 vcc, 32, v7\ns_cbranch_vccnz L_mark\nL_mark_ret:")
    with rare():
        e("L_mark:"); make_loc(KK, C4, True); sync_add(4); e("s_branch L_mark_ret")

def decode(ns):
    for i, n in enumerate(ns): e(f"v_lshrrev_b32 v{TQ+i}, 2, v{RM+n}\nv_bfe_i32 v{TQ+4+i}, v{RM+n}, v{cBIT}, 1")
    for i, n in enumerate(ns): e(f"v_and_b32 v{TQ+i}, v{TQ+i}, v{cAM}\nv_and_b32 v{TQ+8+i}, v{TQ+4+i}, v{cWR}")
    for i, n in enumerate(ns): e(f"v_add3_u32 v{TQ+i}, v{TQ+i}, v{cOFF}, v{TQ+8+i}\nv_and_b32 v{TQ+4+i}, v{TQ+4+i}, v{cA}")
    for i, n in enumerate(ns):
        e(f"buffer_load_dwordx4 {vr(G+4*n,4)}, v{TQ+i}, {sr(S_ROW)}, s{sG} offen{SC}\nv_and_or_b32 v{RM+n}, v{RM+n}, 12, v{TQ+4+i}")
def addrs(n, buf):
    g = G + 4 * n; r = RM + n
    e(f"v_and_b32 v{g}, v{g}, v{r}")
    for t, (d, dw, hi) in enumerate([(2, 1, 0), (g + 1, 1, 1), (3, 2, 0), (g + 2, 2, 1), (4, 3, 0), (g + 3, 3, 1), (g, 0, 1)]):
        e(f"v_add_u32_sdwa v{d}, v{r}, v{g+dw} dst_sel:DWORD dst_unused:UNUSED_PAD src0_sel:WORD_0 src1_sel:WORD_{hi}")
        e(f"ds_read_b32 v{BQ+8*buf+t}, v{d}")
def mf(n, buf):
    a = AC + 4 * (n // 4); q = n & 3
    e(f"v_mfma_f32_16x16x32_bf16 {vr(a,4)}, {vr(AS+4*q,4)}, {vr(BQ+8*buf,4)}, {'0' if q==0 else vr(a,4)}")
    e(f"v_mfma_f32_16x16x32_bf16 {vr(a,4)}, {vr(AS+4*q,4)}, {vr(BQ+8*buf+4,4)}, {vr(a,4)}")
def dreads(addr):
    for q in range(4): e(f"ds_read2_b32 {vr(DX+2*q,2)}, v{addr+q//2} offset0:{128*(q%2)} offset1:{128*(q%2)+16}")
def dests():
    for q in range(8): e(f"v_lshrrev_b32 v{DX+q}, 12, v{DX+q}")
    for q in range(8): e(f"v_and_or_b32 v{DX+q}, v{DX+q}, v5, v6")
def res_stores(lvl, s0):
    T = G + 16 * lvl
    e(f"v_add_u32 v2, 64, v{cRD}\nv_add_u32 v3, 128, v{cRD}\nv_add_u32 v4, 192, v{cRD}\ns_waitcnt lgkmcnt(6)")
    for i in range(4):
        for x in range(2): e(f"ds_read2st64_b32 {vr(T+4*i+2*x,2)}, v{cRD if i==0 else 1+i} offset0:{16*lvl+2*x} offset1:{16*lvl+2*x+1}")
    for i in range(4):
        e(f"s_waitcnt lgkmcnt({6-2*i})")
        for j in range(4): e(f"v_and_or_b32 v{T+4*i+j}, v{T+4*i+j}, v{cMSK}, v{cR+j}")
        e(f"buffer_store_dwordx4 {vr(T+4*i,4)}, v{cRA}, {sr(S_RES)}, s{s0} offen{SC}")
        if i < 3: e(f"s_add_u32 s{s0}, s{s0}, 0x40000")

def lo_lookup():
    POLL = 16; NQ = 3
    e("s_cmp_ge_u32 s2, 250\ns_cbranch_scc1 L_nobucket0")
    with rare(): e("L_nobucket0:\ns_waitcnt lgkmcnt(0)\ns_branch L_nobucket")
    c('================ lo waves: lookups for bucket = workgroup id ================')
    e("s_setprio 0"); late_consts(); e("s_setprio 2")
    e(f"v_lshlrev_b32 v3, 4, v{vL}\ns_lshl_b32 s{sT0}, s2, 14\ns_add_u32 s{sT0}, s{sT0}, s{sCNT}")
    e(f"s_mov_b32 s{sNT}, 0\ns_mov_b32 s{sEX}, 0x88888888\ns_mov_b32 s{sEX+1}, 0x88888888")
    CW, CN1, CD, CP = DX + 8, DX + 9, DX + 10, DX + 11
    RA2 = DX + 12
    e(f"v_lshlrev_b32 v{CW}, 14, v{vL}\nv_mov_b32 v{CD}, {DUMP}\nv_lshl_add_u32 v{CP}, v{vL}, 2, s{sG+1}")
    e(f"s_and_b32 s{sT1}, s{sU}, 1\ns_lshl_b32 s{sT1}, s{sT1}, 2\ns_add_u32 s{sT1}, s{sT1}, {NW}\nv_mov_b32 v2, s{sT1}")
    k.stamp(5)
    c('waves 2,3 fetch the incoming cells (their own stores do not stand in front of the loads); waves 0,1 wait for the word in LDS')
    e(f"s_cmp_ge_u32 s{sU}, 2\ns_cbranch_scc1 L_poller")
    e("L_wait_lists:\ns_sleep 1\nds_read_b32 v4, v2\ns_waitcnt lgkmcnt(0)\nv_cmp_eq_u32 vcc, 0, v4\ns_cbranch_vccnz L_wait_lists")
    e(f"v_cmp_eq_u32 vcc, 1, v4\ns_cbranch_vccnz L_poll1_ok\ns_branch L_gaveup")
    e(f"L_poller:\ns_sub_u32 s{sT1}, s{sT0}, 0x2000\nv_add_u32 v7, {(-0x2000)&0xffffffff:#x}, v{WA}")
    c('back-off: reading a line before it has been written makes that write slow, so the first look waits a little')
    if B1ON:
        e(f"v_lshlrev_b32 v4, 7, v{vL}\nv_add_u32 v4, {BCN:#x}, v4\ns_mov_b64 exec, 0xff\ns_branch L_bw1\nL_bw1_z:\ns_sleep {opt('bs1', 3)}\ns_add_u32 s{sNT}, s{sNT}, 1\ns_cmp_ge_u32 s{sNT}, {LIMIT}\ns_cbranch_scc1 L_bw1_ok")
        e(f"L_bw1:\nglobal_load_dword v5, v4, s[{P_WS}:{P_WS+1}]{SC}\ns_waitcnt vmcnt(0)\nv_cmp_ne_u32 vcc, s{sTAG}, v5\ns_cbranch_vccnz L_bw1_z\nL_bw1_ok:\ns_mov_b64 exec, -1")
    if DL1: e(f"s_sleep {DL1}")
    e("L_poll1:")
    for h in range(8): e(f"buffer_load_dwordx4 {vr(POLL+4*h,4)}, v3, {sr(S_LIST)}, s{sT1 if h<4 else sT0} offen offset:{1024*(h%4)}{SC}")
    for h in range(8):
        e(f"s_waitcnt vmcnt({7-h})")
        if h == 0: e(f"v_xor_b32 v4, s{sTAG}, v{POLL+3}")
        else: e(f"v_xor_b32 v5, s{sTAG}, v{POLL+4*h+3}\nv_or_b32 v4, v4, v5")
        e(f"ds_write_b128 v{7 if h<4 else WA}, {vr(POLL+4*h,4)} offset:{WL+1024*(h%4)}")
    e(f"v_cmp_ne_u32 vcc, 0, v4\ns_and_b64 vcc, vcc, s[{sEX}:{sEX+1}]\nv_mov_b32 v5, 1\ns_waitcnt lgkmcnt(0)")
    e("s_cbranch_vccnz L_poll1_again\nds_write_b32 v2, v5\nL_poll1_ok:")
    with rare():
        e("L_poll1_again:")
        e(f"s_add_u32 s{sNT}, s{sNT}, 1\ns_cmp_lt_u32 s{sNT}, {LIMIT}\ns_cbranch_scc1 L_poll1")
        for i in range(4): e(f"v_mov_b32 v{POLL+i}, 0")
        for h in range(8): e(f"ds_write_b128 v{7 if h<4 else WA}, {vr(POLL,4)} offset:{WL+1024*(h%4)}")
        e("v_mov_b32 v5, 2\ns_waitcnt lgkmcnt(0)\nds_write_b32 v2, v5\nL_gaveup:")
        for i in range(4): e(f"v_or_b32 v{cR+i}, 0x7fc00000, v{cR+i}")
        e("s_branch L_poll1_ok")
    k.stamp(6)
    c('one cell per lane: the first entries of every cell form dense tiles that are fetched at once,\nthe others are packed behind them (count, prefix sum, flat list written from the highest slot down)')
    ND = opt('nd', 2); P1 = 2 * ND; P2 = opt('p2', 6)
    e(f"ds_read_b128 {vr(EN,4)}, v{WA+1} offset:{WL}\nds_read_b128 {vr(EN+12,4)}, v{WA+4} offset:{WL}")
    for g in (1, 2): e(f"ds_read_b128 {vr(EN+4*g,4)}, v{WA+1+g} offset:{WL}")
    e("s_waitcnt lgkmcnt(3)")
    def word(j, d, w): e(f"v_or_b32_sdwa v{d}, v{w}, sext(v{EN+j//2}) dst_sel:DWORD dst_unused:UNUSED_PAD src0_sel:DWORD src1_sel:WORD_{j&1}")
    for j in range(ND):
        if j: e(f"v_add_u32 v5, {j<<20:#x}, v{CW}")
        word(j, 6 + (j & 1), 5 if j else CW); e(f"ds_write_b32 v{CP}, v{6+(j&1)} offset:{256*j}")
    for n in range(P1): e(f"ds_read_b32 v{RM+n}, v{cFL} offset:{128*n}")
    e(f"s_waitcnt lgkmcnt({P1+ND+2})\nv_lshrrev_b32 v2, 1, v{EN+14}\nv_min_u32 v2, 24, v2\nv_sub_u32 v2, v2, {ND} clamp\nv_mov_b32 v3, v2\ns_nop 1")
    scan = [f"v_add_u32_dpp v3, v3, v3 {m} row_mask:0xf bank_mask:0xf" for m in ("row_shr:1", "row_shr:2", "row_shr:4", "row_shr:8")]
    scan += ["v_add_u32_dpp v3, v3, v3 row_bcast:15 row_mask:0xa bank_mask:0xf", "v_add_u32_dpp v3, v3, v3 row_bcast:31 row_mask:0xc bank_mask:0xf"]
    e(scan[0]); e(f"s_waitcnt lgkmcnt({max(P1-4,0)})")
    n0 = len(k.L); decode(list(range(min(4, P1))))
    if P1 > 4: e("s_waitcnt lgkmcnt(0)"); decode(list(range(4, P1)))
    body = k.L[n0:]; del k.L[n0:]
    for i, x in enumerate(body):
        k.L.append(x)
        if i % 3 == 2 and len(scan) > 1: e(scan.pop(1))
    for x in scan[1:]: e("s_nop 1"); e(x)
    e(f"v_cmp_eq_u32 vcc, 0, v2\nv_readlane_b32 s{sNT}, v3, 63\nv_sub_u32 v{CN1}, v3, v2\nv_lshl_add_u32 v3, v{CN1}, 2, s{sG+1}\nv_cndmask_b32 v3, v3, v{CD}, vcc")
    e(f"v_cmp_lt_u32 vcc, {16-ND}, v2\ns_or_b32 s{sBAD}, vcc_lo, vcc_hi\ns_add_u32 s{sNT}, s{sNT}, {64*ND}\ns_waitcnt lgkmcnt(0)\ns_cbranch_vccnz L_fl23")
    e(f"v_cmp_lt_u32 vcc, {14-ND}, v2\nv_add_u32 v5, {15<<20:#x}, v{CW}\ns_cbranch_vccnz L_fl15\nv_add_u32 v5, {13<<20:#x}, v{CW}\ns_branch L_fl13")
    def put(j):
        word(j, 6 + (j & 1), 5)
        if j > ND: e(f"v_add_u32 v5, 0xfff00000, v5")
        e(f"ds_write_b32 v3, v{6+(j&1)} offset:{256*ND+4*(j-ND)}")
    with rare():
        e(f"L_fl23:\nv_add_u32 v5, {23<<20:#x}, v{CW}")
        for j in range(23, 15, -1): put(j)
        e("s_waitcnt lgkmcnt(0)\ns_branch L_fl15")
    for j in range(15, ND - 1, -1):
        if j in (15, 13): e(f"L_fl{j}:")
        put(j)
        if j == 8: e("s_waitcnt lgkmcnt(4)")
    e(f"v_add_u32 v7, 1024, v{cDR}\nv_mov_b32 v6, v{cDR}\ns_waitcnt lgkmcnt(3)")
    for n in range(P1, 16): e(f"ds_read_b32 v{RM+n}, v{cFL} offset:{128*n}")
    c("a cell group whose entries all lie in the first 256 / 384 list places is stored as soon as those sums exist")
    e(f"v_readlane_b32 s{sT0}, v{CN1}, 16\nv_readlane_b32 s{sT1}, v{CN1}, 32\nv_readlane_b32 s{sT2}, v{CN1}, 48\nv_add_u32 v{RA2}, 64, v{cRD}\nv_add_u32 v{RA2+1}, 128, v{cRD}\nv_add_u32 v{RA2+2}, 192, v{cRD}")
    e(f"s_cmp_le_u32 s{sT0}, {256-64*ND}\ns_cselect_b32 s3, 1, 0\ns_cmp_le_u32 s{sT1}, {384-64*ND}\ns_cselect_b32 s{sT0}, 2, 0\ns_or_b32 s3, s3, s{sT0}\ns_cmp_le_u32 s{sT2}, {384-64*ND}\ns_cselect_b32 s{sT0}, 4, 0\ns_or_b32 s3, s3, s{sT0}\ns_mov_b32 s{sCNT}, 0")
    e("L_round:")
    e(f"s_add_u32 s{sT2}, s{sNT}, 31\ns_lshr_b32 s{sT2}, s{sT2}, 5\ns_waitcnt lgkmcnt({16-P2})")
    for x in range(P1, P2, 4): decode(list(range(x, min(x + 4, P2))))
    dreads(6)
    k.stamp(7)
    c('the table is complete')
    sync_wait(5, 4, 'tab', 1)
    k.stamp(8)
    e(f"v_mov_b32 v5, 0x1ffc\nv_mov_b32 v6, s{sG+2}")
    dests()
    c('tile = 32 occurrences x 2 lanes x 7 lookups; the sums over the lookups are formed by MFMA with 0/1 selectors')
    R = 16 - P2
    def scat(q):
        a_ = AC + 4 * q
        e(f"v_cvt_pk_bf16_f32 v{a_}, v{a_+1}, v{a_}\nv_cvt_pk_bf16_f32 v{a_+2}, v{a_+3}, v{a_+2}")
        e(f"ds_write_b32 v{DX+2*q}, v{a_}\nds_write_b32 v{DX+2*q+1}, v{a_+2}")
    def grd(i):
        for x in range(2): e(f"ds_read2st64_b32 {vr(G+4*i+2*x,2)}, v{cRD if i==0 else RA2+i-1} offset0:{2*x} offset1:{2*x+1}")
    def gst(i):
        for j in range(4): e(f"v_and_or_b32 v{G+4*i+j}, v{G+4*i+j}, v{cMSK}, v{cR+j}")
        e(f"s_add_u32 s{sT0}, s{sG+3}, {i*0x40000:#x}\nbuffer_store_dwordx4 {vr(G+4*i,4)}, v{cRA}, {sr(S_RES)}, s{sT0} offen{SC}\ns_bitset1_b32 s{sCNT}, {i}")
    def early(i, nm):
        e(f"s_bitcmp1_b32 s3, {i}\ns_cbranch_scc0 L_e{nm}"); gst(i); e(f"L_e{nm}:")
    for n in range(16):
        e(f"s_waitcnt vmcnt({P2+min(n,R)-1-n})"); addrs(n, n & 1)
        if n: e("s_waitcnt lgkmcnt(7)"); mf(n - 1, (n - 1) & 1)
        if n < R: decode([P2 + n])
        if n == 5: scat(0)
        if n == opt('bt', 6) and B2ON:
            e(f"s_sub_u32 s{sT0}, s2, 240\ns_lshl_b32 s{sT1}, s{sJ}, 3\ns_or_b32 s{sT1}, s{sT1}, s{sT0}\ns_cmp_lt_u32 s{sT1}, 8\ns_cbranch_scc1 L_bc2\nL_bc2_ret:")
            with rare():
                e(f"L_bc2:\ns_lshl_b32 s{sT0}, s{sT0}, 7\ns_add_u32 s{sT0}, s{sT0}, {BCN+0x400:#x}\nv_lshl_add_u32 v5, v{vL}, 4, s{sT0}")
                for i in range(4): e(f"v_mov_b32 v{G+12+i}, s{sTAG}")
                e(f"s_mov_b64 exec, 15\nglobal_store_dwordx4 v5, {vr(G+12,4)}, s[{P_WS}:{P_WS+1}]{SC}\ns_mov_b64 exec, -1\ns_branch L_bc2_ret")
        if n == 9: scat(1); grd(0)
        if n == 10: early(0, 'a')
        if n == 13: scat(2); grd(1); grd(2)
        if n == 14: early(1, 'b'); early(2, 'c')
        if 11 <= n < 15: e(f"s_cmp_le_u32 s{sT2}, {n+1}\ns_cbranch_scc1 L_x{n}")
    e("s_waitcnt lgkmcnt(0)"); mf(15, 1); e("s_nop 6\ns_branch L_tiles_done")
    for n in (11, 12):
        e(f"L_x{n}:\ns_waitcnt lgkmcnt(0)"); mf(n, n & 1); e("s_nop 7"); scat(2); e("s_branch L_tiles_done")
    e("L_x14:\ns_waitcnt lgkmcnt(0)"); mf(14, 0); e("s_nop 6\ns_branch L_tiles_done")
    e("L_x13:\ns_waitcnt lgkmcnt(0)"); mf(13, 1); early(1, 'd'); early(2, 'e'); e("s_nop 3")
    e("L_tiles_done:")
    scat(3)
    e(f"s_cmp_gt_u32 s{sNT}, 512\ns_cbranch_scc1 L_more")
    with rare():
        e(f"L_more:\ns_mov_b32 s3, 0\ns_sub_u32 s{sNT}, s{sNT}, 512\nv_add_u32 v{cFL}, 2048, v{cFL}\nv_add_u32 v{cDR}, 2048, v{cDR}\nv_add_u32 v7, 1024, v{cDR}\nv_mov_b32 v6, v{cDR}")
        e("s_waitcnt vmcnt(0) lgkmcnt(0)")
        for n in range(16):
            e(f"ds_read_b32 v{RM+n}, v{cFL} offset:{128*n}")
            if n == 7: e("s_waitcnt lgkmcnt(0)")
        e("s_waitcnt lgkmcnt(0)")
        for x in range(0, P1, 4): decode(list(range(x, min(x + 4, P1))))
        e("s_branch L_round")
    c('result cells: 16 x (sum w : bf16 | sum w*s : bf16), bit 31 and bit 0 of every dword carry the epoch tag')
    grd(3)
    e(f"s_cmp_lg_u32 s{sCNT}, 7\ns_cbranch_scc1 L_late\nL_late_ret:\ns_waitcnt lgkmcnt(0)")
    with rare():
        e("L_late:")
        for i in range(3): grd(i)
        e("s_waitcnt lgkmcnt(0)")
        for i in range(3):
            e(f"s_bitcmp1_b32 s{sCNT}, {i}\ns_cbranch_scc1 L_l{i}"); gst(i); e(f"L_l{i}:")
        e("s_branch L_late_ret")
    gst(3)
    e(f"s_cmp_lg_u32 s{sBAD}, 0\ns_cbranch_scc1 L_res2\nL_res2_ret:")
    with rare():
        e(f"L_res2:\ns_add_u32 s{sT0}, s{sG+3}, {RLV:#x}"); res_stores(1, sT0); e("s_branch L_res2_ret")
    e("L_nobucket:")
    k.stamp(9)

def hi_lookup():
    e("s_waitcnt lgkmcnt(0)")
    sync_add(5)
    c("================ hi waves: fetch the result cells of this workgroup's samples ================")
    e("L_hi_final:")
    pos()
    e(f"s_add_u32 s{sTAG}, s{sTAG}, 1")
    res_tags("v_and_b32 v4, 3, v0", 96)
    final_poll()
    k.stamp(6)

def final_poll():
    cR = 96
    T = 32; X = 48; Y = 64; CN = 80; YA = 84
    e(f"v_and_b32 v2, 255, v0\nv_lshlrev_b32 v{T}, 4, v2\nv_add_u32 v{T+1}, 0x2000, v{T}\ns_lshl_b32 s{sT0}, s{sPOS}, 14\ns_add_u32 s{sT1}, s{sT0}, 0x1000")
    e(f"v_cmp_gt_u32 vcc, 232, v2\ns_mov_b64 s[{sEX}:{sEX+1}], vcc\ns_mov_b32 s{sNT}, 0")
    sync_wait(0, 8, 'res', 2)
    e(f"ds_read_b32 v6, v5 offset:16\ns_waitcnt lgkmcnt(0)\nv_readfirstlane_b32 s{sRARE}, v6")
    for h in range(4): e(f"v_mov_b32 v{YA+h}, -1")
    e(f"s_cmp_lg_u32 s{sRARE}, 0\ns_cbranch_scc1 L_rare0\nL_rare0_ret:")
    with rare():
        e(f"L_rare0:\nv_and_b32 v4, -4, v2\ns_add_u32 s{sBAD}, s{sT0}, {RLV:#x}\nv_mov_b32 v7, 0x80000000")
        for h in range(4): e(f"ds_read_b32 v{CN+h}, v4 offset:{CNT+256*h}")
        e("s_waitcnt lgkmcnt(0)")
        for h in range(4):
            e(f"v_add_u32 v{CN+h}, -33, v{CN+h}\nv_add_u32 v4, {4096*h}, v{T}\nv_and_or_b32 v{YA+h}, v{CN+h}, v7, v4\nv_ashrrev_i32 v{CN+h}, 31, v{CN+h}")
        e("s_branch L_rare0_ret")
    c('back-off, as above')
    if B2ON:
        e(f"v_lshlrev_b32 v4, 7, v{vL}\nv_add_u32 v4, {BCN+0x400:#x}, v4\ns_mov_b64 exec, 0xff\ns_branch L_bw2\nL_bw2_z:\ns_sleep {opt('bs2', 3)}\ns_add_u32 s{sNT}, s{sNT}, 1\ns_cmp_ge_u32 s{sNT}, {LIMIT}\ns_cbranch_scc1 L_bw2_ok")
        e(f"L_bw2:\nglobal_load_dword v5, v4, s[{P_WS}:{P_WS+1}]{SC}\ns_waitcnt vmcnt(0)\nv_cmp_ne_u32 vcc, s{sTAG}, v5\ns_cbranch_vccnz L_bw2_z\nL_bw2_ok:\ns_mov_b64 exec, -1")
    if DL2: e(f"s_sleep {DL2}")
    e("L_poll2:")
    e(f"s_cmp_lg_u32 s{sRARE}, 0\ns_cbranch_scc1 L_rare1\nL_rare1_ret:")
    with rare():
        e("L_rare1:")
        for h in range(4): e(f"buffer_load_dwordx4 {vr(Y+4*h,4)}, v{YA+h}, {sr(S_RES)}, s{sBAD} offen{SC}")
        e("s_branch L_rare1_ret")
    for h in range(4): e(f"buffer_load_dwordx4 {vr(X+4*h,4)}, v{T+h//2}, {sr(S_RES)}, s{sT0 if h%2==0 else sT1} offen{SC}")
    for h in range(4):
        d = T + 2 if h < 3 else T + 3
        e(f"s_waitcnt vmcnt({3-h})")
        for j in range(4):
            if j == 0 and h in (0, 3): e(f"v_xor_b32 v{d}, v{X+4*h}, v{cR}")
            else: e(f"v_bitop3_b32 v{d}, v{d}, v{X+4*h+j}, v{cR+j} bitop3:0xf6")
        e(f"ds_write_b128 v{T}, {vr(X+4*h,4)} offset:{RS+4096*h}")
    e(f"s_cmp_lg_u32 s{sRARE}, 0\ns_cbranch_scc1 L_rare2\nL_rare2_ret:")
    with rare():
        e("L_rare2:")
        for h in range(4):
            for j in range(4):
                if j == 0: e(f"v_xor_b32 v4, v{Y+4*h}, v{cR}")
                else: e(f"v_bitop3_b32 v4, v4, v{Y+4*h+j}, v{cR+j} bitop3:0xf6")
            e(f"v_bitop3_b32 v{T+2}, v{T+2}, v4, v{CN+h} bitop3:0xf4")
            e(f"ds_write_b128 v{T}, {vr(Y+4*h,4)} offset:{RS+16384+4096*h}")
        e("s_branch L_rare2_ret")
    e(f"v_and_b32 v{T+3}, 0x80000001, v{T+3}\nv_and_b32 v{T+2}, 0x80000001, v{T+2}")
    e(f"v_cmp_ne_u32 vcc, 0, v{T+3}\ns_and_b64 s[{sU}:{sU+1}], vcc, s[{sEX}:{sEX+1}]\nv_cmp_ne_u32 vcc, 0, v{T+2}\ns_or_b64 vcc, vcc, s[{sU}:{sU+1}]")
    e("s_cbranch_vccnz L_poll2_again\nL_poll2_ok:")
    with rare():
        e("L_poll2_again:")
        e(f"s_waitcnt lgkmcnt(0)\ns_add_u32 s{sNT}, s{sNT}, 1\ns_cmp_lt_u32 s{sNT}, {LIMIT}\ns_cbranch_scc1 L_poll2")
        sync_add(3)
        e("s_branch L_poll2_ok")
    k.stamp(10)
    e("s_waitcnt lgkmcnt(0)\ns_barrier")

def final():
    T = 32; X = 48
    c('================ lo waves: combine ================')
    sync_add(0)
    for t in range(8): e(f"v_and_b32 v{T+8+t}, 0xffff, v{LOC+t}")
    e(f"s_lshl_b32 s{sT2}, s2, 7\ns_lshl_b32 s{sBAD}, s{sJ}, 5\ns_add_u32 s{sT2}, s{sT2}, s{sBAD}")
    e(f"v_lshrrev_b32 v3, 2, v{vL}\nv_lshlrev_b32 v3, 1, v3\ns_waitcnt lgkmcnt(0)\ns_barrier")
    k.stamp(10)
    e(f"s_or_b32 s{sCNT}, s2, s{sJ}\ns_cmp_eq_u32 s{sCNT}, 0\ns_cbranch_scc1 L_epoch\nL_epoch_ret:")
    with rare():
        e(f"L_epoch:\ns_mov_b64 exec, 1\nv_mov_b32 v4, {EPOCH:#x}\nv_mov_b32 v5, s{sTAG}\nglobal_store_dword v4, v5, s[{P_WS}:{P_WS+1}]{SC}\ns_mov_b64 exec, -1\ns_branch L_epoch_ret")
    e(f"v_mov_b32 v5, {SYNC+12}\nds_read_b32 v6, v5")
    for t in range(8): e(f"ds_read_b32 v{X+t}, v{T+8+t}")
    for t in range(8):
        e(f"s_waitcnt lgkmcnt({7-t})\nv_and_b32 v{T+t}, 0x7fff0000, v{X+t}\nv_lshlrev_b32 v{X+t}, 16, v{X+t}")
        if t % 2: e(f"v_add_f32 v{T+t-1}, v{T+t-1}, v{T+t}\nv_add_f32 v{X+t-1}, v{X+t-1}, v{X+t}")
        if t % 4 == 3: e(f"v_add_f32 v{T+t-3}, v{T+t-3}, v{T+t-1}\nv_add_f32 v{X+t-3}, v{X+t-3}, v{X+t-1}")
    e(f"v_add_f32 v{T}, v{T}, v{T+4}\nv_add_f32 v{X}, v{X}, v{X+4}\ns_nop 0")
    e(f"v_add_f32_dpp v{T+1}, v{T}, v{T} quad_perm:[1,0,3,2] row_mask:0xf bank_mask:0xf")
    e(f"v_add_f32_dpp v{X+1}, v{X}, v{X} quad_perm:[1,0,3,2] row_mask:0xf bank_mask:0xf")
    e("s_nop 0")
    e(f"v_add_f32_dpp v{T}, v{T+1}, v{T+1} quad_perm:[2,3,0,1] row_mask:0xf bank_mask:0xf")
    e(f"v_add_f32_dpp v{X}, v{X+1}, v{X+1} quad_perm:[2,3,0,1] row_mask:0xf bank_mask:0xf")
    e(f"v_rcp_f32 v{T+1}, v{T}")
    c('the weights were formed against a fixed reference instead of the row maximum: safe iff 2^-80 <= sum < 2^100 and the\nquotient is finite; otherwise (also after an overflow of a cell or a lost hand-off) recompute with the true maximum')
    e(f"v_add_u32 v{T+2}, {(-0x17800000)&0xffffffff:#x}, v{T}\nv_mul_f32 v{X}, v{X}, v{T+1}\nv_cmp_gt_u32 vcc, 0x5a000000, v{T+2}")
    e(f"v_and_b32 v{T+3}, 0x7fffffff, v{X}\ns_mov_b64 s[{sEX}:{sEX+1}], vcc\nv_cmp_gt_u32 vcc, 0x7f800000, v{T+3}\nv_cvt_pk_bf16_f32 v{X}, v{X}, v{X}")
    e(f"s_and_b64 s[{sEX}:{sEX+1}], vcc, s[{sEX}:{sEX+1}]\nv_cmp_eq_u32 vcc, 0, v6")
    e(f"s_and_b64 vcc, vcc, s[{sEX}:{sEX+1}]\ns_cmp_eq_u64 vcc, -1\ns_cbranch_scc0 L_fallback")
    e("s_mov_b32 exec_lo, 0x11111111\ns_mov_b32 exec_hi, 0x11111111")
    e(f"buffer_store_short v{X}, v3, {sr(S_OUT)}, s{sT2} offen")
    e("L_fin:")

def fallback():
    c("================ direct evaluation of this wave's 16 samples, online (true) maximum ================")
    e("L_fallback:")
    A0 = 16; A1 = 20; C0 = 24; C1 = 28; AH = 32; AP = 36; EI = 40; EJ = 48; PK = 56; DD = 60; HK = 68; DS = 72; W16 = 80
    N, Q, IB, M, LL, ACc, T = 100, 101, 102, 103, 104, 105, 106
    e(f"v_and_b32 v{N}, 15, v{vL}\nv_lshrrev_b32 v{Q}, 4, v{vL}")
    e(f"v_lshlrev_b32 v{T}, 9, v{Q}\nv_lshl_add_u32 v{T}, v{N}, 1, v{T}")
    for half in range(2):
        for t in range(8): e(f"buffer_load_ushort v{W16+8*half+t}, v{T}, {sr(S_W)}, 0 offen offset:{t*64+half*32}")
    e(f"v_lshlrev_b32 v{T+1}, 3, v{Q}\nv_lshlrev_b32 v{Q}, 4, v{Q}")
    e(f"global_load_dwordx2 {vr(EI,2)}, v{T+1}, s[{P_B}:{P_B+1}]\nglobal_load_dwordx2 {vr(EI+2,2)}, v{T+1}, s[{P_B}:{P_B+1}] offset:32")
    e(f"global_load_dwordx2 {vr(AH,2)}, v{T+1}, s[{P_H}:{P_H+1}]\nglobal_load_dwordx2 {vr(AH+2,2)}, v{T+1}, s[{P_H}:{P_H+1}] offset:32")
    e(f"global_load_dwordx4 {vr(AP,4)}, v{Q}, s[{P_P}:{P_P+1}]")
    e(f"s_lshl_b32 s{sU}, s2, 6\ns_lshl_b32 s{sT1}, s{sJ}, 4\ns_add_u32 s{sU}, s{sU}, s{sT1}\nv_add_u32 v{IB}, s{sU}, v{N}\nv_mul_u32_u24 v{IB}, 104, v{IB}")
    e("s_waitcnt vmcnt(0)")
    for half in range(2):
        for t in range(4): e(f"v_lshl_or_b32 v{A0+4*half+t}, v{W16+8*half+2*t+1}, 16, v{W16+8*half+2*t}")
    for i in range(4): e(f"v_lshlrev_b32 v{C0+2*i}, 16, v{EI+i}\nv_and_b32 v{C0+2*i+1}, 0xffff0000, v{EI+i}")
    e(f"v_mov_b32 v{M}, 0xff800000\nv_mov_b32 v{LL}, 0\nv_mov_b32 v{ACc}, 0")
    e(f"s_mov_b32 s{sU}, 0")
    def getrow(dst, soff):
        e(f"buffer_load_dword v{T}, v{IB}, {sr(S_IDX)}, s{soff} offen\ns_waitcnt vmcnt(0)")
        e(f"v_lshl_add_u32 v{T}, v{T}, 6, v{Q}\nbuffer_load_dwordx4 {vr(dst+4,4)}, v{T}, {sr(S_TABL)}, 0 offen\ns_waitcnt vmcnt(0)")
        for t in range(4): e(f"v_lshlrev_b32 v{dst+2*t}, 16, v{dst+4+t}\nv_and_b32 v{dst+2*t+1}, 0xffff0000, v{dst+4+t}")
    e("L_fb_i:")
    getrow(EI, sU)
    e(f"s_add_u32 s{sCNT}, s{sU}, 4")
    e("L_fb_j:")
    getrow(EJ, sCNT)
    for t in range(8): e(f"v_mul_f32 v{EJ+t}, v{EJ+t}, v{EI+t}")
    for t in range(4): e(f"v_cvt_pk_bf16_f32 v{PK+t}, v{EJ+2*t}, v{EJ+2*t+1}")
    e("s_nop 1")
    e(f"v_mfma_f32_16x16x32_bf16 {vr(DD,4)}, {vr(A0,4)}, {vr(PK,4)}, {vr(C0,4)}")
    e(f"v_mfma_f32_16x16x32_bf16 {vr(DD+4,4)}, {vr(A1,4)}, {vr(PK,4)}, {vr(C1,4)}")
    e(f"v_mfma_f32_16x16x32_bf16 {vr(DS,4)}, {vr(AP,4)}, {vr(PK,4)}, 0")
    e("s_nop 7")
    for t in range(4): e(f"v_cvt_pk_bf16_f32 v{HK+t}, v{DD+2*t}, v{DD+2*t+1}")
    for t in range(4): e(f"v_pk_max_i16 v{HK+t}, v{HK+t}, 0")
    e("s_nop 1")
    e(f"v_mfma_f32_16x16x32_bf16 {vr(DD,4)}, {vr(AH,4)}, {vr(HK,4)}, 0")
    e("s_nop 7")
    e(f"v_mul_f32 v{DD}, 0x3fb8aa3b, v{DD}\nv_max_f32 v{DD+1}, v{M}, v{DD}\nv_sub_f32 v{DD+2}, v{M}, v{DD+1}\nv_sub_f32 v{DD+3}, v{DD}, v{DD+1}")
    e(f"v_exp_f32 v{DD+2}, v{DD+2}\nv_exp_f32 v{DD+3}, v{DD+3}\nv_mov_b32 v{M}, v{DD+1}")
    e(f"v_fma_f32 v{LL}, v{LL}, v{DD+2}, v{DD+3}\nv_mul_f32 v{ACc}, v{ACc}, v{DD+2}\nv_fma_f32 v{ACc}, v{DD+3}, v{DS}, v{ACc}")
    e(f"s_add_u32 s{sCNT}, s{sCNT}, 4\ns_cmp_lt_u32 s{sCNT}, 104\ns_cbranch_scc1 L_fb_j")
    e(f"s_add_u32 s{sU}, s{sU}, 4\ns_cmp_lt_u32 s{sU}, 100\ns_cbranch_scc1 L_fb_i")
    e(f"v_rcp_f32 v{LL}, v{LL}\nv_lshlrev_b32 v{N}, 1, v{N}\nv_mul_f32 v{ACc}, v{ACc}, v{LL}\nv_cvt_pk_bf16_f32 v{ACc}, v{ACc}, v{ACc}")
    e("s_mov_b64 exec, 0xffff")
    e(f"buffer_store_short v{ACc}, v{N}, {sr(S_OUT)}, s{sT2} offen")
    e("s_branch L_fin")

B_ = 8; A_ = 72; A5 = 104; CB = 120; HQ = 184; D_ = 200; ACC = 232; INIT = 248; TW = 249

NB0 = opt('nb0', 4); NB1 = opt('nb1', 8)

def hi():
    WV = 120; TP = 136; TU = 144; T = 184
    c('================ hi waves (4-7): table rows 4c..4c+3 against all 1000 ids ================')
    e("L_hi:")
    vm = ['s'] * 5
    def vmem(lab, txt): e(txt); vm.append(lab)
    def vneed(lab): return len(vm) - 1 - max(i for i, x in enumerate(vm) if x == lab)
    vmem('s', f"global_load_dwordx4 {vr(TP+4,4)}, v5, s[{P_TAB}:{P_TAB+1}] offset:16")
    for t in range(1, 16): vmem('s', f"global_load_short_d16_hi v{WV+t}, v4, s[{P_W}:{P_W+1}] offset:{t*64-64}")
    c("one line in every 2 MB of the exchange area: its address translation is then ready when the exchange starts")
    e(f"v_and_b32 v2, 7, v{vL}\nv_lshlrev_b32 v2, 21, v2\nv_add_u32 v2, 0x1fff80, v2")
    vmem('x', f"global_load_dword v255, v2, s[{P_WS}:{P_WS+1}]")
    lds_common()
    k.srd(S_TABL, P_TAB, 64000)
    e(f"v_lshlrev_b32 v7, 6, v6\nv_lshl_add_u32 v250, v252, 5, v7\nv_add_u32 v251, 4096, v250")
    e(f"s_waitcnt lgkmcnt(0)\ns_load_dword s{sTAG}, s[{P_WS}:{P_WS+1}], {EPOCH:#x}\ns_barrier")
    e("s_cmp_ge_u32 s2, 250\ns_cbranch_scc1 L_hi_skip")
    e(f"s_lshl_b32 s{sG}, s{sU}, 14\ns_add_u32 s{sG+1}, s{sG}, 0x2000")
    def bload(n):
        b, ks = n // 2, n % 2
        vmem(f"b{b//2}", f"buffer_load_dwordx4 {vr(B_+8*b+4*ks,4)}, v{250+(b//2)%2}, {sr(S_TABL)}, s{sG if b<4 else sG+1} offen offset:{(b%2)*2048+ks*16}")
    for n in range(NB0): bload(n)
    k.srd(S_RES, P_WS, 0x800000, R0)
    with rare():
        e("L_hi_skip:"); k.srd(S_RES, P_WS, 0x800000, R0); e("s_waitcnt lgkmcnt(0)\ns_branch L_hi_final")
    e(f"s_lshl_b32 s{sT0}, s{sU}, 11\nv_lshlrev_b32 v4, 4, v{vL}\nv_add_u32 v5, s{sT0}, v4\nv_cmp_gt_u32 vcc, 32, v{vL}\nv_lshlrev_b32 v7, 2, v{vL}")
    e(f"s_lshl_b32 s{sT0}, s{sU}, 12\nv_add_u32 v{TW}, s{sT0}, v4")
    e(f"s_waitcnt vmcnt({vneed('s')})")
    k.stamp(2)

    c('A operand: rows (table row, hidden unit), value W[d][a] * table[row][d]; one group of 8 hidden units per wave, shared through LDS')
    for t in range(8): e(f"v_lshlrev_b32 v{TU+2*t}, 16, v{TP+t}\nv_and_b32 v{TU+2*t+1}, 0xffff0000, v{TP+t}")
    for t in range(16): e(f"v_mul_f32 v{WV+t}, v{WV+t}, v{TU+t}")
    for t in range(8): e(f"v_cvt_pk_bf16_f32 v{TP+t}, v{WV+2*t}, v{WV+2*t+1}")
    e(f"ds_write_b128 v5, {vr(TP,4)} offset:{AIMG}\nds_write_b128 v5, {vr(TP+4,4)} offset:{AIMG+1024}")
    e(f"v_mul_f32 v{T+2}, {LOG2E_HALF:#x}, v{T+2}\nv_cndmask_b32 v6, v{T+2}, v{T+1}, vcc\nds_write_b32 v7, v6 offset:{BH}")
    for n in range(NB0, NB1): bload(n)
    e("s_waitcnt lgkmcnt(0)")
    sync_add(1)
    sync_wait(1, 4, 'hi')
    e("v_lshlrev_b32 v5, 4, v252")
    k.stamp(3)
    for i in range(2): e(f"ds_read_b128 {vr(A_+4*i,4)}, v4 offset:{AIMG+1024*i}")
    for i in range(4): e(f"ds_read_b128 {vr(CB+4*i,4)}, v5 offset:{BH}")
    for g in range(4): e(f"ds_read_b128 {vr(HQ+4*g,4)}, v5 offset:{BH+128+32*g}")
    for g in range(1, 4): e(f"ds_read_b128 {vr(CB+16*g,4)}, v5 offset:{BH+32*g}")
    e(f"s_waitcnt vmcnt({vneed('b0')}) lgkmcnt(7)"); k.stamp(7)
    later = []
    for g in range(1, 4):
        later += [f"ds_read_b128 {vr(A_+8*g+4*i,4)}, v4 offset:{AIMG+1024*(2*g+i)}" for i in range(2)]
        later += [f"ds_read_b128 {vr(CB+16*g+4*i,4)}, v5 offset:{BH+32*g}" for i in range(1, 4)]
    steps = []
    for bp in range(4): steps += [('r', bp, g, b) for g in range(4) for b in range(2)] + [('x', bp, 0, 0)]
    NS = len(steps)
    def mms(s):
        kind, bp, g, b = steps[s]; d = D_ + 16 * (s % 2)
        if kind == 'r':
            bb = B_ + 8 * (2 * bp + b)
            return [f"v_mfma_f32_32x32x16_bf16 {vr(d,16)}, {vr(A_+8*g,4)}, {vr(bb,4)}, {vr(CB+16*g,16)}",
                    f"v_mfma_f32_32x32x16_bf16 {vr(d,16)}, {vr(A_+8*g+4,4)}, {vr(bb+4,4)}, {vr(d,16)}"]
        return [f"v_mfma_f32_32x32x16_bf16 {vr(d,16)}, {vr(A5+8*b2+4*ks,4)}, {vr(B_+8*(2*bp+b2)+4*ks,4)}, {'0' if b2+ks==0 else vr(d,16)}"
                for b2 in range(2) for ks in range(2)]
    def valu(s):
        kind, bp, g, b = steps[s]; d = D_ + 16 * (s % 2); X = ACC + 8 * (bp % 2); Y = X + 4
        if kind == 'r':
            a = X + 4 * b
            return [f"v_fma_f32 v{a+v}, v{HQ+4*g+r}, |v{d+4*v+r}|, " + (f"-v{INIT}" if g == 0 and r == 0 else f"v{a+v}") for r in range(4) for v in range(4)]
        o = [f"v_permlane32_swap_b32 v{X+v}, v{Y+v}" for v in range(4)]
        o += [f"v_add_f32 v{X+v}, v{X+v}, v{Y+v}" for v in range(4)]
        o += [f"v_add_f32 v{X+v}, v{X+v}, v{d+4*v}" for v in range(4)]
        o += [f"v_exp_f32 v{X+v}, v{X+v}" for v in range(4)]
        o += [f"v_mul_f32 v{Y+v}, v{X+v}, v{d+4*v+1}" for v in range(4)]
        o += [f"v_cvt_pk_bf16_f32 v{X+v}, v{Y+v}, v{X+v}" for v in range(4)]
        o += [f"ds_write_b128 v{TW}, {vr(X,4)} offset:{TAB+16+1024*bp}"]
        return o
    c('relu(x) = (x + |x|)/2: e = sum h/2 |x+b| + linear term; exponent reference = value at zero interaction; entry = (w, w*s) in bf16')
    m = mms(0)
    e(m[0])
    for x in later[:5]: e(x)
    e(m[1])
    e("s_waitcnt lgkmcnt(5)")
    for x in later[5:10]: e(x)
    e(f"v_mul_f32 v{INIT}, v{HQ}, |v{CB}|")
    for g in range(4):
        for r in range(4):
            if g or r: e(f"v_fma_f32 v{INIT}, v{HQ+4*g+r}, |v{CB+16*g+r}|, v{INIT}")
    nb_next = [NB1]
    for s in range(NS):
        v = valu(s); m = mms(s + 1) if s + 1 < NS else []
        if s + 1 < NS:
            kind, bp, g, b = steps[s + 1]
            if bp == 0 and kind == 'r' and b == 0 and g == 1: e("s_waitcnt lgkmcnt(5)"); [e(x) for x in later[10:15]]
            if bp == 0 and kind == 'r' and b == 0 and g == 2: e("s_waitcnt lgkmcnt(5)")
            if bp == 0 and kind == 'r' and b == 0 and g == 3:
                sync_wait(2, 2, 'a5')
                for i in range(4): e(f"ds_read_b128 {vr(A5+4*i,4)}, v4 offset:{AIMG+8192+1024*i}")
            if bp == 0 and kind == 'x': e("s_waitcnt lgkmcnt(0)")
            if kind == 'r' and g == 0 and b == 0 and bp > 0:
                e(f"s_waitcnt vmcnt({vneed(f'b{bp}')})"); k.stamp({1: 4, 2: 8, 3: 10}[bp])
            if bp == 0 and kind == 'r' and b == 0 and g == 3: k.stamp(1)

        for _ in range(2):
            if nb_next[0] < 16: bload(nb_next[0]); nb_next[0] += 1
        if len(m) == 2:
            n = 6 if steps[s][0] == 'x' else 5
            e(m[0]); [e(x) for x in v[:n]]; e(m[1]); [e(x) for x in v[n:]]
        elif len(m) == 4:
            e(m[0]); [e(x) for x in v[:4]]; e(m[1]); [e(x) for x in v[4:8]]; e(m[2]); [e(x) for x in v[8:12]]; e(m[3]); [e(x) for x in v[12:]]
        else:
            e("s_nop 1"); [e(x) for x in v]
    k.stamp(5)
    hi_lookup()

def finish():
    if STAMP:
        e(f"{CLK} s[{sH}:{sH+1}]\ns_waitcnt lgkmcnt(0)\ns_mov_b64 exec, 1")
        e(f"s_lshl_b32 s{sT0}, s2, 3\ns_add_u32 s{sT0}, s{sT0}, s{sJ}\ns_lshl_b32 s{sT0}, s{sT0}, 7\ns_add_u32 s{sT0}, s{sT0}, {STAMP0:#x}")
        e(f"v_mov_b32 v2, s{sT0}")
        for i in range(NST): e(f"v_mov_b32 v3, s{sST+2*i}\nglobal_store_dword v2, v3, s[{P_WS}:{P_WS+1}] offset:{4*i}")
        e(f"v_mov_b32 v3, s{sH}\nglobal_store_dword v2, v3, s[{P_WS}:{P_WS+1}] offset:{4*NST}")
        e(f"v_mov_b32 v3, {NST+1}\nglobal_store_dword v2, v3, s[{P_WS}:{P_WS+1}] offset:124")
    e("s_endpgm")

prologue()
route()
lo_lookup()
final()
finish()
hi()
finish()
e("L_end:\ns_endpgm")
with rare(): fallback()
hazard.check(k.L); hazard.check(k.tail)
src = HEADER + '; Attentional FM as a table lookup.  e(i,j) and s(i,j) = pair . p depend only on the two ids, so with V = 1000 the\n; 5.3 M pair evaluations collapse to a 1000 x 1000 table of (w, w*s), w = exp(e - reference).  Workgroup c < 250 computes the\n; four table rows 4c..4c+3 into LDS (hi waves) and serves every occurrence of those ids; every workgroup also owns 64 samples.\n; Each unordered field pair is owned by one of its two fields (pairs of fields form a cyclic tournament), so one occurrence\n; needs 12 or 13 lookups.  Hand-offs through d_ws, sc1 stores and sc1 loads, 64-byte cells that carry an epoch tag\n; (epoch = word 0 of d_ws + 1, written back at the end):\n;   sample owner -> bucket owner: packed index rows (1 MB) and list cells ; bucket owner -> sample owner: sums per occurrence.\n; Every wait on another workgroup is bounded; whatever is missing or out of the safe range is recomputed directly.\n' + f"; @launch grid=(256,1,1) block=(512,1,1) lds={LDS_BYTES}\n"
src += f'.amdgcn_target "amdgcn-amd-amdhsa--gfx950"\n.text\n.globl {KN}\n.p2align 8\n.type {KN},@function\n{KN}:\n'
src += "\n".join(k.L) + "\n" + "\n".join(k.tail) + "\nL_code_end:\n"
src += '.section .rodata,"a"\n' + kd(KN, 256, 102)
open(sys.argv[1], "w").write(src)
print("lds", LDS_BYTES)
```

```python
import sys
from common import *
import hazard

OPT = set(sys.argv[2].split(',')) if len(sys.argv) > 2 else set()
def opt(name, d):
    for o in OPT:
        if o.startswith(name + '='): return int(o.split('=')[1])
    return d
STAMP = 'stamp' in OPT
CLK = 's_memtime' if 'cyc' in OPT else 's_memrealtime'
DL1, DL2 = opt('dl1', 24), opt('dl2', 18)
OPT.add('lateconst')

EPOCH, L0, ROW0, R0 = 0x0, 0x10000, 0x400000, 0x800000
STAMP0 = 0x1000000
TAB, CNT, BH, GP, AIMG, LIMG, WL = 0, 0x4100, 0x4500, 0x4600, 0x5000, 0x8000, 0xC000
RS = LIMG
NANW = 0x4080
SYNC = CNT + 1000
LIMIT = 0x4000
RLV = 0x400000
FL = 0x10000; FLS = 8192; RIM = 0x18000; NW = 0x4090; DUMP = 0x4C00
LDS_BYTES = RIM + 4 * 8192
S_IDX, S_TABL, S_W, S_LIST, S_ROW, S_RES, S_OUT = 4, 8, 12, 16, 20, 24, 28
sG = 32
P_IDX, P_TAB, P_W, P_B, P_H, P_P, P_OUT, P_WS = 36, 38, 40, 42, 44, 46, 48, 50
sJ, sRARE, sTAG, sT2, sT0, sT1, sNT, sBAD, sU, sCNT = 52, 53, 54, 55, 56, 57, 58, 59, 60, 61
sEX = 62
sPOS = 36
sH = 64
sST = 80
NST = 11
LOG2E_HALF = 0x3f38aa3b
vL = 1
SC = " sc1"
KN = NAME + "_kernel"

class K:
    def __init__(s): s.L = []; s.tail = []; s.cur = s.L
    def e(s, x):
        for ln in x.split('\n'):
            ln = ln.strip()
            if ln: s.cur.append(ln if ln.endswith(':') else '    ' + ln)
    def stamp(s, i):
        if STAMP: s.e(f"{CLK} s[{sST+2*i}:{sST+2*i+1}]")
    def srd(s, d, p, n, off=0):
        if off: s.e(f"s_add_u32 s{d}, s{p}, {off:#x}\ns_addc_u32 s{d+1}, s{p+1}, 0")
        else: s.e(f"s_mov_b64 s[{d}:{d+1}], s[{p}:{p+1}]")
        s.e(f"s_mov_b32 s{d+2}, {n:#x}\ns_mov_b32 s{d+3}, 0x00020000")
k = K(); e = k.e
def c(x):
    for ln in x.split('\n'): k.cur.append('    ; ' + ln)
def vr(a, n): return f"v[{a}:{a+n-1}]"
def sr(a): return f"s[{a}:{a+3}]"
class rare:
    def __enter__(s): s.old = k.cur; k.cur = k.tail
    def __exit__(s, *a): k.cur = s.old

LOC = 8
G = 16; RM = 80; EN = 96; TQ = 112; AS = 166; AC = 182; BQ = 230; DX = 202
cA, cOFF, cBIT, cWR, cFL, cMSK = 246, 247, 248, 249, 250, 251
cR = 252
cAM, cDR, cRD, cRA = 198, 199, 200, 201
WA = 140

def prologue():
    V = 16; T = 52; WV = 120; TP = 136; TH = 184
    e("s_cmp_ge_u32 s2, 256\ns_cbranch_scc1 L_end")
    e(f"s_load_dwordx4 s[{P_IDX}:{P_IDX+3}], s[0:1], 0")
    e(f"s_load_dwordx8 s[{P_W}:{P_W+7}], s[0:1], 32")
    e(f"s_load_dwordx2 s[{P_WS}:{P_WS+1}], s[0:1], 80")
    k.stamp(0)
    c("first touches of memory come first: this kernel's own code (into the L2), then idx (lo) / table rows, W, b, h, p (hi)")
    e(f"s_getpc_b64 s[{sEX}:{sEX+1}]\nv_lshlrev_b32 v4, 6, v0\nv_min_u32 v4, L_code_end-{KN}-64, v4\nv_mov_b32 v5, s{sEX+1}\nv_add_co_u32 v4, vcc, s{sEX}, v4\nv_lshrrev_b32 v2, 6, v0\nv_and_b32 v{vL}, 63, v0\nv_addc_co_u32 v5, vcc, 0, v5, vcc")
    e("global_load_dword v135, v[4:5], off")
    e(f"v_readfirstlane_b32 s{sJ}, v2\nv_cmp_lt_u32 vcc, 255, v0\ns_cbranch_vccnz L_hi0")
    c('lo: lane = (sample, quarter); it loads field pairs 4q..4q+3 (the last quarter: pair 12 and the repeats 0,1,2)')
    e(f"v_lshrrev_b32 v{T}, 2, v0\nv_and_b32 v{T+1}, 3, v0\ns_mul_i32 s{sT1}, s2, 6656\nv_mov_b32 v2, 104\nv_mad_u32_u24 v{T+2}, v{T}, v2, s{sT1}")
    e(f"v_lshl_add_u32 v{T+2}, v{T+1}, 5, v{T+2}\nv_add_u32 v{T+3}, 1, v{T+1}\nv_lshrrev_b32 v{T+3}, 2, v{T+3}\nv_mul_i32_i24 v4, -104, v{T+3}\nv_add3_u32 v4, v{T+2}, v4, 8")
    e("s_waitcnt lgkmcnt(0)")
    e(f"global_load_dwordx2 {vr(V,2)}, v{T+2}, s[{P_IDX}:{P_IDX+1}]\nglobal_load_dwordx4 {vr(V+2,4)}, v4, s[{P_IDX}:{P_IDX+1}]\nglobal_load_dwordx2 {vr(V+6,2)}, v4, s[{P_IDX}:{P_IDX+1}] offset:16")
    e("s_branch L_lo")
    e("L_hi0:")
    e(f"v_lshrrev_b32 v252, 5, v{vL}\nv_bfe_u32 v5, v{vL}, 3, 2\ns_lshl_b32 s{sT1}, s2, 8\nv_lshl_add_u32 v5, v5, 6, s{sT1}\nv_lshl_add_u32 v5, v252, 5, v5\nv_min_u32 v5, {64000-32}, v5")
    e(f"v_and_b32 v4, 7, v{vL}\nv_lshl_add_u32 v4, v2, 3, v4\nv_lshlrev_b32 v4, 1, v4\nv_lshl_add_u32 v4, v252, 10, v4\nv_and_b32 v6, 31, v{vL}\nv_lshlrev_b32 v7, 1, v6")
    e("s_waitcnt lgkmcnt(0)")
    e(f"global_load_dwordx4 {vr(TP,4)}, v5, s[{P_TAB}:{P_TAB+1}]\nglobal_load_short_d16_hi v{WV}, v4, s[{P_W}:{P_W+1}] offset:-64")
    e(f"global_load_short_d16_hi v{TH+1}, v7, s[{P_B}:{P_B+1}]\nglobal_load_short_d16_hi v{TH+2}, v7, s[{P_H}:{P_H+1}]\nglobal_load_short_d16_hi v{TH}, v7, s[{P_P}:{P_P+1}]")
    e("s_branch L_hi")

def lds_common():
    e("v_mov_b32 v240, -1\nv_mov_b32 v241, -1\nv_mov_b32 v242, -1\nv_mov_b32 v243, -1")
    e(f"v_lshlrev_b32 v3, 4, v0\nds_write_b128 v3, v[240:243] offset:{LIMG}\nds_write_b128 v3, v[240:243] offset:{LIMG+8192}")
    e(f"s_and_b32 s{sU}, s{sJ}, 3")

def sync_add(i):
    e(f"v_mov_b32 v5, {SYNC+4*i}\nv_mov_b32 v6, 1\ns_mov_b64 exec, 1\nds_add_u32 v5, v6\ns_mov_b64 exec, -1")
def sync_wait(i, n, nm, sleep=0):
    e(f"v_mov_b32 v5, {SYNC+4*i}")
    if sleep: e(f"s_branch L_sync_{nm}\nL_sync_{nm}_z:\ns_sleep {sleep}")
    e(f"L_sync_{nm}:\nds_read_b32 v6, v5\ns_waitcnt lgkmcnt(0)\nv_cmp_gt_u32 vcc, {n}, v6\ns_cbranch_vccnz L_sync_{nm}{'_z' if sleep else ''}")

def make_loc(KK, C4, full):
    e(f"v_mov_b32 v7, {RS}")
    if full: e(f"v_mov_b32 v6, {NANW}\nv_mov_b32 v4, -1\nds_write_b32 v6, v4")
    for t in range(8):
        if t == 2: e("s_mov_b32 exec_lo, 0x77777777\ns_mov_b32 exec_hi, 0x77777777")
        if full:
            e(f"v_and_b32 v4, 30, v{KK+t}\nv_lshlrev_b32 v5, 3, v{C4+t}\nv_add_lshl_u32 v4, v4, v5, 1\nv_cmp_le_u32 vcc, 48, v{KK+t}")
            e(f"v_lshrrev_b32 v5, 5, v{KK+t}\nv_lshlrev_b32 v5, 14, v5\nv_add3_u32 v4, v4, v5, v7\nv_cndmask_b32 v{LOC+t}, v4, v6, vcc")
        else:
            e(f"v_lshl_add_u32 v4, v{C4+t}, 3, v{KK+t}\nv_lshl_add_u32 v{LOC+t}, v4, 1, v7")
    e("s_mov_b64 exec, -1")

def lookup_consts():
    e(f"v_and_b32 v4, 15, v{vL}\nv_bfe_u32 v5, v{vL}, 4, 1\nv_lshrrev_b32 v{cBIT}, 5, v{vL}")
    e(f"s_mul_i32 s{sG+1}, s{sU}, {FLS}\ns_add_u32 s{sG+1}, s{sG+1}, {FL}\ns_lshl_b32 s{sG}, s{sU}, 18\ns_lshl_b32 s{sG+2}, s{sU}, 13\ns_add_u32 s{sG+2}, s{sG+2}, {RIM}")
    e(f"v_and_b32 v{cFL}, 31, v{vL}\nv_lshl_add_u32 v{cFL}, v{cFL}, 2, s{sG+1}")
    e(f"v_lshrrev_b32 v7, 4, v{vL}\nv_lshl_add_u32 v{cDR}, v7, 5, v4\nv_lshl_add_u32 v{cDR}, v{cDR}, 2, s{sG+1}")
    e(f"v_add_u32 v{cA}, -1, v{cBIT}\nv_and_b32 v{cA}, 0xffff0000, v{cA}")
    e(f"v_mul_u32_u24 v{cOFF}, 12, v{cBIT}\nv_mul_i32_i24 v{cWR}, -52, v{cBIT}\nv_mov_b32 v{cMSK}, 0x7ffffffe\nv_mov_b32 v{cAM}, 0x2003fffc")
    e(f"v_and_b32 v6, 1, v4\nv_lshlrev_b32 v6, 4, v6\nv_lshrrev_b32 v6, v6, 1.0")
    e(f"v_bfe_u32 v7, v4, 1, 1\nv_xor_b32 v7, v7, v5\nv_add_u32 v7, -1, v7\nv_and_b32 v6, v6, v7\nv_lshrrev_b32 v7, 2, v4")
    for q in range(4):
        e(f"v_xor_b32 v4, {q}, v7\nv_add_u32 v4, -1, v4\nv_ashrrev_i32 v4, 31, v4\nv_and_b32 v{AS+4*q}, v4, v6")
        for i in range(1, 4): e(f"v_mov_b32 v{AS+4*q+i}, v{AS+4*q}")
    e(f"v_mov_b32 v{BQ+7}, 0\nv_mov_b32 v{BQ+15}, 0")
    e(f"v_and_b32 v4, 3, v{vL}\nv_lshrrev_b32 v5, 2, v{vL}\nv_lshlrev_b32 v{cRD}, 10, v4\nv_lshl_add_u32 v{cRD}, v5, 2, v{cRD}\nv_add_u32 v{cRD}, s{sG+2}, v{cRD}")
    e(f"v_lshlrev_b32 v4, 4, v4\nv_lshl_add_u32 v{cRA}, v5, 14, v4")
    e(f"s_lshl_b32 s{sG+3}, s{sU}, 20\ns_lshl_b32 s{sT0}, s2, 6\ns_add_u32 s{sG+3}, s{sG+3}, s{sT0}")

def res_tags(lane_expr, cR=cR):
    e(f"s_and_b32 s{sT0}, s{sTAG}, 255\ns_xor_b32 s{sT1}, s{sTAG}, 1\ns_and_b32 s{sT1}, s{sT1}, 3\ns_lshl_b32 s{sT1}, s{sT1}, 8\ns_or_b32 s{sT0}, s{sT0}, s{sT1}")
    e(f"s_lshr_b32 s{sT1}, s{sTAG}, 8\ns_lshl_b32 s{sT1}, s{sT1}, 10\ns_or_b32 s{sT0}, s{sT0}, s{sT1}")
    e(lane_expr)
    e(f"v_lshlrev_b32 v4, 3, v4\nv_lshrrev_b32 v4, v4, s{sT0}")
    for j in range(4): e(f"v_bfe_u32 v5, v4, {2*j}, 2\nv_alignbit_b32 v{cR+j}, v5, v5, 1")

def pos():
    c("exchange position: workgroups with equal id mod 8 (usually one die) become neighbours; speed only")
    e(f"s_and_b32 s{sPOS}, s2, 6\ns_lshl_b32 s{sPOS}, s{sPOS}, 5\ns_lshr_b32 s{sT0}, s2, 3\ns_lshl_b32 s{sT0}, s{sT0}, 1\ns_or_b32 s{sPOS}, s{sPOS}, s{sT0}\ns_and_b32 s{sT0}, s2, 1\ns_or_b32 s{sPOS}, s{sPOS}, s{sT0}")

def late_consts():
    lookup_consts()
    e(f"s_lshl_b32 s{sCNT}, s{sU}, 12\nv_lshrrev_b32 v4, 4, v{vL}\nv_xor_b32 v4, v4, v{vL}\nv_and_b32 v4, 3, v4\nv_and_b32 v5, 60, v{vL}\nv_or_b32 v4, v4, v5\nv_lshl_add_u32 v{WA}, v4, 4, s{sCNT}")
    e(f"v_lshrrev_b32 v4, 2, v{vL}\nv_lshl_add_u32 v5, v{vL}, 6, s{sCNT}")
    for g in range(4): e(f"v_xor_b32 v6, {g}, v4\nv_and_b32 v6, 3, v6\nv_lshl_add_u32 v{WA+1+g}, v6, 4, v5")
    e(f"v_lshl_add_u32 v4, v{vL}, 4, s{sG+1}")
    for i in range(8): e(f"ds_write_b128 v4, v[240:243] offset:{1024*i}")
    res_tags("v_and_b32 v4, 3, v0")

def route():
    V = 16; KK = 24; C4 = 32; RW = 40; EB = 44; T = 52
    TP = 64; TU = 72; WR = 88; WV = 104; MU = 120; PP = 128
    c('================ lo waves (0-3): route ================')
    e("L_lo:\ns_setprio 2")
    lds_common()
    e(f"v_mov_b32 v4, 0\nv_lshlrev_b32 v5, 2, v0\nds_write_b32 v5, v4 offset:{CNT}\nv_and_b32 v5, 12, v5\nds_write_b32 v5, v4\nds_write_b32 v5, v4 offset:{NW}")
    k.srd(S_IDX, P_IDX, 16384 * 104)
    e(f"v_lshlrev_b32 v{EB}, 2, v{T+1}\nv_mul_u32_u24 v4, 13, v{T+3}\nv_sub_u32 v4, v{EB}, v4")
    for t in range(1, 4): e(f"v_add_u32 v{EB+2*t}, {t}, v4")
    e("s_waitcnt lgkmcnt(0)")
    e(f"s_load_dword s{sTAG}, s[{P_WS}:{P_WS+1}], {EPOCH:#x}")
    e(f"s_load_dwordx16 s[{sH}:{sH+15}], s[{P_H}:{P_H+1}], 0")
    e(f"s_load_dwordx2 s[{P_OUT}:{P_OUT+1}], s[0:1], 64")
    e("s_barrier")
    pos()
    k.srd(S_TABL, P_TAB, 64000)
    k.srd(S_W, P_W, 2048)
    e(f"v_lshrrev_b32 v130, 5, v{vL}\nv_bfe_u32 v131, v{vL}, 3, 2\nv_lshlrev_b32 v131, 6, v131\nv_lshl_add_u32 v131, v130, 5, v131")
    e(f"v_and_b32 v133, 31, v{vL}\nv_lshlrev_b32 v132, 6, v133\nv_lshlrev_b32 v133, 1, v133")
    k.srd(S_ROW, P_WS, 0x100000, ROW0)
    k.srd(S_LIST, P_WS, 250 * 16384, L0)
    k.srd(S_RES, P_WS, 0x800000, R0)
    e(f"v_lshlrev_b32 v{T+3}, 8, v{T}")
    for t in range(4):
        e(f"v_add_u32 v4, 6, v{EB+2*t}\nv_lshl_or_b32 v{EB+2*t+1}, v{EB+2*t}, 4, v{T+3}")
        e(f"v_lshrrev_b32 v4, 4, v4\nv_lshl_or_b32 v{EB+2*t+1}, v4, 1, v{EB+2*t+1}\nv_or_b32 v{EB+2*t}, 1, v{EB+2*t+1}")
    for t in range(8): e(f"v_mov_b32 v{LOC+t}, 0\nv_mov_b32 v{KK+t}, 0")
    e(f"v_mov_b32 v2, 2\nv_mov_b32 v7, 0x100010")
    e(f"v_and_b32 v4, 3, v0\nv_lshlrev_b32 v{T+4}, 14, v{T}\nv_lshl_add_u32 v{T+4}, v4, 4, v{T+4}")
    e(f"v_add_u32 v{T+5}, 1, v4\nv_lshrrev_b32 v{T+5}, 2, v{T+5}\nv_sub_u32 v{T+5}, 0, v{T+5}")
    e(f"s_lshl_b32 s{sT0}, s{sPOS}, 12\ns_waitcnt vmcnt(0)")
    k.stamp(1)
    c('row of the sample: 16 dwords of two u16 table offsets (id+1)*16; 13 field pairs + the first three again')
    for t in range(4): e(f"v_lshl_or_b32 v{RW+t}, v{V+2*t+1}, 16, v{V+2*t}\nv_lshl_add_u32 v{RW+t}, v{RW+t}, 4, v7")
    e(f"buffer_store_dwordx4 {vr(RW,4)}, v3, {sr(S_ROW)}, s{sT0} offen{SC}")
    e(f"s_lshl_b32 s{sT1}, s2, 8")
    for x in range(2): e(f"buffer_load_dwordx4 {vr(TP+4*x,4)}, v131, {sr(S_TABL)}, s{sT1} offen offset:{16*x}")
    for t in range(4): e(f"buffer_load_dwordx4 {vr(WR+4*t,4)}, v132, {sr(S_W)}, 0 offen offset:{16*t}")
    e(f"global_load_short_d16_hi v{PP}, v133, s[{P_P}:{P_P+1}]")
    c('rank of every occurrence inside its bucket (bucket = id>>2), entry = sample<<8 | pair<<4 | (id&3)<<2 | wrap<<1 | first')
    for t in range(8):
        if t == 2: e("s_mov_b32 exec_lo, 0x77777777\ns_mov_b32 exec_hi, 0x77777777")
        e(f"v_and_b32 v{C4+t}, -4, v{V+t}\nds_add_rtn_u32 v{KK+t}, v{C4+t}, v2 offset:{CNT}")
    e("s_mov_b64 exec, -1")
    for t in range(8): e(f"v_lshlrev_b32 v{V+t}, 2, v{V+t}\nv_and_or_b32 v{V+t}, v{V+t}, 12, v{EB+t}")
    e("s_waitcnt lgkmcnt(0)")
    for t in range(8):
        if t == 2: e("s_mov_b32 exec_lo, 0x77777777\ns_mov_b32 exec_hi, 0x77777777")
        e(f"v_min_u32 v4, 54, v{KK+t}\nv_lshl_add_u32 v4, v{C4+t}, 4, v4\nds_write_b16 v4, v{V+t} offset:{LIMG}")
    e("s_mov_b64 exec, -1")
    e(f"s_lshl_b32 s{sT0}, s{sPOS}, 6")
    e(f"s_add_u32 s{sTAG}, s{sTAG}, 1")
    k.srd(S_OUT, P_OUT, 32768)
    k.stamp(2)
    e(f"v_mov_b32 v7, s{sTAG}\ns_waitcnt vmcnt(7) lgkmcnt(0)")
    sync_add(0)
    sync_wait(0, 4, 'lo')
    k.stamp(3)
    c('all rows of this workgroup are in memory: waves 0,1 publish the 250 list cells (64 B: entries, count, epoch tag)\nwaves 2,3 build the operand images of the linear term (W h / 2) and of the value (p)')
    PR = lambda h: 146 + 4 * h if h < 5 else 202 + 4 * (h - 5)
    e(f"s_cmp_ge_u32 s{sU}, 2\ns_cbranch_scc1 L_nopub\nv_and_b32 v4, -4, v0")
    for h in range(7): e(f"ds_read_b128 {vr(PR(h),4)}, v3 offset:{LIMG+2048*h}\nds_read_b32 v{216+h}, v4 offset:{CNT+128*h}")
    for h in range(8):
        e(f"s_waitcnt lgkmcnt({12 if h==0 else 14-2*h})")
        if h == 0: e(f"ds_read_b128 {vr(PR(7),4)}, v3 offset:{LIMG+2048*7}\nds_read_b32 v223, v4 offset:{CNT+128*7}")
        e(f"v_bfi_b32 v{PR(h)+3}, v{T+5}, v7, v{PR(h)+3}\nv_bfi_b32 v{PR(h)+2}, v{T+5}, v{216+h}, v{PR(h)+2}")
        e(f"buffer_store_dwordx4 {vr(PR(h),4)}, v{T+4}, {sr(S_LIST)}, s{sT0} offen{SC}")
        if h < 7: e(f"s_add_u32 s{sT0}, s{sT0}, 0x80000")
    e("s_waitcnt vmcnt(8)\ns_branch L_noa5\nL_nopub:")
    e(f"s_and_b32 s{sT1}, s{sU}, 1\ns_mul_i32 s{sT0}, s{sT1}, 384\nv_lshl_add_u32 v134, v{vL}, 2, s{sT0}\nv_mov_b32 v6, 0\nv_lshl_add_u32 v4, v133, 1, s{sT0}\nds_write_b32 v4, v6 offset:{GP+256}")
    e(f"s_lshl_b32 s{sNT}, s{sT1}, 2\nv_and_b32 v4, 7, v{vL}\nv_subrev_u32 v4, s{sNT}, v4\nv_min_u32 v4, 2, v4\nv_lshlrev_b32 v4, 7, v4\nv_lshl_add_u32 v4, v130, 6, v4\nv_add_u32 v132, s{sT0}, v4")
    e(f"s_lshl_b32 s{sT1}, s{sT1}, 11\nv_lshl_add_u32 v131, v{vL}, 4, s{sT1}\nv_cmp_gt_u32 vcc, 32, v{vL}\ns_waitcnt vmcnt(0)")
    for t in range(16): e(f"v_dot2_f32_bf16 v6, v{WR+t}, s{sH+t}, v6")
    for t in range(8): e(f"v_lshlrev_b32 v{TU+2*t}, 16, v{TP+t}\nv_and_b32 v{TU+2*t+1}, 0xffff0000, v{TP+t}")
    e(f"v_mul_f32 v6, {LOG2E_HALF:#x}, v6\nv_cndmask_b32 v6, v{PP}, v6, vcc\nds_write_b32 v134, v6 offset:{GP}\ns_waitcnt lgkmcnt(0)")
    for t in range(4): e(f"ds_read_b128 {vr(WV+4*t,4)}, v132 offset:{GP+16*t}")
    e("s_waitcnt lgkmcnt(0)")
    for t in range(16): e(f"v_mul_f32 v{WV+t}, v{WV+t}, v{TU+t}")
    for t in range(8): e(f"v_cvt_pk_bf16_f32 v{MU+t}, v{WV+2*t}, v{WV+2*t+1}")
    e(f"ds_write_b128 v131, {vr(MU,4)} offset:{AIMG+8192}\nds_write_b128 v131, {vr(MU+4,4)} offset:{AIMG+8192+1024}\ns_waitcnt lgkmcnt(0)")
    sync_add(2)
    e("L_noa5:")
    k.stamp(4)
    c("where the sums of this lane's occurrences will be found")
    make_loc(KK, C4, False)
    e(f"v_max3_u32 v7, v{KK}, v{KK+1}, v{KK+2}\nv_max3_u32 v7, v7, v{KK+3}, v{KK+4}\nv_max3_u32 v7, v7, v{KK+5}, v{KK+6}\nv_max_u32 v7, v7, v{KK+7}")
    e(f"v_cmp_le_u32 vcc, 32, v7\ns_cbranch_vccnz L_mark\nL_mark_ret:")
    with rare():
        e("L_mark:"); make_loc(KK, C4, True); sync_add(4); e("s_branch L_mark_ret")

def decode(ns):
    for i, n in enumerate(ns): e(f"v_lshrrev_b32 v{TQ+i}, 2, v{RM+n}\nv_bfe_i32 v{TQ+4+i}, v{RM+n}, v{cBIT}, 1")
    for i, n in enumerate(ns): e(f"v_and_b32 v{TQ+i}, v{TQ+i}, v{cAM}\nv_and_b32 v{TQ+8+i}, v{TQ+4+i}, v{cWR}")
    for i, n in enumerate(ns): e(f"v_add3_u32 v{TQ+i}, v{TQ+i}, v{cOFF}, v{TQ+8+i}\nv_and_b32 v{TQ+4+i}, v{TQ+4+i}, v{cA}")
    for i, n in enumerate(ns):
        e(f"buffer_load_dwordx4 {vr(G+4*n,4)}, v{TQ+i}, {sr(S_ROW)}, s{sG} offen{SC}\nv_and_or_b32 v{RM+n}, v{RM+n}, 12, v{TQ+4+i}")
def addrs(n, buf):
    g = G + 4 * n; r = RM + n
    e(f"v_and_b32 v{g}, v{g}, v{r}")
    for t, (d, dw, hi) in enumerate([(2, 1, 0), (g + 1, 1, 1), (3, 2, 0), (g + 2, 2, 1), (4, 3, 0), (g + 3, 3, 1), (g, 0, 1)]):
        e(f"v_add_u32_sdwa v{d}, v{r}, v{g+dw} dst_sel:DWORD dst_unused:UNUSED_PAD src0_sel:WORD_0 src1_sel:WORD_{hi}")
        e(f"ds_read_b32 v{BQ+8*buf+t}, v{d}")
def mf(n, buf):
    a = AC + 4 * (n // 4); q = n & 3
    e(f"v_mfma_f32_16x16x32_bf16 {vr(a,4)}, {vr(AS+4*q,4)}, {vr(BQ+8*buf,4)}, {'0' if q==0 else vr(a,4)}")
    e(f"v_mfma_f32_16x16x32_bf16 {vr(a,4)}, {vr(AS+4*q,4)}, {vr(BQ+8*buf+4,4)}, {vr(a,4)}")
def dreads(addr):
    for q in range(4): e(f"ds_read2_b32 {vr(DX+2*q,2)}, v{addr+q//2} offset0:{128*(q%2)} offset1:{128*(q%2)+16}")
def dests():
    for q in range(8): e(f"v_lshrrev_b32 v{DX+q}, 12, v{DX+q}")
    for q in range(8): e(f"v_and_or_b32 v{DX+q}, v{DX+q}, v5, v6")
def res_stores(lvl, s0):
    T = G + 16 * lvl
    e(f"v_add_u32 v2, 64, v{cRD}\nv_add_u32 v3, 128, v{cRD}\nv_add_u32 v4, 192, v{cRD}\ns_waitcnt lgkmcnt(6)")
    for i in range(4):
        for x in range(2): e(f"ds_read2st64_b32 {vr(T+4*i+2*x,2)}, v{cRD if i==0 else 1+i} offset0:{16*lvl+2*x} offset1:{16*lvl+2*x+1}")
    for i in range(4):
        e(f"s_waitcnt lgkmcnt({6-2*i})")
        for j in range(4): e(f"v_and_or_b32 v{T+4*i+j}, v{T+4*i+j}, v{cMSK}, v{cR+j}")
        e(f"buffer_store_dwordx4 {vr(T+4*i,4)}, v{cRA}, {sr(S_RES)}, s{s0} offen{SC}")
        if i < 3: e(f"s_add_u32 s{s0}, s{s0}, 0x40000")

def lo_lookup():
    POLL = 16; NQ = 3
    e("s_cmp_ge_u32 s2, 250\ns_cbranch_scc1 L_nobucket0")
    with rare(): e("L_nobucket0:\ns_waitcnt lgkmcnt(0)\ns_branch L_nobucket")
    c('================ lo waves: lookups for bucket = workgroup id ================')
    e("s_setprio 0"); late_consts(); e("s_setprio 2")
    e(f"v_lshlrev_b32 v3, 4, v{vL}\ns_lshl_b32 s{sT0}, s2, 14\ns_add_u32 s{sT0}, s{sT0}, s{sCNT}")
    e(f"s_mov_b32 s{sNT}, 0\ns_mov_b32 s{sEX}, 0x88888888\ns_mov_b32 s{sEX+1}, 0x88888888")
    CW, CN1, CD, CP = DX + 8, DX + 9, DX + 10, DX + 11
    RA2 = DX + 12
    e(f"v_lshlrev_b32 v{CW}, 14, v{vL}\nv_mov_b32 v{CD}, {DUMP}\nv_lshl_add_u32 v{CP}, v{vL}, 2, s{sG+1}")
    e(f"s_and_b32 s{sT1}, s{sU}, 1\ns_lshl_b32 s{sT1}, s{sT1}, 2\ns_add_u32 s{sT1}, s{sT1}, {NW}\nv_mov_b32 v2, s{sT1}")
    k.stamp(5)
    c('waves 2,3 fetch the incoming cells (their own stores do not stand in front of the loads); waves 0,1 wait for the word in LDS')
    e(f"s_cmp_ge_u32 s{sU}, 2\ns_cbranch_scc1 L_poller")
    e("L_wait_lists:\ns_sleep 1\nds_read_b32 v4, v2\ns_waitcnt lgkmcnt(0)\nv_cmp_eq_u32 vcc, 0, v4\ns_cbranch_vccnz L_wait_lists")
    e(f"v_cmp_eq_u32 vcc, 1, v4\ns_cbranch_vccnz L_poll1_ok\ns_branch L_gaveup")
    e(f"L_poller:\ns_sub_u32 s{sT1}, s{sT0}, 0x2000\nv_add_u32 v7, {(-0x2000)&0xffffffff:#x}, v{WA}")
    c('back-off: reading a line before it has been written makes that write slow, so the first look waits a little')
    if DL1: e(f"s_sleep {DL1}")
    e("L_poll1:")
    for h in range(8): e(f"buffer_load_dwordx4 {vr(POLL+4*h,4)}, v3, {sr(S_LIST)}, s{sT1 if h<4 else sT0} offen offset:{1024*(h%4)}{SC}")
    for h in range(8):
        e(f"s_waitcnt vmcnt({7-h})")
        if h == 0: e(f"v_xor_b32 v4, s{sTAG}, v{POLL+3}")
        else: e(f"v_xor_b32 v5, s{sTAG}, v{POLL+4*h+3}\nv_or_b32 v4, v4, v5")
        e(f"ds_write_b128 v{7 if h<4 else WA}, {vr(POLL+4*h,4)} offset:{WL+1024*(h%4)}")
    e(f"v_cmp_ne_u32 vcc, 0, v4\ns_and_b64 vcc, vcc, s[{sEX}:{sEX+1}]\nv_mov_b32 v5, 1\ns_waitcnt lgkmcnt(0)")
    e("s_cbranch_vccnz L_poll1_again\nds_write_b32 v2, v5\nL_poll1_ok:")
    with rare():
        e("L_poll1_again:")
        e(f"s_add_u32 s{sNT}, s{sNT}, 1\ns_cmp_lt_u32 s{sNT}, {LIMIT}\ns_cbranch_scc1 L_poll1")
        for i in range(4): e(f"v_mov_b32 v{POLL+i}, 0")
        for h in range(8): e(f"ds_write_b128 v{7 if h<4 else WA}, {vr(POLL,4)} offset:{WL+1024*(h%4)}")
        e("v_mov_b32 v5, 2\ns_waitcnt lgkmcnt(0)\nds_write_b32 v2, v5\nL_gaveup:")
        for i in range(4): e(f"v_or_b32 v{cR+i}, 0x7fc00000, v{cR+i}")
        e("s_branch L_poll1_ok")
    k.stamp(6)
    c('one cell per lane: the first entries of every cell form dense tiles that are fetched at once,\nthe others are packed behind them (count, prefix sum, flat list written from the highest slot down)')
    ND = opt('nd', 2); P1 = 2 * ND; P2 = opt('p2', 6)
    e(f"ds_read_b128 {vr(EN,4)}, v{WA+1} offset:{WL}\nds_read_b128 {vr(EN+12,4)}, v{WA+4} offset:{WL}")
    for g in (1, 2): e(f"ds_read_b128 {vr(EN+4*g,4)}, v{WA+1+g} offset:{WL}")
    e("s_waitcnt lgkmcnt(3)")
    def word(j, d, w): e(f"v_or_b32_sdwa v{d}, v{w}, sext(v{EN+j//2}) dst_sel:DWORD dst_unused:UNUSED_PAD src0_sel:DWORD src1_sel:WORD_{j&1}")
    for j in range(ND):
        if j: e(f"v_add_u32 v5, {j<<20:#x}, v{CW}")
        word(j, 6 + (j & 1), 5 if j else CW); e(f"ds_write_b32 v{CP}, v{6+(j&1)} offset:{256*j}")
    for n in range(P1): e(f"ds_read_b32 v{RM+n}, v{cFL} offset:{128*n}")
    e(f"s_waitcnt lgkmcnt({P1+ND+2})\nv_lshrrev_b32 v2, 1, v{EN+14}\nv_min_u32 v2, 24, v2\nv_sub_u32 v2, v2, {ND} clamp\nv_mov_b32 v3, v2\ns_nop 1")
    scan = [f"v_add_u32_dpp v3, v3, v3 {m} row_mask:0xf bank_mask:0xf" for m in ("row_shr:1", "row_shr:2", "row_shr:4", "row_shr:8")]
    scan += ["v_add_u32_dpp v3, v3, v3 row_bcast:15 row_mask:0xa bank_mask:0xf", "v_add_u32_dpp v3, v3, v3 row_bcast:31 row_mask:0xc bank_mask:0xf"]
    e(scan[0]); e(f"s_waitcnt lgkmcnt({max(P1-4,0)})")
    n0 = len(k.L); decode(list(range(min(4, P1))))
    if P1 > 4: e("s_waitcnt lgkmcnt(0)"); decode(list(range(4, P1)))
    body = k.L[n0:]; del k.L[n0:]
    for i, x in enumerate(body):
        k.L.append(x)
        if i % 3 == 2 and len(scan) > 1: e(scan.pop(1))
    for x in scan[1:]: e("s_nop 1"); e(x)
    e(f"v_cmp_eq_u32 vcc, 0, v2\nv_readlane_b32 s{sNT}, v3, 63\nv_sub_u32 v{CN1}, v3, v2\nv_lshl_add_u32 v3, v{CN1}, 2, s{sG+1}\nv_cndmask_b32 v3, v3, v{CD}, vcc")
    e(f"v_cmp_lt_u32 vcc, {16-ND}, v2\ns_or_b32 s{sBAD}, vcc_lo, vcc_hi\ns_add_u32 s{sNT}, s{sNT}, {64*ND}\ns_waitcnt lgkmcnt(0)\ns_cbranch_vccnz L_fl23")
    e(f"v_cmp_lt_u32 vcc, {14-ND}, v2\nv_add_u32 v5, {15<<20:#x}, v{CW}\ns_cbranch_vccnz L_fl15\nv_add_u32 v5, {13<<20:#x}, v{CW}\ns_branch L_fl13")
    def put(j):
        word(j, 6 + (j & 1), 5)
        if j > ND: e(f"v_add_u32 v5, 0xfff00000, v5")
        e(f"ds_write_b32 v3, v{6+(j&1)} offset:{256*ND+4*(j-ND)}")
    with rare():
        e(f"L_fl23:\nv_add_u32 v5, {23<<20:#x}, v{CW}")
        for j in range(23, 15, -1): put(j)
        e("s_waitcnt lgkmcnt(0)\ns_branch L_fl15")
    for j in range(15, ND - 1, -1):
        if j in (15, 13): e(f"L_fl{j}:")
        put(j)
        if j == 8: e("s_waitcnt lgkmcnt(4)")
    e(f"v_add_u32 v7, 1024, v{cDR}\nv_mov_b32 v6, v{cDR}\ns_waitcnt lgkmcnt(3)")
    for n in range(P1, 16): e(f"ds_read_b32 v{RM+n}, v{cFL} offset:{128*n}")
    c("a cell group whose entries all lie in the first 256 / 384 list places is stored as soon as those sums exist")
    e(f"v_readlane_b32 s{sT0}, v{CN1}, 16\nv_readlane_b32 s{sT1}, v{CN1}, 32\nv_readlane_b32 s{sT2}, v{CN1}, 48\nv_add_u32 v{RA2}, 64, v{cRD}\nv_add_u32 v{RA2+1}, 128, v{cRD}\nv_add_u32 v{RA2+2}, 192, v{cRD}")
    e(f"s_cmp_le_u32 s{sT0}, {256-64*ND}\ns_cselect_b32 s3, 1, 0\ns_cmp_le_u32 s{sT1}, {384-64*ND}\ns_cselect_b32 s{sT0}, 2, 0\ns_or_b32 s3, s3, s{sT0}\ns_cmp_le_u32 s{sT2}, {384-64*ND}\ns_cselect_b32 s{sT0}, 4, 0\ns_or_b32 s3, s3, s{sT0}\ns_mov_b32 s{sCNT}, 0")
    e("L_round:")
    e(f"s_add_u32 s{sT2}, s{sNT}, 31\ns_lshr_b32 s{sT2}, s{sT2}, 5\ns_waitcnt lgkmcnt({16-P2})")
    for x in range(P1, P2, 4): decode(list(range(x, min(x + 4, P2))))
    dreads(6)
    k.stamp(7)
    c('the table is complete')
    sync_wait(5, 4, 'tab', 1)
    k.stamp(8)
    e(f"v_mov_b32 v5, 0x1ffc\nv_mov_b32 v6, s{sG+2}")
    dests()
    c('tile = 32 occurrences x 2 lanes x 7 lookups; the sums over the lookups are formed by MFMA with 0/1 selectors')
    R = 16 - P2
    def scat(q):
        a_ = AC + 4 * q
        e(f"v_cvt_pk_bf16_f32 v{a_}, v{a_+1}, v{a_}\nv_cvt_pk_bf16_f32 v{a_+2}, v{a_+3}, v{a_+2}")
        e(f"ds_write_b32 v{DX+2*q}, v{a_}\nds_write_b32 v{DX+2*q+1}, v{a_+2}")
    def grd(i):
        for x in range(2): e(f"ds_read2st64_b32 {vr(G+4*i+2*x,2)}, v{cRD if i==0 else RA2+i-1} offset0:{2*x} offset1:{2*x+1}")
    def gst(i):
        for j in range(4): e(f"v_and_or_b32 v{G+4*i+j}, v{G+4*i+j}, v{cMSK}, v{cR+j}")
        e(f"s_add_u32 s{sT0}, s{sG+3}, {i*0x40000:#x}\nbuffer_store_dwordx4 {vr(G+4*i,4)}, v{cRA}, {sr(S_RES)}, s{sT0} offen{SC}\ns_bitset1_b32 s{sCNT}, {i}")
    def early(i, nm):
        e(f"s_bitcmp1_b32 s3, {i}\ns_cbranch_scc0 L_e{nm}"); gst(i); e(f"L_e{nm}:")
    for n in range(16):
        e(f"s_waitcnt vmcnt({P2+min(n,R)-1-n})"); addrs(n, n & 1)
        if n: e("s_waitcnt lgkmcnt(7)"); mf(n - 1, (n - 1) & 1)
        if n < R: decode([P2 + n])
        if n == 5: scat(0)
        if n == 9: scat(1); grd(0)
        if n == 10: early(0, 'a')
        if n == 13: scat(2); grd(1); grd(2)
        if n == 14: early(1, 'b'); early(2, 'c')
        if 11 <= n < 15: e(f"s_cmp_le_u32 s{sT2}, {n+1}\ns_cbranch_scc1 L_x{n}")
    e("s_waitcnt lgkmcnt(0)"); mf(15, 1); e("s_nop 6\ns_branch L_tiles_done")
    for n in (11, 12):
        e(f"L_x{n}:\ns_waitcnt lgkmcnt(0)"); mf(n, n & 1); e("s_nop 7"); scat(2); e("s_branch L_tiles_done")
    e("L_x14:\ns_waitcnt lgkmcnt(0)"); mf(14, 0); e("s_nop 6\ns_branch L_tiles_done")
    e("L_x13:\ns_waitcnt lgkmcnt(0)"); mf(13, 1); early(1, 'd'); early(2, 'e'); e("s_nop 3")
    e("L_tiles_done:")
    scat(3)
    e(f"s_cmp_gt_u32 s{sNT}, 512\ns_cbranch_scc1 L_more")
    with rare():
        e(f"L_more:\ns_mov_b32 s3, 0\ns_sub_u32 s{sNT}, s{sNT}, 512\nv_add_u32 v{cFL}, 2048, v{cFL}\nv_add_u32 v{cDR}, 2048, v{cDR}\nv_add_u32 v7, 1024, v{cDR}\nv_mov_b32 v6, v{cDR}")
        e("s_waitcnt vmcnt(0) lgkmcnt(0)")
        for n in range(16):
            e(f"ds_read_b32 v{RM+n}, v{cFL} offset:{128*n}")
            if n == 7: e("s_waitcnt lgkmcnt(0)")
        e("s_waitcnt lgkmcnt(0)")
        for x in range(0, P1, 4): decode(list(range(x, min(x + 4, P1))))
        e("s_branch L_round")
    c('result cells: 16 x (sum w : bf16 | sum w*s : bf16), bit 31 and bit 0 of every dword carry the epoch tag')
    grd(3)
    e(f"s_cmp_lg_u32 s{sCNT}, 7\ns_cbranch_scc1 L_late\nL_late_ret:\ns_waitcnt lgkmcnt(0)")
    with rare():
        e("L_late:")
        for i in range(3): grd(i)
        e("s_waitcnt lgkmcnt(0)")
        for i in range(3):
            e(f"s_bitcmp1_b32 s{sCNT}, {i}\ns_cbranch_scc1 L_l{i}"); gst(i); e(f"L_l{i}:")
        e("s_branch L_late_ret")
    gst(3)
    e(f"s_cmp_lg_u32 s{sBAD}, 0\ns_cbranch_scc1 L_res2\nL_res2_ret:")
    with rare():
        e(f"L_res2:\ns_add_u32 s{sT0}, s{sG+3}, {RLV:#x}"); res_stores(1, sT0); e("s_branch L_res2_ret")
    e("L_nobucket:")
    k.stamp(9)

def hi_lookup():
    e("s_waitcnt lgkmcnt(0)")
    sync_add(5)
    c("================ hi waves: fetch the result cells of this workgroup's samples ================")
    e("L_hi_final:")
    pos()
    e(f"s_add_u32 s{sTAG}, s{sTAG}, 1")
    res_tags("v_and_b32 v4, 3, v0", 96)
    final_poll()
    k.stamp(6)

def final_poll():
    cR = 96
    T = 32; X = 48; Y = 64; CN = 80; YA = 84
    e(f"v_and_b32 v2, 255, v0\nv_lshlrev_b32 v{T}, 4, v2\nv_add_u32 v{T+1}, 0x2000, v{T}\ns_lshl_b32 s{sT0}, s{sPOS}, 14\ns_add_u32 s{sT1}, s{sT0}, 0x1000")
    e(f"v_cmp_gt_u32 vcc, 232, v2\ns_mov_b64 s[{sEX}:{sEX+1}], vcc\ns_mov_b32 s{sNT}, 0")
    sync_wait(0, 8, 'res', 2)
    e(f"ds_read_b32 v6, v5 offset:16\ns_waitcnt lgkmcnt(0)\nv_readfirstlane_b32 s{sRARE}, v6")
    for h in range(4): e(f"v_mov_b32 v{YA+h}, -1")
    e(f"s_cmp_lg_u32 s{sRARE}, 0\ns_cbranch_scc1 L_rare0\nL_rare0_ret:")
    with rare():
        e(f"L_rare0:\nv_and_b32 v4, -4, v2\ns_add_u32 s{sBAD}, s{sT0}, {RLV:#x}\nv_mov_b32 v7, 0x80000000")
        for h in range(4): e(f"ds_read_b32 v{CN+h}, v4 offset:{CNT+256*h}")
        e("s_waitcnt lgkmcnt(0)")
        for h in range(4):
            e(f"v_add_u32 v{CN+h}, -33, v{CN+h}\nv_add_u32 v4, {4096*h}, v{T}\nv_and_or_b32 v{YA+h}, v{CN+h}, v7, v4\nv_ashrrev_i32 v{CN+h}, 31, v{CN+h}")
        e("s_branch L_rare0_ret")
    c('back-off, as above')
    if DL2: e(f"s_sleep {DL2}")
    e("L_poll2:")
    e(f"s_cmp_lg_u32 s{sRARE}, 0\ns_cbranch_scc1 L_rare1\nL_rare1_ret:")
    with rare():
        e("L_rare1:")
        for h in range(4): e(f"buffer_load_dwordx4 {vr(Y+4*h,4)}, v{YA+h}, {sr(S_RES)}, s{sBAD} offen{SC}")
        e("s_branch L_rare1_ret")
    for h in range(4): e(f"buffer_load_dwordx4 {vr(X+4*h,4)}, v{T+h//2}, {sr(S_RES)}, s{sT0 if h%2==0 else sT1} offen{SC}")
    for h in range(4):
        d = T + 2 if h < 3 else T + 3
        e(f"s_waitcnt vmcnt({3-h})")
        for j in range(4):
            if j == 0 and h in (0, 3): e(f"v_xor_b32 v{d}, v{X+4*h}, v{cR}")
            else: e(f"v_bitop3_b32 v{d}, v{d}, v{X+4*h+j}, v{cR+j} bitop3:0xf6")
        e(f"ds_write_b128 v{T}, {vr(X+4*h,4)} offset:{RS+4096*h}")
    e(f"s_cmp_lg_u32 s{sRARE}, 0\ns_cbranch_scc1 L_rare2\nL_rare2_ret:")
    with rare():
        e("L_rare2:")
        for h in range(4):
            for j in range(4):
                if j == 0: e(f"v_xor_b32 v4, v{Y+4*h}, v{cR}")
                else: e(f"v_bitop3_b32 v4, v4, v{Y+4*h+j}, v{cR+j} bitop3:0xf6")
            e(f"v_bitop3_b32 v{T+2}, v{T+2}, v4, v{CN+h} bitop3:0xf4")
            e(f"ds_write_b128 v{T}, {vr(Y+4*h,4)} offset:{RS+16384+4096*h}")
        e("s_branch L_rare2_ret")
    e(f"v_and_b32 v{T+3}, 0x80000001, v{T+3}\nv_and_b32 v{T+2}, 0x80000001, v{T+2}")
    e(f"v_cmp_ne_u32 vcc, 0, v{T+3}\ns_and_b64 s[{sU}:{sU+1}], vcc, s[{sEX}:{sEX+1}]\nv_cmp_ne_u32 vcc, 0, v{T+2}\ns_or_b64 vcc, vcc, s[{sU}:{sU+1}]")
    e("s_cbranch_vccnz L_poll2_again\nL_poll2_ok:")
    with rare():
        e("L_poll2_again:")
        e(f"s_waitcnt lgkmcnt(0)\ns_add_u32 s{sNT}, s{sNT}, 1\ns_cmp_lt_u32 s{sNT}, {LIMIT}\ns_cbranch_scc1 L_poll2")
        sync_add(3)
        e("s_branch L_poll2_ok")
    k.stamp(10)
    e("s_waitcnt lgkmcnt(0)\ns_barrier")

def final():
    T = 32; X = 48
    c('================ lo waves: combine ================')
    sync_add(0)
    for t in range(8): e(f"v_and_b32 v{T+8+t}, 0xffff, v{LOC+t}")
    e(f"s_lshl_b32 s{sT2}, s2, 7\ns_lshl_b32 s{sBAD}, s{sJ}, 5\ns_add_u32 s{sT2}, s{sT2}, s{sBAD}")
    e(f"v_lshrrev_b32 v3, 2, v{vL}\nv_lshlrev_b32 v3, 1, v3\ns_waitcnt lgkmcnt(0)\ns_barrier")
    k.stamp(10)
    e(f"s_or_b32 s{sCNT}, s2, s{sJ}\ns_cmp_eq_u32 s{sCNT}, 0\ns_cbranch_scc1 L_epoch\nL_epoch_ret:")
    with rare():
        e(f"L_epoch:\ns_mov_b64 exec, 1\nv_mov_b32 v4, {EPOCH:#x}\nv_mov_b32 v5, s{sTAG}\nglobal_store_dword v4, v5, s[{P_WS}:{P_WS+1}]{SC}\ns_mov_b64 exec, -1\ns_branch L_epoch_ret")
    e(f"v_mov_b32 v5, {SYNC+12}\nds_read_b32 v6, v5")
    for t in range(8): e(f"ds_read_b32 v{X+t}, v{T+8+t}")
    for t in range(8):
        e(f"s_waitcnt lgkmcnt({7-t})\nv_and_b32 v{T+t}, 0x7fff0000, v{X+t}\nv_lshlrev_b32 v{X+t}, 16, v{X+t}")
        if t % 2: e(f"v_add_f32 v{T+t-1}, v{T+t-1}, v{T+t}\nv_add_f32 v{X+t-1}, v{X+t-1}, v{X+t}")
        if t % 4 == 3: e(f"v_add_f32 v{T+t-3}, v{T+t-3}, v{T+t-1}\nv_add_f32 v{X+t-3}, v{X+t-3}, v{X+t-1}")
    e(f"v_add_f32 v{T}, v{T}, v{T+4}\nv_add_f32 v{X}, v{X}, v{X+4}\ns_nop 0")
    e(f"v_add_f32_dpp v{T+1}, v{T}, v{T} quad_perm:[1,0,3,2] row_mask:0xf bank_mask:0xf")
    e(f"v_add_f32_dpp v{X+1}, v{X}, v{X} quad_perm:[1,0,3,2] row_mask:0xf bank_mask:0xf")
    e("s_nop 0")
    e(f"v_add_f32_dpp v{T}, v{T+1}, v{T+1} quad_perm:[2,3,0,1] row_mask:0xf bank_mask:0xf")
    e(f"v_add_f32_dpp v{X}, v{X+1}, v{X+1} quad_perm:[2,3,0,1] row_mask:0xf bank_mask:0xf")
    e(f"v_rcp_f32 v{T+1}, v{T}")
    c('the weights were formed against a fixed reference instead of the row maximum: safe iff 2^-80 <= sum < 2^100 and the\nquotient is finite; otherwise (also after an overflow of a cell or a lost hand-off) recompute with the true maximum')
    e(f"v_add_u32 v{T+2}, {(-0x17800000)&0xffffffff:#x}, v{T}\nv_mul_f32 v{X}, v{X}, v{T+1}\nv_cmp_gt_u32 vcc, 0x5a000000, v{T+2}")
    e(f"v_and_b32 v{T+3}, 0x7fffffff, v{X}\ns_mov_b64 s[{sEX}:{sEX+1}], vcc\nv_cmp_gt_u32 vcc, 0x7f800000, v{T+3}\nv_cvt_pk_bf16_f32 v{X}, v{X}, v{X}")
    e(f"s_and_b64 s[{sEX}:{sEX+1}], vcc, s[{sEX}:{sEX+1}]\nv_cmp_eq_u32 vcc, 0, v6")
    e(f"s_and_b64 vcc, vcc, s[{sEX}:{sEX+1}]\ns_cmp_eq_u64 vcc, -1\ns_cbranch_scc0 L_fallback")
    e("s_mov_b32 exec_lo, 0x11111111\ns_mov_b32 exec_hi, 0x11111111")
    e(f"buffer_store_short v{X}, v3, {sr(S_OUT)}, s{sT2} offen")
    e("L_fin:")

def fallback():
    c("================ direct evaluation of this wave's 16 samples, online (true) maximum ================")
    e("L_fallback:")
    A0 = 16; A1 = 20; C0 = 24; C1 = 28; AH = 32; AP = 36; EI = 40; EJ = 48; PK = 56; DD = 60; HK = 68; DS = 72; W16 = 80
    N, Q, IB, M, LL, ACc, T = 100, 101, 102, 103, 104, 105, 106
    e(f"v_and_b32 v{N}, 15, v{vL}\nv_lshrrev_b32 v{Q}, 4, v{vL}")
    e(f"v_lshlrev_b32 v{T}, 9, v{Q}\nv_lshl_add_u32 v{T}, v{N}, 1, v{T}")
    for half in range(2):
        for t in range(8): e(f"buffer_load_ushort v{W16+8*half+t}, v{T}, {sr(S_W)}, 0 offen offset:{t*64+half*32}")
    e(f"v_lshlrev_b32 v{T+1}, 3, v{Q}\nv_lshlrev_b32 v{Q}, 4, v{Q}")
    e(f"global_load_dwordx2 {vr(EI,2)}, v{T+1}, s[{P_B}:{P_B+1}]\nglobal_load_dwordx2 {vr(EI+2,2)}, v{T+1}, s[{P_B}:{P_B+1}] offset:32")
    e(f"global_load_dwordx2 {vr(AH,2)}, v{T+1}, s[{P_H}:{P_H+1}]\nglobal_load_dwordx2 {vr(AH+2,2)}, v{T+1}, s[{P_H}:{P_H+1}] offset:32")
    e(f"global_load_dwordx4 {vr(AP,4)}, v{Q}, s[{P_P}:{P_P+1}]")
    e(f"s_lshl_b32 s{sU}, s2, 6\ns_lshl_b32 s{sT1}, s{sJ}, 4\ns_add_u32 s{sU}, s{sU}, s{sT1}\nv_add_u32 v{IB}, s{sU}, v{N}\nv_mul_u32_u24 v{IB}, 104, v{IB}")
    e("s_waitcnt vmcnt(0)")
    for half in range(2):
        for t in range(4): e(f"v_lshl_or_b32 v{A0+4*half+t}, v{W16+8*half+2*t+1}, 16, v{W16+8*half+2*t}")
    for i in range(4): e(f"v_lshlrev_b32 v{C0+2*i}, 16, v{EI+i}\nv_and_b32 v{C0+2*i+1}, 0xffff0000, v{EI+i}")
    e(f"v_mov_b32 v{M}, 0xff800000\nv_mov_b32 v{LL}, 0\nv_mov_b32 v{ACc}, 0")
    e(f"s_mov_b32 s{sU}, 0")
    def getrow(dst, soff):
        e(f"buffer_load_dword v{T}, v{IB}, {sr(S_IDX)}, s{soff} offen\ns_waitcnt vmcnt(0)")
        e(f"v_lshl_add_u32 v{T}, v{T}, 6, v{Q}\nbuffer_load_dwordx4 {vr(dst+4,4)}, v{T}, {sr(S_TABL)}, 0 offen\ns_waitcnt vmcnt(0)")
        for t in range(4): e(f"v_lshlrev_b32 v{dst+2*t}, 16, v{dst+4+t}\nv_and_b32 v{dst+2*t+1}, 0xffff0000, v{dst+4+t}")
    e("L_fb_i:")
    getrow(EI, sU)
    e(f"s_add_u32 s{sCNT}, s{sU}, 4")
    e("L_fb_j:")
    getrow(EJ, sCNT)
    for t in range(8): e(f"v_mul_f32 v{EJ+t}, v{EJ+t}, v{EI+t}")
    for t in range(4): e(f"v_cvt_pk_bf16_f32 v{PK+t}, v{EJ+2*t}, v{EJ+2*t+1}")
    e("s_nop 1")
    e(f"v_mfma_f32_16x16x32_bf16 {vr(DD,4)}, {vr(A0,4)}, {vr(PK,4)}, {vr(C0,4)}")
    e(f"v_mfma_f32_16x16x32_bf16 {vr(DD+4,4)}, {vr(A1,4)}, {vr(PK,4)}, {vr(C1,4)}")
    e(f"v_mfma_f32_16x16x32_bf16 {vr(DS,4)}, {vr(AP,4)}, {vr(PK,4)}, 0")
    e("s_nop 7")
    for t in range(4): e(f"v_cvt_pk_bf16_f32 v{HK+t}, v{DD+2*t}, v{DD+2*t+1}")
    for t in range(4): e(f"v_pk_max_i16 v{HK+t}, v{HK+t}, 0")
    e("s_nop 1")
    e(f"v_mfma_f32_16x16x32_bf16 {vr(DD,4)}, {vr(AH,4)}, {vr(HK,4)}, 0")
    e("s_nop 7")
    e(f"v_mul_f32 v{DD}, 0x3fb8aa3b, v{DD}\nv_max_f32 v{DD+1}, v{M}, v{DD}\nv_sub_f32 v{DD+2}, v{M}, v{DD+1}\nv_sub_f32 v{DD+3}, v{DD}, v{DD+1}")
    e(f"v_exp_f32 v{DD+2}, v{DD+2}\nv_exp_f32 v{DD+3}, v{DD+3}\nv_mov_b32 v{M}, v{DD+1}")
    e(f"v_fma_f32 v{LL}, v{LL}, v{DD+2}, v{DD+3}\nv_mul_f32 v{ACc}, v{ACc}, v{DD+2}\nv_fma_f32 v{ACc}, v{DD+3}, v{DS}, v{ACc}")
    e(f"s_add_u32 s{sCNT}, s{sCNT}, 4\ns_cmp_lt_u32 s{sCNT}, 104\ns_cbranch_scc1 L_fb_j")
    e(f"s_add_u32 s{sU}, s{sU}, 4\ns_cmp_lt_u32 s{sU}, 100\ns_cbranch_scc1 L_fb_i")
    e(f"v_rcp_f32 v{LL}, v{LL}\nv_lshlrev_b32 v{N}, 1, v{N}\nv_mul_f32 v{ACc}, v{ACc}, v{LL}\nv_cvt_pk_bf16_f32 v{ACc}, v{ACc}, v{ACc}")
    e("s_mov_b64 exec, 0xffff")
    e(f"buffer_store_short v{ACc}, v{N}, {sr(S_OUT)}, s{sT2} offen")
    e("s_branch L_fin")

B_ = 8; A_ = 72; A5 = 104; CB = 120; HQ = 184; D_ = 200; ACC = 232; INIT = 248; TW = 249

NB0 = opt('nb0', 4); NB1 = opt('nb1', 8)

def hi():
    WV = 120; TP = 136; TU = 144; T = 184
    c('================ hi waves (4-7): table rows 4c..4c+3 against all 1000 ids ================')
    e("L_hi:")
    vm = ['s'] * 5
    def vmem(lab, txt): e(txt); vm.append(lab)
    def vneed(lab): return len(vm) - 1 - max(i for i, x in enumerate(vm) if x == lab)
    vmem('s', f"global_load_dwordx4 {vr(TP+4,4)}, v5, s[{P_TAB}:{P_TAB+1}] offset:16")
    for t in range(1, 16): vmem('s', f"global_load_short_d16_hi v{WV+t}, v4, s[{P_W}:{P_W+1}] offset:{t*64-64}")
    c("one line in every 2 MB of the exchange area: its address translation is then ready when the exchange starts")
    e(f"v_and_b32 v2, 7, v{vL}\nv_lshlrev_b32 v2, 21, v2\nv_add_u32 v2, 0x1fff80, v2")
    vmem('x', f"global_load_dword v255, v2, s[{P_WS}:{P_WS+1}]")
    lds_common()
    k.srd(S_TABL, P_TAB, 64000)
    e(f"v_lshlrev_b32 v7, 6, v6\nv_lshl_add_u32 v250, v252, 5, v7\nv_add_u32 v251, 4096, v250")
    e(f"s_waitcnt lgkmcnt(0)\ns_load_dword s{sTAG}, s[{P_WS}:{P_WS+1}], {EPOCH:#x}\ns_barrier")
    e("s_cmp_ge_u32 s2, 250\ns_cbranch_scc1 L_hi_skip")
    e(f"s_lshl_b32 s{sG}, s{sU}, 14\ns_add_u32 s{sG+1}, s{sG}, 0x2000")
    def bload(n):
        b, ks = n // 2, n % 2
        vmem(f"b{b//2}", f"buffer_load_dwordx4 {vr(B_+8*b+4*ks,4)}, v{250+(b//2)%2}, {sr(S_TABL)}, s{sG if b<4 else sG+1} offen offset:{(b%2)*2048+ks*16}")
    for n in range(NB0): bload(n)
    k.srd(S_RES, P_WS, 0x800000, R0)
    with rare():
        e("L_hi_skip:"); k.srd(S_RES, P_WS, 0x800000, R0); e("s_waitcnt lgkmcnt(0)\ns_branch L_hi_final")
    e(f"s_lshl_b32 s{sT0}, s{sU}, 11\nv_lshlrev_b32 v4, 4, v{vL}\nv_add_u32 v5, s{sT0}, v4\nv_cmp_gt_u32 vcc, 32, v{vL}\nv_lshlrev_b32 v7, 2, v{vL}")
    e(f"s_lshl_b32 s{sT0}, s{sU}, 12\nv_add_u32 v{TW}, s{sT0}, v4")
    e(f"s_waitcnt vmcnt({vneed('s')})")
    k.stamp(2)

    c('A operand: rows (table row, hidden unit), value W[d][a] * table[row][d]; one group of 8 hidden units per wave, shared through LDS')
    for t in range(8): e(f"v_lshlrev_b32 v{TU+2*t}, 16, v{TP+t}\nv_and_b32 v{TU+2*t+1}, 0xffff0000, v{TP+t}")
    for t in range(16): e(f"v_mul_f32 v{WV+t}, v{WV+t}, v{TU+t}")
    for t in range(8): e(f"v_cvt_pk_bf16_f32 v{TP+t}, v{WV+2*t}, v{WV+2*t+1}")
    e(f"ds_write_b128 v5, {vr(TP,4)} offset:{AIMG}\nds_write_b128 v5, {vr(TP+4,4)} offset:{AIMG+1024}")
    e(f"v_mul_f32 v{T+2}, {LOG2E_HALF:#x}, v{T+2}\nv_cndmask_b32 v6, v{T+2}, v{T+1}, vcc\nds_write_b32 v7, v6 offset:{BH}")
    for n in range(NB0, NB1): bload(n)
    e("s_waitcnt lgkmcnt(0)")
    sync_add(1)
    sync_wait(1, 4, 'hi')
    e("v_lshlrev_b32 v5, 4, v252")
    k.stamp(3)
    for i in range(2): e(f"ds_read_b128 {vr(A_+4*i,4)}, v4 offset:{AIMG+1024*i}")
    for i in range(4): e(f"ds_read_b128 {vr(CB+4*i,4)}, v5 offset:{BH}")
    for g in range(4): e(f"ds_read_b128 {vr(HQ+4*g,4)}, v5 offset:{BH+128+32*g}")
    for g in range(1, 4): e(f"ds_read_b128 {vr(CB+16*g,4)}, v5 offset:{BH+32*g}")
    e(f"s_waitcnt vmcnt({vneed('b0')}) lgkmcnt(7)"); k.stamp(7)
    later = []
    for g in range(1, 4):
        later += [f"ds_read_b128 {vr(A_+8*g+4*i,4)}, v4 offset:{AIMG+1024*(2*g+i)}" for i in range(2)]
        later += [f"ds_read_b128 {vr(CB+16*g+4*i,4)}, v5 offset:{BH+32*g}" for i in range(1, 4)]
    steps = []
    for bp in range(4): steps += [('r', bp, g, b) for g in range(4) for b in range(2)] + [('x', bp, 0, 0)]
    NS = len(steps)
    def mms(s):
        kind, bp, g, b = steps[s]; d = D_ + 16 * (s % 2)
        if kind == 'r':
            bb = B_ + 8 * (2 * bp + b)
            return [f"v_mfma_f32_32x32x16_bf16 {vr(d,16)}, {vr(A_+8*g,4)}, {vr(bb,4)}, {vr(CB+16*g,16)}",
                    f"v_mfma_f32_32x32x16_bf16 {vr(d,16)}, {vr(A_+8*g+4,4)}, {vr(bb+4,4)}, {vr(d,16)}"]
        return [f"v_mfma_f32_32x32x16_bf16 {vr(d,16)}, {vr(A5+8*b2+4*ks,4)}, {vr(B_+8*(2*bp+b2)+4*ks,4)}, {'0' if b2+ks==0 else vr(d,16)}"
                for b2 in range(2) for ks in range(2)]
    def valu(s):
        kind, bp, g, b = steps[s]; d = D_ + 16 * (s % 2); X = ACC + 8 * (bp % 2); Y = X + 4
        if kind == 'r':
            a = X + 4 * b
            return [f"v_fma_f32 v{a+v}, v{HQ+4*g+r}, |v{d+4*v+r}|, " + (f"-v{INIT}" if g == 0 and r == 0 else f"v{a+v}") for r in range(4) for v in range(4)]
        o = [f"v_permlane32_swap_b32 v{X+v}, v{Y+v}" for v in range(4)]
        o += [f"v_add_f32 v{X+v}, v{X+v}, v{Y+v}" for v in range(4)]
        o += [f"v_add_f32 v{X+v}, v{X+v}, v{d+4*v}" for v in range(4)]
        o += [f"v_exp_f32 v{X+v}, v{X+v}" for v in range(4)]
        o += [f"v_mul_f32 v{Y+v}, v{X+v}, v{d+4*v+1}" for v in range(4)]
        o += [f"v_cvt_pk_bf16_f32 v{X+v}, v{Y+v}, v{X+v}" for v in range(4)]
        o += [f"ds_write_b128 v{TW}, {vr(X,4)} offset:{TAB+16+1024*bp}"]
        return o
    c('relu(x) = (x + |x|)/2: e = sum h/2 |x+b| + linear term; exponent reference = value at zero interaction; entry = (w, w*s) in bf16')
    m = mms(0)
    e(m[0])
    for x in later[:5]: e(x)
    e(m[1])
    e("s_waitcnt lgkmcnt(5)")
    for x in later[5:10]: e(x)
    e(f"v_mul_f32 v{INIT}, v{HQ}, |v{CB}|")
    for g in range(4):
        for r in range(4):
            if g or r: e(f"v_fma_f32 v{INIT}, v{HQ+4*g+r}, |v{CB+16*g+r}|, v{INIT}")
    nb_next = [NB1]
    for s in range(NS):
        v = valu(s); m = mms(s + 1) if s + 1 < NS else []
        if s + 1 < NS:
            kind, bp, g, b = steps[s + 1]
            if bp == 0 and kind == 'r' and b == 0 and g == 1: e("s_waitcnt lgkmcnt(5)"); [e(x) for x in later[10:15]]
            if bp == 0 and kind == 'r' and b == 0 and g == 2: e("s_waitcnt lgkmcnt(5)")
            if bp == 0 and kind == 'r' and b == 0 and g == 3:
                sync_wait(2, 2, 'a5')
                for i in range(4): e(f"ds_read_b128 {vr(A5+4*i,4)}, v4 offset:{AIMG+8192+1024*i}")
            if bp == 0 and kind == 'x': e("s_waitcnt lgkmcnt(0)")
            if kind == 'r' and g == 0 and b == 0 and bp > 0:
                e(f"s_waitcnt vmcnt({vneed(f'b{bp}')})"); k.stamp({1: 4, 2: 8, 3: 10}[bp])
            if bp == 0 and kind == 'r' and b == 0 and g == 3: k.stamp(1)

        for _ in range(2):
            if nb_next[0] < 16: bload(nb_next[0]); nb_next[0] += 1
        if len(m) == 2:
            n = 6 if steps[s][0] == 'x' else 5
            e(m[0]); [e(x) for x in v[:n]]; e(m[1]); [e(x) for x in v[n:]]
        elif len(m) == 4:
            e(m[0]); [e(x) for x in v[:4]]; e(m[1]); [e(x) for x in v[4:8]]; e(m[2]); [e(x) for x in v[8:12]]; e(m[3]); [e(x) for x in v[12:]]
        else:
            e("s_nop 1"); [e(x) for x in v]
    k.stamp(5)
    hi_lookup()

def finish():
    if STAMP:
        e(f"{CLK} s[{sH}:{sH+1}]\ns_waitcnt lgkmcnt(0)\ns_mov_b64 exec, 1")
        e(f"s_lshl_b32 s{sT0}, s2, 3\ns_add_u32 s{sT0}, s{sT0}, s{sJ}\ns_lshl_b32 s{sT0}, s{sT0}, 7\ns_add_u32 s{sT0}, s{sT0}, {STAMP0:#x}")
        e(f"v_mov_b32 v2, s{sT0}")
        for i in range(NST): e(f"v_mov_b32 v3, s{sST+2*i}\nglobal_store_dword v2, v3, s[{P_WS}:{P_WS+1}] offset:{4*i}")
        e(f"v_mov_b32 v3, s{sH}\nglobal_store_dword v2, v3, s[{P_WS}:{P_WS+1}] offset:{4*NST}")
        e(f"v_mov_b32 v3, {NST+1}\nglobal_store_dword v2, v3, s[{P_WS}:{P_WS+1}] offset:124")
    e("s_endpgm")

prologue()
route()
lo_lookup()
final()
finish()
hi()
finish()
e("L_end:\ns_endpgm")
with rare(): fallback()
hazard.check(k.L); hazard.check(k.tail)
src = HEADER + '; Attentional FM as a table lookup.  e(i,j) and s(i,j) = pair . p depend only on the two ids, so with V = 1000 the\n; 5.3 M pair evaluations collapse to a 1000 x 1000 table of (w, w*s), w = exp(e - reference).  Workgroup c < 250 computes the\n; four table rows 4c..4c+3 into LDS (hi waves) and serves every occurrence of those ids; every workgroup also owns 64 samples.\n; Each unordered field pair is owned by one of its two fields (pairs of fields form a cyclic tournament), so one occurrence\n; needs 12 or 13 lookups.  Hand-offs through d_ws, sc1 stores and sc1 loads, 64-byte cells that carry an epoch tag\n; (epoch = word 0 of d_ws + 1, written back at the end):\n;   sample owner -> bucket owner: packed index rows (1 MB) and list cells ; bucket owner -> sample owner: sums per occurrence.\n; Every wait on another workgroup is bounded; whatever is missing or out of the safe range is recomputed directly.\n' + f"; @launch grid=(256,1,1) block=(512,1,1) lds={LDS_BYTES}\n"
src += f'.amdgcn_target "amdgcn-amd-amdhsa--gfx950"\n.text\n.globl {KN}\n.p2align 8\n.type {KN},@function\n{KN}:\n'
src += "\n".join(k.L) + "\n" + "\n".join(k.tail) + "\nL_code_end:\n"
src += '.section .rodata,"a"\n' + kd(KN, 256, 102)
open(sys.argv[1], "w").write(src)
print("lds", LDS_BYTES)
```

```python
import sys
from common import *
import hazard

OPT = set(sys.argv[2].split(',')) if len(sys.argv) > 2 else set()
def opt(name, d):
    for o in OPT:
        if o.startswith(name + '='): return int(o.split('=')[1])
    return d
STAMP = 'stamp' in OPT
CLK = 's_memtime' if 'cyc' in OPT else 's_memrealtime'
DL1, DL2 = opt('dl1', 16), opt('dl2', 20)
OPT.add('lateconst')

EPOCH, L0, ROW0, R0 = 0x0, 0x10000, 0x400000, 0x800000
STAMP0 = 0x1000000
TAB, CNT, BH, GP, AIMG, LIMG, WL = 0, 0x4100, 0x4500, 0x4600, 0x5000, 0x8000, 0xC000
RS = LIMG
NANW = 0x4080
SYNC = CNT + 1000
LIMIT = opt('limit', 0x4000)
RLV = 0x400000
FL = 0x10000; FLS = 8192; RIM = 0x18000; NW = 0x4090; DUMP = 0x4C00
LDS_BYTES = RIM + 4 * 8192
S_IDX, S_TABL, S_W, S_LIST, S_ROW, S_RES, S_OUT = 4, 8, 12, 16, 20, 24, 28
sG = 32
P_IDX, P_TAB, P_W, P_B, P_H, P_P, P_OUT, P_WS = 36, 38, 40, 42, 44, 46, 48, 50
sJ, sRARE, sTAG, sT2, sT0, sT1, sNT, sBAD, sU, sCNT = 52, 53, 54, 55, 56, 57, 58, 59, 60, 61
sEX = 62
sPOS = 36
sH = 64
sST = 80
NST = 11
LOG2E_HALF = 0x3f38aa3b
vL = 1
SC = " sc1"
KN = NAME + "_kernel"

class K:
    def __init__(s): s.L = []; s.tail = []; s.cur = s.L
    def e(s, x):
        for ln in x.split('\n'):
            ln = ln.strip()
            if ln: s.cur.append(ln if ln.endswith(':') else '    ' + ln)
    def stamp(s, i):
        if STAMP: s.e(f"{CLK} s[{sST+2*i}:{sST+2*i+1}]")
    def srd(s, d, p, n, off=0):
        if off: s.e(f"s_add_u32 s{d}, s{p}, {off:#x}\ns_addc_u32 s{d+1}, s{p+1}, 0")
        else: s.e(f"s_mov_b64 s[{d}:{d+1}], s[{p}:{p+1}]")
        s.e(f"s_mov_b32 s{d+2}, {n:#x}\ns_mov_b32 s{d+3}, 0x00020000")
k = K(); e = k.e
def c(x):
    for ln in x.split('\n'): k.cur.append('    ; ' + ln)
def vr(a, n): return f"v[{a}:{a+n-1}]"
def sr(a): return f"s[{a}:{a+3}]"
class rare:
    def __enter__(s): s.old = k.cur; k.cur = k.tail
    def __exit__(s, *a): k.cur = s.old

LOC = 8
G = 16; RM = 80; EN = 96; TQ = 112; AS = 166; AC = 182; BQ = 230; DX = 202
cA, cOFF, cBIT, cWR, cFL, cMSK = 246, 247, 248, 249, 250, 251
cR = 252
cAM, cDR, cRD, cRA = 198, 199, 200, 201
WA = 140

def prologue():
    V = 16; T = 52; WV = 120; TP = 136; TH = 184
    e("s_cmp_ge_u32 s2, 256\ns_cbranch_scc1 L_end")
    if opt('late', -1) >= 0:
        e(f"s_cmp_lg_u32 s2, {opt('late', -1)}\ns_cbranch_scc1 L_notlate\ns_mov_b32 s3, {opt('latec', 100)}\nL_late_loop:\ns_sleep 100\ns_sub_u32 s3, s3, 1\ns_cmp_lg_u32 s3, 0\ns_cbranch_scc1 L_late_loop\nL_notlate:")
    e(f"s_load_dwordx4 s[{P_IDX}:{P_IDX+3}], s[0:1], 0")
    e(f"s_load_dwordx8 s[{P_W}:{P_W+7}], s[0:1], 32")
    e(f"s_load_dwordx2 s[{P_WS}:{P_WS+1}], s[0:1], 80")
    k.stamp(0)
    c("first touches of memory come first: this kernel's own code (into the L2), then idx (lo) / table rows, W, b, h, p (hi)")
    e(f"s_getpc_b64 s[{sEX}:{sEX+1}]\nv_lshlrev_b32 v4, 6, v0\nv_min_u32 v4, L_code_end-{KN}-64, v4\nv_mov_b32 v5, s{sEX+1}\nv_add_co_u32 v4, vcc, s{sEX}, v4\nv_lshrrev_b32 v2, 6, v0\nv_and_b32 v{vL}, 63, v0\nv_addc_co_u32 v5, vcc, 0, v5, vcc")
    e("global_load_dword v135, v[4:5], off")
    e(f"v_readfirstlane_b32 s{sJ}, v2\nv_cmp_lt_u32 vcc, 255, v0\ns_cbranch_vccnz L_hi0")
    c('lo: lane = (sample, quarter); it loads field pairs 4q..4q+3 (the last quarter: pair 12 and the repeats 0,1,2)')
    e(f"v_lshrrev_b32 v{T}, 2, v0\nv_and_b32 v{T+1}, 3, v0\ns_mul_i32 s{sT1}, s2, 6656\nv_mov_b32 v2, 104\nv_mad_u32_u24 v{T+2}, v{T}, v2, s{sT1}")
    e(f"v_lshl_add_u32 v{T+2}, v{T+1}, 5, v{T+2}\nv_add_u32 v{T+3}, 1, v{T+1}\nv_lshrrev_b32 v{T+3}, 2, v{T+3}\nv_mul_i32_i24 v4, -104, v{T+3}\nv_add3_u32 v4, v{T+2}, v4, 8")
    e("s_waitcnt lgkmcnt(0)")
    e(f"global_load_dwordx2 {vr(V,2)}, v{T+2}, s[{P_IDX}:{P_IDX+1}]\nglobal_load_dwordx4 {vr(V+2,4)}, v4, s[{P_IDX}:{P_IDX+1}]\nglobal_load_dwordx2 {vr(V+6,2)}, v4, s[{P_IDX}:{P_IDX+1}] offset:16")
    e("s_branch L_lo")
    e("L_hi0:")
    e(f"v_lshrrev_b32 v252, 5, v{vL}\nv_bfe_u32 v5, v{vL}, 3, 2\ns_lshl_b32 s{sT1}, s2, 8\nv_lshl_add_u32 v5, v5, 6, s{sT1}\nv_lshl_add_u32 v5, v252, 5, v5\nv_min_u32 v5, {64000-32}, v5")
    e(f"v_and_b32 v4, 7, v{vL}\nv_lshl_add_u32 v4, v2, 3, v4\nv_lshlrev_b32 v4, 1, v4\nv_lshl_add_u32 v4, v252, 10, v4\nv_and_b32 v6, 31, v{vL}\nv_lshlrev_b32 v7, 1, v6")
    e("s_waitcnt lgkmcnt(0)")
    e(f"global_load_dwordx4 {vr(TP,4)}, v5, s[{P_TAB}:{P_TAB+1}]\nglobal_load_short_d16_hi v{WV}, v4, s[{P_W}:{P_W+1}] offset:-64")
    e(f"global_load_short_d16_hi v{TH+1}, v7, s[{P_B}:{P_B+1}]\nglobal_load_short_d16_hi v{TH+2}, v7, s[{P_H}:{P_H+1}]\nglobal_load_short_d16_hi v{TH}, v7, s[{P_P}:{P_P+1}]")
    e("s_branch L_hi")

def lds_common():
    e("v_mov_b32 v240, -1\nv_mov_b32 v241, -1\nv_mov_b32 v242, -1\nv_mov_b32 v243, -1")
    e(f"v_lshlrev_b32 v3, 4, v0\nds_write_b128 v3, v[240:243] offset:{LIMG}\nds_write_b128 v3, v[240:243] offset:{LIMG+8192}")
    e(f"s_and_b32 s{sU}, s{sJ}, 3")

def sync_add(i):
    e(f"v_mov_b32 v5, {SYNC+4*i}\nv_mov_b32 v6, 1\ns_mov_b64 exec, 1\nds_add_u32 v5, v6\ns_mov_b64 exec, -1")
def sync_wait(i, n, nm, sleep=0):
    e(f"v_mov_b32 v5, {SYNC+4*i}")
    if sleep: e(f"s_branch L_sync_{nm}\nL_sync_{nm}_z:\ns_sleep {sleep}")
    e(f"L_sync_{nm}:\nds_read_b32 v6, v5\ns_waitcnt lgkmcnt(0)\nv_cmp_gt_u32 vcc, {n}, v6\ns_cbranch_vccnz L_sync_{nm}{'_z' if sleep else ''}")

def make_loc(KK, C4, full):
    e(f"v_mov_b32 v7, {RS}")
    if full: e(f"v_mov_b32 v6, {NANW}\nv_mov_b32 v4, -1\nds_write_b32 v6, v4")
    for t in range(8):
        if t == 2: e("s_mov_b32 exec_lo, 0x77777777\ns_mov_b32 exec_hi, 0x77777777")
        if full:
            e(f"v_and_b32 v4, 30, v{KK+t}\nv_lshlrev_b32 v5, 3, v{C4+t}\nv_add_lshl_u32 v4, v4, v5, 1\nv_cmp_le_u32 vcc, 48, v{KK+t}")
            e(f"v_lshrrev_b32 v5, 5, v{KK+t}\nv_lshlrev_b32 v5, 14, v5\nv_add3_u32 v4, v4, v5, v7\nv_cndmask_b32 v{LOC+t}, v4, v6, vcc")
        else:
            e(f"v_lshl_add_u32 v4, v{C4+t}, 3, v{KK+t}\nv_lshl_add_u32 v{LOC+t}, v4, 1, v7")
    e("s_mov_b64 exec, -1")

def lookup_consts():
    e(f"v_and_b32 v4, 15, v{vL}\nv_bfe_u32 v5, v{vL}, 4, 1\nv_lshrrev_b32 v{cBIT}, 5, v{vL}")
    e(f"s_mul_i32 s{sG+1}, s{sU}, {FLS}\ns_add_u32 s{sG+1}, s{sG+1}, {FL}\ns_lshl_b32 s{sG}, s{sU}, 18\ns_lshl_b32 s{sG+2}, s{sU}, 13\ns_add_u32 s{sG+2}, s{sG+2}, {RIM}")
    e(f"v_and_b32 v{cFL}, 31, v{vL}\nv_lshl_add_u32 v{cFL}, v{cFL}, 2, s{sG+1}")
    e(f"v_lshrrev_b32 v7, 4, v{vL}\nv_lshl_add_u32 v{cDR}, v7, 5, v4\nv_lshl_add_u32 v{cDR}, v{cDR}, 2, s{sG+1}")
    e(f"v_add_u32 v{cA}, -1, v{cBIT}\nv_and_b32 v{cA}, 0xffff0000, v{cA}")
    e(f"v_mul_u32_u24 v{cOFF}, 12, v{cBIT}\nv_mul_i32_i24 v{cWR}, -52, v{cBIT}\nv_mov_b32 v{cMSK}, 0x7ffffffe\nv_mov_b32 v{cAM}, 0x2003fffc")
    e(f"v_and_b32 v6, 1, v4\nv_lshlrev_b32 v6, 4, v6\nv_lshrrev_b32 v6, v6, 1.0")
    e(f"v_bfe_u32 v7, v4, 1, 1\nv_xor_b32 v7, v7, v5\nv_add_u32 v7, -1, v7\nv_and_b32 v6, v6, v7\nv_lshrrev_b32 v7, 2, v4")
    for q in range(4):
        e(f"v_xor_b32 v4, {q}, v7\nv_add_u32 v4, -1, v4\nv_ashrrev_i32 v4, 31, v4\nv_and_b32 v{AS+4*q}, v4, v6")
        for i in range(1, 4): e(f"v_mov_b32 v{AS+4*q+i}, v{AS+4*q}")
    e(f"v_mov_b32 v{BQ+7}, 0\nv_mov_b32 v{BQ+15}, 0")
    e(f"v_and_b32 v4, 3, v{vL}\nv_lshrrev_b32 v5, 2, v{vL}\nv_lshlrev_b32 v{cRD}, 10, v4\nv_lshl_add_u32 v{cRD}, v5, 2, v{cRD}\nv_add_u32 v{cRD}, s{sG+2}, v{cRD}")
    e(f"v_lshlrev_b32 v4, 4, v4\nv_lshl_add_u32 v{cRA}, v5, 14, v4")
    e(f"s_lshl_b32 s{sG+3}, s{sU}, 20\ns_lshl_b32 s{sT0}, s2, 6\ns_add_u32 s{sG+3}, s{sG+3}, s{sT0}")

def res_tags(lane_expr, cR=cR):
    e(f"s_and_b32 s{sT0}, s{sTAG}, 255\ns_xor_b32 s{sT1}, s{sTAG}, 1\ns_and_b32 s{sT1}, s{sT1}, 3\ns_lshl_b32 s{sT1}, s{sT1}, 8\ns_or_b32 s{sT0}, s{sT0}, s{sT1}")
    e(f"s_lshr_b32 s{sT1}, s{sTAG}, 8\ns_lshl_b32 s{sT1}, s{sT1}, 10\ns_or_b32 s{sT0}, s{sT0}, s{sT1}")
    e(lane_expr)
    e(f"v_lshlrev_b32 v4, 3, v4\nv_lshrrev_b32 v4, v4, s{sT0}")
    for j in range(4): e(f"v_bfe_u32 v5, v4, {2*j}, 2\nv_alignbit_b32 v{cR+j}, v5, v5, 1")

def pos():
    c("exchange position: workgroups with equal id mod 8 (usually one die) become neighbours; speed only")
    e(f"s_and_b32 s{sPOS}, s2, 6\ns_lshl_b32 s{sPOS}, s{sPOS}, 5\ns_lshr_b32 s{sT0}, s2, 3\ns_lshl_b32 s{sT0}, s{sT0}, 1\ns_or_b32 s{sPOS}, s{sPOS}, s{sT0}\ns_and_b32 s{sT0}, s2, 1\ns_or_b32 s{sPOS}, s{sPOS}, s{sT0}")

def late_consts():
    lookup_consts()
    e(f"s_lshl_b32 s{sCNT}, s{sU}, 12\nv_lshrrev_b32 v4, 4, v{vL}\nv_xor_b32 v4, v4, v{vL}\nv_and_b32 v4, 3, v4\nv_and_b32 v5, 60, v{vL}\nv_or_b32 v4, v4, v5\nv_lshl_add_u32 v{WA}, v4, 4, s{sCNT}")
    e(f"v_lshrrev_b32 v4, 2, v{vL}\nv_lshl_add_u32 v5, v{vL}, 6, s{sCNT}")
    for g in range(4): e(f"v_xor_b32 v6, {g}, v4\nv_and_b32 v6, 3, v6\nv_lshl_add_u32 v{WA+1+g}, v6, 4, v5")
    e(f"v_lshl_add_u32 v4, v{vL}, 4, s{sG+1}")
    for i in range(8): e(f"ds_write_b128 v4, v[240:243] offset:{1024*i}")
    res_tags("v_and_b32 v4, 3, v0")

def route():
    V = 16; KK = 24; C4 = 32; RW = 40; EB = 44; T = 52
    TP = 64; TU = 72; WR = 88; WV = 104; MU = 120; PP = 128
    c('================ lo waves (0-3): route ================')
    e("L_lo:\ns_setprio 2")
    lds_common()
    e(f"v_mov_b32 v4, 0\nv_lshlrev_b32 v5, 2, v0\nds_write_b32 v5, v4 offset:{CNT}\nv_and_b32 v5, 12, v5\nds_write_b32 v5, v4\nds_write_b32 v5, v4 offset:{NW}")
    k.srd(S_IDX, P_IDX, 16384 * 104)
    e(f"v_lshlrev_b32 v{EB}, 2, v{T+1}\nv_mul_u32_u24 v4, 13, v{T+3}\nv_sub_u32 v4, v{EB}, v4")
    for t in range(1, 4): e(f"v_add_u32 v{EB+2*t}, {t}, v4")
    e("s_waitcnt lgkmcnt(0)")
    e(f"s_load_dword s{sTAG}, s[{P_WS}:{P_WS+1}], {EPOCH:#x}")
    e(f"s_load_dwordx16 s[{sH}:{sH+15}], s[{P_H}:{P_H+1}], 0")
    e(f"s_load_dwordx2 s[{P_OUT}:{P_OUT+1}], s[0:1], 64")
    e("s_barrier")
    pos()
    k.srd(S_TABL, P_TAB, 64000)
    k.srd(S_W, P_W, 2048)
    e(f"v_lshrrev_b32 v130, 5, v{vL}\nv_bfe_u32 v131, v{vL}, 3, 2\nv_lshlrev_b32 v131, 6, v131\nv_lshl_add_u32 v131, v130, 5, v131")
    e(f"v_and_b32 v133, 31, v{vL}\nv_lshlrev_b32 v132, 6, v133\nv_lshlrev_b32 v133, 1, v133")
    k.srd(S_ROW, P_WS, 0x100000, ROW0)
    k.srd(S_LIST, P_WS, 250 * 16384, L0)
    k.srd(S_RES, P_WS, 0x800000, R0)
    e(f"v_lshlrev_b32 v{T+3}, 8, v{T}")
    for t in range(4):
        e(f"v_add_u32 v4, 6, v{EB+2*t}\nv_lshl_or_b32 v{EB+2*t+1}, v{EB+2*t}, 4, v{T+3}")
        e(f"v_lshrrev_b32 v4, 4, v4\nv_lshl_or_b32 v{EB+2*t+1}, v4, 1, v{EB+2*t+1}\nv_or_b32 v{EB+2*t}, 1, v{EB+2*t+1}")
    for t in range(8): e(f"v_mov_b32 v{LOC+t}, 0\nv_mov_b32 v{KK+t}, 0")
    e(f"v_mov_b32 v2, 2\nv_mov_b32 v7, 0x100010")
    e(f"v_and_b32 v4, 3, v0\nv_lshlrev_b32 v{T+4}, 14, v{T}\nv_lshl_add_u32 v{T+4}, v4, 4, v{T+4}")
    e(f"v_add_u32 v{T+5}, 1, v4\nv_lshrrev_b32 v{T+5}, 2, v{T+5}\nv_sub_u32 v{T+5}, 0, v{T+5}")
    e(f"s_lshl_b32 s{sT0}, s{sPOS}, 12\ns_waitcnt vmcnt(0)")
    k.stamp(1)
    c('row of the sample: 16 dwords of two u16 table offsets (id+1)*16; 13 field pairs + the first three again')
    for t in range(4): e(f"v_lshl_or_b32 v{RW+t}, v{V+2*t+1}, 16, v{V+2*t}\nv_lshl_add_u32 v{RW+t}, v{RW+t}, 4, v7")
    e(f"buffer_store_dwordx4 {vr(RW,4)}, v3, {sr(S_ROW)}, s{sT0} offen{SC}")
    e(f"s_lshl_b32 s{sT1}, s2, 8")
    for x in range(2): e(f"buffer_load_dwordx4 {vr(TP+4*x,4)}, v131, {sr(S_TABL)}, s{sT1} offen offset:{16*x}")
    for t in range(4): e(f"buffer_load_dwordx4 {vr(WR+4*t,4)}, v132, {sr(S_W)}, 0 offen offset:{16*t}")
    e(f"global_load_short_d16_hi v{PP}, v133, s[{P_P}:{P_P+1}]")
    c('rank of every occurrence inside its bucket (bucket = id>>2), entry = sample<<8 | pair<<4 | (id&3)<<2 | wrap<<1 | first')
    for t in range(8):
        if t == 2: e("s_mov_b32 exec_lo, 0x77777777\ns_mov_b32 exec_hi, 0x77777777")
        e(f"v_and_b32 v{C4+t}, -4, v{V+t}\nds_add_rtn_u32 v{KK+t}, v{C4+t}, v2 offset:{CNT}")
    e("s_mov_b64 exec, -1")
    for t in range(8): e(f"v_lshlrev_b32 v{V+t}, 2, v{V+t}\nv_and_or_b32 v{V+t}, v{V+t}, 12, v{EB+t}")
    e("s_waitcnt lgkmcnt(0)")
    for t in range(8):
        if t == 2: e("s_mov_b32 exec_lo, 0x77777777\ns_mov_b32 exec_hi, 0x77777777")
        e(f"v_min_u32 v4, 54, v{KK+t}\nv_lshl_add_u32 v4, v{C4+t}, 4, v4\nds_write_b16 v4, v{V+t} offset:{LIMG}")
    e("s_mov_b64 exec, -1")
    e(f"s_lshl_b32 s{sT0}, s{sPOS}, 6")
    e(f"s_add_u32 s{sTAG}, s{sTAG}, 1")
    k.srd(S_OUT, P_OUT, 32768)
    k.stamp(2)
    e(f"v_mov_b32 v7, s{sTAG}\ns_waitcnt vmcnt(7) lgkmcnt(0)")
    sync_add(0)
    sync_wait(0, 4, 'lo')
    k.stamp(3)
    c('all rows of this workgroup are in memory: waves 0,1 publish the 250 list cells (64 B: entries, count, epoch tag)\nwaves 2,3 build the operand images of the linear term (W h / 2) and of the value (p)')
    PR = lambda h: 146 + 4 * h if h < 5 else 202 + 4 * (h - 5)
    e(f"s_cmp_ge_u32 s{sU}, 2\ns_cbranch_scc1 L_nopub\nv_and_b32 v4, -4, v0")
    for h in range(7): e(f"ds_read_b128 {vr(PR(h),4)}, v3 offset:{LIMG+2048*h}\nds_read_b32 v{216+h}, v4 offset:{CNT+128*h}")
    for h in range(8):
        e(f"s_waitcnt lgkmcnt({12 if h==0 else 14-2*h})")
        if h == 0: e(f"ds_read_b128 {vr(PR(7),4)}, v3 offset:{LIMG+2048*7}\nds_read_b32 v223, v4 offset:{CNT+128*7}")
        e(f"v_bfi_b32 v{PR(h)+3}, v{T+5}, v7, v{PR(h)+3}\nv_bfi_b32 v{PR(h)+2}, v{T+5}, v{216+h}, v{PR(h)+2}")
        e(f"buffer_store_dwordx4 {vr(PR(h),4)}, v{T+4}, {sr(S_LIST)}, s{sT0} offen{SC}")
        if h < 7: e(f"s_add_u32 s{sT0}, s{sT0}, 0x80000")
    e("s_waitcnt vmcnt(8)\ns_branch L_noa5\nL_nopub:")
    e(f"s_and_b32 s{sT1}, s{sU}, 1\ns_mul_i32 s{sT0}, s{sT1}, 384\nv_lshl_add_u32 v134, v{vL}, 2, s{sT0}\nv_mov_b32 v6, 0\nv_lshl_add_u32 v4, v133, 1, s{sT0}\nds_write_b32 v4, v6 offset:{GP+256}")
    e(f"s_lshl_b32 s{sNT}, s{sT1}, 2\nv_and_b32 v4, 7, v{vL}\nv_subrev_u32 v4, s{sNT}, v4\nv_min_u32 v4, 2, v4\nv_lshlrev_b32 v4, 7, v4\nv_lshl_add_u32 v4, v130, 6, v4\nv_add_u32 v132, s{sT0}, v4")
    e(f"s_lshl_b32 s{sT1}, s{sT1}, 11\nv_lshl_add_u32 v131, v{vL}, 4, s{sT1}\nv_cmp_gt_u32 vcc, 32, v{vL}\ns_waitcnt vmcnt(0)")
    for t in range(16): e(f"v_dot2_f32_bf16 v6, v{WR+t}, s{sH+t}, v6")
    for t in range(8): e(f"v_lshlrev_b32 v{TU+2*t}, 16, v{TP+t}\nv_and_b32 v{TU+2*t+1}, 0xffff0000, v{TP+t}")
    e(f"v_mul_f32 v6, {LOG2E_HALF:#x}, v6\nv_cndmask_b32 v6, v{PP}, v6, vcc\nds_write_b32 v134, v6 offset:{GP}\ns_waitcnt lgkmcnt(0)")
    for t in range(4): e(f"ds_read_b128 {vr(WV+4*t,4)}, v132 offset:{GP+16*t}")
    e("s_waitcnt lgkmcnt(0)")
    for t in range(16): e(f"v_mul_f32 v{WV+t}, v{WV+t}, v{TU+t}")
    for t in range(8): e(f"v_cvt_pk_bf16_f32 v{MU+t}, v{WV+2*t}, v{WV+2*t+1}")
    e(f"ds_write_b128 v131, {vr(MU,4)} offset:{AIMG+8192}\nds_write_b128 v131, {vr(MU+4,4)} offset:{AIMG+8192+1024}\ns_waitcnt lgkmcnt(0)")
    sync_add(2)
    e("L_noa5:")
    k.stamp(4)
    c("where the sums of this lane's occurrences will be found")
    make_loc(KK, C4, False)
    e(f"v_max3_u32 v7, v{KK}, v{KK+1}, v{KK+2}\nv_max3_u32 v7, v7, v{KK+3}, v{KK+4}\nv_max3_u32 v7, v7, v{KK+5}, v{KK+6}\nv_max_u32 v7, v7, v{KK+7}")
    e(f"v_cmp_le_u32 vcc, 32, v7\ns_cbranch_vccnz L_mark\nL_mark_ret:")
    with rare():
        e("L_mark:"); make_loc(KK, C4, True); sync_add(4); e("s_branch L_mark_ret")

def decode(ns):
    for i, n in enumerate(ns): e(f"v_lshrrev_b32 v{TQ+i}, 2, v{RM+n}\nv_bfe_i32 v{TQ+4+i}, v{RM+n}, v{cBIT}, 1")
    for i, n in enumerate(ns): e(f"v_and_b32 v{TQ+i}, v{TQ+i}, v{cAM}\nv_and_b32 v{TQ+8+i}, v{TQ+4+i}, v{cWR}")
    for i, n in enumerate(ns): e(f"v_add3_u32 v{TQ+i}, v{TQ+i}, v{cOFF}, v{TQ+8+i}\nv_and_b32 v{TQ+4+i}, v{TQ+4+i}, v{cA}")
    for i, n in enumerate(ns):
        e(f"buffer_load_dwordx4 {vr(G+4*n,4)}, v{TQ+i}, {sr(S_ROW)}, s{sG} offen{SC}\nv_and_or_b32 v{RM+n}, v{RM+n}, 12, v{TQ+4+i}")
def addrs(n, buf):
    g = G + 4 * n; r = RM + n
    e(f"v_and_b32 v{g}, v{g}, v{r}")
    for t, (d, dw, hi) in enumerate([(2, 1, 0), (g + 1, 1, 1), (3, 2, 0), (g + 2, 2, 1), (4, 3, 0), (g + 3, 3, 1), (g, 0, 1)]):
        e(f"v_add_u32_sdwa v{d}, v{r}, v{g+dw} dst_sel:DWORD dst_unused:UNUSED_PAD src0_sel:WORD_0 src1_sel:WORD_{hi}")
        e(f"ds_read_b32 v{BQ+8*buf+t}, v{d}")
def mf(n, buf):
    a = AC + 4 * (n // 4); q = n & 3
    e(f"v_mfma_f32_16x16x32_bf16 {vr(a,4)}, {vr(AS+4*q,4)}, {vr(BQ+8*buf,4)}, {'0' if q==0 else vr(a,4)}")
    e(f"v_mfma_f32_16x16x32_bf16 {vr(a,4)}, {vr(AS+4*q,4)}, {vr(BQ+8*buf+4,4)}, {vr(a,4)}")
def dreads(addr):
    for q in range(4): e(f"ds_read2_b32 {vr(DX+2*q,2)}, v{addr+q//2} offset0:{128*(q%2)} offset1:{128*(q%2)+16}")
def dests():
    for q in range(8): e(f"v_lshrrev_b32 v{DX+q}, 12, v{DX+q}")
    for q in range(8): e(f"v_and_or_b32 v{DX+q}, v{DX+q}, v5, v6")
def res_stores(lvl, s0):
    T = G + 16 * lvl
    e(f"v_add_u32 v2, 64, v{cRD}\nv_add_u32 v3, 128, v{cRD}\nv_add_u32 v4, 192, v{cRD}\ns_waitcnt lgkmcnt(6)")
    for i in range(4):
        for x in range(2): e(f"ds_read2st64_b32 {vr(T+4*i+2*x,2)}, v{cRD if i==0 else 1+i} offset0:{16*lvl+2*x} offset1:{16*lvl+2*x+1}")
    for i in range(4):
        e(f"s_waitcnt lgkmcnt({6-2*i})")
        for j in range(4): e(f"v_and_or_b32 v{T+4*i+j}, v{T+4*i+j}, v{cMSK}, v{cR+j}")
        e(f"buffer_store_dwordx4 {vr(T+4*i,4)}, v{cRA}, {sr(S_RES)}, s{s0} offen{SC}")
        if i < 3: e(f"s_add_u32 s{s0}, s{s0}, 0x40000")

def lo_lookup():
    POLL = 16; NQ = 3
    e("s_cmp_ge_u32 s2, 250\ns_cbranch_scc1 L_nobucket0")
    with rare(): e("L_nobucket0:\ns_waitcnt lgkmcnt(0)\ns_branch L_nobucket")
    c('================ lo waves: lookups for bucket = workgroup id ================')
    e("s_setprio 0"); late_consts(); e("s_setprio 2")
    e(f"v_lshlrev_b32 v3, 4, v{vL}\ns_lshl_b32 s{sT0}, s2, 14\ns_add_u32 s{sT0}, s{sT0}, s{sCNT}")
    e(f"s_mov_b32 s{sNT}, 0\ns_mov_b32 s{sEX}, 0x88888888\ns_mov_b32 s{sEX+1}, 0x88888888")
    CW, CN1, CD, CP = DX + 8, DX + 9, DX + 10, DX + 11
    RA2 = DX + 12
    e(f"v_lshlrev_b32 v{CW}, 14, v{vL}\nv_mov_b32 v{CD}, {DUMP}\nv_lshl_add_u32 v{CP}, v{vL}, 2, s{sG+1}")
    e(f"s_and_b32 s{sT1}, s{sU}, 1\ns_lshl_b32 s{sT1}, s{sT1}, 2\ns_add_u32 s{sT1}, s{sT1}, {NW}\nv_mov_b32 v2, s{sT1}")
    k.stamp(5)
    c('waves 2,3 fetch the incoming cells (their own stores do not stand in front of the loads); waves 0,1 wait for the word in LDS')
    e(f"s_cmp_ge_u32 s{sU}, 2\ns_cbranch_scc1 L_poller")
    e("L_wait_lists:\ns_sleep 1\nds_read_b32 v4, v2\ns_waitcnt lgkmcnt(0)\nv_cmp_eq_u32 vcc, 0, v4\ns_cbranch_vccnz L_wait_lists")
    e(f"v_cmp_eq_u32 vcc, 1, v4\ns_cbranch_vccnz L_poll1_ok\ns_branch L_gaveup")
    e(f"L_poller:\ns_sub_u32 s{sT1}, s{sT0}, 0x2000\nv_add_u32 v7, {(-0x2000)&0xffffffff:#x}, v{WA}")
    c('back-off: reading a line before it has been written makes that write slow, so the first look waits a little')
    if DL1: e(f"s_sleep {DL1}")
    e("L_poll1:")
    for h in range(8): e(f"buffer_load_dwordx4 {vr(POLL+4*h,4)}, v3, {sr(S_LIST)}, s{sT1 if h<4 else sT0} offen offset:{1024*(h%4)}{SC}")
    for h in range(8):
        e(f"s_waitcnt vmcnt({7-h})")
        if h == 0: e(f"v_xor_b32 v4, s{sTAG}, v{POLL+3}")
        else: e(f"v_xor_b32 v5, s{sTAG}, v{POLL+4*h+3}\nv_or_b32 v4, v4, v5")
        e(f"ds_write_b128 v{7 if h<4 else WA}, {vr(POLL+4*h,4)} offset:{WL+1024*(h%4)}")
    e(f"v_cmp_ne_u32 vcc, 0, v4\ns_and_b64 vcc, vcc, s[{sEX}:{sEX+1}]\nv_mov_b32 v5, 1\ns_waitcnt lgkmcnt(0)")
    e("s_cbranch_vccnz L_poll1_again\nds_write_b32 v2, v5\nL_poll1_ok:")
    with rare():
        e("L_poll1_again:")
        e(f"s_add_u32 s{sNT}, s{sNT}, 1\ns_cmp_lt_u32 s{sNT}, {LIMIT}\ns_cbranch_scc1 L_poll1")
        for i in range(4): e(f"v_mov_b32 v{POLL+i}, 0")
        for h in range(8): e(f"ds_write_b128 v{7 if h<4 else WA}, {vr(POLL,4)} offset:{WL+1024*(h%4)}")
        e("v_mov_b32 v5, 2\ns_waitcnt lgkmcnt(0)\nds_write_b32 v2, v5\nL_gaveup:")
        for i in range(4): e(f"v_or_b32 v{cR+i}, 0x7fc00000, v{cR+i}")
        e("s_branch L_poll1_ok")
    k.stamp(6)
    c('one cell per lane: the first entries of every cell form dense tiles that are fetched at once,\nthe others are packed behind them (count, prefix sum, flat list written from the highest slot down)')
    ND = opt('nd', 2); P1 = 2 * ND; P2 = opt('p2', 6)
    e(f"ds_read_b128 {vr(EN,4)}, v{WA+1} offset:{WL}\nds_read_b128 {vr(EN+12,4)}, v{WA+4} offset:{WL}")
    for g in (1, 2): e(f"ds_read_b128 {vr(EN+4*g,4)}, v{WA+1+g} offset:{WL}")
    e("s_waitcnt lgkmcnt(3)")
    def word(j, d, w): e(f"v_or_b32_sdwa v{d}, v{w}, sext(v{EN+j//2}) dst_sel:DWORD dst_unused:UNUSED_PAD src0_sel:DWORD src1_sel:WORD_{j&1}")
    for j in range(ND):
        if j: e(f"v_add_u32 v5, {j<<20:#x}, v{CW}")
        word(j, 6 + (j & 1), 5 if j else CW); e(f"ds_write_b32 v{CP}, v{6+(j&1)} offset:{256*j}")
    for n in range(P1): e(f"ds_read_b32 v{RM+n}, v{cFL} offset:{128*n}")
    e(f"s_waitcnt lgkmcnt({P1+ND+2})\nv_lshrrev_b32 v2, 1, v{EN+14}\nv_min_u32 v2, 24, v2\nv_sub_u32 v2, v2, {ND} clamp\nv_mov_b32 v3, v2\ns_nop 1")
    scan = [f"v_add_u32_dpp v3, v3, v3 {m} row_mask:0xf bank_mask:0xf" for m in ("row_shr:1", "row_shr:2", "row_shr:4", "row_shr:8")]
    scan += ["v_add_u32_dpp v3, v3, v3 row_bcast:15 row_mask:0xa bank_mask:0xf", "v_add_u32_dpp v3, v3, v3 row_bcast:31 row_mask:0xc bank_mask:0xf"]
    e(scan[0]); e(f"s_waitcnt lgkmcnt({max(P1-4,0)})")
    n0 = len(k.L); decode(list(range(min(4, P1))))
    if P1 > 4: e("s_waitcnt lgkmcnt(0)"); decode(list(range(4, P1)))
    body = k.L[n0:]; del k.L[n0:]
    for i, x in enumerate(body):
        k.L.append(x)
        if i % 3 == 2 and len(scan) > 1: e(scan.pop(1))
    for x in scan[1:]: e("s_nop 1"); e(x)
    e(f"v_cmp_eq_u32 vcc, 0, v2\nv_readlane_b32 s{sNT}, v3, 63\nv_sub_u32 v{CN1}, v3, v2\nv_lshl_add_u32 v3, v{CN1}, 2, s{sG+1}\nv_cndmask_b32 v3, v3, v{CD}, vcc")
    e(f"v_cmp_lt_u32 vcc, {16-ND}, v2\ns_or_b32 s{sBAD}, vcc_lo, vcc_hi\ns_add_u32 s{sNT}, s{sNT}, {64*ND}\ns_waitcnt lgkmcnt(0)\ns_cbranch_vccnz L_fl23")
    e(f"v_cmp_lt_u32 vcc, {14-ND}, v2\nv_add_u32 v5, {15<<20:#x}, v{CW}\ns_cbranch_vccnz L_fl15\nv_add_u32 v5, {13<<20:#x}, v{CW}\ns_branch L_fl13")
    def put(j):
        word(j, 6 + (j & 1), 5)
        if j > ND: e(f"v_add_u32 v5, 0xfff00000, v5")
        e(f"ds_write_b32 v3, v{6+(j&1)} offset:{256*ND+4*(j-ND)}")
    with rare():
        e(f"L_fl23:\nv_add_u32 v5, {23<<20:#x}, v{CW}")
        for j in range(23, 15, -1): put(j)
        e("s_waitcnt lgkmcnt(0)\ns_branch L_fl15")
    for j in range(15, ND - 1, -1):
        if j in (15, 13): e(f"L_fl{j}:")
        put(j)
        if j == 8: e("s_waitcnt lgkmcnt(4)")
    e(f"v_add_u32 v7, 1024, v{cDR}\nv_mov_b32 v6, v{cDR}\ns_waitcnt lgkmcnt(3)")
    for n in range(P1, 16): e(f"ds_read_b32 v{RM+n}, v{cFL} offset:{128*n}")
    c("a cell group whose entries all lie in the first 256 / 384 list places is stored as soon as those sums exist")
    e(f"v_readlane_b32 s{sT0}, v{CN1}, 16\nv_readlane_b32 s{sT1}, v{CN1}, 32\nv_readlane_b32 s{sT2}, v{CN1}, 48\nv_add_u32 v{RA2}, 64, v{cRD}\nv_add_u32 v{RA2+1}, 128, v{cRD}\nv_add_u32 v{RA2+2}, 192, v{cRD}")
    e(f"s_cmp_le_u32 s{sT0}, {256-64*ND}\ns_cselect_b32 s3, 1, 0\ns_cmp_le_u32 s{sT1}, {384-64*ND}\ns_cselect_b32 s{sT0}, 2, 0\ns_or_b32 s3, s3, s{sT0}\ns_cmp_le_u32 s{sT2}, {384-64*ND}\ns_cselect_b32 s{sT0}, 4, 0\ns_or_b32 s3, s3, s{sT0}\ns_mov_b32 s{sCNT}, 0")
    e("L_round:")
    e(f"s_add_u32 s{sT2}, s{sNT}, 31\ns_lshr_b32 s{sT2}, s{sT2}, 5\ns_waitcnt lgkmcnt({16-P2})")
    for x in range(P1, P2, 4): decode(list(range(x, min(x + 4, P2))))
    dreads(6)
    k.stamp(7)
    c('the table is complete')
    sync_wait(5, 4, 'tab', 1)
    k.stamp(8)
    e(f"v_mov_b32 v5, 0x1ffc\nv_mov_b32 v6, s{sG+2}")
    dests()
    c('tile = 32 occurrences x 2 lanes x 7 lookups; the sums over the lookups are formed by MFMA with 0/1 selectors')
    R = 16 - P2
    def scat(q):
        a_ = AC + 4 * q
        e(f"v_cvt_pk_bf16_f32 v{a_}, v{a_+1}, v{a_}\nv_cvt_pk_bf16_f32 v{a_+2}, v{a_+3}, v{a_+2}")
        e(f"ds_write_b32 v{DX+2*q}, v{a_}\nds_write_b32 v{DX+2*q+1}, v{a_+2}")
    def grd(i):
        for x in range(2): e(f"ds_read2st64_b32 {vr(G+4*i+2*x,2)}, v{cRD if i==0 else RA2+i-1} offset0:{2*x} offset1:{2*x+1}")
    def gst(i):
        for j in range(4): e(f"v_and_or_b32 v{G+4*i+j}, v{G+4*i+j}, v{cMSK}, v{cR+j}")
        e(f"s_add_u32 s{sT0}, s{sG+3}, {i*0x40000:#x}\nbuffer_store_dwordx4 {vr(G+4*i,4)}, v{cRA}, {sr(S_RES)}, s{sT0} offen{SC}\ns_bitset1_b32 s{sCNT}, {i}")
    def early(i, nm):
        e(f"s_bitcmp1_b32 s3, {i}\ns_cbranch_scc0 L_e{nm}"); gst(i); e(f"L_e{nm}:")
    for n in range(16):
        e(f"s_waitcnt vmcnt({P2+min(n,R)-1-n})"); addrs(n, n & 1)
        if n: e("s_waitcnt lgkmcnt(7)"); mf(n - 1, (n - 1) & 1)
        if n < R: decode([P2 + n])
        if n == 5: scat(0)
        if n == 9: scat(1); grd(0)
        if n == 10: early(0, 'a')
        if n == 13: scat(2); grd(1); grd(2)
        if n == 14: early(1, 'b'); early(2, 'c')
        if 11 <= n < 15: e(f"s_cmp_le_u32 s{sT2}, {n+1}\ns_cbranch_scc1 L_x{n}")
    e("s_waitcnt lgkmcnt(0)"); mf(15, 1); e("s_nop 6\ns_branch L_tiles_done")
    for n in (11, 12):
        e(f"L_x{n}:\ns_waitcnt lgkmcnt(0)"); mf(n, n & 1); e("s_nop 7"); scat(2); e("s_branch L_tiles_done")
    e("L_x14:\ns_waitcnt lgkmcnt(0)"); mf(14, 0); e("s_nop 6\ns_branch L_tiles_done")
    e("L_x13:\ns_waitcnt lgkmcnt(0)"); mf(13, 1); early(1, 'd'); early(2, 'e'); e("s_nop 3")
    e("L_tiles_done:")
    scat(3)
    e(f"s_cmp_gt_u32 s{sNT}, 512\ns_cbranch_scc1 L_more")
    with rare():
        e(f"L_more:\ns_mov_b32 s3, 0\ns_sub_u32 s{sNT}, s{sNT}, 512\nv_add_u32 v{cFL}, 2048, v{cFL}\nv_add_u32 v{cDR}, 2048, v{cDR}\nv_add_u32 v7, 1024, v{cDR}\nv_mov_b32 v6, v{cDR}")
        e("s_waitcnt vmcnt(0) lgkmcnt(0)")
        for n in range(16):
            e(f"ds_read_b32 v{RM+n}, v{cFL} offset:{128*n}")
            if n == 7: e("s_waitcnt lgkmcnt(0)")
        e("s_waitcnt lgkmcnt(0)")
        for x in range(0, P1, 4): decode(list(range(x, min(x + 4, P1))))
        e("s_branch L_round")
    c('result cells: 16 x (sum w : bf16 | sum w*s : bf16), bit 31 and bit 0 of every dword carry the epoch tag')
    grd(3)
    e(f"s_cmp_lg_u32 s{sCNT}, 7\ns_cbranch_scc1 L_late\nL_late_ret:\ns_waitcnt lgkmcnt(0)")
    with rare():
        e("L_late:")
        for i in range(3): grd(i)
        e("s_waitcnt lgkmcnt(0)")
        for i in range(3):
            e(f"s_bitcmp1_b32 s{sCNT}, {i}\ns_cbranch_scc1 L_l{i}"); gst(i); e(f"L_l{i}:")
        e("s_branch L_late_ret")
    gst(3)
    e(f"s_cmp_lg_u32 s{sBAD}, 0\ns_cbranch_scc1 L_res2\nL_res2_ret:")
    with rare():
        e(f"L_res2:\ns_add_u32 s{sT0}, s{sG+3}, {RLV:#x}"); res_stores(1, sT0); e("s_branch L_res2_ret")
    e("L_nobucket:")
    k.stamp(9)

def hi_lookup():
    e("s_waitcnt lgkmcnt(0)")
    sync_add(5)
    c("================ hi waves: fetch the result cells of this workgroup's samples ================")
    e("L_hi_final:")
    pos()
    e(f"s_add_u32 s{sTAG}, s{sTAG}, 1")
    res_tags("v_and_b32 v4, 3, v0", 96)
    final_poll()
    k.stamp(6)

def final_poll():
    cR = 96
    T = 32; X = 48; Y = 64; CN = 80; YA = 84
    e(f"v_and_b32 v2, 255, v0\nv_lshlrev_b32 v{T}, 4, v2\nv_add_u32 v{T+1}, 0x2000, v{T}\ns_lshl_b32 s{sT0}, s{sPOS}, 14\ns_add_u32 s{sT1}, s{sT0}, 0x1000")
    e(f"v_cmp_gt_u32 vcc, 232, v2\ns_mov_b64 s[{sEX}:{sEX+1}], vcc\ns_mov_b32 s{sNT}, 0")
    sync_wait(0, 8, 'res', 2)
    e(f"ds_read_b32 v6, v5 offset:16\ns_waitcnt lgkmcnt(0)\nv_readfirstlane_b32 s{sRARE}, v6")
    for h in range(4): e(f"v_mov_b32 v{YA+h}, -1")
    e(f"s_cmp_lg_u32 s{sRARE}, 0\ns_cbranch_scc1 L_rare0\nL_rare0_ret:")
    with rare():
        e(f"L_rare0:\nv_and_b32 v4, -4, v2\ns_add_u32 s{sBAD}, s{sT0}, {RLV:#x}\nv_mov_b32 v7, 0x80000000")
        for h in range(4): e(f"ds_read_b32 v{CN+h}, v4 offset:{CNT+256*h}")
        e("s_waitcnt lgkmcnt(0)")
        for h in range(4):
            e(f"v_add_u32 v{CN+h}, -33, v{CN+h}\nv_add_u32 v4, {4096*h}, v{T}\nv_and_or_b32 v{YA+h}, v{CN+h}, v7, v4\nv_ashrrev_i32 v{CN+h}, 31, v{CN+h}")
        e("s_branch L_rare0_ret")
    c('back-off, as above')
    if DL2: e(f"s_sleep {DL2}")
    e("L_poll2:")
    e(f"s_cmp_lg_u32 s{sRARE}, 0\ns_cbranch_scc1 L_rare1\nL_rare1_ret:")
    with rare():
        e("L_rare1:")
        for h in range(4): e(f"buffer_load_dwordx4 {vr(Y+4*h,4)}, v{YA+h}, {sr(S_RES)}, s{sBAD} offen{SC}")
        e("s_branch L_rare1_ret")
    for h in range(4): e(f"buffer_load_dwordx4 {vr(X+4*h,4)}, v{T+h//2}, {sr(S_RES)}, s{sT0 if h%2==0 else sT1} offen{SC}")
    for h in range(4):
        d = T + 2 if h < 3 else T + 3
        e(f"s_waitcnt vmcnt({3-h})")
        for j in range(4):
            if j == 0 and h in (0, 3): e(f"v_xor_b32 v{d}, v{X+4*h}, v{cR}")
            else: e(f"v_bitop3_b32 v{d}, v{d}, v{X+4*h+j}, v{cR+j} bitop3:0xf6")
        e(f"ds_write_b128 v{T}, {vr(X+4*h,4)} offset:{RS+4096*h}")
    e(f"s_cmp_lg_u32 s{sRARE}, 0\ns_cbranch_scc1 L_rare2\nL_rare2_ret:")
    with rare():
        e("L_rare2:")
        for h in range(4):
            for j in range(4):
                if j == 0: e(f"v_xor_b32 v4, v{Y+4*h}, v{cR}")
                else: e(f"v_bitop3_b32 v4, v4, v{Y+4*h+j}, v{cR+j} bitop3:0xf6")
            e(f"v_bitop3_b32 v{T+2}, v{T+2}, v4, v{CN+h} bitop3:0xf4")
            e(f"ds_write_b128 v{T}, {vr(Y+4*h,4)} offset:{RS+16384+4096*h}")
        e("s_branch L_rare2_ret")
    e(f"v_and_b32 v{T+3}, 0x80000001, v{T+3}\nv_and_b32 v{T+2}, 0x80000001, v{T+2}")
    e(f"v_cmp_ne_u32 vcc, 0, v{T+3}\ns_and_b64 s[{sU}:{sU+1}], vcc, s[{sEX}:{sEX+1}]\nv_cmp_ne_u32 vcc, 0, v{T+2}\ns_or_b64 vcc, vcc, s[{sU}:{sU+1}]")
    e("s_cbranch_vccnz L_poll2_again\nL_poll2_ok:")
    with rare():
        e("L_poll2_again:")
        e(f"s_waitcnt lgkmcnt(0)\ns_add_u32 s{sNT}, s{sNT}, 1\ns_cmp_lt_u32 s{sNT}, {LIMIT}\ns_cbranch_scc1 L_poll2")
        sync_add(3)
        e("s_branch L_poll2_ok")
    k.stamp(10)
    e("s_waitcnt lgkmcnt(0)\ns_barrier")

def final():
    T = 32; X = 48
    c('================ lo waves: combine ================')
    sync_add(0)
    for t in range(8): e(f"v_and_b32 v{T+8+t}, 0xffff, v{LOC+t}")
    e(f"s_lshl_b32 s{sT2}, s2, 7\ns_lshl_b32 s{sBAD}, s{sJ}, 5\ns_add_u32 s{sT2}, s{sT2}, s{sBAD}")
    e(f"v_lshrrev_b32 v3, 2, v{vL}\nv_lshlrev_b32 v3, 1, v3\ns_waitcnt lgkmcnt(0)\ns_barrier")
    k.stamp(10)
    e(f"s_or_b32 s{sCNT}, s2, s{sJ}\ns_cmp_eq_u32 s{sCNT}, 0\ns_cbranch_scc1 L_epoch\nL_epoch_ret:")
    with rare():
        e(f"L_epoch:\ns_mov_b64 exec, 1\nv_mov_b32 v4, {EPOCH:#x}\nv_mov_b32 v5, s{sTAG}\nglobal_store_dword v4, v5, s[{P_WS}:{P_WS+1}]{SC}\ns_mov_b64 exec, -1\ns_branch L_epoch_ret")
    e(f"v_mov_b32 v5, {SYNC+12}\nds_read_b32 v6, v5")
    for t in range(8): e(f"ds_read_b32 v{X+t}, v{T+8+t}")
    for t in range(8):
        e(f"s_waitcnt lgkmcnt({7-t})\nv_and_b32 v{T+t}, 0x7fff0000, v{X+t}\nv_lshlrev_b32 v{X+t}, 16, v{X+t}")
        if t % 2: e(f"v_add_f32 v{T+t-1}, v{T+t-1}, v{T+t}\nv_add_f32 v{X+t-1}, v{X+t-1}, v{X+t}")
        if t % 4 == 3: e(f"v_add_f32 v{T+t-3}, v{T+t-3}, v{T+t-1}\nv_add_f32 v{X+t-3}, v{X+t-3}, v{X+t-1}")
    e(f"v_add_f32 v{T}, v{T}, v{T+4}\nv_add_f32 v{X}, v{X}, v{X+4}\ns_nop 0")
    e(f"v_add_f32_dpp v{T+1}, v{T}, v{T} quad_perm:[1,0,3,2] row_mask:0xf bank_mask:0xf")
    e(f"v_add_f32_dpp v{X+1}, v{X}, v{X} quad_perm:[1,0,3,2] row_mask:0xf bank_mask:0xf")
    e("s_nop 0")
    e(f"v_add_f32_dpp v{T}, v{T+1}, v{T+1} quad_perm:[2,3,0,1] row_mask:0xf bank_mask:0xf")
    e(f"v_add_f32_dpp v{X}, v{X+1}, v{X+1} quad_perm:[2,3,0,1] row_mask:0xf bank_mask:0xf")
    e(f"v_rcp_f32 v{T+1}, v{T}")
    c('the weights were formed against a fixed reference instead of the row maximum: safe iff 2^-80 <= sum < 2^100 and the\nquotient is finite; otherwise (also after an overflow of a cell or a lost hand-off) recompute with the true maximum')
    e(f"v_add_u32 v{T+2}, {(-0x17800000)&0xffffffff:#x}, v{T}\nv_mul_f32 v{X}, v{X}, v{T+1}\nv_cmp_gt_u32 vcc, 0x5a000000, v{T+2}")
    e(f"v_and_b32 v{T+3}, 0x7fffffff, v{X}\ns_mov_b64 s[{sEX}:{sEX+1}], vcc\nv_cmp_gt_u32 vcc, 0x7f800000, v{T+3}\nv_cvt_pk_bf16_f32 v{X}, v{X}, v{X}")
    e(f"s_and_b64 s[{sEX}:{sEX+1}], vcc, s[{sEX}:{sEX+1}]\nv_cmp_eq_u32 vcc, 0, v6")
    e(f"s_and_b64 vcc, vcc, s[{sEX}:{sEX+1}]\ns_cmp_eq_u64 vcc, -1\ns_cbranch_scc0 L_fallback")
    e("s_mov_b32 exec_lo, 0x11111111\ns_mov_b32 exec_hi, 0x11111111")
    e(f"buffer_store_short v{X}, v3, {sr(S_OUT)}, s{sT2} offen")
    e("L_fin:")

def fallback():
    c("================ direct evaluation of this wave's 16 samples, online (true) maximum ================")
    e("L_fallback:")
    c("after a lost hand-off (a workgroup that ran too late used a newer epoch) move the epoch past every tag in use")
    e(f"v_cmp_eq_u32 vcc, 0, v6\ns_cbranch_vccnz L_fb_go\ns_mov_b64 exec, 1\nv_mov_b32 v4, {EPOCH:#x}\nv_mov_b32 v5, s{sTAG}\nglobal_atomic_umax v4, v5, s[{P_WS}:{P_WS+1}]{SC}\ns_mov_b64 exec, -1\nL_fb_go:")
    A0 = 16; A1 = 20; C0 = 24; C1 = 28; AH = 32; AP = 36; EI = 40; EJ = 48; PK = 56; DD = 60; HK = 68; DS = 72; W16 = 80
    N, Q, IB, M, LL, ACc, T = 100, 101, 102, 103, 104, 105, 106
    e(f"v_and_b32 v{N}, 15, v{vL}\nv_lshrrev_b32 v{Q}, 4, v{vL}")
    e(f"v_lshlrev_b32 v{T}, 9, v{Q}\nv_lshl_add_u32 v{T}, v{N}, 1, v{T}")
    for half in range(2):
        for t in range(8): e(f"buffer_load_ushort v{W16+8*half+t}, v{T}, {sr(S_W)}, 0 offen offset:{t*64+half*32}")
    e(f"v_lshlrev_b32 v{T+1}, 3, v{Q}\nv_lshlrev_b32 v{Q}, 4, v{Q}")
    e(f"global_load_dwordx2 {vr(EI,2)}, v{T+1}, s[{P_B}:{P_B+1}]\nglobal_load_dwordx2 {vr(EI+2,2)}, v{T+1}, s[{P_B}:{P_B+1}] offset:32")
    e(f"global_load_dwordx2 {vr(AH,2)}, v{T+1}, s[{P_H}:{P_H+1}]\nglobal_load_dwordx2 {vr(AH+2,2)}, v{T+1}, s[{P_H}:{P_H+1}] offset:32")
    e(f"global_load_dwordx4 {vr(AP,4)}, v{Q}, s[{P_P}:{P_P+1}]")
    e(f"s_lshl_b32 s{sU}, s2, 6\ns_lshl_b32 s{sT1}, s{sJ}, 4\ns_add_u32 s{sU}, s{sU}, s{sT1}\nv_add_u32 v{IB}, s{sU}, v{N}\nv_mul_u32_u24 v{IB}, 104, v{IB}")
    e("s_waitcnt vmcnt(0)")
    for half in range(2):
        for t in range(4): e(f"v_lshl_or_b32 v{A0+4*half+t}, v{W16+8*half+2*t+1}, 16, v{W16+8*half+2*t}")
    for i in range(4): e(f"v_lshlrev_b32 v{C0+2*i}, 16, v{EI+i}\nv_and_b32 v{C0+2*i+1}, 0xffff0000, v{EI+i}")
    e(f"v_mov_b32 v{M}, 0xff800000\nv_mov_b32 v{LL}, 0\nv_mov_b32 v{ACc}, 0")
    e(f"s_mov_b32 s{sU}, 0")
    def getrow(dst, soff):
        e(f"buffer_load_dword v{T}, v{IB}, {sr(S_IDX)}, s{soff} offen\ns_waitcnt vmcnt(0)")
        e(f"v_lshl_add_u32 v{T}, v{T}, 6, v{Q}\nbuffer_load_dwordx4 {vr(dst+4,4)}, v{T}, {sr(S_TABL)}, 0 offen\ns_waitcnt vmcnt(0)")
        for t in range(4): e(f"v_lshlrev_b32 v{dst+2*t}, 16, v{dst+4+t}\nv_and_b32 v{dst+2*t+1}, 0xffff0000, v{dst+4+t}")
    e("L_fb_i:")
    getrow(EI, sU)
    e(f"s_add_u32 s{sCNT}, s{sU}, 4")
    e("L_fb_j:")
    getrow(EJ, sCNT)
    for t in range(8): e(f"v_mul_f32 v{EJ+t}, v{EJ+t}, v{EI+t}")
    for t in range(4): e(f"v_cvt_pk_bf16_f32 v{PK+t}, v{EJ+2*t}, v{EJ+2*t+1}")
    e("s_nop 1")
    e(f"v_mfma_f32_16x16x32_bf16 {vr(DD,4)}, {vr(A0,4)}, {vr(PK,4)}, {vr(C0,4)}")
    e(f"v_mfma_f32_16x16x32_bf16 {vr(DD+4,4)}, {vr(A1,4)}, {vr(PK,4)}, {vr(C1,4)}")
    e(f"v_mfma_f32_16x16x32_bf16 {vr(DS,4)}, {vr(AP,4)}, {vr(PK,4)}, 0")
    e("s_nop 7")
    for t in range(4): e(f"v_cvt_pk_bf16_f32 v{HK+t}, v{DD+2*t}, v{DD+2*t+1}")
    for t in range(4): e(f"v_pk_max_i16 v{HK+t}, v{HK+t}, 0")
    e("s_nop 1")
    e(f"v_mfma_f32_16x16x32_bf16 {vr(DD,4)}, {vr(AH,4)}, {vr(HK,4)}, 0")
    e("s_nop 7")
    e(f"v_mul_f32 v{DD}, 0x3fb8aa3b, v{DD}\nv_max_f32 v{DD+1}, v{M}, v{DD}\nv_sub_f32 v{DD+2}, v{M}, v{DD+1}\nv_sub_f32 v{DD+3}, v{DD}, v{DD+1}")
    e(f"v_exp_f32 v{DD+2}, v{DD+2}\nv_exp_f32 v{DD+3}, v{DD+3}\nv_mov_b32 v{M}, v{DD+1}")
    e(f"v_fma_f32 v{LL}, v{LL}, v{DD+2}, v{DD+3}\nv_mul_f32 v{ACc}, v{ACc}, v{DD+2}\nv_fma_f32 v{ACc}, v{DD+3}, v{DS}, v{ACc}")
    e(f"s_add_u32 s{sCNT}, s{sCNT}, 4\ns_cmp_lt_u32 s{sCNT}, 104\ns_cbranch_scc1 L_fb_j")
    e(f"s_add_u32 s{sU}, s{sU}, 4\ns_cmp_lt_u32 s{sU}, 100\ns_cbranch_scc1 L_fb_i")
    e(f"v_rcp_f32 v{LL}, v{LL}\nv_lshlrev_b32 v{N}, 1, v{N}\nv_mul_f32 v{ACc}, v{ACc}, v{LL}\nv_cvt_pk_bf16_f32 v{ACc}, v{ACc}, v{ACc}")
    e("s_mov_b64 exec, 0xffff")
    e(f"buffer_store_short v{ACc}, v{N}, {sr(S_OUT)}, s{sT2} offen")
    e("s_branch L_fin")

B_ = 8; A_ = 72; A5 = 104; CB = 120; HQ = 184; D_ = 200; ACC = 232; INIT = 248; TW = 249

NB0 = opt('nb0', 4); NB1 = opt('nb1', 8)

def hi():
    WV = 120; TP = 136; TU = 144; T = 184
    c('================ hi waves (4-7): table rows 4c..4c+3 against all 1000 ids ================')
    e("L_hi:")
    vm = ['s'] * 5
    def vmem(lab, txt): e(txt); vm.append(lab)
    def vneed(lab): return len(vm) - 1 - max(i for i, x in enumerate(vm) if x == lab)
    vmem('s', f"global_load_dwordx4 {vr(TP+4,4)}, v5, s[{P_TAB}:{P_TAB+1}] offset:16")
    for t in range(1, 16): vmem('s', f"global_load_short_d16_hi v{WV+t}, v4, s[{P_W}:{P_W+1}] offset:{t*64-64}")
    c("one line in every 2 MB of the exchange area: its address translation is then ready when the exchange starts")
    e(f"v_and_b32 v2, 7, v{vL}\nv_lshlrev_b32 v2, 21, v2\nv_add_u32 v2, 0x1fff80, v2")
    vmem('x', f"global_load_dword v255, v2, s[{P_WS}:{P_WS+1}]")
    lds_common()
    k.srd(S_TABL, P_TAB, 64000)
    e(f"v_lshlrev_b32 v7, 6, v6\nv_lshl_add_u32 v250, v252, 5, v7\nv_add_u32 v251, 4096, v250")
    e(f"s_waitcnt lgkmcnt(0)\ns_load_dword s{sTAG}, s[{P_WS}:{P_WS+1}], {EPOCH:#x}\ns_barrier")
    e("s_cmp_ge_u32 s2, 250\ns_cbranch_scc1 L_hi_skip")
    e(f"s_lshl_b32 s{sG}, s{sU}, 14\ns_add_u32 s{sG+1}, s{sG}, 0x2000")
    def bload(n):
        b, ks = n // 2, n % 2
        vmem(f"b{b//2}", f"buffer_load_dwordx4 {vr(B_+8*b+4*ks,4)}, v{250+(b//2)%2}, {sr(S_TABL)}, s{sG if b<4 else sG+1} offen offset:{(b%2)*2048+ks*16}")
    for n in range(NB0): bload(n)
    k.srd(S_RES, P_WS, 0x800000, R0)
    with rare():
        e("L_hi_skip:"); k.srd(S_RES, P_WS, 0x800000, R0); e("s_waitcnt lgkmcnt(0)\ns_branch L_hi_final")
    e(f"s_lshl_b32 s{sT0}, s{sU}, 11\nv_lshlrev_b32 v4, 4, v{vL}\nv_add_u32 v5, s{sT0}, v4\nv_cmp_gt_u32 vcc, 32, v{vL}\nv_lshlrev_b32 v7, 2, v{vL}")
    e(f"s_lshl_b32 s{sT0}, s{sU}, 12\nv_add_u32 v{TW}, s{sT0}, v4")
    e(f"s_waitcnt vmcnt({vneed('s')})")
    k.stamp(2)

    c('A operand: rows (table row, hidden unit), value W[d][a] * table[row][d]; one group of 8 hidden units per wave, shared through LDS')
    for t in range(8): e(f"v_lshlrev_b32 v{TU+2*t}, 16, v{TP+t}\nv_and_b32 v{TU+2*t+1}, 0xffff0000, v{TP+t}")
    for t in range(16): e(f"v_mul_f32 v{WV+t}, v{WV+t}, v{TU+t}")
    for t in range(8): e(f"v_cvt_pk_bf16_f32 v{TP+t}, v{WV+2*t}, v{WV+2*t+1}")
    e(f"ds_write_b128 v5, {vr(TP,4)} offset:{AIMG}\nds_write_b128 v5, {vr(TP+4,4)} offset:{AIMG+1024}")
    e(f"v_mul_f32 v{T+2}, {LOG2E_HALF:#x}, v{T+2}\nv_cndmask_b32 v6, v{T+2}, v{T+1}, vcc\nds_write_b32 v7, v6 offset:{BH}")
    for n in range(NB0, NB1): bload(n)
    e("s_waitcnt lgkmcnt(0)")
    sync_add(1)
    sync_wait(1, 4, 'hi')
    e("v_lshlrev_b32 v5, 4, v252")
    k.stamp(3)
    for i in range(2): e(f"ds_read_b128 {vr(A_+4*i,4)}, v4 offset:{AIMG+1024*i}")
    for i in range(4): e(f"ds_read_b128 {vr(CB+4*i,4)}, v5 offset:{BH}")
    for g in range(4): e(f"ds_read_b128 {vr(HQ+4*g,4)}, v5 offset:{BH+128+32*g}")
    for g in range(1, 4): e(f"ds_read_b128 {vr(CB+16*g,4)}, v5 offset:{BH+32*g}")
    e(f"s_waitcnt vmcnt({vneed('b0')}) lgkmcnt(7)"); k.stamp(7)
    later = []
    for g in range(1, 4):
        later += [f"ds_read_b128 {vr(A_+8*g+4*i,4)}, v4 offset:{AIMG+1024*(2*g+i)}" for i in range(2)]
        later += [f"ds_read_b128 {vr(CB+16*g+4*i,4)}, v5 offset:{BH+32*g}" for i in range(1, 4)]
    steps = []
    for bp in range(4): steps += [('r', bp, g, b) for g in range(4) for b in range(2)] + [('x', bp, 0, 0)]
    NS = len(steps)
    def mms(s):
        kind, bp, g, b = steps[s]; d = D_ + 16 * (s % 2)
        if kind == 'r':
            bb = B_ + 8 * (2 * bp + b)
            return [f"v_mfma_f32_32x32x16_bf16 {vr(d,16)}, {vr(A_+8*g,4)}, {vr(bb,4)}, {vr(CB+16*g,16)}",
                    f"v_mfma_f32_32x32x16_bf16 {vr(d,16)}, {vr(A_+8*g+4,4)}, {vr(bb+4,4)}, {vr(d,16)}"]
        return [f"v_mfma_f32_32x32x16_bf16 {vr(d,16)}, {vr(A5+8*b2+4*ks,4)}, {vr(B_+8*(2*bp+b2)+4*ks,4)}, {'0' if b2+ks==0 else vr(d,16)}"
                for b2 in range(2) for ks in range(2)]
    def valu(s):
        kind, bp, g, b = steps[s]; d = D_ + 16 * (s % 2); X = ACC + 8 * (bp % 2); Y = X + 4
        if kind == 'r':
            a = X + 4 * b
            return [f"v_fma_f32 v{a+v}, v{HQ+4*g+r}, |v{d+4*v+r}|, " + (f"-v{INIT}" if g == 0 and r == 0 else f"v{a+v}") for r in range(4) for v in range(4)]
        o = [f"v_permlane32_swap_b32 v{X+v}, v{Y+v}" for v in range(4)]
        o += [f"v_add_f32 v{X+v}, v{X+v}, v{Y+v}" for v in range(4)]
        o += [f"v_add_f32 v{X+v}, v{X+v}, v{d+4*v}" for v in range(4)]
        o += [f"v_exp_f32 v{X+v}, v{X+v}" for v in range(4)]
        o += [f"v_mul_f32 v{Y+v}, v{X+v}, v{d+4*v+1}" for v in range(4)]
        o += [f"v_cvt_pk_bf16_f32 v{X+v}, v{Y+v}, v{X+v}" for v in range(4)]
        o += [f"ds_write_b128 v{TW}, {vr(X,4)} offset:{TAB+16+1024*bp}"]
        return o
    c('relu(x) = (x + |x|)/2: e = sum h/2 |x+b| + linear term; exponent reference = value at zero interaction; entry = (w, w*s) in bf16')
    m = mms(0)
    e(m[0])
    for x in later[:5]: e(x)
    e(m[1])
    e("s_waitcnt lgkmcnt(5)")
    for x in later[5:10]: e(x)
    e(f"v_mul_f32 v{INIT}, v{HQ}, |v{CB}|")
    for g in range(4):
        for r in range(4):
            if g or r: e(f"v_fma_f32 v{INIT}, v{HQ+4*g+r}, |v{CB+16*g+r}|, v{INIT}")
    nb_next = [NB1]
    for s in range(NS):
        v = valu(s); m = mms(s + 1) if s + 1 < NS else []
        if s + 1 < NS:
            kind, bp, g, b = steps[s + 1]
            if bp == 0 and kind == 'r' and b == 0 and g == 1: e("s_waitcnt lgkmcnt(5)"); [e(x) for x in later[10:15]]
            if bp == 0 and kind == 'r' and b == 0 and g == 2: e("s_waitcnt lgkmcnt(5)")
            if bp == 0 and kind == 'r' and b == 0 and g == 3:
                sync_wait(2, 2, 'a5')
                for i in range(4): e(f"ds_read_b128 {vr(A5+4*i,4)}, v4 offset:{AIMG+8192+1024*i}")
            if bp == 0 and kind == 'x': e("s_waitcnt lgkmcnt(0)")
            if kind == 'r' and g == 0 and b == 0 and bp > 0:
                e(f"s_waitcnt vmcnt({vneed(f'b{bp}')})"); k.stamp({1: 4, 2: 8, 3: 10}[bp])
            if bp == 0 and kind == 'r' and b == 0 and g == 3: k.stamp(1)

        for _ in range(2):
            if nb_next[0] < 16: bload(nb_next[0]); nb_next[0] += 1
        if len(m) == 2:
            n = 6 if steps[s][0] == 'x' else 5
            e(m[0]); [e(x) for x in v[:n]]; e(m[1]); [e(x) for x in v[n:]]
        elif len(m) == 4:
            e(m[0]); [e(x) for x in v[:4]]; e(m[1]); [e(x) for x in v[4:8]]; e(m[2]); [e(x) for x in v[8:12]]; e(m[3]); [e(x) for x in v[12:]]
        else:
            e("s_nop 1"); [e(x) for x in v]
    k.stamp(5)
    hi_lookup()

def finish():
    if STAMP:
        e(f"{CLK} s[{sH}:{sH+1}]\ns_waitcnt lgkmcnt(0)\ns_mov_b64 exec, 1")
        e(f"s_lshl_b32 s{sT0}, s2, 3\ns_add_u32 s{sT0}, s{sT0}, s{sJ}\ns_lshl_b32 s{sT0}, s{sT0}, 7\ns_add_u32 s{sT0}, s{sT0}, {STAMP0:#x}")
        e(f"v_mov_b32 v2, s{sT0}")
        for i in range(NST): e(f"v_mov_b32 v3, s{sST+2*i}\nglobal_store_dword v2, v3, s[{P_WS}:{P_WS+1}] offset:{4*i}")
        e(f"v_mov_b32 v3, s{sH}\nglobal_store_dword v2, v3, s[{P_WS}:{P_WS+1}] offset:{4*NST}")
        e(f"v_mov_b32 v3, {NST+1}\nglobal_store_dword v2, v3, s[{P_WS}:{P_WS+1}] offset:124")
    e("s_endpgm")

prologue()
route()
lo_lookup()
final()
finish()
hi()
finish()
e("L_end:\ns_endpgm")
with rare(): fallback()
hazard.check(k.L); hazard.check(k.tail)
src = HEADER + '; Attentional FM as a table lookup.  e(i,j) and s(i,j) = pair . p depend only on the two ids, so with V = 1000 the\n; 5.3 M pair evaluations collapse to a 1000 x 1000 table of (w, w*s), w = exp(e - reference).  Workgroup c < 250 computes the\n; four table rows 4c..4c+3 into LDS (hi waves) and serves every occurrence of those ids; every workgroup also owns 64 samples.\n; Each unordered field pair is owned by one of its two fields (pairs of fields form a cyclic tournament), so one occurrence\n; needs 12 or 13 lookups.  Hand-offs through d_ws, sc1 stores and sc1 loads, 64-byte cells that carry an epoch tag\n; (epoch = word 0 of d_ws + 1, written back at the end):\n;   sample owner -> bucket owner: packed index rows (1 MB) and list cells ; bucket owner -> sample owner: sums per occurrence.\n; Every wait on another workgroup is bounded; whatever is missing or out of the safe range is recomputed directly.\n' + f"; @launch grid=(256,1,1) block=(512,1,1) lds={LDS_BYTES}\n"
src += f'.amdgcn_target "amdgcn-amd-amdhsa--gfx950"\n.text\n.globl {KN}\n.p2align 8\n.type {KN},@function\n{KN}:\n'
src += "\n".join(k.L) + "\n" + "\n".join(k.tail) + "\nL_code_end:\n"
src += '.section .rodata,"a"\n' + kd(KN, 256, 102)
open(sys.argv[1], "w").write(src)
print("lds", LDS_BYTES)
```

```python
import sys
from common import *
import hazard

OPT = set(sys.argv[2].split(',')) if len(sys.argv) > 2 else set()
def opt(name, d):
    for o in OPT:
        if o.startswith(name + '='): return int(o.split('=')[1])
    return d
STAMP = 'stamp' in OPT
CLK = 's_memtime' if 'cyc' in OPT else 's_memrealtime'
DL1, DL2 = opt('dl1', 24), opt('dl2', 18)
OPT.add('lateconst')

EPOCH, L0, ROW0, R0 = 0x0, 0x10000, 0x400000, 0x800000
STAMP0 = 0x1000000
TAB, CNT, BH, GP, AIMG, LIMG, WL = 0, 0x4100, 0x4500, 0x4600, 0x5000, 0x8000, 0xC000
RS = LIMG
NANW = 0x4080
SYNC = CNT + 1000
LIMIT = opt('limit', 0x4000)
RLV = 0x400000
FL = 0x10000; FLS = 8192; RIM = 0x18000; NW = 0x4090; DUMP = 0x4C00
LDS_BYTES = RIM + 4 * 8192
S_IDX, S_TABL, S_W, S_LIST, S_ROW, S_RES, S_OUT = 4, 8, 12, 16, 20, 24, 28
sG = 32
P_IDX, P_TAB, P_W, P_B, P_H, P_P, P_OUT, P_WS = 36, 38, 40, 42, 44, 46, 48, 50
sJ, sRARE, sTAG, sT2, sT0, sT1, sNT, sBAD, sU, sCNT = 52, 53, 54, 55, 56, 57, 58, 59, 60, 61
sEX = 62
sPOS = 36
sH = 64
sST = 80
NST = 11
LOG2E_HALF = 0x3f38aa3b
STEP = 5
vL = 1
SC = " sc1"
KN = NAME + "_kernel"

class K:
    def __init__(s): s.L = []; s.tail = []; s.cur = s.L
    def e(s, x):
        for ln in x.split('\n'):
            ln = ln.strip()
            if ln: s.cur.append(ln if ln.endswith(':') else '    ' + ln)
    def stamp(s, i):
        if STAMP: s.e(f"{CLK} s[{sST+2*i}:{sST+2*i+1}]")
    def srd(s, d, p, n, off=0):
        if off: s.e(f"s_add_u32 s{d}, s{p}, {off:#x}\ns_addc_u32 s{d+1}, s{p+1}, 0")
        else: s.e(f"s_mov_b64 s[{d}:{d+1}], s[{p}:{p+1}]")
        s.e(f"s_mov_b32 s{d+2}, {n:#x}\ns_mov_b32 s{d+3}, 0x00020000")
k = K(); e = k.e
def c(x):
    for ln in x.split('\n'): k.cur.append('    ; ' + ln)
def vr(a, n): return f"v[{a}:{a+n-1}]"
def sr(a): return f"s[{a}:{a+3}]"
class rare:
    def __enter__(s): s.old = k.cur; k.cur = k.tail
    def __exit__(s, *a): k.cur = s.old

LOC = 8
G = 16; RM = 80; EN = 96; TQ = 112; AS = 166; AC = 182; BQ = 230; DX = 202
cA, cOFF, cBIT, cWR, cFL, cMSK = 246, 247, 248, 249, 250, 251
cR = 252
cAM, cDR, cRD, cRA = 198, 199, 200, 201
cRT, cRK, CHK = 124, 125, 126
WA = 140

def prologue():
    V = 16; T = 52; WV = 120; TP = 136; TH = 184
    e("s_cmp_ge_u32 s2, 256\ns_cbranch_scc1 L_end")
    if opt('late', -1) >= 0:
        e(f"s_cmp_lg_u32 s2, {opt('late', -1)}\ns_cbranch_scc1 L_notlate\ns_mov_b32 s3, {opt('latec', 100)}\nL_late_loop:\ns_sleep 100\ns_sub_u32 s3, s3, 1\ns_cmp_lg_u32 s3, 0\ns_cbranch_scc1 L_late_loop\nL_notlate:")
    e(f"s_load_dwordx4 s[{P_IDX}:{P_IDX+3}], s[0:1], 0")
    e(f"s_load_dwordx8 s[{P_W}:{P_W+7}], s[0:1], 32")
    e(f"s_load_dwordx2 s[{P_WS}:{P_WS+1}], s[0:1], 80")
    k.stamp(0)
    c("first touches of memory come first: this kernel's own code (into the L2), then idx (lo) / table rows, W, b, h, p (hi)")
    e(f"s_getpc_b64 s[{sEX}:{sEX+1}]\nv_lshlrev_b32 v4, 6, v0\nv_min_u32 v4, L_code_end-{KN}-64, v4\nv_mov_b32 v5, s{sEX+1}\nv_add_co_u32 v4, vcc, s{sEX}, v4\nv_lshrrev_b32 v2, 6, v0\nv_and_b32 v{vL}, 63, v0\nv_addc_co_u32 v5, vcc, 0, v5, vcc")
    e("global_load_dword v135, v[4:5], off")
    e(f"v_readfirstlane_b32 s{sJ}, v2\nv_cmp_lt_u32 vcc, 255, v0\ns_cbranch_vccnz L_hi0")
    c('lo: lane = (sample, quarter); it loads field pairs 4q..4q+3 (the last quarter: pair 12 and the repeats 0,1,2)')
    e(f"v_lshrrev_b32 v{T}, 2, v0\nv_and_b32 v{T+1}, 3, v0\ns_mul_i32 s{sT1}, s2, 6656\nv_mov_b32 v2, 104\nv_mad_u32_u24 v{T+2}, v{T}, v2, s{sT1}")
    e(f"v_lshl_add_u32 v{T+2}, v{T+1}, 5, v{T+2}\nv_add_u32 v{T+3}, 1, v{T+1}\nv_lshrrev_b32 v{T+3}, 2, v{T+3}\nv_mul_i32_i24 v4, -104, v{T+3}\nv_add3_u32 v4, v{T+2}, v4, 8")
    e("s_waitcnt lgkmcnt(0)")
    e(f"global_load_dwordx2 {vr(V,2)}, v{T+2}, s[{P_IDX}:{P_IDX+1}]\nglobal_load_dwordx4 {vr(V+2,4)}, v4, s[{P_IDX}:{P_IDX+1}]\nglobal_load_dwordx2 {vr(V+6,2)}, v4, s[{P_IDX}:{P_IDX+1}] offset:16")
    e("s_branch L_lo")
    e("L_hi0:")
    e(f"v_lshrrev_b32 v252, 5, v{vL}\nv_bfe_u32 v5, v{vL}, 3, 2\ns_lshl_b32 s{sT1}, s2, 8\nv_lshl_add_u32 v5, v5, 6, s{sT1}\nv_lshl_add_u32 v5, v252, 5, v5\nv_min_u32 v5, {64000-32}, v5")
    e(f"v_and_b32 v4, 7, v{vL}\nv_lshl_add_u32 v4, v2, 3, v4\nv_lshlrev_b32 v4, 1, v4\nv_lshl_add_u32 v4, v252, 10, v4\nv_and_b32 v6, 31, v{vL}\nv_lshlrev_b32 v7, 1, v6")
    e("s_waitcnt lgkmcnt(0)")
    e(f"global_load_dwordx4 {vr(TP,4)}, v5, s[{P_TAB}:{P_TAB+1}]\nglobal_load_short_d16_hi v{WV}, v4, s[{P_W}:{P_W+1}] offset:-64")
    e(f"global_load_short_d16_hi v{TH+1}, v7, s[{P_B}:{P_B+1}]\nglobal_load_short_d16_hi v{TH+2}, v7, s[{P_H}:{P_H+1}]\nglobal_load_short_d16_hi v{TH}, v7, s[{P_P}:{P_P+1}]")
    e("s_branch L_hi")

def lds_common():
    e("v_mov_b32 v240, -1\nv_mov_b32 v241, -1\nv_mov_b32 v242, -1\nv_mov_b32 v243, -1")
    e(f"v_lshlrev_b32 v3, 4, v0\nds_write_b128 v3, v[240:243] offset:{LIMG}\nds_write_b128 v3, v[240:243] offset:{LIMG+8192}")
    e(f"s_and_b32 s{sU}, s{sJ}, 3")

def sync_add(i):
    e(f"v_mov_b32 v5, {SYNC+4*i}\nv_mov_b32 v6, 1\ns_mov_b64 exec, 1\nds_add_u32 v5, v6\ns_mov_b64 exec, -1")
def sync_wait(i, n, nm, sleep=0):
    e(f"v_mov_b32 v5, {SYNC+4*i}")
    if sleep: e(f"s_branch L_sync_{nm}\nL_sync_{nm}_z:\ns_sleep {sleep}")
    e(f"L_sync_{nm}:\nds_read_b32 v6, v5\ns_waitcnt lgkmcnt(0)\nv_cmp_gt_u32 vcc, {n}, v6\ns_cbranch_vccnz L_sync_{nm}{'_z' if sleep else ''}")

def make_loc(KK, C4, full):
    e(f"v_mov_b32 v7, {RS}")
    if full: e(f"v_mov_b32 v6, {NANW}\nv_mov_b32 v4, -1\nds_write_b32 v6, v4")
    for t in range(8):
        if t == 2: e("s_mov_b32 exec_lo, 0x77777777\ns_mov_b32 exec_hi, 0x77777777")
        if full:
            e(f"v_and_b32 v4, 30, v{KK+t}\nv_lshlrev_b32 v5, 3, v{C4+t}\nv_add_lshl_u32 v4, v4, v5, 1\nv_cmp_le_u32 vcc, 48, v{KK+t}")
            e(f"v_lshrrev_b32 v5, 5, v{KK+t}\nv_lshlrev_b32 v5, 14, v5\nv_add3_u32 v4, v4, v5, v7\nv_cndmask_b32 v{LOC+t}, v4, v6, vcc")
        else:
            e(f"v_lshl_add_u32 v4, v{C4+t}, 3, v{KK+t}\nv_lshl_add_u32 v{LOC+t}, v4, 1, v7")
    e("s_mov_b64 exec, -1")

def lookup_consts():
    e(f"v_and_b32 v4, 15, v{vL}\nv_bfe_u32 v5, v{vL}, 4, 1\nv_lshrrev_b32 v{cBIT}, 5, v{vL}")
    e(f"s_mul_i32 s{sG+1}, s{sU}, {FLS}\ns_add_u32 s{sG+1}, s{sG+1}, {FL}\ns_lshl_b32 s{sG}, s{sU}, 18\ns_lshl_b32 s{sG+2}, s{sU}, 13\ns_add_u32 s{sG+2}, s{sG+2}, {RIM}")
    e(f"v_and_b32 v{cFL}, 31, v{vL}\nv_lshl_add_u32 v{cFL}, v{cFL}, 2, s{sG+1}")
    e(f"v_lshrrev_b32 v7, 4, v{vL}\nv_lshl_add_u32 v{cDR}, v7, 5, v4\nv_lshl_add_u32 v{cDR}, v{cDR}, 2, s{sG+1}")
    e(f"v_add_u32 v{cA}, -1, v{cBIT}\nv_and_b32 v{cA}, 0xffff0000, v{cA}")
    e(f"v_mul_u32_u24 v{cOFF}, 12, v{cBIT}\nv_mul_i32_i24 v{cWR}, -52, v{cBIT}\nv_mov_b32 v{cMSK}, 0x7ffffffe\nv_mov_b32 v{cAM}, 0x2003fffc")
    e(f"v_and_b32 v6, 1, v4\nv_lshlrev_b32 v6, 4, v6\nv_lshrrev_b32 v6, v6, 1.0")
    e(f"v_bfe_u32 v7, v4, 1, 1\nv_xor_b32 v7, v7, v5\nv_add_u32 v7, -1, v7\nv_and_b32 v6, v6, v7\nv_lshrrev_b32 v7, 2, v4")
    for q in range(4):
        e(f"v_xor_b32 v4, {q}, v7\nv_add_u32 v4, -1, v4\nv_ashrrev_i32 v4, 31, v4\nv_and_b32 v{AS+4*q}, v4, v6")
        for i in range(1, 4): e(f"v_mov_b32 v{AS+4*q+i}, v{AS+4*q}")
    e(f"v_mov_b32 v{BQ+7}, 0\nv_mov_b32 v{BQ+15}, 0")
    e(f"v_and_b32 v4, 3, v{vL}\nv_lshrrev_b32 v5, 2, v{vL}\nv_lshlrev_b32 v{cRD}, 10, v4\nv_lshl_add_u32 v{cRD}, v5, 2, v{cRD}\nv_add_u32 v{cRD}, s{sG+2}, v{cRD}")
    e(f"v_lshlrev_b32 v4, 4, v4\nv_lshl_add_u32 v{cRA}, v5, 14, v4")
    e(f"s_lshl_b32 s{sG+3}, s{sU}, 20\ns_lshl_b32 s{sT0}, s2, 6\ns_add_u32 s{sG+3}, s{sG+3}, s{sT0}")

def res_tags(lane_expr, cR=cR):
    e(f"s_and_b32 s{sT0}, s{sTAG}, 255\ns_xor_b32 s{sT1}, s{sTAG}, 1\ns_and_b32 s{sT1}, s{sT1}, 3\ns_lshl_b32 s{sT1}, s{sT1}, 8\ns_or_b32 s{sT0}, s{sT0}, s{sT1}")
    e(f"s_lshr_b32 s{sT1}, s{sTAG}, 8\ns_lshl_b32 s{sT1}, s{sT1}, 10\ns_or_b32 s{sT0}, s{sT0}, s{sT1}")
    e(lane_expr)
    e(f"v_lshlrev_b32 v4, 3, v4\nv_lshrrev_b32 v4, v4, s{sT0}")
    for j in range(4): e(f"v_bfe_u32 v5, v4, {2*j}, 2\nv_alignbit_b32 v{cR+j}, v5, v5, 1")

def pos():
    c("exchange position: workgroups with equal id mod 8 (usually one die) become neighbours; speed only")
    e(f"s_and_b32 s{sPOS}, s2, 6\ns_lshl_b32 s{sPOS}, s{sPOS}, 5\ns_lshr_b32 s{sT0}, s2, 3\ns_lshl_b32 s{sT0}, s{sT0}, 1\ns_or_b32 s{sPOS}, s{sPOS}, s{sT0}\ns_and_b32 s{sT0}, s2, 1\ns_or_b32 s{sPOS}, s{sPOS}, s{sT0}")

def late_consts():
    lookup_consts()
    e(f"s_lshl_b32 s{sCNT}, s{sU}, 12\nv_lshrrev_b32 v4, 4, v{vL}\nv_xor_b32 v4, v4, v{vL}\nv_and_b32 v4, 3, v4\nv_and_b32 v5, 60, v{vL}\nv_or_b32 v4, v4, v5\nv_lshl_add_u32 v{WA}, v4, 4, s{sCNT}")
    e(f"v_lshrrev_b32 v4, 2, v{vL}\nv_lshl_add_u32 v5, v{vL}, 6, s{sCNT}")
    for g in range(4): e(f"v_xor_b32 v6, {g}, v4\nv_and_b32 v6, 3, v6\nv_lshl_add_u32 v{WA+1+g}, v6, 4, v5")
    e(f"v_lshl_add_u32 v4, v{vL}, 4, s{sG+1}")
    for i in range(8): e(f"ds_write_b128 v4, v[240:243] offset:{1024*i}")
    res_tags("v_and_b32 v4, 3, v0")
    e(f"s_and_b32 s{sT0}, s{sTAG}, 12\ns_sub_u32 s{sT1}, 16, s{sT0}\nv_mov_b32 v{cRK}, s{sT1}\ns_mul_i32 s{sT0}, s{sT0}, 0x10001\nv_mov_b32 v{cRT}, s{sT0}\nv_mov_b32 v{CHK}, 0")

def route():
    V = 16; KK = 24; C4 = 32; RW = 40; EB = 44; T = 52
    TP = 64; TU = 72; WR = 88; WV = 104; MU = 120; PP = 128
    c('================ lo waves (0-3): route ================')
    e("L_lo:\ns_setprio 2")
    lds_common()
    e(f"v_mov_b32 v4, 0\nv_lshlrev_b32 v5, 2, v0\nds_write_b32 v5, v4 offset:{CNT}\nv_and_b32 v5, 28, v5\nds_write_b32 v5, v4\nds_write_b32 v5, v4 offset:{NW}")
    k.srd(S_IDX, P_IDX, 16384 * 104)
    e(f"v_lshlrev_b32 v{EB}, 2, v{T+1}\nv_mul_u32_u24 v4, 13, v{T+3}\nv_sub_u32 v4, v{EB}, v4")
    for t in range(1, 4): e(f"v_add_u32 v{EB+2*t}, {t}, v4")
    e("s_waitcnt lgkmcnt(0)")
    e(f"s_load_dword s{sTAG}, s[{P_WS}:{P_WS+1}], {EPOCH:#x}")
    e(f"s_load_dwordx16 s[{sH}:{sH+15}], s[{P_H}:{P_H+1}], 0")
    e(f"s_load_dwordx2 s[{P_OUT}:{P_OUT+1}], s[0:1], 64")
    e("s_barrier")
    pos()
    k.srd(S_TABL, P_TAB, 64000)
    k.srd(S_W, P_W, 2048)
    e(f"v_lshrrev_b32 v130, 5, v{vL}\nv_bfe_u32 v131, v{vL}, 3, 2\nv_lshlrev_b32 v131, 6, v131\nv_lshl_add_u32 v131, v130, 5, v131")
    e(f"v_and_b32 v133, 31, v{vL}\nv_lshlrev_b32 v132, 6, v133\nv_lshlrev_b32 v133, 1, v133")
    e(f"s_lshl_b32 s{sT1}, s2, 8")
    for x in range(2): e(f"buffer_load_dwordx4 {vr(TP+4*x,4)}, v131, {sr(S_TABL)}, s{sT1} offen offset:{16*x}")
    for t in range(4): e(f"buffer_load_dwordx4 {vr(WR+4*t,4)}, v132, {sr(S_W)}, 0 offen offset:{16*t}")
    e(f"global_load_short_d16_hi v{PP}, v133, s[{P_P}:{P_P+1}]")
    k.srd(S_ROW, P_WS, 0x100000, ROW0)
    k.srd(S_LIST, P_WS, 250 * 16384, L0)
    k.srd(S_RES, P_WS, 0x800000, R0)
    e(f"v_lshlrev_b32 v{T+3}, 8, v{T}")
    for t in range(4):
        e(f"v_add_u32 v4, 6, v{EB+2*t}\nv_lshl_or_b32 v{EB+2*t+1}, v{EB+2*t}, 4, v{T+3}")
        e(f"v_lshrrev_b32 v4, 4, v4\nv_lshl_or_b32 v{EB+2*t+1}, v4, 1, v{EB+2*t+1}\nv_or_b32 v{EB+2*t}, 1, v{EB+2*t+1}")
    for t in range(8): e(f"v_mov_b32 v{LOC+t}, 0\nv_mov_b32 v{KK+t}, 0")
    e("v_mov_b32 v2, 2")
    e(f"v_and_b32 v4, 3, v0\nv_lshlrev_b32 v{T+4}, 14, v{T}\nv_lshl_add_u32 v{T+4}, v4, 4, v{T+4}")
    e(f"v_add_u32 v{T+5}, 1, v4\nv_lshrrev_b32 v{T+5}, 2, v{T+5}\nv_sub_u32 v{T+5}, 0, v{T+5}")
    e(f"s_lshl_b32 s{sT0}, s{sPOS}, 12\ns_waitcnt lgkmcnt(0)\ns_add_u32 s{sTAG}, s{sTAG}, {STEP:#x}\ns_and_b32 s{sT1}, s{sTAG}, 12\ns_mul_i32 s{sT1}, s{sT1}, 0x10001\ns_or_b32 s{sT1}, s{sT1}, 0x100010\nv_mov_b32 v7, s{sT1}\ns_waitcnt vmcnt(7)")
    k.stamp(1)
    c('row of the sample: 16 dwords of two u16 table offsets (id+1)*16 + two epoch bits (3:2); 13 field pairs + the first three again')
    for t in range(4): e(f"v_lshl_or_b32 v{RW+t}, v{V+2*t+1}, 16, v{V+2*t}\nv_lshl_add_u32 v{RW+t}, v{RW+t}, 4, v7")
    e(f"buffer_store_dwordx4 {vr(RW,4)}, v3, {sr(S_ROW)}, s{sT0} offen{SC}")
    c('rank of every occurrence inside its bucket (bucket = id>>2), entry = sample<<8 | pair<<4 | (id&3)<<2 | wrap<<1 | first')
    for t in range(8):
        if t == 2: e("s_mov_b32 exec_lo, 0x77777777\ns_mov_b32 exec_hi, 0x77777777")
        e(f"v_and_b32 v{C4+t}, -4, v{V+t}\nds_add_rtn_u32 v{KK+t}, v{C4+t}, v2 offset:{CNT}")
    e("s_mov_b64 exec, -1")
    for t in range(8): e(f"v_lshlrev_b32 v{V+t}, 2, v{V+t}\nv_and_or_b32 v{V+t}, v{V+t}, 12, v{EB+t}")
    e("s_waitcnt lgkmcnt(0)")
    for t in range(8):
        if t == 2: e("s_mov_b32 exec_lo, 0x77777777\ns_mov_b32 exec_hi, 0x77777777")
        e(f"v_min_u32 v4, 54, v{KK+t}\nv_lshl_add_u32 v4, v{C4+t}, 4, v4\nds_write_b16 v4, v{V+t} offset:{LIMG}")
    e("s_mov_b64 exec, -1")
    e(f"s_lshl_b32 s{sT0}, s{sPOS}, 6")
    k.srd(S_OUT, P_OUT, 32768)
    k.stamp(2)
    e(f"v_mov_b32 v7, s{sTAG}\ns_waitcnt lgkmcnt(0)")
    sync_add(0)
    sync_wait(0, 4, 'lo')
    k.stamp(3)
    c('all entries are in the list image: waves 0,1 publish the 250 list cells (64 B: entries, count, epoch tag)\nwaves 2,3 build the operand images of the linear term (W h / 2) and of the value (p)')
    PR = lambda h: 146 + 4 * h if h < 5 else 202 + 4 * (h - 5)
    e(f"s_cmp_ge_u32 s{sU}, 2\ns_cbranch_scc1 L_nopub\nv_and_b32 v4, -4, v0")
    for h in range(7): e(f"ds_read_b128 {vr(PR(h),4)}, v3 offset:{LIMG+2048*h}\nds_read_b32 v{216+h}, v4 offset:{CNT+128*h}")
    for h in range(8):
        e(f"s_waitcnt lgkmcnt({12 if h==0 else 14-2*h})")
        if h == 0: e(f"ds_read_b128 {vr(PR(7),4)}, v3 offset:{LIMG+2048*7}\nds_read_b32 v223, v4 offset:{CNT+128*7}")
        e(f"v_bfi_b32 v{PR(h)+3}, v{T+5}, v7, v{PR(h)+3}\nv_bfi_b32 v{PR(h)+2}, v{T+5}, v{216+h}, v{PR(h)+2}")
        e(f"buffer_store_dwordx4 {vr(PR(h),4)}, v{T+4}, {sr(S_LIST)}, s{sT0} offen{SC}")
        if h < 7: e(f"s_add_u32 s{sT0}, s{sT0}, 0x80000")
    e("s_waitcnt vmcnt(9)\ns_branch L_noa5\nL_nopub:")
    if 'a5p0' in OPT: e("s_setprio 0")
    e(f"s_and_b32 s{sT1}, s{sU}, 1\ns_mul_i32 s{sT0}, s{sT1}, 384\nv_lshl_add_u32 v134, v{vL}, 2, s{sT0}\nv_mov_b32 v6, 0\nv_lshl_add_u32 v4, v133, 1, s{sT0}\nds_write_b32 v4, v6 offset:{GP+256}")
    e(f"s_lshl_b32 s{sNT}, s{sT1}, 2\nv_and_b32 v4, 7, v{vL}\nv_subrev_u32 v4, s{sNT}, v4\nv_min_u32 v4, 2, v4\nv_lshlrev_b32 v4, 7, v4\nv_lshl_add_u32 v4, v130, 6, v4\nv_add_u32 v132, s{sT0}, v4")
    e(f"s_lshl_b32 s{sT1}, s{sT1}, 11\nv_lshl_add_u32 v131, v{vL}, 4, s{sT1}\nv_cmp_gt_u32 vcc, 32, v{vL}\ns_waitcnt vmcnt(1)")
    for t in range(16): e(f"v_dot2_f32_bf16 v6, v{WR+t}, s{sH+t}, v6")
    for t in range(8): e(f"v_lshlrev_b32 v{TU+2*t}, 16, v{TP+t}\nv_and_b32 v{TU+2*t+1}, 0xffff0000, v{TP+t}")
    e(f"v_mul_f32 v6, {LOG2E_HALF:#x}, v6\nv_cndmask_b32 v6, v{PP}, v6, vcc\nds_write_b32 v134, v6 offset:{GP}\ns_waitcnt lgkmcnt(0)")
    for t in range(4): e(f"ds_read_b128 {vr(WV+4*t,4)}, v132 offset:{GP+16*t}")
    e("s_waitcnt lgkmcnt(0)")
    for t in range(16): e(f"v_mul_f32 v{WV+t}, v{WV+t}, v{TU+t}")
    for t in range(8): e(f"v_cvt_pk_bf16_f32 v{MU+t}, v{WV+2*t}, v{WV+2*t+1}")
    e(f"ds_write_b128 v131, {vr(MU,4)} offset:{AIMG+8192}\nds_write_b128 v131, {vr(MU+4,4)} offset:{AIMG+8192+1024}\ns_waitcnt lgkmcnt(0)")
    sync_add(2)
    e("L_noa5:")
    k.stamp(4)
    c("where the sums of this lane's occurrences will be found")
    make_loc(KK, C4, False)
    e(f"v_max3_u32 v7, v{KK}, v{KK+1}, v{KK+2}\nv_max3_u32 v7, v7, v{KK+3}, v{KK+4}\nv_max3_u32 v7, v7, v{KK+5}, v{KK+6}\nv_max_u32 v7, v7, v{KK+7}")
    e(f"v_cmp_le_u32 vcc, 32, v7\ns_cbranch_vccnz L_mark\nL_mark_ret:")
    with rare():
        e("L_mark:"); make_loc(KK, C4, True); sync_add(4); e("s_branch L_mark_ret")

def decode(ns):
    for i, n in enumerate(ns): e(f"v_lshrrev_b32 v{TQ+i}, 2, v{RM+n}\nv_bfe_i32 v{TQ+4+i}, v{RM+n}, v{cBIT}, 1")
    for i, n in enumerate(ns): e(f"v_and_b32 v{TQ+i}, v{TQ+i}, v{cAM}\nv_and_b32 v{TQ+8+i}, v{TQ+4+i}, v{cWR}")
    for i, n in enumerate(ns): e(f"v_add3_u32 v{TQ+i}, v{TQ+i}, v{cOFF}, v{TQ+8+i}\nv_and_or_b32 v{TQ+4+i}, v{TQ+4+i}, v{cA}, v{cRK}")
    for i, n in enumerate(ns):
        e(f"buffer_load_dwordx4 {vr(G+4*n,4)}, v{TQ+i}, {sr(S_ROW)}, s{sG} offen{SC}\nv_ashrrev_i32 v{NL(n)}, 31, v{RM+n}\nv_and_b32 v{RM+n}, 12, v{RM+n}")
    for i, n in enumerate(ns): e(f"v_add_u32 v{RM+n}, v{RM+n}, v{TQ+4+i}\nv_bfi_b32 v{NL(n)}, v{NL(n)}, 0, v{cRT}")
def addrs(n, buf):
    g = G + 4 * n; r = RM + n
    e(f"v_and_b32 v{g}, v{g}, v{r}\nv_bitop3_b32 v{CHK}, v{CHK}, v{g+2}, v{NL(n)} bitop3:0xf6")
    for t, (d, dw, hi) in enumerate([(2, 1, 0), (g + 1, 1, 1), (3, 2, 0), (g + 2, 2, 1), (4, 3, 0), (g + 3, 3, 1), (g, 0, 1)]):
        e(f"v_add_u32_sdwa v{d}, v{r}, v{g+dw} dst_sel:DWORD dst_unused:UNUSED_PAD src0_sel:WORD_0 src1_sel:WORD_{hi}")
        e(f"ds_read_b32 v{BQ+8*buf+t}, v{d}")
def NL(n): return 146 + n
def mf(n, buf):
    a = AC + 4 * (n // 4); q = n & 3
    e(f"v_mfma_f32_16x16x32_bf16 {vr(a,4)}, {vr(AS+4*q,4)}, {vr(BQ+8*buf,4)}, {'0' if q==0 else vr(a,4)}")
    e(f"v_mfma_f32_16x16x32_bf16 {vr(a,4)}, {vr(AS+4*q,4)}, {vr(BQ+8*buf+4,4)}, {vr(a,4)}")
def dreads(addr):
    for q in range(4): e(f"ds_read2_b32 {vr(DX+2*q,2)}, v{addr+q//2} offset0:{128*(q%2)} offset1:{128*(q%2)+16}")
def dests():
    for q in range(8): e(f"v_lshrrev_b32 v{DX+q}, 12, v{DX+q}")
    for q in range(8): e(f"v_and_or_b32 v{DX+q}, v{DX+q}, v5, v6")
def res_stores(lvl, s0):
    T = G + 16 * lvl
    e(f"v_add_u32 v2, 64, v{cRD}\nv_add_u32 v3, 128, v{cRD}\nv_add_u32 v4, 192, v{cRD}\ns_waitcnt lgkmcnt(6)")
    for i in range(4):
        for x in range(2): e(f"ds_read2st64_b32 {vr(T+4*i+2*x,2)}, v{cRD if i==0 else 1+i} offset0:{16*lvl+2*x} offset1:{16*lvl+2*x+1}")
    for i in range(4):
        e(f"s_waitcnt lgkmcnt({6-2*i})")
        for j in range(4): e(f"v_and_or_b32 v{T+4*i+j}, v{T+4*i+j}, v{cMSK}, v{cR+j}")
        e(f"buffer_store_dwordx4 {vr(T+4*i,4)}, v{cRA}, {sr(S_RES)}, s{s0} offen{SC}")
        if i < 3: e(f"s_add_u32 s{s0}, s{s0}, 0x40000")

def lo_lookup():
    POLL = 16; NQ = 3
    e("s_cmp_ge_u32 s2, 250\ns_cbranch_scc1 L_nobucket0")
    with rare(): e("L_nobucket0:\ns_waitcnt lgkmcnt(0)\ns_branch L_nobucket")
    c('================ lo waves: lookups for bucket = workgroup id ================')
    e("s_setprio 0"); late_consts(); e(f"s_setprio {opt('prio2', 2)}")
    e(f"v_lshlrev_b32 v3, 4, v{vL}\ns_lshl_b32 s{sT0}, s2, 14\ns_add_u32 s{sT0}, s{sT0}, s{sCNT}")
    e(f"s_mov_b32 s{sNT}, 0\ns_mov_b32 s{sEX}, 0x88888888\ns_mov_b32 s{sEX+1}, 0x88888888")
    CW, CN1, CD, CP = DX + 8, DX + 9, DX + 10, DX + 11
    RA2 = DX + 12
    e(f"v_lshlrev_b32 v{CW}, 14, v{vL}\nv_mov_b32 v{CD}, {DUMP}\nv_lshl_add_u32 v{CP}, v{vL}, 2, s{sG+1}")
    e(f"s_and_b32 s{sT1}, s{sU}, 1\ns_lshl_b32 s{sT1}, s{sT1}, 2\ns_add_u32 s{sT1}, s{sT1}, {NW}\nv_mov_b32 v2, s{sT1}")
    k.stamp(5)
    c('waves 2,3 fetch the incoming cells (their own stores do not stand in front of the loads); waves 0,1 wait for the word in LDS')
    e(f"s_cmp_ge_u32 s{sU}, 2\ns_cbranch_scc1 L_poller")
    e("L_wait_lists:\ns_sleep 1\nds_read_b32 v4, v2\ns_waitcnt lgkmcnt(0)\nv_cmp_eq_u32 vcc, 0, v4\ns_cbranch_vccnz L_wait_lists")
    e(f"v_cmp_eq_u32 vcc, 1, v4\ns_cbranch_vccnz L_poll1_ok\ns_branch L_gaveup")
    e(f"L_poller:\ns_sub_u32 s{sT1}, s{sT0}, 0x2000\nv_add_u32 v7, {(-0x2000)&0xffffffff:#x}, v{WA}")
    c('back-off: reading a line before it has been written makes that write slow, so the first look waits a little')
    if DL1: e(f"s_sleep {DL1}")
    e("L_poll1:")
    for h in range(8): e(f"buffer_load_dwordx4 {vr(POLL+4*h,4)}, v3, {sr(S_LIST)}, s{sT1 if h<4 else sT0} offen offset:{1024*(h%4)}{SC}")
    for h in range(8):
        e(f"s_waitcnt vmcnt({7-h})")
        if h == 0: e(f"v_xor_b32 v4, s{sTAG}, v{POLL+3}")
        else: e(f"v_xor_b32 v5, s{sTAG}, v{POLL+4*h+3}\nv_or_b32 v4, v4, v5")
        e(f"ds_write_b128 v{7 if h<4 else WA}, {vr(POLL+4*h,4)} offset:{WL+1024*(h%4)}")
    e(f"v_cmp_ne_u32 vcc, 0, v4\ns_and_b64 vcc, vcc, s[{sEX}:{sEX+1}]\nv_mov_b32 v5, 1\ns_waitcnt lgkmcnt(0)")
    e("s_cbranch_vccnz L_poll1_again\nds_write_b32 v2, v5\nL_poll1_ok:")
    with rare():
        e("L_poll1_again:")
        e(f"s_add_u32 s{sNT}, s{sNT}, 1\ns_cmp_lt_u32 s{sNT}, {LIMIT}\ns_cbranch_scc1 L_poll1")
        for i in range(4): e(f"v_mov_b32 v{POLL+i}, 0")
        for h in range(8): e(f"ds_write_b128 v{7 if h<4 else WA}, {vr(POLL,4)} offset:{WL+1024*(h%4)}")
        e("v_mov_b32 v5, 2\ns_waitcnt lgkmcnt(0)\nds_write_b32 v2, v5\nL_gaveup:")
        for i in range(4): e(f"v_or_b32 v{cR+i}, 0x7fc00000, v{cR+i}")
        e("s_branch L_poll1_ok")
    k.stamp(6)
    c('one cell per lane: the first entries of every cell form dense tiles that are fetched at once,\nthe others are packed behind them (count, prefix sum, flat list written from the highest slot down)')
    ND = opt('nd', 2); P1 = 2 * ND; P2 = opt('p2', 6)
    e(f"ds_read_b128 {vr(EN,4)}, v{WA+1} offset:{WL}\nds_read_b128 {vr(EN+12,4)}, v{WA+4} offset:{WL}")
    for g in (1, 2): e(f"ds_read_b128 {vr(EN+4*g,4)}, v{WA+1+g} offset:{WL}")
    e("s_waitcnt lgkmcnt(3)")
    def word(j, d, w): e(f"v_or_b32_sdwa v{d}, v{w}, sext(v{EN+j//2}) dst_sel:DWORD dst_unused:UNUSED_PAD src0_sel:DWORD src1_sel:WORD_{j&1}")
    for j in range(ND):
        if j: e(f"v_add_u32 v5, {j<<20:#x}, v{CW}")
        word(j, 6 + (j & 1), 5 if j else CW); e(f"ds_write_b32 v{CP}, v{6+(j&1)} offset:{256*j}")
    for n in range(P1): e(f"ds_read_b32 v{RM+n}, v{cFL} offset:{128*n}")
    e(f"s_waitcnt lgkmcnt({P1+ND+2})\nv_lshrrev_b32 v2, 1, v{EN+14}\nv_min_u32 v2, 24, v2\nv_sub_u32 v2, v2, {ND} clamp\nv_mov_b32 v3, v2\ns_nop 1")
    scan = [f"v_add_u32_dpp v3, v3, v3 {m} row_mask:0xf bank_mask:0xf" for m in ("row_shr:1", "row_shr:2", "row_shr:4", "row_shr:8")]
    scan += ["v_add_u32_dpp v3, v3, v3 row_bcast:15 row_mask:0xa bank_mask:0xf", "v_add_u32_dpp v3, v3, v3 row_bcast:31 row_mask:0xc bank_mask:0xf"]
    e(scan[0]); e(f"s_waitcnt lgkmcnt({max(P1-4,0)})")
    n0 = len(k.L); decode(list(range(min(4, P1))))
    if P1 > 4: e("s_waitcnt lgkmcnt(0)"); decode(list(range(4, P1)))
    body = k.L[n0:]; del k.L[n0:]
    for i, x in enumerate(body):
        k.L.append(x)
        if i % 3 == 2 and len(scan) > 1: e(scan.pop(1))
    for x in scan[1:]: e("s_nop 1"); e(x)
    e(f"v_cmp_eq_u32 vcc, 0, v2\nv_readlane_b32 s{sNT}, v3, 63\nv_sub_u32 v{CN1}, v3, v2\nv_lshl_add_u32 v3, v{CN1}, 2, s{sG+1}\nv_cndmask_b32 v3, v3, v{CD}, vcc")
    e(f"v_cmp_lt_u32 vcc, {16-ND}, v2\ns_or_b32 s{sBAD}, vcc_lo, vcc_hi\ns_add_u32 s{sNT}, s{sNT}, {64*ND}\ns_waitcnt lgkmcnt(0)\ns_cbranch_vccnz L_fl23")
    e(f"v_cmp_lt_u32 vcc, {14-ND}, v2\nv_add_u32 v5, {15<<20:#x}, v{CW}\ns_cbranch_vccnz L_fl15\nv_add_u32 v5, {13<<20:#x}, v{CW}\ns_branch L_fl13")
    def put(j):
        word(j, 6 + (j & 1), 5)
        if j > ND: e(f"v_add_u32 v5, 0xfff00000, v5")
        e(f"ds_write_b32 v3, v{6+(j&1)} offset:{256*ND+4*(j-ND)}")
    with rare():
        e(f"L_fl23:\nv_add_u32 v5, {23<<20:#x}, v{CW}")
        for j in range(23, 15, -1): put(j)
        e("s_waitcnt lgkmcnt(0)\ns_branch L_fl15")
    for j in range(15, ND - 1, -1):
        if j in (15, 13): e(f"L_fl{j}:")
        put(j)
        if j == 8: e("s_waitcnt lgkmcnt(4)")
    e(f"v_add_u32 v7, 1024, v{cDR}\nv_mov_b32 v6, v{cDR}\ns_waitcnt lgkmcnt(3)")
    for n in range(P1, 16): e(f"ds_read_b32 v{RM+n}, v{cFL} offset:{128*n}")
    c("a cell group whose entries all lie in the first 256 / 384 list places is stored as soon as those sums exist")
    e(f"v_readlane_b32 s{sT0}, v{CN1}, 16\nv_readlane_b32 s{sT1}, v{CN1}, 32\nv_readlane_b32 s{sT2}, v{CN1}, 48\nv_add_u32 v{RA2}, 64, v{cRD}\nv_add_u32 v{RA2+1}, 128, v{cRD}\nv_add_u32 v{RA2+2}, 192, v{cRD}")
    e(f"s_cmp_le_u32 s{sT0}, {256-64*ND}\ns_cselect_b32 s3, 1, 0\ns_cmp_le_u32 s{sT1}, {384-64*ND}\ns_cselect_b32 s{sT0}, 2, 0\ns_or_b32 s3, s3, s{sT0}\ns_cmp_le_u32 s{sT2}, {384-64*ND}\ns_cselect_b32 s{sT0}, 4, 0\ns_or_b32 s3, s3, s{sT0}\ns_mov_b32 s{sCNT}, 0")
    e("L_round:")
    e(f"s_add_u32 s{sT2}, s{sNT}, 31\ns_lshr_b32 s{sT2}, s{sT2}, 5\ns_waitcnt lgkmcnt({16-P2})")
    for x in range(P1, P2, 4): decode(list(range(x, min(x + 4, P2))))
    dreads(6)
    k.stamp(7)
    c('the table is complete')
    sync_wait(5, 4, 'tab', 1)
    k.stamp(8)
    e(f"v_mov_b32 v5, 0x1ffc\nv_mov_b32 v6, s{sG+2}")
    dests()
    c('tile = 32 occurrences x 2 lanes x 7 lookups; the sums over the lookups are formed by MFMA with 0/1 selectors')
    R = 16 - P2
    def scat(q):
        a_ = AC + 4 * q
        e(f"v_cvt_pk_bf16_f32 v{a_}, v{a_+1}, v{a_}\nv_cvt_pk_bf16_f32 v{a_+2}, v{a_+3}, v{a_+2}")
        e(f"ds_write_b32 v{DX+2*q}, v{a_}\nds_write_b32 v{DX+2*q+1}, v{a_+2}")
    def grd(i):
        for x in range(2): e(f"ds_read2st64_b32 {vr(G+4*i+2*x,2)}, v{cRD if i==0 else RA2+i-1} offset0:{2*x} offset1:{2*x+1}")
    def rowchk(nm):
        e(f"v_and_b32 v5, 0x000c000c, v{CHK}\nv_cmp_ne_u32 vcc, 0, v5\ns_cbranch_vccnz L_rb{nm}\nL_rb{nm}_ret:")
        with rare():
            e(f"L_rb{nm}:")
            for j in range(4): e(f"v_or_b32 v{cR+j}, 0x7fc00000, v{cR+j}")
            e(f"s_branch L_rb{nm}_ret")
    def gst(i):
        for j in range(4): e(f"v_and_or_b32 v{G+4*i+j}, v{G+4*i+j}, v{cMSK}, v{cR+j}")
        e(f"s_add_u32 s{sT0}, s{sG+3}, {i*0x40000:#x}\nbuffer_store_dwordx4 {vr(G+4*i,4)}, v{cRA}, {sr(S_RES)}, s{sT0} offen{SC}\ns_bitset1_b32 s{sCNT}, {i}")
    def early(i, nm):
        e(f"s_bitcmp1_b32 s3, {i}\ns_cbranch_scc0 L_e{nm}"); gst(i); e(f"L_e{nm}:")
    for n in range(16):
        e(f"s_waitcnt vmcnt({P2+min(n,R)-1-n})"); addrs(n, n & 1)
        if n: e("s_waitcnt lgkmcnt(7)"); mf(n - 1, (n - 1) & 1)
        if n < R: decode([P2 + n])
        if n == 5: scat(0)
        if n == 9: scat(1); grd(0)
        if n == 10: rowchk('a'); early(0, 'a')
        if n == 13: scat(2); grd(1); grd(2)
        if n == 14: rowchk('b'); early(1, 'b'); early(2, 'c')
        if 11 <= n < 15: e(f"s_cmp_le_u32 s{sT2}, {n+1}\ns_cbranch_scc1 L_x{n}")
    e("s_waitcnt lgkmcnt(0)"); mf(15, 1); e("s_nop 6\ns_branch L_tiles_done")
    for n in (11, 12):
        e(f"L_x{n}:\ns_waitcnt lgkmcnt(0)"); mf(n, n & 1); e("s_nop 7"); scat(2); e("s_branch L_tiles_done")
    e("L_x14:\ns_waitcnt lgkmcnt(0)"); mf(14, 0); e("s_nop 6\ns_branch L_tiles_done")
    e("L_x13:\ns_waitcnt lgkmcnt(0)"); mf(13, 1); rowchk('d'); early(1, 'd'); early(2, 'e'); e("s_nop 0")
    e("L_tiles_done:")
    scat(3)
    e(f"s_cmp_gt_u32 s{sNT}, 512\ns_cbranch_scc1 L_more")
    with rare():
        e(f"L_more:\ns_mov_b32 s3, 0\ns_sub_u32 s{sNT}, s{sNT}, 512\nv_add_u32 v{cFL}, 2048, v{cFL}\nv_add_u32 v{cDR}, 2048, v{cDR}\nv_add_u32 v7, 1024, v{cDR}\nv_mov_b32 v6, v{cDR}")
        e("s_waitcnt vmcnt(0) lgkmcnt(0)")
        for n in range(16):
            e(f"ds_read_b32 v{RM+n}, v{cFL} offset:{128*n}")
            if n == 7: e("s_waitcnt lgkmcnt(0)")
        e("s_waitcnt lgkmcnt(0)")
        for x in range(0, P1, 4): decode(list(range(x, min(x + 4, P1))))
        e("s_branch L_round")
    c('result cells: 16 x (sum w : bf16 | sum w*s : bf16), bit 31 and bit 0 of every dword carry the epoch tag')
    grd(3)
    rowchk('z')
    e(f"s_cmp_lg_u32 s{sCNT}, 7\ns_cbranch_scc1 L_late\nL_late_ret:\ns_waitcnt lgkmcnt(0)")
    with rare():
        e("L_late:")
        for i in range(3): grd(i)
        e("s_waitcnt lgkmcnt(0)")
        for i in range(3):
            e(f"s_bitcmp1_b32 s{sCNT}, {i}\ns_cbranch_scc1 L_l{i}"); gst(i); e(f"L_l{i}:")
        e("s_branch L_late_ret")
    gst(3)
    e(f"s_cmp_lg_u32 s{sBAD}, 0\ns_cbranch_scc1 L_res2\nL_res2_ret:")
    with rare():
        e(f"L_res2:\ns_add_u32 s{sT0}, s{sG+3}, {RLV:#x}"); res_stores(1, sT0); e("s_branch L_res2_ret")
    e("L_nobucket:")
    k.stamp(9)

def hi_lookup():
    e("s_waitcnt lgkmcnt(0)")
    sync_add(5)
    c("================ hi waves: fetch the result cells of this workgroup's samples ================")
    e("L_hi_final:")
    pos()
    e(f"s_add_u32 s{sTAG}, s{sTAG}, {STEP:#x}")
    res_tags("v_and_b32 v4, 3, v0", 96)
    final_poll()
    k.stamp(6)

def final_poll():
    cR = 96
    T = 32; X = 48; Y = 64; CN = 80; YA = 84
    e(f"v_and_b32 v2, 255, v0\nv_lshlrev_b32 v{T}, 4, v2\nv_add_u32 v{T+1}, 0x2000, v{T}\ns_lshl_b32 s{sT0}, s{sPOS}, 14\ns_add_u32 s{sT1}, s{sT0}, 0x1000")
    e(f"v_cmp_gt_u32 vcc, 232, v2\ns_mov_b64 s[{sEX}:{sEX+1}], vcc\ns_mov_b32 s{sNT}, 0")
    sync_wait(0, 8, 'res', 2)
    e(f"ds_read_b32 v6, v5 offset:16\ns_waitcnt lgkmcnt(0)\nv_readfirstlane_b32 s{sRARE}, v6")
    for h in range(4): e(f"v_mov_b32 v{YA+h}, -1")
    e(f"s_cmp_lg_u32 s{sRARE}, 0\ns_cbranch_scc1 L_rare0\nL_rare0_ret:")
    with rare():
        e(f"L_rare0:\nv_and_b32 v4, -4, v2\ns_add_u32 s{sBAD}, s{sT0}, {RLV:#x}\nv_mov_b32 v7, 0x80000000")
        for h in range(4): e(f"ds_read_b32 v{CN+h}, v4 offset:{CNT+256*h}")
        e("s_waitcnt lgkmcnt(0)")
        for h in range(4):
            e(f"v_add_u32 v{CN+h}, -33, v{CN+h}\nv_add_u32 v4, {4096*h}, v{T}\nv_and_or_b32 v{YA+h}, v{CN+h}, v7, v4\nv_ashrrev_i32 v{CN+h}, 31, v{CN+h}")
        e("s_branch L_rare0_ret")
    c('back-off, as above')
    if DL2: e(f"s_sleep {DL2}")
    e("L_poll2:")
    e(f"s_cmp_lg_u32 s{sRARE}, 0\ns_cbranch_scc1 L_rare1\nL_rare1_ret:")
    with rare():
        e("L_rare1:")
        for h in range(4): e(f"buffer_load_dwordx4 {vr(Y+4*h,4)}, v{YA+h}, {sr(S_RES)}, s{sBAD} offen{SC}")
        e("s_branch L_rare1_ret")
    for h in range(4): e(f"buffer_load_dwordx4 {vr(X+4*h,4)}, v{T+h//2}, {sr(S_RES)}, s{sT0 if h%2==0 else sT1} offen{SC}")
    for h in range(4):
        d = T + 2 if h < 3 else T + 3
        e(f"s_waitcnt vmcnt({3-h})")
        for j in range(4):
            if j == 0 and h in (0, 3): e(f"v_xor_b32 v{d}, v{X+4*h}, v{cR}")
            else: e(f"v_bitop3_b32 v{d}, v{d}, v{X+4*h+j}, v{cR+j} bitop3:0xf6")
        e(f"ds_write_b128 v{T}, {vr(X+4*h,4)} offset:{RS+4096*h}")
    e(f"s_cmp_lg_u32 s{sRARE}, 0\ns_cbranch_scc1 L_rare2\nL_rare2_ret:")
    with rare():
        e("L_rare2:")
        for h in range(4):
            for j in range(4):
                if j == 0: e(f"v_xor_b32 v4, v{Y+4*h}, v{cR}")
                else: e(f"v_bitop3_b32 v4, v4, v{Y+4*h+j}, v{cR+j} bitop3:0xf6")
            e(f"v_bitop3_b32 v{T+2}, v{T+2}, v4, v{CN+h} bitop3:0xf4")
            e(f"ds_write_b128 v{T}, {vr(Y+4*h,4)} offset:{RS+16384+4096*h}")
        e("s_branch L_rare2_ret")
    e(f"v_and_b32 v{T+3}, 0x80000001, v{T+3}\nv_and_b32 v{T+2}, 0x80000001, v{T+2}")
    e(f"v_cmp_ne_u32 vcc, 0, v{T+3}\ns_and_b64 s[{sU}:{sU+1}], vcc, s[{sEX}:{sEX+1}]\nv_cmp_ne_u32 vcc, 0, v{T+2}\ns_or_b64 vcc, vcc, s[{sU}:{sU+1}]")
    e("s_cbranch_vccnz L_poll2_again\nL_poll2_ok:")
    with rare():
        e("L_poll2_again:")
        e(f"s_waitcnt lgkmcnt(0)\ns_add_u32 s{sNT}, s{sNT}, 1\ns_cmp_lt_u32 s{sNT}, {LIMIT}\ns_cbranch_scc1 L_poll2")
        sync_add(3)
        e("s_branch L_poll2_ok")
    k.stamp(10)
    e("s_waitcnt lgkmcnt(0)\ns_barrier")

def final():
    T = 32; X = 48
    c('================ lo waves: combine ================')
    sync_add(0)
    for t in range(8): e(f"v_and_b32 v{T+8+t}, 0xffff, v{LOC+t}")
    e(f"s_lshl_b32 s{sT2}, s2, 7\ns_lshl_b32 s{sBAD}, s{sJ}, 5\ns_add_u32 s{sT2}, s{sT2}, s{sBAD}")
    e(f"v_lshrrev_b32 v3, 2, v{vL}\nv_lshlrev_b32 v3, 1, v3\ns_waitcnt lgkmcnt(0)\ns_barrier")
    k.stamp(10)
    e(f"s_or_b32 s{sCNT}, s2, s{sJ}\ns_cmp_eq_u32 s{sCNT}, 0\ns_cbranch_scc1 L_epoch\nL_epoch_ret:")
    with rare():
        e(f"L_epoch:\ns_mov_b64 exec, 1\nv_mov_b32 v4, {EPOCH:#x}\nv_mov_b32 v5, s{sTAG}\nglobal_store_dword v4, v5, s[{P_WS}:{P_WS+1}]{SC}\ns_mov_b64 exec, -1\ns_branch L_epoch_ret")
    e(f"v_mov_b32 v5, {SYNC+12}\nds_read_b32 v6, v5")
    for t in range(8): e(f"ds_read_b32 v{X+t}, v{T+8+t}")
    for t in range(8):
        e(f"s_waitcnt lgkmcnt({7-t})\nv_and_b32 v{T+t}, 0x7fff0000, v{X+t}\nv_lshlrev_b32 v{X+t}, 16, v{X+t}")
        if t % 2: e(f"v_add_f32 v{T+t-1}, v{T+t-1}, v{T+t}\nv_add_f32 v{X+t-1}, v{X+t-1}, v{X+t}")
        if t % 4 == 3: e(f"v_add_f32 v{T+t-3}, v{T+t-3}, v{T+t-1}\nv_add_f32 v{X+t-3}, v{X+t-3}, v{X+t-1}")
    e(f"v_add_f32 v{T}, v{T}, v{T+4}\nv_add_f32 v{X}, v{X}, v{X+4}\ns_nop 0")
    e(f"v_add_f32_dpp v{T+1}, v{T}, v{T} quad_perm:[1,0,3,2] row_mask:0xf bank_mask:0xf")
    e(f"v_add_f32_dpp v{X+1}, v{X}, v{X} quad_perm:[1,0,3,2] row_mask:0xf bank_mask:0xf")
    e("s_nop 0")
    e(f"v_add_f32_dpp v{T}, v{T+1}, v{T+1} quad_perm:[2,3,0,1] row_mask:0xf bank_mask:0xf")
    e(f"v_add_f32_dpp v{X}, v{X+1}, v{X+1} quad_perm:[2,3,0,1] row_mask:0xf bank_mask:0xf")
    e(f"v_rcp_f32 v{T+1}, v{T}")
    c('the weights were formed against a fixed reference instead of the row maximum: safe iff 2^-80 <= sum < 2^100 and the\nquotient is finite; otherwise (also after an overflow of a cell or a lost hand-off) recompute with the true maximum')
    e(f"v_add_u32 v{T+2}, {(-0x17800000)&0xffffffff:#x}, v{T}\nv_mul_f32 v{X}, v{X}, v{T+1}\nv_cmp_gt_u32 vcc, 0x5a000000, v{T+2}")
    e(f"v_and_b32 v{T+3}, 0x7fffffff, v{X}\ns_mov_b64 s[{sEX}:{sEX+1}], vcc\nv_cmp_gt_u32 vcc, 0x7f800000, v{T+3}\nv_cvt_pk_bf16_f32 v{X}, v{X}, v{X}")
    e(f"s_and_b64 s[{sEX}:{sEX+1}], vcc, s[{sEX}:{sEX+1}]\nv_cmp_eq_u32 vcc, 0, v6")
    e(f"s_and_b64 vcc, vcc, s[{sEX}:{sEX+1}]\ns_cmp_eq_u64 vcc, -1\ns_cbranch_scc0 L_fallback")
    e("s_mov_b32 exec_lo, 0x11111111\ns_mov_b32 exec_hi, 0x11111111")
    e(f"buffer_store_short v{X}, v3, {sr(S_OUT)}, s{sT2} offen")
    e("L_fin:")

def fallback():
    c("================ direct evaluation of this wave's 16 samples, online (true) maximum ================")
    e("L_fallback:")
    c("after a lost hand-off (a workgroup that ran too late used a newer epoch) leave this tag as the epoch, so that the next launch uses another one")
    e(f"v_cmp_eq_u32 vcc, 0, v6\ns_cbranch_vccnz L_fb_go\ns_mov_b64 exec, 1\nv_mov_b32 v4, {EPOCH:#x}\nv_mov_b32 v5, s{sTAG}\nglobal_store_dword v4, v5, s[{P_WS}:{P_WS+1}]{SC}\ns_mov_b64 exec, -1\nL_fb_go:")
    A0 = 16; A1 = 20; C0 = 24; C1 = 28; AH = 32; AP = 36; EI = 40; EJ = 48; PK = 56; DD = 60; HK = 68; DS = 72; W16 = 80
    N, Q, IB, M, LL, ACc, T = 100, 101, 102, 103, 104, 105, 106
    e(f"v_and_b32 v{N}, 15, v{vL}\nv_lshrrev_b32 v{Q}, 4, v{vL}")
    e(f"v_lshlrev_b32 v{T}, 9, v{Q}\nv_lshl_add_u32 v{T}, v{N}, 1, v{T}")
    for half in range(2):
        for t in range(8): e(f"buffer_load_ushort v{W16+8*half+t}, v{T}, {sr(S_W)}, 0 offen offset:{t*64+half*32}")
    e(f"v_lshlrev_b32 v{T+1}, 3, v{Q}\nv_lshlrev_b32 v{Q}, 4, v{Q}")
    e(f"global_load_dwordx2 {vr(EI,2)}, v{T+1}, s[{P_B}:{P_B+1}]\nglobal_load_dwordx2 {vr(EI+2,2)}, v{T+1}, s[{P_B}:{P_B+1}] offset:32")
    e(f"global_load_dwordx2 {vr(AH,2)}, v{T+1}, s[{P_H}:{P_H+1}]\nglobal_load_dwordx2 {vr(AH+2,2)}, v{T+1}, s[{P_H}:{P_H+1}] offset:32")
    e(f"global_load_dwordx4 {vr(AP,4)}, v{Q}, s[{P_P}:{P_P+1}]")
    e(f"s_lshl_b32 s{sU}, s2, 6\ns_lshl_b32 s{sT1}, s{sJ}, 4\ns_add_u32 s{sU}, s{sU}, s{sT1}\nv_add_u32 v{IB}, s{sU}, v{N}\nv_mul_u32_u24 v{IB}, 104, v{IB}")
    e("s_waitcnt vmcnt(0)")
    for half in range(2):
        for t in range(4): e(f"v_lshl_or_b32 v{A0+4*half+t}, v{W16+8*half+2*t+1}, 16, v{W16+8*half+2*t}")
    for i in range(4): e(f"v_lshlrev_b32 v{C0+2*i}, 16, v{EI+i}\nv_and_b32 v{C0+2*i+1}, 0xffff0000, v{EI+i}")
    e(f"v_mov_b32 v{M}, 0xff800000\nv_mov_b32 v{LL}, 0\nv_mov_b32 v{ACc}, 0")
    e(f"s_mov_b32 s{sU}, 0")
    def getrow(dst, soff):
        e(f"buffer_load_dword v{T}, v{IB}, {sr(S_IDX)}, s{soff} offen\ns_waitcnt vmcnt(0)")
        e(f"v_lshl_add_u32 v{T}, v{T}, 6, v{Q}\nbuffer_load_dwordx4 {vr(dst+4,4)}, v{T}, {sr(S_TABL)}, 0 offen\ns_waitcnt vmcnt(0)")
        for t in range(4): e(f"v_lshlrev_b32 v{dst+2*t}, 16, v{dst+4+t}\nv_and_b32 v{dst+2*t+1}, 0xffff0000, v{dst+4+t}")
    e("L_fb_i:")
    getrow(EI, sU)
    e(f"s_add_u32 s{sCNT}, s{sU}, 4")
    e("L_fb_j:")
    getrow(EJ, sCNT)
    for t in range(8): e(f"v_mul_f32 v{EJ+t}, v{EJ+t}, v{EI+t}")
    for t in range(4): e(f"v_cvt_pk_bf16_f32 v{PK+t}, v{EJ+2*t}, v{EJ+2*t+1}")
    e("s_nop 1")
    e(f"v_mfma_f32_16x16x32_bf16 {vr(DD,4)}, {vr(A0,4)}, {vr(PK,4)}, {vr(C0,4)}")
    e(f"v_mfma_f32_16x16x32_bf16 {vr(DD+4,4)}, {vr(A1,4)}, {vr(PK,4)}, {vr(C1,4)}")
    e(f"v_mfma_f32_16x16x32_bf16 {vr(DS,4)}, {vr(AP,4)}, {vr(PK,4)}, 0")
    e("s_nop 7")
    for t in range(4): e(f"v_cvt_pk_bf16_f32 v{HK+t}, v{DD+2*t}, v{DD+2*t+1}")
    for t in range(4): e(f"v_pk_max_i16 v{HK+t}, v{HK+t}, 0")
    e("s_nop 1")
    e(f"v_mfma_f32_16x16x32_bf16 {vr(DD,4)}, {vr(AH,4)}, {vr(HK,4)}, 0")
    e("s_nop 7")
    e(f"v_mul_f32 v{DD}, 0x3fb8aa3b, v{DD}\nv_max_f32 v{DD+1}, v{M}, v{DD}\nv_sub_f32 v{DD+2}, v{M}, v{DD+1}\nv_sub_f32 v{DD+3}, v{DD}, v{DD+1}")
    e(f"v_exp_f32 v{DD+2}, v{DD+2}\nv_exp_f32 v{DD+3}, v{DD+3}\nv_mov_b32 v{M}, v{DD+1}")
    e(f"v_fma_f32 v{LL}, v{LL}, v{DD+2}, v{DD+3}\nv_mul_f32 v{ACc}, v{ACc}, v{DD+2}\nv_fma_f32 v{ACc}, v{DD+3}, v{DS}, v{ACc}")
    e(f"s_add_u32 s{sCNT}, s{sCNT}, 4\ns_cmp_lt_u32 s{sCNT}, 104\ns_cbranch_scc1 L_fb_j")
    e(f"s_add_u32 s{sU}, s{sU}, 4\ns_cmp_lt_u32 s{sU}, 100\ns_cbranch_scc1 L_fb_i")
    e(f"v_rcp_f32 v{LL}, v{LL}\nv_lshlrev_b32 v{N}, 1, v{N}\nv_mul_f32 v{ACc}, v{ACc}, v{LL}\nv_cvt_pk_bf16_f32 v{ACc}, v{ACc}, v{ACc}")
    e("s_mov_b64 exec, 0xffff")
    e(f"buffer_store_short v{ACc}, v{N}, {sr(S_OUT)}, s{sT2} offen")
    e("s_branch L_fin")

B_ = 8; A_ = 72; A5 = 104; CB = 120; HQ = 184; D_ = 200; ACC = 232; INIT = 248; TW = 249

NB0 = opt('nb0', 4); NB1 = opt('nb1', 8)

def hi():
    WV = 120; TP = 136; TU = 144; T = 184
    c('================ hi waves (4-7): table rows 4c..4c+3 against all 1000 ids ================')
    e("L_hi:")
    vm = ['s'] * 5
    def vmem(lab, txt): e(txt); vm.append(lab)
    def vneed(lab): return len(vm) - 1 - max(i for i, x in enumerate(vm) if x == lab)
    vmem('s', f"global_load_dwordx4 {vr(TP+4,4)}, v5, s[{P_TAB}:{P_TAB+1}] offset:16")
    for t in range(1, 16): vmem('s', f"global_load_short_d16_hi v{WV+t}, v4, s[{P_W}:{P_W+1}] offset:{t*64-64}")
    c("one line in every 2 MB of the exchange area: its address translation is then ready when the exchange starts")
    e(f"v_and_b32 v2, 7, v{vL}\nv_lshlrev_b32 v2, 21, v2\nv_add_u32 v2, 0x1fff80, v2")
    vmem('x', f"global_load_dword v255, v2, s[{P_WS}:{P_WS+1}]")
    lds_common()
    k.srd(S_TABL, P_TAB, 64000)
    e(f"v_lshlrev_b32 v7, 6, v6\nv_lshl_add_u32 v250, v252, 5, v7\nv_add_u32 v251, 4096, v250")
    e(f"s_waitcnt lgkmcnt(0)\ns_load_dword s{sTAG}, s[{P_WS}:{P_WS+1}], {EPOCH:#x}\ns_barrier")
    e("s_cmp_ge_u32 s2, 250\ns_cbranch_scc1 L_hi_skip")
    e(f"s_lshl_b32 s{sG}, s{sU}, 14\ns_add_u32 s{sG+1}, s{sG}, 0x2000")
    def bload(n):
        b, ks = n // 2, n % 2
        vmem(f"b{b//2}", f"buffer_load_dwordx4 {vr(B_+8*b+4*ks,4)}, v{250+(b//2)%2}, {sr(S_TABL)}, s{sG if b<4 else sG+1} offen offset:{(b%2)*2048+ks*16}")
    for n in range(NB0): bload(n)
    k.srd(S_RES, P_WS, 0x800000, R0)
    with rare():
        e("L_hi_skip:"); k.srd(S_RES, P_WS, 0x800000, R0); e("s_waitcnt lgkmcnt(0)\ns_branch L_hi_final")
    e(f"s_lshl_b32 s{sT0}, s{sU}, 11\nv_lshlrev_b32 v4, 4, v{vL}\nv_add_u32 v5, s{sT0}, v4\nv_cmp_gt_u32 vcc, 32, v{vL}\nv_lshlrev_b32 v7, 2, v{vL}")
    e(f"s_lshl_b32 s{sT0}, s{sU}, 12\nv_add_u32 v{TW}, s{sT0}, v4")
    e(f"s_waitcnt vmcnt({vneed('s')})")
    k.stamp(2)

    c('A operand: rows (table row, hidden unit), value W[d][a] * table[row][d]; one group of 8 hidden units per wave, shared through LDS')
    for t in range(8): e(f"v_lshlrev_b32 v{TU+2*t}, 16, v{TP+t}\nv_and_b32 v{TU+2*t+1}, 0xffff0000, v{TP+t}")
    for t in range(16): e(f"v_mul_f32 v{WV+t}, v{WV+t}, v{TU+t}")
    for t in range(8): e(f"v_cvt_pk_bf16_f32 v{TP+t}, v{WV+2*t}, v{WV+2*t+1}")
    e(f"ds_write_b128 v5, {vr(TP,4)} offset:{AIMG}\nds_write_b128 v5, {vr(TP+4,4)} offset:{AIMG+1024}")
    e(f"v_mul_f32 v{T+2}, {LOG2E_HALF:#x}, v{T+2}\nv_cndmask_b32 v6, v{T+2}, v{T+1}, vcc\nds_write_b32 v7, v6 offset:{BH}")
    for n in range(NB0, NB1): bload(n)
    e("s_waitcnt lgkmcnt(0)")
    sync_add(1)
    sync_wait(1, 4, 'hi')
    e("v_lshlrev_b32 v5, 4, v252")
    k.stamp(3)
    for i in range(2): e(f"ds_read_b128 {vr(A_+4*i,4)}, v4 offset:{AIMG+1024*i}")
    for i in range(4): e(f"ds_read_b128 {vr(CB+4*i,4)}, v5 offset:{BH}")
    for g in range(4): e(f"ds_read_b128 {vr(HQ+4*g,4)}, v5 offset:{BH+128+32*g}")
    for g in range(1, 4): e(f"ds_read_b128 {vr(CB+16*g,4)}, v5 offset:{BH+32*g}")
    e(f"s_waitcnt vmcnt({vneed('b0')}) lgkmcnt(7)"); k.stamp(7)
    later = []
    for g in range(1, 4):
        later += [f"ds_read_b128 {vr(A_+8*g+4*i,4)}, v4 offset:{AIMG+1024*(2*g+i)}" for i in range(2)]
        later += [f"ds_read_b128 {vr(CB+16*g+4*i,4)}, v5 offset:{BH+32*g}" for i in range(1, 4)]
    steps = []
    for bp in range(4): steps += [('r', bp, g, b) for g in range(4) for b in range(2)] + [('x', bp, 0, 0)]
    NS = len(steps)
    def mms(s):
        kind, bp, g, b = steps[s]; d = D_ + 16 * (s % 2)
        if kind == 'r':
            bb = B_ + 8 * (2 * bp + b)
            return [f"v_mfma_f32_32x32x16_bf16 {vr(d,16)}, {vr(A_+8*g,4)}, {vr(bb,4)}, {vr(CB+16*g,16)}",
                    f"v_mfma_f32_32x32x16_bf16 {vr(d,16)}, {vr(A_+8*g+4,4)}, {vr(bb+4,4)}, {vr(d,16)}"]
        return [f"v_mfma_f32_32x32x16_bf16 {vr(d,16)}, {vr(A5+8*b2+4*ks,4)}, {vr(B_+8*(2*bp+b2)+4*ks,4)}, {'0' if b2+ks==0 else vr(d,16)}"
                for b2 in range(2) for ks in range(2)]
    def valu(s):
        kind, bp, g, b = steps[s]; d = D_ + 16 * (s % 2); X = ACC + 8 * (bp % 2); Y = X + 4
        if kind == 'r':
            a = X + 4 * b
            return [f"v_fma_f32 v{a+v}, v{HQ+4*g+r}, |v{d+4*v+r}|, " + (f"-v{INIT}" if g == 0 and r == 0 else f"v{a+v}") for r in range(4) for v in range(4)]
        o = [f"v_permlane32_swap_b32 v{X+v}, v{Y+v}" for v in range(4)]
        o += [f"v_add_f32 v{X+v}, v{X+v}, v{Y+v}" for v in range(4)]
        o += [f"v_add_f32 v{X+v}, v{X+v}, v{d+4*v}" for v in range(4)]
        o += [f"v_exp_f32 v{X+v}, v{X+v}" for v in range(4)]
        o += [f"v_mul_f32 v{Y+v}, v{X+v}, v{d+4*v+1}" for v in range(4)]
        o += [f"v_cvt_pk_bf16_f32 v{X+v}, v{Y+v}, v{X+v}" for v in range(4)]
        o += [f"ds_write_b128 v{TW}, {vr(X,4)} offset:{TAB+32+1024*bp}"]
        return o
    c('relu(x) = (x + |x|)/2: e = sum h/2 |x+b| + linear term; exponent reference = value at zero interaction; entry = (w, w*s) in bf16')
    m = mms(0)
    e(m[0])
    for x in later[:5]: e(x)
    e(m[1])
    e("s_waitcnt lgkmcnt(5)")
    for x in later[5:10]: e(x)
    e(f"v_mul_f32 v{INIT}, v{HQ}, |v{CB}|")
    for g in range(4):
        for r in range(4):
            if g or r: e(f"v_fma_f32 v{INIT}, v{HQ+4*g+r}, |v{CB+16*g+r}|, v{INIT}")
    nb_next = [NB1]
    for s in range(NS):
        v = valu(s); m = mms(s + 1) if s + 1 < NS else []
        if s + 1 < NS:
            kind, bp, g, b = steps[s + 1]
            if bp == 0 and kind == 'r' and b == 0 and g == 1: e("s_waitcnt lgkmcnt(5)"); [e(x) for x in later[10:15]]
            if bp == 0 and kind == 'r' and b == 0 and g == 2: e("s_waitcnt lgkmcnt(5)")
            if bp == 0 and kind == 'r' and b == 0 and g == 3:
                sync_wait(2, 2, 'a5')
                for i in range(4): e(f"ds_read_b128 {vr(A5+4*i,4)}, v4 offset:{AIMG+8192+1024*i}")
            if bp == 0 and kind == 'x': e("s_waitcnt lgkmcnt(0)")
            if kind == 'r' and g == 0 and b == 0 and bp > 0:
                e(f"s_waitcnt vmcnt({vneed(f'b{bp}')})"); k.stamp({1: 4, 2: 8, 3: 10}[bp])
            if bp == 0 and kind == 'r' and b == 0 and g == 3: k.stamp(1)

        for _ in range(2):
            if nb_next[0] < 16: bload(nb_next[0]); nb_next[0] += 1
        if len(m) == 2:
            n = 6 if steps[s][0] == 'x' else 5
            e(m[0]); [e(x) for x in v[:n]]; e(m[1]); [e(x) for x in v[n:]]
        elif len(m) == 4:
            e(m[0]); [e(x) for x in v[:4]]; e(m[1]); [e(x) for x in v[4:8]]; e(m[2]); [e(x) for x in v[8:12]]; e(m[3]); [e(x) for x in v[12:]]
        else:
            e("s_nop 1"); [e(x) for x in v]
    k.stamp(5)
    hi_lookup()

def finish():
    if STAMP:
        e(f"{CLK} s[{sH}:{sH+1}]\ns_waitcnt lgkmcnt(0)\ns_mov_b64 exec, 1")
        e(f"s_lshl_b32 s{sT0}, s2, 3\ns_add_u32 s{sT0}, s{sT0}, s{sJ}\ns_lshl_b32 s{sT0}, s{sT0}, 7\ns_add_u32 s{sT0}, s{sT0}, {STAMP0:#x}")
        e(f"v_mov_b32 v2, s{sT0}")
        for i in range(NST): e(f"v_mov_b32 v3, s{sST+2*i}\nglobal_store_dword v2, v3, s[{P_WS}:{P_WS+1}] offset:{4*i}")
        e(f"v_mov_b32 v3, s{sH}\nglobal_store_dword v2, v3, s[{P_WS}:{P_WS+1}] offset:{4*NST}")
        e(f"v_mov_b32 v3, {NST+1}\nglobal_store_dword v2, v3, s[{P_WS}:{P_WS+1}] offset:124")
    e("s_endpgm")

prologue()
route()
lo_lookup()
final()
finish()
hi()
finish()
e("L_end:\ns_endpgm")
with rare(): fallback()
hazard.check(k.L); hazard.check(k.tail)
src = HEADER + '; Attentional FM as a table lookup.  e(i,j) and s(i,j) = pair . p depend only on the two ids, so with V = 1000 the\n; 5.3 M pair evaluations collapse to a 1000 x 1000 table of (w, w*s), w = exp(e - reference).  Workgroup c < 250 computes the\n; four table rows 4c..4c+3 into LDS (hi waves) and serves every occurrence of those ids; every workgroup also owns 64 samples.\n; Each unordered field pair is owned by one of its two fields (pairs of fields form a cyclic tournament), so one occurrence\n; needs 12 or 13 lookups.  Hand-offs through d_ws, sc1 stores and sc1 loads, 64-byte cells that carry an epoch tag\n; (epoch = word 0 of d_ws + a constant, written back at the end):\n;   sample owner -> bucket owner: packed index rows (1 MB) and list cells ; bucket owner -> sample owner: sums per occurrence.\n; Every wait on another workgroup is bounded; whatever is missing or out of the safe range is recomputed directly.\n' + f"; @launch grid=(256,1,1) block=(512,1,1) lds={LDS_BYTES}\n"
src += f'.amdgcn_target "amdgcn-amd-amdhsa--gfx950"\n.text\n.globl {KN}\n.p2align 8\n.type {KN},@function\n{KN}:\n'
src += "\n".join(k.L) + "\n" + "\n".join(k.tail) + "\nL_code_end:\n"
src += '.section .rodata,"a"\n' + kd(KN, 256, 102)
open(sys.argv[1], "w").write(src)
print("lds", LDS_BYTES)
```

```python
import sys
from common import *
import hazard

OPT = set(sys.argv[2].split(',')) if len(sys.argv) > 2 else set()
def opt(name, d):
    for o in OPT:
        if o.startswith(name + '='): return int(o.split('=')[1])
    return d
STAMP = 'stamp' in OPT
CLK = 's_memtime' if 'cyc' in OPT else 's_memrealtime'
DL1, DL2 = opt('dl1', 24), opt('dl2', 18)
OPT.add('lateconst')

EPOCH, L0, ROW0, R0 = 0x0, 0x10000, 0x400000, 0x800000
STAMP0 = 0x1000000
TAB, CNT, BH, GP, AIMG, LIMG, WL = 0, 0x4100, 0x4500, 0x4600, 0x5000, 0x8000, 0xC000
RS = LIMG
NANW = 0x4080
SYNC = CNT + 1000
LIMIT = opt('limit', 0x4000)
RLV = 0x400000
FL = 0x10000; FLS = 8192; RIM = 0x18000; NW = 0x4090; DUMP = 0x4C00
LDS_BYTES = RIM + 4 * 8192
S_IDX, S_TABL, S_W, S_LIST, S_ROW, S_RES, S_OUT = 4, 8, 12, 16, 20, 24, 28
sG = 32
P_IDX, P_TAB, P_W, P_B, P_H, P_P, P_OUT, P_WS = 36, 38, 40, 42, 44, 46, 48, 50
sJ, sRARE, sTAG, sT2, sT0, sT1, sNT, sBAD, sU, sCNT = 52, 53, 54, 55, 56, 57, 58, 59, 60, 61
sEX = 62
sPOS = 36
sH = 64
sST = 80
NST = 11
LOG2E_HALF = 0x3f38aa3b
vL = 1
SC = " sc1"
KN = NAME + "_kernel"

class K:
    def __init__(s): s.L = []; s.tail = []; s.cur = s.L
    def e(s, x):
        for ln in x.split('\n'):
            ln = ln.strip()
            if ln: s.cur.append(ln if ln.endswith(':') else '    ' + ln)
    def stamp(s, i):
        if STAMP: s.e(f"{CLK} s[{sST+2*i}:{sST+2*i+1}]")
    def srd(s, d, p, n, off=0):
        if off: s.e(f"s_add_u32 s{d}, s{p}, {off:#x}\ns_addc_u32 s{d+1}, s{p+1}, 0")
        else: s.e(f"s_mov_b64 s[{d}:{d+1}], s[{p}:{p+1}]")
        s.e(f"s_mov_b32 s{d+2}, {n:#x}\ns_mov_b32 s{d+3}, 0x00020000")
k = K(); e = k.e
def c(x):
    for ln in x.split('\n'): k.cur.append('    ; ' + ln)
def vr(a, n): return f"v[{a}:{a+n-1}]"
def sr(a): return f"s[{a}:{a+3}]"
class rare:
    def __enter__(s): s.old = k.cur; k.cur = k.tail
    def __exit__(s, *a): k.cur = s.old

LOC = 8
G = 16; RM = 80; EN = 96; TQ = 112; AS = 166; AC = 182; BQ = 230; DX = 202
cA, cOFF, cBIT, cWR, cFL, cMSK = 246, 247, 248, 249, 250, 251
cR = 252
cAM, cDR, cRD, cRA = 198, 199, 200, 201
WA = 140

def prologue():
    V = 16; T = 52; WV = 120; TP = 136; TH = 184
    e("s_cmp_ge_u32 s2, 256\ns_cbranch_scc1 L_end")
    if opt('late', -1) >= 0:
        e(f"s_cmp_lg_u32 s2, {opt('late', -1)}\ns_cbranch_scc1 L_notlate\ns_mov_b32 s3, {opt('latec', 100)}\nL_late_loop:\ns_sleep 100\ns_sub_u32 s3, s3, 1\ns_cmp_lg_u32 s3, 0\ns_cbranch_scc1 L_late_loop\nL_notlate:")
    e(f"s_load_dwordx4 s[{P_IDX}:{P_IDX+3}], s[0:1], 0")
    e(f"s_load_dwordx8 s[{P_W}:{P_W+7}], s[0:1], 32")
    e(f"s_load_dwordx2 s[{P_WS}:{P_WS+1}], s[0:1], 80")
    k.stamp(0)
    c("first touches of memory come first: this kernel's own code (into the L2), then idx (lo) / table rows, W, b, h, p (hi)")
    e(f"s_getpc_b64 s[{sEX}:{sEX+1}]\nv_lshlrev_b32 v4, 6, v0\nv_min_u32 v4, L_code_end-{KN}-64, v4\nv_mov_b32 v5, s{sEX+1}\nv_add_co_u32 v4, vcc, s{sEX}, v4\nv_lshrrev_b32 v2, 6, v0\nv_and_b32 v{vL}, 63, v0\nv_addc_co_u32 v5, vcc, 0, v5, vcc")
    e("global_load_dword v135, v[4:5], off")
    e(f"v_readfirstlane_b32 s{sJ}, v2\nv_cmp_lt_u32 vcc, 255, v0\ns_cbranch_vccnz L_hi0")
    c('lo: lane = (sample, quarter); it loads field pairs 4q..4q+3 (the last quarter: pair 12 and the repeats 0,1,2)')
    e(f"v_lshrrev_b32 v{T}, 2, v0\nv_and_b32 v{T+1}, 3, v0\ns_mul_i32 s{sT1}, s2, 6656\nv_mov_b32 v2, 104\nv_mad_u32_u24 v{T+2}, v{T}, v2, s{sT1}")
    e(f"v_lshl_add_u32 v{T+2}, v{T+1}, 5, v{T+2}\nv_add_u32 v{T+3}, 1, v{T+1}\nv_lshrrev_b32 v{T+3}, 2, v{T+3}\nv_mul_i32_i24 v4, -104, v{T+3}\nv_add3_u32 v4, v{T+2}, v4, 8")
    e("s_waitcnt lgkmcnt(0)")
    e(f"global_load_dwordx2 {vr(V,2)}, v{T+2}, s[{P_IDX}:{P_IDX+1}]\nglobal_load_dwordx4 {vr(V+2,4)}, v4, s[{P_IDX}:{P_IDX+1}]\nglobal_load_dwordx2 {vr(V+6,2)}, v4, s[{P_IDX}:{P_IDX+1}] offset:16")
    e("s_branch L_lo")
    e("L_hi0:")
    e(f"v_lshrrev_b32 v252, 5, v{vL}\nv_bfe_u32 v5, v{vL}, 3, 2\ns_lshl_b32 s{sT1}, s2, 8\nv_lshl_add_u32 v5, v5, 6, s{sT1}\nv_lshl_add_u32 v5, v252, 5, v5\nv_min_u32 v5, {64000-32}, v5")
    e(f"v_and_b32 v4, 7, v{vL}\nv_lshl_add_u32 v4, v2, 3, v4\nv_lshlrev_b32 v4, 1, v4\nv_lshl_add_u32 v4, v252, 10, v4\nv_and_b32 v6, 31, v{vL}\nv_lshlrev_b32 v7, 1, v6")
    e("s_waitcnt lgkmcnt(0)")
    e(f"global_load_dwordx4 {vr(TP,4)}, v5, s[{P_TAB}:{P_TAB+1}]\nglobal_load_short_d16_hi v{WV}, v4, s[{P_W}:{P_W+1}] offset:-64")
    e(f"global_load_short_d16_hi v{TH+1}, v7, s[{P_B}:{P_B+1}]\nglobal_load_short_d16_hi v{TH+2}, v7, s[{P_H}:{P_H+1}]\nglobal_load_short_d16_hi v{TH}, v7, s[{P_P}:{P_P+1}]")
    e("s_branch L_hi")

def lds_common():
    e("v_mov_b32 v240, -1\nv_mov_b32 v241, -1\nv_mov_b32 v242, -1\nv_mov_b32 v243, -1")
    e(f"v_lshlrev_b32 v3, 4, v0\nds_write_b128 v3, v[240:243] offset:{LIMG}\nds_write_b128 v3, v[240:243] offset:{LIMG+8192}")
    e(f"s_and_b32 s{sU}, s{sJ}, 3")

def sync_add(i):
    e(f"v_mov_b32 v5, {SYNC+4*i}\nv_mov_b32 v6, 1\ns_mov_b64 exec, 1\nds_add_u32 v5, v6\ns_mov_b64 exec, -1")
def sync_wait(i, n, nm, sleep=0):
    e(f"v_mov_b32 v5, {SYNC+4*i}")
    if sleep: e(f"s_branch L_sync_{nm}\nL_sync_{nm}_z:\ns_sleep {sleep}")
    e(f"L_sync_{nm}:\nds_read_b32 v6, v5\ns_waitcnt lgkmcnt(0)\nv_cmp_gt_u32 vcc, {n}, v6\ns_cbranch_vccnz L_sync_{nm}{'_z' if sleep else ''}")

def make_loc(KK, C4, full):
    e(f"v_mov_b32 v7, {RS}")
    if full: e(f"v_mov_b32 v6, {NANW}\nv_mov_b32 v4, -1\nds_write_b32 v6, v4")
    for t in range(8):
        if t == 2: e("s_mov_b32 exec_lo, 0x77777777\ns_mov_b32 exec_hi, 0x77777777")
        if full:
            e(f"v_and_b32 v4, 30, v{KK+t}\nv_lshlrev_b32 v5, 3, v{C4+t}\nv_add_lshl_u32 v4, v4, v5, 1\nv_cmp_le_u32 vcc, 48, v{KK+t}")
            e(f"v_lshrrev_b32 v5, 5, v{KK+t}\nv_lshlrev_b32 v5, 14, v5\nv_add3_u32 v4, v4, v5, v7\nv_cndmask_b32 v{LOC+t}, v4, v6, vcc")
        else:
            e(f"v_lshl_add_u32 v4, v{C4+t}, 3, v{KK+t}\nv_lshl_add_u32 v{LOC+t}, v4, 1, v7")
    e("s_mov_b64 exec, -1")

def lookup_consts():
    e(f"v_and_b32 v4, 15, v{vL}\nv_bfe_u32 v5, v{vL}, 4, 1\nv_lshrrev_b32 v{cBIT}, 5, v{vL}")
    e(f"s_mul_i32 s{sG+1}, s{sU}, {FLS}\ns_add_u32 s{sG+1}, s{sG+1}, {FL}\ns_lshl_b32 s{sG}, s{sU}, 18\ns_lshl_b32 s{sG+2}, s{sU}, 13\ns_add_u32 s{sG+2}, s{sG+2}, {RIM}")
    e(f"v_and_b32 v{cFL}, 31, v{vL}\nv_lshl_add_u32 v{cFL}, v{cFL}, 2, s{sG+1}")
    e(f"v_lshrrev_b32 v7, 4, v{vL}\nv_lshl_add_u32 v{cDR}, v7, 5, v4\nv_lshl_add_u32 v{cDR}, v{cDR}, 2, s{sG+1}")
    e(f"v_add_u32 v{cA}, -1, v{cBIT}\nv_and_b32 v{cA}, 0xffff0000, v{cA}")
    e(f"v_mul_u32_u24 v{cOFF}, 12, v{cBIT}\nv_mul_i32_i24 v{cWR}, -52, v{cBIT}\nv_mov_b32 v{cMSK}, 0x7ffffffe\nv_mov_b32 v{cAM}, 0x2003fffc")
    e(f"v_and_b32 v6, 1, v4\nv_lshlrev_b32 v6, 4, v6\nv_lshrrev_b32 v6, v6, 1.0")
    e(f"v_bfe_u32 v7, v4, 1, 1\nv_xor_b32 v7, v7, v5\nv_add_u32 v7, -1, v7\nv_and_b32 v6, v6, v7\nv_lshrrev_b32 v7, 2, v4")
    for q in range(4):
        e(f"v_xor_b32 v4, {q}, v7\nv_add_u32 v4, -1, v4\nv_ashrrev_i32 v4, 31, v4\nv_and_b32 v{AS+4*q}, v4, v6")
        for i in range(1, 4): e(f"v_mov_b32 v{AS+4*q+i}, v{AS+4*q}")
    e(f"v_mov_b32 v{BQ+7}, 0\nv_mov_b32 v{BQ+15}, 0")
    e(f"v_and_b32 v4, 3, v{vL}\nv_lshrrev_b32 v5, 2, v{vL}\nv_lshlrev_b32 v{cRD}, 10, v4\nv_lshl_add_u32 v{cRD}, v5, 2, v{cRD}\nv_add_u32 v{cRD}, s{sG+2}, v{cRD}")
    e(f"v_lshlrev_b32 v4, 4, v4\nv_lshl_add_u32 v{cRA}, v5, 14, v4")
    e(f"s_lshl_b32 s{sG+3}, s{sU}, 20\ns_lshl_b32 s{sT0}, s2, 6\ns_add_u32 s{sG+3}, s{sG+3}, s{sT0}")

def res_tags(lane_expr, cR=cR):
    e(f"s_and_b32 s{sT0}, s{sTAG}, 255\ns_xor_b32 s{sT1}, s{sTAG}, 1\ns_and_b32 s{sT1}, s{sT1}, 3\ns_lshl_b32 s{sT1}, s{sT1}, 8\ns_or_b32 s{sT0}, s{sT0}, s{sT1}")
    e(f"s_lshr_b32 s{sT1}, s{sTAG}, 8\ns_lshl_b32 s{sT1}, s{sT1}, 10\ns_or_b32 s{sT0}, s{sT0}, s{sT1}")
    e(lane_expr)
    e(f"v_lshlrev_b32 v4, 3, v4\nv_lshrrev_b32 v4, v4, s{sT0}")
    for j in range(4): e(f"v_bfe_u32 v5, v4, {2*j}, 2\nv_alignbit_b32 v{cR+j}, v5, v5, 1")

def pos():
    c("exchange position: workgroups with equal id mod 8 (usually one die) become neighbours; speed only")
    e(f"s_and_b32 s{sPOS}, s2, 6\ns_lshl_b32 s{sPOS}, s{sPOS}, 5\ns_lshr_b32 s{sT0}, s2, 3\ns_lshl_b32 s{sT0}, s{sT0}, 1\ns_or_b32 s{sPOS}, s{sPOS}, s{sT0}\ns_and_b32 s{sT0}, s2, 1\ns_or_b32 s{sPOS}, s{sPOS}, s{sT0}")

def late_consts():
    lookup_consts()
    e(f"s_lshl_b32 s{sCNT}, s{sU}, 12\nv_lshrrev_b32 v4, 4, v{vL}\nv_xor_b32 v4, v4, v{vL}\nv_and_b32 v4, 3, v4\nv_and_b32 v5, 60, v{vL}\nv_or_b32 v4, v4, v5\nv_lshl_add_u32 v{WA}, v4, 4, s{sCNT}")
    e(f"v_lshrrev_b32 v4, 2, v{vL}\nv_lshl_add_u32 v5, v{vL}, 6, s{sCNT}")
    for g in range(4): e(f"v_xor_b32 v6, {g}, v4\nv_and_b32 v6, 3, v6\nv_lshl_add_u32 v{WA+1+g}, v6, 4, v5")
    e(f"v_lshl_add_u32 v4, v{vL}, 4, s{sG+1}")
    for i in range(8): e(f"ds_write_b128 v4, v[240:243] offset:{1024*i}")
    res_tags("v_and_b32 v4, 3, v0")

def route():
    V = 16; KK = 24; C4 = 32; RW = 40; EB = 44; T = 52
    TP = 64; TU = 72; WR = 88; WV = 104; MU = 120; PP = 128
    c('================ lo waves (0-3): route ================')
    e("L_lo:\ns_setprio 2")
    lds_common()
    e(f"v_mov_b32 v4, 0\nv_lshlrev_b32 v5, 2, v0\nds_write_b32 v5, v4 offset:{CNT}\nv_and_b32 v5, 12, v5\nds_write_b32 v5, v4\nds_write_b32 v5, v4 offset:{NW}")
    k.srd(S_IDX, P_IDX, 16384 * 104)
    e(f"v_lshlrev_b32 v{EB}, 2, v{T+1}\nv_mul_u32_u24 v4, 13, v{T+3}\nv_sub_u32 v4, v{EB}, v4")
    for t in range(1, 4): e(f"v_add_u32 v{EB+2*t}, {t}, v4")
    e("s_waitcnt lgkmcnt(0)")
    e(f"s_load_dword s{sTAG}, s[{P_WS}:{P_WS+1}], {EPOCH:#x}")
    e(f"s_load_dwordx16 s[{sH}:{sH+15}], s[{P_H}:{P_H+1}], 0")
    e(f"s_load_dwordx2 s[{P_OUT}:{P_OUT+1}], s[0:1], 64")
    e("s_barrier")
    pos()
    k.srd(S_TABL, P_TAB, 64000)
    k.srd(S_W, P_W, 2048)
    e(f"v_lshrrev_b32 v130, 5, v{vL}\nv_bfe_u32 v131, v{vL}, 3, 2\nv_lshlrev_b32 v131, 6, v131\nv_lshl_add_u32 v131, v130, 5, v131")
    e(f"v_and_b32 v133, 31, v{vL}\nv_lshlrev_b32 v132, 6, v133\nv_lshlrev_b32 v133, 1, v133")
    k.srd(S_ROW, P_WS, 0x100000, ROW0)
    k.srd(S_LIST, P_WS, 250 * 16384, L0)
    k.srd(S_RES, P_WS, 0x800000, R0)
    e(f"v_lshlrev_b32 v{T+3}, 8, v{T}")
    for t in range(4):
        e(f"v_add_u32 v4, 6, v{EB+2*t}\nv_lshl_or_b32 v{EB+2*t+1}, v{EB+2*t}, 4, v{T+3}")
        e(f"v_lshrrev_b32 v4, 4, v4\nv_lshl_or_b32 v{EB+2*t+1}, v4, 1, v{EB+2*t+1}\nv_or_b32 v{EB+2*t}, 1, v{EB+2*t+1}")
    for t in range(8): e(f"v_mov_b32 v{LOC+t}, 0\nv_mov_b32 v{KK+t}, 0")
    e(f"v_mov_b32 v2, 2\nv_mov_b32 v7, 0x100010")
    e(f"v_and_b32 v4, 3, v0\nv_lshlrev_b32 v{T+4}, 14, v{T}\nv_lshl_add_u32 v{T+4}, v4, 4, v{T+4}")
    e(f"v_add_u32 v{T+5}, 1, v4\nv_lshrrev_b32 v{T+5}, 2, v{T+5}\nv_sub_u32 v{T+5}, 0, v{T+5}")
    e(f"s_lshl_b32 s{sT0}, s{sPOS}, 12\ns_waitcnt vmcnt(0)")
    k.stamp(1)
    c('row of the sample: 16 dwords of two u16 table offsets (id+1)*16; 13 field pairs + the first three again')
    for t in range(4): e(f"v_lshl_or_b32 v{RW+t}, v{V+2*t+1}, 16, v{V+2*t}\nv_lshl_add_u32 v{RW+t}, v{RW+t}, 4, v7")
    e(f"buffer_store_dwordx4 {vr(RW,4)}, v3, {sr(S_ROW)}, s{sT0} offen{SC}")
    e(f"s_lshl_b32 s{sT1}, s2, 8")
    for x in range(2): e(f"buffer_load_dwordx4 {vr(TP+4*x,4)}, v131, {sr(S_TABL)}, s{sT1} offen offset:{16*x}")
    for t in range(4): e(f"buffer_load_dwordx4 {vr(WR+4*t,4)}, v132, {sr(S_W)}, 0 offen offset:{16*t}")
    e(f"global_load_short_d16_hi v{PP}, v133, s[{P_P}:{P_P+1}]")
    c('rank of every occurrence inside its bucket (bucket = id>>2), entry = sample<<8 | pair<<4 | (id&3)<<2 | wrap<<1 | first')
    for t in range(8):
        if t == 2: e("s_mov_b32 exec_lo, 0x77777777\ns_mov_b32 exec_hi, 0x77777777")
        e(f"v_and_b32 v{C4+t}, -4, v{V+t}\nds_add_rtn_u32 v{KK+t}, v{C4+t}, v2 offset:{CNT}")
    e("s_mov_b64 exec, -1")
    for t in range(8): e(f"v_lshlrev_b32 v{V+t}, 2, v{V+t}\nv_and_or_b32 v{V+t}, v{V+t}, 12, v{EB+t}")
    e("s_waitcnt lgkmcnt(0)")
    for t in range(8):
        if t == 2: e("s_mov_b32 exec_lo, 0x77777777\ns_mov_b32 exec_hi, 0x77777777")
        e(f"v_min_u32 v4, 54, v{KK+t}\nv_lshl_add_u32 v4, v{C4+t}, 4, v4\nds_write_b16 v4, v{V+t} offset:{LIMG}")
    e("s_mov_b64 exec, -1")
    e(f"s_lshl_b32 s{sT0}, s{sPOS}, 6")
    e(f"s_add_u32 s{sTAG}, s{sTAG}, 1")
    k.srd(S_OUT, P_OUT, 32768)
    k.stamp(2)
    e(f"v_mov_b32 v7, s{sTAG}\ns_waitcnt vmcnt(7) lgkmcnt(0)")
    sync_add(0)
    sync_wait(0, 4, 'lo')
    k.stamp(3)
    c('all rows of this workgroup are in memory: waves 0,1 publish the 250 list cells (64 B: entries, count, epoch tag)\nwaves 2,3 build the operand images of the linear term (W h / 2) and of the value (p)')
    PR = lambda h: 146 + 4 * h if h < 5 else 202 + 4 * (h - 5)
    e(f"s_cmp_ge_u32 s{sU}, 2\ns_cbranch_scc1 L_nopub\nv_and_b32 v4, -4, v0")
    for h in range(7): e(f"ds_read_b128 {vr(PR(h),4)}, v3 offset:{LIMG+2048*h}\nds_read_b32 v{216+h}, v4 offset:{CNT+128*h}")
    for h in range(8):
        e(f"s_waitcnt lgkmcnt({12 if h==0 else 14-2*h})")
        if h == 0: e(f"ds_read_b128 {vr(PR(7),4)}, v3 offset:{LIMG+2048*7}\nds_read_b32 v223, v4 offset:{CNT+128*7}")
        e(f"v_bfi_b32 v{PR(h)+3}, v{T+5}, v7, v{PR(h)+3}\nv_bfi_b32 v{PR(h)+2}, v{T+5}, v{216+h}, v{PR(h)+2}")
        e(f"buffer_store_dwordx4 {vr(PR(h),4)}, v{T+4}, {sr(S_LIST)}, s{sT0} offen{SC}")
        if h < 7: e(f"s_add_u32 s{sT0}, s{sT0}, 0x80000")
    e("s_waitcnt vmcnt(8)\ns_branch L_noa5\nL_nopub:")
    e(f"s_and_b32 s{sT1}, s{sU}, 1\ns_mul_i32 s{sT0}, s{sT1}, 384\nv_lshl_add_u32 v134, v{vL}, 2, s{sT0}\nv_mov_b32 v6, 0\nv_lshl_add_u32 v4, v133, 1, s{sT0}\nds_write_b32 v4, v6 offset:{GP+256}")
    e(f"s_lshl_b32 s{sNT}, s{sT1}, 2\nv_and_b32 v4, 7, v{vL}\nv_subrev_u32 v4, s{sNT}, v4\nv_min_u32 v4, 2, v4\nv_lshlrev_b32 v4, 7, v4\nv_lshl_add_u32 v4, v130, 6, v4\nv_add_u32 v132, s{sT0}, v4")
    e(f"s_lshl_b32 s{sT1}, s{sT1}, 11\nv_lshl_add_u32 v131, v{vL}, 4, s{sT1}\nv_cmp_gt_u32 vcc, 32, v{vL}\ns_waitcnt vmcnt(0)")
    for t in range(16): e(f"v_dot2_f32_bf16 v6, v{WR+t}, s{sH+t}, v6")
    for t in range(8): e(f"v_lshlrev_b32 v{TU+2*t}, 16, v{TP+t}\nv_and_b32 v{TU+2*t+1}, 0xffff0000, v{TP+t}")
    e(f"v_mul_f32 v6, {LOG2E_HALF:#x}, v6\nv_cndmask_b32 v6, v{PP}, v6, vcc\nds_write_b32 v134, v6 offset:{GP}\ns_waitcnt lgkmcnt(0)")
    for t in range(4): e(f"ds_read_b128 {vr(WV+4*t,4)}, v132 offset:{GP+16*t}")
    e("s_waitcnt lgkmcnt(0)")
    for t in range(16): e(f"v_mul_f32 v{WV+t}, v{WV+t}, v{TU+t}")
    for t in range(8): e(f"v_cvt_pk_bf16_f32 v{MU+t}, v{WV+2*t}, v{WV+2*t+1}")
    e(f"ds_write_b128 v131, {vr(MU,4)} offset:{AIMG+8192}\nds_write_b128 v131, {vr(MU+4,4)} offset:{AIMG+8192+1024}\ns_waitcnt lgkmcnt(0)")
    sync_add(2)
    e("L_noa5:")
    k.stamp(4)
    c("where the sums of this lane's occurrences will be found")
    make_loc(KK, C4, False)
    e(f"v_max3_u32 v7, v{KK}, v{KK+1}, v{KK+2}\nv_max3_u32 v7, v7, v{KK+3}, v{KK+4}\nv_max3_u32 v7, v7, v{KK+5}, v{KK+6}\nv_max_u32 v7, v7, v{KK+7}")
    e(f"v_cmp_le_u32 vcc, 32, v7\ns_cbranch_vccnz L_mark\nL_mark_ret:")
    with rare():
        e("L_mark:"); make_loc(KK, C4, True); sync_add(4); e("s_branch L_mark_ret")

def decode(ns):
    for i, n in enumerate(ns): e(f"v_lshrrev_b32 v{TQ+i}, 2, v{RM+n}\nv_bfe_i32 v{TQ+4+i}, v{RM+n}, v{cBIT}, 1")
    for i, n in enumerate(ns): e(f"v_and_b32 v{TQ+i}, v{TQ+i}, v{cAM}\nv_and_b32 v{TQ+8+i}, v{TQ+4+i}, v{cWR}")
    for i, n in enumerate(ns): e(f"v_add3_u32 v{TQ+i}, v{TQ+i}, v{cOFF}, v{TQ+8+i}\nv_and_b32 v{TQ+4+i}, v{TQ+4+i}, v{cA}")
    for i, n in enumerate(ns):
        e(f"buffer_load_dwordx4 {vr(G+4*n,4)}, v{TQ+i}, {sr(S_ROW)}, s{sG} offen{SC}\nv_and_or_b32 v{RM+n}, v{RM+n}, 12, v{TQ+4+i}")
def addrs(n, buf):
    g = G + 4 * n; r = RM + n
    e(f"v_and_b32 v{g}, v{g}, v{r}")
    for t, (d, dw, hi) in enumerate([(2, 1, 0), (g + 1, 1, 1), (3, 2, 0), (g + 2, 2, 1), (4, 3, 0), (g + 3, 3, 1), (g, 0, 1)]):
        e(f"v_add_u32_sdwa v{d}, v{r}, v{g+dw} dst_sel:DWORD dst_unused:UNUSED_PAD src0_sel:WORD_0 src1_sel:WORD_{hi}")
        e(f"ds_read_b32 v{BQ+8*buf+t}, v{d}")
def mf(n, buf):
    a = AC + 4 * (n // 4); q = n & 3
    e(f"v_mfma_f32_16x16x32_bf16 {vr(a,4)}, {vr(AS+4*q,4)}, {vr(BQ+8*buf,4)}, {'0' if q==0 else vr(a,4)}")
    e(f"v_mfma_f32_16x16x32_bf16 {vr(a,4)}, {vr(AS+4*q,4)}, {vr(BQ+8*buf+4,4)}, {vr(a,4)}")
def dreads(addr):
    for q in range(4): e(f"ds_read2_b32 {vr(DX+2*q,2)}, v{addr+q//2} offset0:{128*(q%2)} offset1:{128*(q%2)+16}")
def dests():
    for q in range(8): e(f"v_lshrrev_b32 v{DX+q}, 12, v{DX+q}")
    for q in range(8): e(f"v_and_or_b32 v{DX+q}, v{DX+q}, v5, v6")
def res_stores(lvl, s0):
    T = G + 16 * lvl
    e(f"v_add_u32 v2, 64, v{cRD}\nv_add_u32 v3, 128, v{cRD}\nv_add_u32 v4, 192, v{cRD}\ns_waitcnt lgkmcnt(6)")
    for i in range(4):
        for x in range(2): e(f"ds_read2st64_b32 {vr(T+4*i+2*x,2)}, v{cRD if i==0 else 1+i} offset0:{16*lvl+2*x} offset1:{16*lvl+2*x+1}")
    for i in range(4):
        e(f"s_waitcnt lgkmcnt({6-2*i})")
        for j in range(4): e(f"v_and_or_b32 v{T+4*i+j}, v{T+4*i+j}, v{cMSK}, v{cR+j}")
        e(f"buffer_store_dwordx4 {vr(T+4*i,4)}, v{cRA}, {sr(S_RES)}, s{s0} offen{SC}")
        if i < 3: e(f"s_add_u32 s{s0}, s{s0}, 0x40000")

def lo_lookup():
    POLL = 16; NQ = 3
    e("s_cmp_ge_u32 s2, 250\ns_cbranch_scc1 L_nobucket0")
    with rare(): e("L_nobucket0:\ns_waitcnt lgkmcnt(0)\ns_branch L_nobucket")
    c('================ lo waves: lookups for bucket = workgroup id ================')
    e("s_setprio 0"); late_consts(); e("s_setprio 2")
    e(f"v_lshlrev_b32 v3, 4, v{vL}\ns_lshl_b32 s{sT0}, s2, 14\ns_add_u32 s{sT0}, s{sT0}, s{sCNT}")
    e(f"s_mov_b32 s{sNT}, 0\ns_mov_b32 s{sEX}, 0x88888888\ns_mov_b32 s{sEX+1}, 0x88888888")
    CW, CN1, CD, CP = DX + 8, DX + 9, DX + 10, DX + 11
    RA2 = DX + 12
    e(f"v_lshlrev_b32 v{CW}, 14, v{vL}\nv_mov_b32 v{CD}, {DUMP}\nv_lshl_add_u32 v{CP}, v{vL}, 2, s{sG+1}")
    e(f"s_and_b32 s{sT1}, s{sU}, 1\ns_lshl_b32 s{sT1}, s{sT1}, 2\ns_add_u32 s{sT1}, s{sT1}, {NW}\nv_mov_b32 v2, s{sT1}")
    k.stamp(5)
    c('waves 2,3 fetch the incoming cells (their own stores do not stand in front of the loads); waves 0,1 wait for the word in LDS')
    e(f"s_cmp_ge_u32 s{sU}, 2\ns_cbranch_scc1 L_poller")
    e("L_wait_lists:\ns_sleep 1\nds_read_b32 v4, v2\ns_waitcnt lgkmcnt(0)\nv_cmp_eq_u32 vcc, 0, v4\ns_cbranch_vccnz L_wait_lists")
    e(f"v_cmp_eq_u32 vcc, 1, v4\ns_cbranch_vccnz L_poll1_ok\ns_branch L_gaveup")
    e(f"L_poller:\ns_sub_u32 s{sT1}, s{sT0}, 0x2000\nv_add_u32 v7, {(-0x2000)&0xffffffff:#x}, v{WA}")
    c('back-off: reading a line before it has been written makes that write slow, so the first look waits a little')
    if DL1: e(f"s_sleep {DL1}")
    e("L_poll1:")
    for h in range(8): e(f"buffer_load_dwordx4 {vr(POLL+4*h,4)}, v3, {sr(S_LIST)}, s{sT1 if h<4 else sT0} offen offset:{1024*(h%4)}{SC}")
    for h in range(8):
        e(f"s_waitcnt vmcnt({7-h})")
        if h == 0: e(f"v_xor_b32 v4, s{sTAG}, v{POLL+3}")
        else: e(f"v_xor_b32 v5, s{sTAG}, v{POLL+4*h+3}\nv_or_b32 v4, v4, v5")
        e(f"ds_write_b128 v{7 if h<4 else WA}, {vr(POLL+4*h,4)} offset:{WL+1024*(h%4)}")
    e(f"v_cmp_ne_u32 vcc, 0, v4\ns_and_b64 vcc, vcc, s[{sEX}:{sEX+1}]\nv_mov_b32 v5, 1\ns_waitcnt lgkmcnt(0)")
    e("s_cbranch_vccnz L_poll1_again\nds_write_b32 v2, v5\nL_poll1_ok:")
    with rare():
        e("L_poll1_again:")
        e(f"s_add_u32 s{sNT}, s{sNT}, 1\ns_cmp_lt_u32 s{sNT}, {LIMIT}\ns_cbranch_scc1 L_poll1")
        for i in range(4): e(f"v_mov_b32 v{POLL+i}, 0")
        for h in range(8): e(f"ds_write_b128 v{7 if h<4 else WA}, {vr(POLL,4)} offset:{WL+1024*(h%4)}")
        e("v_mov_b32 v5, 2\ns_waitcnt lgkmcnt(0)\nds_write_b32 v2, v5\nL_gaveup:")
        for i in range(4): e(f"v_or_b32 v{cR+i}, 0x7fc00000, v{cR+i}")
        e("s_branch L_poll1_ok")
    k.stamp(6)
    c('one cell per lane: the first entries of every cell form dense tiles that are fetched at once,\nthe others are packed behind them (count, prefix sum, flat list written from the highest slot down)')
    ND = opt('nd', 2); P1 = 2 * ND; P2 = opt('p2', 6)
    e(f"ds_read_b128 {vr(EN,4)}, v{WA+1} offset:{WL}\nds_read_b128 {vr(EN+12,4)}, v{WA+4} offset:{WL}")
    for g in (1, 2): e(f"ds_read_b128 {vr(EN+4*g,4)}, v{WA+1+g} offset:{WL}")
    e("s_waitcnt lgkmcnt(3)")
    def word(j, d, w): e(f"v_or_b32_sdwa v{d}, v{w}, sext(v{EN+j//2}) dst_sel:DWORD dst_unused:UNUSED_PAD src0_sel:DWORD src1_sel:WORD_{j&1}")
    for j in range(ND):
        if j: e(f"v_add_u32 v5, {j<<20:#x}, v{CW}")
        word(j, 6 + (j & 1), 5 if j else CW); e(f"ds_write_b32 v{CP}, v{6+(j&1)} offset:{256*j}")
    for n in range(P1): e(f"ds_read_b32 v{RM+n}, v{cFL} offset:{128*n}")
    e(f"s_waitcnt lgkmcnt({P1+ND+2})\nv_lshrrev_b32 v2, 1, v{EN+14}\nv_min_u32 v2, 24, v2\nv_sub_u32 v2, v2, {ND} clamp\nv_mov_b32 v3, v2\ns_nop 1")
    scan = [f"v_add_u32_dpp v3, v3, v3 {m} row_mask:0xf bank_mask:0xf" for m in ("row_shr:1", "row_shr:2", "row_shr:4", "row_shr:8")]
    scan += ["v_add_u32_dpp v3, v3, v3 row_bcast:15 row_mask:0xa bank_mask:0xf", "v_add_u32_dpp v3, v3, v3 row_bcast:31 row_mask:0xc bank_mask:0xf"]
    e(scan[0]); e(f"s_waitcnt lgkmcnt({max(P1-4,0)})")
    n0 = len(k.L); decode(list(range(min(4, P1))))
    if P1 > 4: e("s_waitcnt lgkmcnt(0)"); decode(list(range(4, P1)))
    body = k.L[n0:]; del k.L[n0:]
    for i, x in enumerate(body):
        k.L.append(x)
        if i % 3 == 2 and len(scan) > 1: e(scan.pop(1))
    for x in scan[1:]: e("s_nop 1"); e(x)
    e(f"v_cmp_eq_u32 vcc, 0, v2\nv_readlane_b32 s{sNT}, v3, 63\nv_sub_u32 v{CN1}, v3, v2\nv_lshl_add_u32 v3, v{CN1}, 2, s{sG+1}\nv_cndmask_b32 v3, v3, v{CD}, vcc")
    e(f"v_cmp_lt_u32 vcc, {16-ND}, v2\ns_or_b32 s{sBAD}, vcc_lo, vcc_hi\ns_add_u32 s{sNT}, s{sNT}, {64*ND}\ns_waitcnt lgkmcnt(0)\ns_cbranch_vccnz L_fl23")
    e(f"v_cmp_lt_u32 vcc, {14-ND}, v2\nv_add_u32 v5, {15<<20:#x}, v{CW}\ns_cbranch_vccnz L_fl15\nv_add_u32 v5, {13<<20:#x}, v{CW}\ns_branch L_fl13")
    def put(j):
        word(j, 6 + (j & 1), 5)
        if j > ND: e(f"v_add_u32 v5, 0xfff00000, v5")
        e(f"ds_write_b32 v3, v{6+(j&1)} offset:{256*ND+4*(j-ND)}")
    with rare():
        e(f"L_fl23:\nv_add_u32 v5, {23<<20:#x}, v{CW}")
        for j in range(23, 15, -1): put(j)
        e("s_waitcnt lgkmcnt(0)\ns_branch L_fl15")
    for j in range(15, ND - 1, -1):
        if j in (15, 13): e(f"L_fl{j}:")
        put(j)
        if j == 8: e("s_waitcnt lgkmcnt(4)")
    e(f"v_add_u32 v7, 1024, v{cDR}\nv_mov_b32 v6, v{cDR}\ns_waitcnt lgkmcnt(3)")
    for n in range(P1, 16): e(f"ds_read_b32 v{RM+n}, v{cFL} offset:{128*n}")
    c("a cell group whose entries all lie in the first 256 / 384 list places is stored as soon as those sums exist")
    e(f"v_readlane_b32 s{sT0}, v{CN1}, 16\nv_readlane_b32 s{sT1}, v{CN1}, 32\nv_readlane_b32 s{sT2}, v{CN1}, 48\nv_add_u32 v{RA2}, 64, v{cRD}\nv_add_u32 v{RA2+1}, 128, v{cRD}\nv_add_u32 v{RA2+2}, 192, v{cRD}")
    e(f"s_cmp_le_u32 s{sT0}, {256-64*ND}\ns_cselect_b32 s3, 1, 0\ns_cmp_le_u32 s{sT1}, {384-64*ND}\ns_cselect_b32 s{sT0}, 2, 0\ns_or_b32 s3, s3, s{sT0}\ns_cmp_le_u32 s{sT2}, {384-64*ND}\ns_cselect_b32 s{sT0}, 4, 0\ns_or_b32 s3, s3, s{sT0}\ns_mov_b32 s{sCNT}, 0")
    e("L_round:")
    e(f"s_add_u32 s{sT2}, s{sNT}, 31\ns_lshr_b32 s{sT2}, s{sT2}, 5\ns_waitcnt lgkmcnt({16-P2})")
    for x in range(P1, P2, 4): decode(list(range(x, min(x + 4, P2))))
    dreads(6)
    k.stamp(7)
    c('the table is complete')
    sync_wait(5, 4, 'tab', 1)
    k.stamp(8)
    e(f"v_mov_b32 v5, 0x1ffc\nv_mov_b32 v6, s{sG+2}")
    dests()
    c('tile = 32 occurrences x 2 lanes x 7 lookups; the sums over the lookups are formed by MFMA with 0/1 selectors')
    R = 16 - P2
    def scat(q):
        a_ = AC + 4 * q
        e(f"v_cvt_pk_bf16_f32 v{a_}, v{a_+1}, v{a_}\nv_cvt_pk_bf16_f32 v{a_+2}, v{a_+3}, v{a_+2}")
        e(f"ds_write_b32 v{DX+2*q}, v{a_}\nds_write_b32 v{DX+2*q+1}, v{a_+2}")
    def grd(i):
        for x in range(2): e(f"ds_read2st64_b32 {vr(G+4*i+2*x,2)}, v{cRD if i==0 else RA2+i-1} offset0:{2*x} offset1:{2*x+1}")
    def gst(i):
        for j in range(4): e(f"v_and_or_b32 v{G+4*i+j}, v{G+4*i+j}, v{cMSK}, v{cR+j}")
        e(f"s_add_u32 s{sT0}, s{sG+3}, {i*0x40000:#x}\nbuffer_store_dwordx4 {vr(G+4*i,4)}, v{cRA}, {sr(S_RES)}, s{sT0} offen{SC}\ns_bitset1_b32 s{sCNT}, {i}")
    def early(i, nm):
        e(f"s_bitcmp1_b32 s3, {i}\ns_cbranch_scc0 L_e{nm}"); gst(i); e(f"L_e{nm}:")
    for n in range(16):
        e(f"s_waitcnt vmcnt({P2+min(n,R)-1-n})"); addrs(n, n & 1)
        if n: e("s_waitcnt lgkmcnt(7)"); mf(n - 1, (n - 1) & 1)
        if n < R: decode([P2 + n])
        if n == 5: scat(0)
        if n == 9: scat(1); grd(0)
        if n == 10: early(0, 'a')
        if n == 13: scat(2); grd(1); grd(2)
        if n == 14: early(1, 'b'); early(2, 'c')
        if 11 <= n < 15: e(f"s_cmp_le_u32 s{sT2}, {n+1}\ns_cbranch_scc1 L_x{n}")
    e("s_waitcnt lgkmcnt(0)"); mf(15, 1); e("s_nop 6\ns_branch L_tiles_done")
    for n in (11, 12):
        e(f"L_x{n}:\ns_waitcnt lgkmcnt(0)"); mf(n, n & 1); e("s_nop 7"); scat(2); e("s_branch L_tiles_done")
    e("L_x14:\ns_waitcnt lgkmcnt(0)"); mf(14, 0); e("s_nop 6\ns_branch L_tiles_done")
    e("L_x13:\ns_waitcnt lgkmcnt(0)"); mf(13, 1); early(1, 'd'); early(2, 'e'); e("s_nop 3")
    e("L_tiles_done:")
    scat(3)
    e(f"s_cmp_gt_u32 s{sNT}, 512\ns_cbranch_scc1 L_more")
    with rare():
        e(f"L_more:\ns_mov_b32 s3, 0\ns_sub_u32 s{sNT}, s{sNT}, 512\nv_add_u32 v{cFL}, 2048, v{cFL}\nv_add_u32 v{cDR}, 2048, v{cDR}\nv_add_u32 v7, 1024, v{cDR}\nv_mov_b32 v6, v{cDR}")
        e("s_waitcnt vmcnt(0) lgkmcnt(0)")
        for n in range(16):
            e(f"ds_read_b32 v{RM+n}, v{cFL} offset:{128*n}")
            if n == 7: e("s_waitcnt lgkmcnt(0)")
        e("s_waitcnt lgkmcnt(0)")
        for x in range(0, P1, 4): decode(list(range(x, min(x + 4, P1))))
        e("s_branch L_round")
    c('result cells: 16 x (sum w : bf16 | sum w*s : bf16), bit 31 and bit 0 of every dword carry the epoch tag')
    grd(3)
    e(f"s_cmp_lg_u32 s{sCNT}, 7\ns_cbranch_scc1 L_late\nL_late_ret:\ns_waitcnt lgkmcnt(0)")
    with rare():
        e("L_late:")
        for i in range(3): grd(i)
        e("s_waitcnt lgkmcnt(0)")
        for i in range(3):
            e(f"s_bitcmp1_b32 s{sCNT}, {i}\ns_cbranch_scc1 L_l{i}"); gst(i); e(f"L_l{i}:")
        e("s_branch L_late_ret")
    gst(3)
    e(f"s_cmp_lg_u32 s{sBAD}, 0\ns_cbranch_scc1 L_res2\nL_res2_ret:")
    with rare():
        e(f"L_res2:\ns_add_u32 s{sT0}, s{sG+3}, {RLV:#x}"); res_stores(1, sT0); e("s_branch L_res2_ret")
    e("L_nobucket:")
    k.stamp(9)

def hi_lookup():
    e("s_waitcnt lgkmcnt(0)")
    sync_add(5)
    c("================ hi waves: fetch the result cells of this workgroup's samples ================")
    e("L_hi_final:")
    pos()
    e(f"s_add_u32 s{sTAG}, s{sTAG}, 1")
    res_tags("v_and_b32 v4, 3, v0", 96)
    final_poll()
    k.stamp(6)

def final_poll():
    cR = 96
    T = 32; X = 48; Y = 64; CN = 80; YA = 84
    e(f"v_and_b32 v2, 255, v0\nv_lshlrev_b32 v{T}, 4, v2\nv_add_u32 v{T+1}, 0x2000, v{T}\ns_lshl_b32 s{sT0}, s{sPOS}, 14\ns_add_u32 s{sT1}, s{sT0}, 0x1000")
    e(f"v_cmp_gt_u32 vcc, 232, v2\ns_mov_b64 s[{sEX}:{sEX+1}], vcc\ns_mov_b32 s{sNT}, 0")
    sync_wait(0, 8, 'res', 2)
    e(f"ds_read_b32 v6, v5 offset:16\ns_waitcnt lgkmcnt(0)\nv_readfirstlane_b32 s{sRARE}, v6")
    for h in range(4): e(f"v_mov_b32 v{YA+h}, -1")
    e(f"s_cmp_lg_u32 s{sRARE}, 0\ns_cbranch_scc1 L_rare0\nL_rare0_ret:")
    with rare():
        e(f"L_rare0:\nv_and_b32 v4, -4, v2\ns_add_u32 s{sBAD}, s{sT0}, {RLV:#x}\nv_mov_b32 v7, 0x80000000")
        for h in range(4): e(f"ds_read_b32 v{CN+h}, v4 offset:{CNT+256*h}")
        e("s_waitcnt lgkmcnt(0)")
        for h in range(4):
            e(f"v_add_u32 v{CN+h}, -33, v{CN+h}\nv_add_u32 v4, {4096*h}, v{T}\nv_and_or_b32 v{YA+h}, v{CN+h}, v7, v4\nv_ashrrev_i32 v{CN+h}, 31, v{CN+h}")
        e("s_branch L_rare0_ret")
    c('back-off, as above')
    if DL2: e(f"s_sleep {DL2}")
    e("L_poll2:")
    e(f"s_cmp_lg_u32 s{sRARE}, 0\ns_cbranch_scc1 L_rare1\nL_rare1_ret:")
    with rare():
        e("L_rare1:")
        for h in range(4): e(f"buffer_load_dwordx4 {vr(Y+4*h,4)}, v{YA+h}, {sr(S_RES)}, s{sBAD} offen{SC}")
        e("s_branch L_rare1_ret")
    for h in range(4): e(f"buffer_load_dwordx4 {vr(X+4*h,4)}, v{T+h//2}, {sr(S_RES)}, s{sT0 if h%2==0 else sT1} offen{SC}")
    for h in range(4):
        d = T + 2 if h < 3 else T + 3
        e(f"s_waitcnt vmcnt({3-h})")
        for j in range(4):
            if j == 0 and h in (0, 3): e(f"v_xor_b32 v{d}, v{X+4*h}, v{cR}")
            else: e(f"v_bitop3_b32 v{d}, v{d}, v{X+4*h+j}, v{cR+j} bitop3:0xf6")
        e(f"ds_write_b128 v{T}, {vr(X+4*h,4)} offset:{RS+4096*h}")
    e(f"s_cmp_lg_u32 s{sRARE}, 0\ns_cbranch_scc1 L_rare2\nL_rare2_ret:")
    with rare():
        e("L_rare2:")
        for h in range(4):
            for j in range(4):
                if j == 0: e(f"v_xor_b32 v4, v{Y+4*h}, v{cR}")
                else: e(f"v_bitop3_b32 v4, v4, v{Y+4*h+j}, v{cR+j} bitop3:0xf6")
            e(f"v_bitop3_b32 v{T+2}, v{T+2}, v4, v{CN+h} bitop3:0xf4")
            e(f"ds_write_b128 v{T}, {vr(Y+4*h,4)} offset:{RS+16384+4096*h}")
        e("s_branch L_rare2_ret")
    e(f"v_and_b32 v{T+3}, 0x80000001, v{T+3}\nv_and_b32 v{T+2}, 0x80000001, v{T+2}")
    e(f"v_cmp_ne_u32 vcc, 0, v{T+3}\ns_and_b64 s[{sU}:{sU+1}], vcc, s[{sEX}:{sEX+1}]\nv_cmp_ne_u32 vcc, 0, v{T+2}\ns_or_b64 vcc, vcc, s[{sU}:{sU+1}]")
    e("s_cbranch_vccnz L_poll2_again\nL_poll2_ok:")
    with rare():
        e("L_poll2_again:")
        e(f"s_waitcnt lgkmcnt(0)\ns_add_u32 s{sNT}, s{sNT}, 1\ns_cmp_lt_u32 s{sNT}, {LIMIT}\ns_cbranch_scc1 L_poll2")
        sync_add(3)
        e("s_branch L_poll2_ok")
    k.stamp(10)
    e("s_waitcnt lgkmcnt(0)\ns_barrier")

def final():
    T = 32; X = 48
    c('================ lo waves: combine ================')
    sync_add(0)
    for t in range(8): e(f"v_and_b32 v{T+8+t}, 0xffff, v{LOC+t}")
    e(f"s_lshl_b32 s{sT2}, s2, 7\ns_lshl_b32 s{sBAD}, s{sJ}, 5\ns_add_u32 s{sT2}, s{sT2}, s{sBAD}")
    e(f"v_lshrrev_b32 v3, 2, v{vL}\nv_lshlrev_b32 v3, 1, v3\ns_waitcnt lgkmcnt(0)\ns_barrier")
    k.stamp(10)
    e(f"s_or_b32 s{sCNT}, s2, s{sJ}\ns_cmp_eq_u32 s{sCNT}, 0\ns_cbranch_scc1 L_epoch\nL_epoch_ret:")
    with rare():
        e(f"L_epoch:\ns_mov_b64 exec, 1\nv_mov_b32 v4, {EPOCH:#x}\nv_mov_b32 v5, s{sTAG}\nglobal_store_dword v4, v5, s[{P_WS}:{P_WS+1}]{SC}\ns_mov_b64 exec, -1\ns_branch L_epoch_ret")
    e(f"v_mov_b32 v5, {SYNC+12}\nds_read_b32 v6, v5")
    for t in range(8): e(f"ds_read_b32 v{X+t}, v{T+8+t}")
    for t in range(8):
        e(f"s_waitcnt lgkmcnt({7-t})\nv_and_b32 v{T+t}, 0x7fff0000, v{X+t}\nv_lshlrev_b32 v{X+t}, 16, v{X+t}")
        if t % 2: e(f"v_add_f32 v{T+t-1}, v{T+t-1}, v{T+t}\nv_add_f32 v{X+t-1}, v{X+t-1}, v{X+t}")
        if t % 4 == 3: e(f"v_add_f32 v{T+t-3}, v{T+t-3}, v{T+t-1}\nv_add_f32 v{X+t-3}, v{X+t-3}, v{X+t-1}")
    e(f"v_add_f32 v{T}, v{T}, v{T+4}\nv_add_f32 v{X}, v{X}, v{X+4}\ns_nop 0")
    e(f"v_add_f32_dpp v{T+1}, v{T}, v{T} quad_perm:[1,0,3,2] row_mask:0xf bank_mask:0xf")
    e(f"v_add_f32_dpp v{X+1}, v{X}, v{X} quad_perm:[1,0,3,2] row_mask:0xf bank_mask:0xf")
    e("s_nop 0")
    e(f"v_add_f32_dpp v{T}, v{T+1}, v{T+1} quad_perm:[2,3,0,1] row_mask:0xf bank_mask:0xf")
    e(f"v_add_f32_dpp v{X}, v{X+1}, v{X+1} quad_perm:[2,3,0,1] row_mask:0xf bank_mask:0xf")
    e(f"v_rcp_f32 v{T+1}, v{T}")
    c('the weights were formed against a fixed reference instead of the row maximum: safe iff 2^-80 <= sum < 2^100 and the\nquotient is finite; otherwise (also after an overflow of a cell or a lost hand-off) recompute with the true maximum')
    e(f"v_add_u32 v{T+2}, {(-0x17800000)&0xffffffff:#x}, v{T}\nv_mul_f32 v{X}, v{X}, v{T+1}\nv_cmp_gt_u32 vcc, 0x5a000000, v{T+2}")
    e(f"v_and_b32 v{T+3}, 0x7fffffff, v{X}\ns_mov_b64 s[{sEX}:{sEX+1}], vcc\nv_cmp_gt_u32 vcc, 0x7f800000, v{T+3}\nv_cvt_pk_bf16_f32 v{X}, v{X}, v{X}")
    e(f"s_and_b64 s[{sEX}:{sEX+1}], vcc, s[{sEX}:{sEX+1}]\nv_cmp_eq_u32 vcc, 0, v6")
    e(f"s_and_b64 vcc, vcc, s[{sEX}:{sEX+1}]\ns_cmp_eq_u64 vcc, -1\ns_cbranch_scc0 L_fallback")
    e("s_mov_b32 exec_lo, 0x11111111\ns_mov_b32 exec_hi, 0x11111111")
    e(f"buffer_store_short v{X}, v3, {sr(S_OUT)}, s{sT2} offen")
    e("L_fin:")

def fallback():
    c("================ direct evaluation of this wave's 16 samples, online (true) maximum ================")
    e("L_fallback:")
    c("after a lost hand-off (a workgroup that ran too late used a newer epoch) move the epoch past every tag in use")
    e(f"v_cmp_eq_u32 vcc, 0, v6\ns_cbranch_vccnz L_fb_go\ns_mov_b64 exec, 1\nv_mov_b32 v4, {EPOCH:#x}\nv_mov_b32 v5, s{sTAG}\nglobal_atomic_umax v4, v5, s[{P_WS}:{P_WS+1}]{SC}\ns_mov_b64 exec, -1\nL_fb_go:")
    A0 = 16; A1 = 20; C0 = 24; C1 = 28; AH = 32; AP = 36; EI = 40; EJ = 48; PK = 56; DD = 60; HK = 68; DS = 72; W16 = 80
    N, Q, IB, M, LL, ACc, T = 100, 101, 102, 103, 104, 105, 106
    e(f"v_and_b32 v{N}, 15, v{vL}\nv_lshrrev_b32 v{Q}, 4, v{vL}")
    e(f"v_lshlrev_b32 v{T}, 9, v{Q}\nv_lshl_add_u32 v{T}, v{N}, 1, v{T}")
    for half in range(2):
        for t in range(8): e(f"buffer_load_ushort v{W16+8*half+t}, v{T}, {sr(S_W)}, 0 offen offset:{t*64+half*32}")
    e(f"v_lshlrev_b32 v{T+1}, 3, v{Q}\nv_lshlrev_b32 v{Q}, 4, v{Q}")
    e(f"global_load_dwordx2 {vr(EI,2)}, v{T+1}, s[{P_B}:{P_B+1}]\nglobal_load_dwordx2 {vr(EI+2,2)}, v{T+1}, s[{P_B}:{P_B+1}] offset:32")
    e(f"global_load_dwordx2 {vr(AH,2)}, v{T+1}, s[{P_H}:{P_H+1}]\nglobal_load_dwordx2 {vr(AH+2,2)}, v{T+1}, s[{P_H}:{P_H+1}] offset:32")
    e(f"global_load_dwordx4 {vr(AP,4)}, v{Q}, s[{P_P}:{P_P+1}]")
    e(f"s_lshl_b32 s{sU}, s2, 6\ns_lshl_b32 s{sT1}, s{sJ}, 4\ns_add_u32 s{sU}, s{sU}, s{sT1}\nv_add_u32 v{IB}, s{sU}, v{N}\nv_mul_u32_u24 v{IB}, 104, v{IB}")
    e("s_waitcnt vmcnt(0)")
    for half in range(2):
        for t in range(4): e(f"v_lshl_or_b32 v{A0+4*half+t}, v{W16+8*half+2*t+1}, 16, v{W16+8*half+2*t}")
    for i in range(4): e(f"v_lshlrev_b32 v{C0+2*i}, 16, v{EI+i}\nv_and_b32 v{C0+2*i+1}, 0xffff0000, v{EI+i}")
    e(f"v_mov_b32 v{M}, 0xff800000\nv_mov_b32 v{LL}, 0\nv_mov_b32 v{ACc}, 0")
    e(f"s_mov_b32 s{sU}, 0")
    def getrow(dst, soff):
        e(f"buffer_load_dword v{T}, v{IB}, {sr(S_IDX)}, s{soff} offen\ns_waitcnt vmcnt(0)")
        e(f"v_lshl_add_u32 v{T}, v{T}, 6, v{Q}\nbuffer_load_dwordx4 {vr(dst+4,4)}, v{T}, {sr(S_TABL)}, 0 offen\ns_waitcnt vmcnt(0)")
        for t in range(4): e(f"v_lshlrev_b32 v{dst+2*t}, 16, v{dst+4+t}\nv_and_b32 v{dst+2*t+1}, 0xffff0000, v{dst+4+t}")
    e("L_fb_i:")
    getrow(EI, sU)
    e(f"s_add_u32 s{sCNT}, s{sU}, 4")
    e("L_fb_j:")
    getrow(EJ, sCNT)
    for t in range(8): e(f"v_mul_f32 v{EJ+t}, v{EJ+t}, v{EI+t}")
    for t in range(4): e(f"v_cvt_pk_bf16_f32 v{PK+t}, v{EJ+2*t}, v{EJ+2*t+1}")
    e("s_nop 1")
    e(f"v_mfma_f32_16x16x32_bf16 {vr(DD,4)}, {vr(A0,4)}, {vr(PK,4)}, {vr(C0,4)}")
    e(f"v_mfma_f32_16x16x32_bf16 {vr(DD+4,4)}, {vr(A1,4)}, {vr(PK,4)}, {vr(C1,4)}")
    e(f"v_mfma_f32_16x16x32_bf16 {vr(DS,4)}, {vr(AP,4)}, {vr(PK,4)}, 0")
    e("s_nop 7")
    for t in range(4): e(f"v_cvt_pk_bf16_f32 v{HK+t}, v{DD+2*t}, v{DD+2*t+1}")
    for t in range(4): e(f"v_pk_max_i16 v{HK+t}, v{HK+t}, 0")
    e("s_nop 1")
    e(f"v_mfma_f32_16x16x32_bf16 {vr(DD,4)}, {vr(AH,4)}, {vr(HK,4)}, 0")
    e("s_nop 7")
    e(f"v_mul_f32 v{DD}, 0x3fb8aa3b, v{DD}\nv_max_f32 v{DD+1}, v{M}, v{DD}\nv_sub_f32 v{DD+2}, v{M}, v{DD+1}\nv_sub_f32 v{DD+3}, v{DD}, v{DD+1}")
    e(f"v_exp_f32 v{DD+2}, v{DD+2}\nv_exp_f32 v{DD+3}, v{DD+3}\nv_mov_b32 v{M}, v{DD+1}")
    e(f"v_fma_f32 v{LL}, v{LL}, v{DD+2}, v{DD+3}\nv_mul_f32 v{ACc}, v{ACc}, v{DD+2}\nv_fma_f32 v{ACc}, v{DD+3}, v{DS}, v{ACc}")
    e(f"s_add_u32 s{sCNT}, s{sCNT}, 4\ns_cmp_lt_u32 s{sCNT}, 104\ns_cbranch_scc1 L_fb_j")
    e(f"s_add_u32 s{sU}, s{sU}, 4\ns_cmp_lt_u32 s{sU}, 100\ns_cbranch_scc1 L_fb_i")
    e(f"v_rcp_f32 v{LL}, v{LL}\nv_lshlrev_b32 v{N}, 1, v{N}\nv_mul_f32 v{ACc}, v{ACc}, v{LL}\nv_cvt_pk_bf16_f32 v{ACc}, v{ACc}, v{ACc}")
    e("s_mov_b64 exec, 0xffff")
    e(f"buffer_store_short v{ACc}, v{N}, {sr(S_OUT)}, s{sT2} offen")
    e("s_branch L_fin")

B_ = 8; A_ = 72; A5 = 104; CB = 120; HQ = 184; D_ = 200; ACC = 232; INIT = 248; TW = 249

NB0 = opt('nb0', 4); NB1 = opt('nb1', 8)

def hi():
    WV = 120; TP = 136; TU = 144; T = 184
    c('================ hi waves (4-7): table rows 4c..4c+3 against all 1000 ids ================')
    e("L_hi:")
    vm = ['s'] * 5
    def vmem(lab, txt): e(txt); vm.append(lab)
    def vneed(lab): return len(vm) - 1 - max(i for i, x in enumerate(vm) if x == lab)
    vmem('s', f"global_load_dwordx4 {vr(TP+4,4)}, v5, s[{P_TAB}:{P_TAB+1}] offset:16")
    for t in range(1, 16): vmem('s', f"global_load_short_d16_hi v{WV+t}, v4, s[{P_W}:{P_W+1}] offset:{t*64-64}")
    c("one line in every 2 MB of the exchange area: its address translation is then ready when the exchange starts")
    e(f"v_and_b32 v2, 7, v{vL}\nv_lshlrev_b32 v2, 21, v2\nv_add_u32 v2, 0x1fff80, v2")
    vmem('x', f"global_load_dword v255, v2, s[{P_WS}:{P_WS+1}]")
    lds_common()
    k.srd(S_TABL, P_TAB, 64000)
    e(f"v_lshlrev_b32 v7, 6, v6\nv_lshl_add_u32 v250, v252, 5, v7\nv_add_u32 v251, 4096, v250")
    e(f"s_waitcnt lgkmcnt(0)\ns_load_dword s{sTAG}, s[{P_WS}:{P_WS+1}], {EPOCH:#x}\ns_barrier")
    e("s_cmp_ge_u32 s2, 250\ns_cbranch_scc1 L_hi_skip")
    e(f"s_lshl_b32 s{sG}, s{sU}, 14\ns_add_u32 s{sG+1}, s{sG}, 0x2000")
    def bload(n):
        b, ks = n // 2, n % 2
        vmem(f"b{b//2}", f"buffer_load_dwordx4 {vr(B_+8*b+4*ks,4)}, v{250+(b//2)%2}, {sr(S_TABL)}, s{sG if b<4 else sG+1} offen offset:{(b%2)*2048+ks*16}")
    for n in range(NB0): bload(n)
    k.srd(S_RES, P_WS, 0x800000, R0)
    with rare():
        e("L_hi_skip:"); k.srd(S_RES, P_WS, 0x800000, R0); e("s_waitcnt lgkmcnt(0)\ns_branch L_hi_final")
    e(f"s_lshl_b32 s{sT0}, s{sU}, 11\nv_lshlrev_b32 v4, 4, v{vL}\nv_add_u32 v5, s{sT0}, v4\nv_cmp_gt_u32 vcc, 32, v{vL}\nv_lshlrev_b32 v7, 2, v{vL}")
    e(f"s_lshl_b32 s{sT0}, s{sU}, 12\nv_add_u32 v{TW}, s{sT0}, v4")
    e(f"s_waitcnt vmcnt({vneed('s')})")
    k.stamp(2)

    c('A operand: rows (table row, hidden unit), value W[d][a] * table[row][d]; one group of 8 hidden units per wave, shared through LDS')
    for t in range(8): e(f"v_lshlrev_b32 v{TU+2*t}, 16, v{TP+t}\nv_and_b32 v{TU+2*t+1}, 0xffff0000, v{TP+t}")
    for t in range(16): e(f"v_mul_f32 v{WV+t}, v{WV+t}, v{TU+t}")
    for t in range(8): e(f"v_cvt_pk_bf16_f32 v{TP+t}, v{WV+2*t}, v{WV+2*t+1}")
    e(f"ds_write_b128 v5, {vr(TP,4)} offset:{AIMG}\nds_write_b128 v5, {vr(TP+4,4)} offset:{AIMG+1024}")
    e(f"v_mul_f32 v{T+2}, {LOG2E_HALF:#x}, v{T+2}\nv_cndmask_b32 v6, v{T+2}, v{T+1}, vcc\nds_write_b32 v7, v6 offset:{BH}")
    for n in range(NB0, NB1): bload(n)
    e("s_waitcnt lgkmcnt(0)")
    sync_add(1)
    sync_wait(1, 4, 'hi')
    e("v_lshlrev_b32 v5, 4, v252")
    k.stamp(3)
    for i in range(2): e(f"ds_read_b128 {vr(A_+4*i,4)}, v4 offset:{AIMG+1024*i}")
    for i in range(4): e(f"ds_read_b128 {vr(CB+4*i,4)}, v5 offset:{BH}")
    for g in range(4): e(f"ds_read_b128 {vr(HQ+4*g,4)}, v5 offset:{BH+128+32*g}")
    for g in range(1, 4): e(f"ds_read_b128 {vr(CB+16*g,4)}, v5 offset:{BH+32*g}")
    e(f"s_waitcnt vmcnt({vneed('b0')}) lgkmcnt(7)"); k.stamp(7)
    later = []
    for g in range(1, 4):
        later += [f"ds_read_b128 {vr(A_+8*g+4*i,4)}, v4 offset:{AIMG+1024*(2*g+i)}" for i in range(2)]
        later += [f"ds_read_b128 {vr(CB+16*g+4*i,4)}, v5 offset:{BH+32*g}" for i in range(1, 4)]
    steps = []
    for bp in range(4): steps += [('r', bp, g, b) for g in range(4) for b in range(2)] + [('x', bp, 0, 0)]
    NS = len(steps)
    def mms(s):
        kind, bp, g, b = steps[s]; d = D_ + 16 * (s % 2)
        if kind == 'r':
            bb = B_ + 8 * (2 * bp + b)
            return [f"v_mfma_f32_32x32x16_bf16 {vr(d,16)}, {vr(A_+8*g,4)}, {vr(bb,4)}, {vr(CB+16*g,16)}",
                    f"v_mfma_f32_32x32x16_bf16 {vr(d,16)}, {vr(A_+8*g+4,4)}, {vr(bb+4,4)}, {vr(d,16)}"]
        return [f"v_mfma_f32_32x32x16_bf16 {vr(d,16)}, {vr(A5+8*b2+4*ks,4)}, {vr(B_+8*(2*bp+b2)+4*ks,4)}, {'0' if b2+ks==0 else vr(d,16)}"
                for b2 in range(2) for ks in range(2)]
    def valu(s):
        kind, bp, g, b = steps[s]; d = D_ + 16 * (s % 2); X = ACC + 8 * (bp % 2); Y = X + 4
        if kind == 'r':
            a = X + 4 * b
            return [f"v_fma_f32 v{a+v}, v{HQ+4*g+r}, |v{d+4*v+r}|, " + (f"-v{INIT}" if g == 0 and r == 0 else f"v{a+v}") for r in range(4) for v in range(4)]
        o = [f"v_permlane32_swap_b32 v{X+v}, v{Y+v}" for v in range(4)]
        o += [f"v_add_f32 v{X+v}, v{X+v}, v{Y+v}" for v in range(4)]
        o += [f"v_add_f32 v{X+v}, v{X+v}, v{d+4*v}" for v in range(4)]
        o += [f"v_exp_f32 v{X+v}, v{X+v}" for v in range(4)]
        o += [f"v_mul_f32 v{Y+v}, v{X+v}, v{d+4*v+1}" for v in range(4)]
        o += [f"v_cvt_pk_bf16_f32 v{X+v}, v{Y+v}, v{X+v}" for v in range(4)]
        o += [f"ds_write_b128 v{TW}, {vr(X,4)} offset:{TAB+16+1024*bp}"]
        return o
    c('relu(x) = (x + |x|)/2: e = sum h/2 |x+b| + linear term; exponent reference = value at zero interaction; entry = (w, w*s) in bf16')
    m = mms(0)
    e(m[0])
    for x in later[:5]: e(x)
    e(m[1])
    e("s_waitcnt lgkmcnt(5)")
    for x in later[5:10]: e(x)
    e(f"v_mul_f32 v{INIT}, v{HQ}, |v{CB}|")
    for g in range(4):
        for r in range(4):
            if g or r: e(f"v_fma_f32 v{INIT}, v{HQ+4*g+r}, |v{CB+16*g+r}|, v{INIT}")
    nb_next = [NB1]
    for s in range(NS):
        v = valu(s); m = mms(s + 1) if s + 1 < NS else []
        if s + 1 < NS:
            kind, bp, g, b = steps[s + 1]
            if bp == 0 and kind == 'r' and b == 0 and g == 1: e("s_waitcnt lgkmcnt(5)"); [e(x) for x in later[10:15]]
            if bp == 0 and kind == 'r' and b == 0 and g == 2: e("s_waitcnt lgkmcnt(5)")
            if bp == 0 and kind == 'r' and b == 0 and g == 3:
                sync_wait(2, 2, 'a5')
                for i in range(4): e(f"ds_read_b128 {vr(A5+4*i,4)}, v4 offset:{AIMG+8192+1024*i}")
            if bp == 0 and kind == 'x': e("s_waitcnt lgkmcnt(0)")
            if kind == 'r' and g == 0 and b == 0 and bp > 0:
                e(f"s_waitcnt vmcnt({vneed(f'b{bp}')})"); k.stamp({1: 4, 2: 8, 3: 10}[bp])
            if bp == 0 and kind == 'r' and b == 0 and g == 3: k.stamp(1)

        for _ in range(2):
            if nb_next[0] < 16: bload(nb_next[0]); nb_next[0] += 1
        if len(m) == 2:
            n = 6 if steps[s][0] == 'x' else 5
            e(m[0]); [e(x) for x in v[:n]]; e(m[1]); [e(x) for x in v[n:]]
        elif len(m) == 4:
            e(m[0]); [e(x) for x in v[:4]]; e(m[1]); [e(x) for x in v[4:8]]; e(m[2]); [e(x) for x in v[8:12]]; e(m[3]); [e(x) for x in v[12:]]
        else:
            e("s_nop 1"); [e(x) for x in v]
    k.stamp(5)
    hi_lookup()

def finish(role):
    e(f"{CLK} s[{sH}:{sH+1}]\ns_load_dwordx2 s[{sH+2}:{sH+3}], s[0:1], 72\ns_waitcnt lgkmcnt(0)\ns_cmp_ge_u32 s2, 250\ns_cbranch_scc1 L_nod{role}\ns_mov_b64 exec, 1")
    sl = [(i, i - 1) for i in range(1, 11)] + [(11, 10)] if role == 0 else [(2, 11), (3, 12), (5, 13), (10, 14)]
    for st, w in sl:
        r = sH if st == 11 else sST + 2 * st
        e(f"s_sub_u32 s{sT0}, s{r}, s{sST}\nv_mov_b32 v3, s{sT0}\nv_mov_b32 v2, {4*w}\nglobal_atomic_{'umax' if 'mx' in OPT else 'add'} v2, v3, s[{sH+2}:{sH+3}]")
    e(f"L_nod{role}:\ns_endpgm")

prologue()
route()
lo_lookup()
final()
finish(0)
hi()
finish(1)
e("L_end:\ns_endpgm")
with rare(): fallback()
hazard.check(k.L); hazard.check(k.tail)
src = HEADER + '; Attentional FM as a table lookup.  e(i,j) and s(i,j) = pair . p depend only on the two ids, so with V = 1000 the\n; 5.3 M pair evaluations collapse to a 1000 x 1000 table of (w, w*s), w = exp(e - reference).  Workgroup c < 250 computes the\n; four table rows 4c..4c+3 into LDS (hi waves) and serves every occurrence of those ids; every workgroup also owns 64 samples.\n; Each unordered field pair is owned by one of its two fields (pairs of fields form a cyclic tournament), so one occurrence\n; needs 12 or 13 lookups.  Hand-offs through d_ws, sc1 stores and sc1 loads, 64-byte cells that carry an epoch tag\n; (epoch = word 0 of d_ws + 1, written back at the end):\n;   sample owner -> bucket owner: packed index rows (1 MB) and list cells ; bucket owner -> sample owner: sums per occurrence.\n; Every wait on another workgroup is bounded; whatever is missing or out of the safe range is recomputed directly.\n' + f"; @launch grid=(256,1,1) block=(512,1,1) lds={LDS_BYTES}\n"
src += f'.amdgcn_target "amdgcn-amd-amdhsa--gfx950"\n.text\n.globl {KN}\n.p2align 8\n.type {KN},@function\n{KN}:\n'
src += "\n".join(k.L) + "\n" + "\n".join(k.tail) + "\nL_code_end:\n"
src += '.section .rodata,"a"\n' + kd(KN, 256, 102)
open(sys.argv[1], "w").write(src)
print("lds", LDS_BYTES)
```
